```python
import torch

def _softmax(x, axis=-1):
    return torch.softmax(x, dim=axis)
def _gelu(x):
    return torch.nn.functional.gelu(x, approximate="tanh")
def _silu(x):
    return torch.nn.functional.silu(x)
def _sigmoid(x):
    return torch.sigmoid(x)
def _layernorm(x, axis=-1, eps=1e-5):
    m = x.mean(dim=axis, keepdim=True)
    v = x.var(dim=axis, keepdim=True, unbiased=False)
    return (x - m) / torch.sqrt(v + eps)
def _scatter_add(tgt, idx, src, axis=0):
    return tgt.clone().index_add_(axis, idx, src)
def _segment_sum(src, seg, n):
    out = torch.zeros((n,) + src.shape[1:], dtype=src.dtype)
    return out.index_add_(0, seg, src)
def _pad(x, pw):
    flat = tuple(v for pair in reversed(pw) for v in pair)
    return torch.nn.functional.pad(x, flat)

kernel_name = 'sequential_preLN__linear_kernel_hedgehog__dense_activation_relu__prompt'

def setup_inputs():

    _w = (lambda a: (lambda t: t.to(torch.bfloat16) if t.is_floating_point() else t)(torch.as_tensor(a)))
    def _A_setup():
        B, S, D, H = 1, 2048, 1024, 32
        Dh = D // H
        return {
            "x": _w((lambda *s: torch.randn(*s, dtype=torch.bfloat16) * 0.05)(B, S, D)),
            "wqkv": _w((lambda *s: torch.randn(*s, dtype=torch.bfloat16) * 0.2)(D, 3 * D)),
            "w_phi": _w((lambda *s: torch.randn(*s, dtype=torch.bfloat16) * 0.2)(H, Dh, Dh) * (Dh ** -0.5)),
            "wo": _w((lambda *s: torch.randn(*s, dtype=torch.bfloat16) * 0.05)(D, D)),
        }
    _A_in = _A_setup()

    def _B_setup():
        B, S, D, Dff = 1, 2048, 1024, 3584
        return {
            "x": _w((lambda *s: torch.randn(*s, dtype=torch.bfloat16) * 0.05)(B, S, D)),
            "w1": _w((lambda *s: torch.randn(*s, dtype=torch.bfloat16) * 0.05)(D, Dff)),
            "w2": _w((lambda *s: torch.randn(*s, dtype=torch.bfloat16) * 0.05)(Dff, D)),
        }
    _B_in = _B_setup()

    return {
        "A_x": _A_in["x"],
        "A_wqkv": _A_in["wqkv"],
        "A_w_phi": _A_in["w_phi"],
        "A_wo": _A_in["wo"],
        "B_x": _B_in["x"],
        "B_w1": _B_in["w1"],
        "B_w2": _B_in["w2"],
    }

def reference(A_x, A_wqkv, A_w_phi, A_wo, B_x, B_w1, B_w2):
    def _A_ref(x, wqkv, w_phi, wo):
        B, S, D = x.shape
        H = 32; Dh = D // H
        qkv = (lambda x, *d: x.permute(*d))((x @ wqkv).reshape(B, S, 3, H, Dh), 2, 0, 3, 1, 4)
        q, k, v = qkv[0], qkv[1], qkv[2]
        pq = torch.einsum("bhsd,hdf->bhsf", q, w_phi)
        pk = torch.einsum("bhsd,hdf->bhsf", k, w_phi)
        phi_q = torch.concatenate([_softmax(pq, axis=-1), _softmax(-pq, axis=-1)], axis=-1)
        phi_k = torch.concatenate([_softmax(pk, axis=-1), _softmax(-pk, axis=-1)], axis=-1)
        kv = torch.einsum("bhsf,bhsd->bhfd", phi_k, v)
        z  = torch.einsum("bhsf->bhf", phi_k)
        num = torch.einsum("bhqf,bhfd->bhqd", phi_q, kv)
        den = torch.einsum("bhqf,bhf->bhq", phi_q, z)[..., None] + 1e-6
        o = num / den
        return (lambda x, *d: x.permute(*d))(o, 0, 2, 1, 3).reshape(B, S, D) @ wo

    def _B_ref(x, w1, w2):
        h = torch.einsum("bsd,df->bsf", x, w1)
        zero = torch.zeros_like(h)
        h = torch.maximum(h, zero)
        return torch.einsum("bsf,fd->bsd", h, w2)

    x = A_x
    h = x + _A_ref(_layernorm(x, axis=-1), A_wqkv, A_w_phi, A_wo)
    h2 = h + _B_ref(_layernorm(h, axis=-1), B_w1, B_w2)
    return h2
```

```python
class Asm:
    def __init__(self):
        self.lines = []
        self.uid = 0
    def __call__(self, s):
        for l in s.split("\n"):
            self.lines.append("  " + l.strip())
    def raw(self, s):
        self.lines.append(s)
    def label(self, name):
        self.lines.append(name + ":")
    def newlabel(self, base="L"):
        self.uid += 1
        return "%s_%d" % (base, self.uid)
    def comment(self, s):
        self.lines.append("  ; " + s)
    def text(self):
        return "\n".join(self.lines) + "\n"

def vr(base, n=1):
    if n == 1:
        return "v%d" % base
    return "v[%d:%d]" % (base, base + n - 1)

def sr(base, n=1):
    if n == 1:
        return "s%d" % base
    return "s[%d:%d]" % (base, base + n - 1)

KA_X, KA_WQKV, KA_WPHI, KA_WO, KA_BX, KA_W1, KA_W2, KA_OUT, KA_DBG, KA_WS = [8 * i for i in range(10)]

MB = 1 << 20
WS_O = 0
WS_H = 4 * MB
WS_H1 = 8 * MB
WS_KVP = 24 * MB
KVP_BYTES = 8704
WS_ST1 = 28 * MB
WS_ST2 = 29 * MB
WS_CS1 = 30 * MB
WS_CSQ = 31 * MB
WS_FLAG = 32 * MB
WS_SIZE = 256 * MB

S_, D_, DFF = 2048, 1024, 3584

def kernel_header(a, name):
    a.raw(".globl %s" % name)
    a.raw(".p2align 8")
    a.raw(".type %s,@function" % name)
    a.label(name)

def kernel_desc(name, vgpr, sgpr):
    acc = (vgpr + 3) // 4 * 4
    return """.p2align 6
.amdhsa_kernel %s
  .amdhsa_next_free_vgpr %d
  .amdhsa_next_free_sgpr %d
  .amdhsa_accum_offset %d
  .amdhsa_group_segment_fixed_size 0
  .amdhsa_kernarg_size 80
  .amdhsa_user_sgpr_count 2
  .amdhsa_user_sgpr_kernarg_segment_ptr 1
  .amdhsa_system_sgpr_workgroup_id_x 1
.end_amdhsa_kernel
""" % (name, vgpr, sgpr, acc)

def make_srd(a, s, base_lo, base_hi, nbytes):
    a("s_mov_b32 s%d, %s" % (s, base_lo))
    a("s_and_b32 s%d, %s, 0xffff" % (s + 1, base_hi))
    a("s_mov_b32 s%d, %s" % (s + 2, nbytes if isinstance(nbytes, str) else hex(nbytes)))
    a("s_mov_b32 s%d, 0x00020000" % (s + 3))

import os
STAMPS = "stamp" in os.environ.get("GDBG", "")
WS_STAMP = 40 * MB
def stamp(a, idx, s_wave, kidx, sws=4, tmp_s=60, tmp_v=None):
    if not STAMPS: return
    if idx in (6, 7): a("s_memtime s[60:61]")
    else: a("s_memrealtime s[60:61]")
    a("s_lshl_b32 s62, s2, 3")
    a("s_add_u32 s62, s62, s%d" % s_wave)
    a("s_lshl_b32 s62, s62, 7")
    a("s_add_u32 s62, s62, %d" % (WS_STAMP + kidx * 256 * 8 * 128 + idx * 8))
    a("s_waitcnt lgkmcnt(0)")
    a("v_mov_b32 v%d, s60" % tmp_v)
    a("v_mov_b32 v%d, s61" % (tmp_v + 1))
    a("v_mov_b32 v%d, s62" % (tmp_v + 2))
    a("global_store_dwordx2 v%d, v[%d:%d], s[4:5]" % (tmp_v + 2, tmp_v, tmp_v + 1))
```

```python
from common import *
import os
DBG = os.environ.get("GDBG", "")

def magic_div(P, maxs):
    for sh in range(8, 24):
        mul = -(-(1 << sh) // P)
        if mul >= (1 << 24): continue
        if all(((s * mul) >> sh) == s // P for s in range(maxs)) and (maxs * mul) < (1 << 32):
            return mul, sh
    raise Exception("no magic")

def swz_mask_bits(P):
    if P % 16 in (4, 12):
        return [(3, 1)]
    if P % 16 == 8:
        return [(1, 1), (3, 2)]
    if P % 16 == 0:
        return [(0, 1), (1, 2), (3, 3)]
    raise Exception("P")

class Cfg:
    pass

def emit_producer_setup(a, c, vbase):
    vl = c.v_lane
    t0, t1, t2, t3 = c.vt[0:4]
    st = c.st[0]
    c.vA = [vbase + i for i in range(c.a_ins)]
    c.vB = [vbase + c.a_ins + i for i in range(c.b_ins)]
    a("v_lshrrev_b32 v%d, 3, v%d" % (t0, vl))
    a("v_and_b32 v%d, 7, v%d" % (t1, vl))
    a("s_mul_i32 s%d, s%d, %d" % (st, c.s_p, c.a_ins * 8))
    for j in range(c.a_ins):
        a("v_add_u32 v%d, s%d, v%d" % (t2, st, t0))
        if j: a("v_add_u32 v%d, %d, v%d" % (t2, 8 * j, t2))
        a("v_bfe_u32 v%d, v%d, 1, 3" % (t3, t2))
        if "noswzA" in DBG: a("v_mov_b32 v%d, v%d" % (t3, t1))
        else: a("v_xor_b32 v%d, v%d, v%d" % (t3, t3, t1))
        a("v_lshlrev_b32 v%d, 4, v%d" % (t3, t3))
        a("s_mov_b32 s%d, %d" % (c.st[1], c.lda))
        a("v_mul_lo_u32 v%d, v%d, s%d" % (t2, t2, c.st[1]))
        a("v_add_u32 v%d, v%d, v%d" % (c.vA[j], t2, t3))
    P = c.P
    mul, sh = magic_div(P, 64 * P + 64)
    a("s_mul_i32 s%d, s%d, %d" % (st, c.s_p, c.b_ins * 64))
    for j in range(c.b_ins):
        a("v_add_u32 v%d, s%d, v%d" % (t0, st, vl))
        if j: a("v_add_u32 v%d, %d, v%d" % (t0, 64 * j, t0))
        a("v_mul_u32_u24 v%d, %d, v%d" % (t1, mul, t0))
        a("v_lshrrev_b32 v%d, %d, v%d" % (t1, sh, t1))
        a("v_mul_u32_u24 v%d, %d, v%d" % (t2, P, t1))
        a("v_sub_u32 v%d, v%d, v%d" % (t2, t0, t2))
        for (kb, jb) in (c.swz if "noswzB" not in DBG else []):
            a("v_bfe_u32 v%d, v%d, %d, 1" % (t3, t1, kb))
            a("v_lshlrev_b32 v%d, %d, v%d" % (t3, jb, t3))
            a("v_xor_b32 v%d, v%d, v%d" % (t2, t2, t3))
        if c.colmode == "lin":
            a("v_lshlrev_b32 v%d, 4, v%d" % (t2, t2))
        else:
            a("v_lshrrev_b32 v%d, 2, v%d" % (t3, t2))
            a("v_lshlrev_b32 v%d, 11, v%d" % (t3, t3))
            a("v_and_b32 v%d, 3, v%d" % (t2, t2))
            a("v_lshlrev_b32 v%d, 4, v%d" % (t2, t2))
            a("v_add_u32 v%d, v%d, v%d" % (t2, t2, t3))
        a("s_mov_b32 s%d, %d" % (c.st[1], c.ldb))
        a("v_mul_lo_u32 v%d, v%d, s%d" % (t1, t1, c.st[1]))
        a("v_add_u32 v%d, v%d, v%d" % (c.vB[j], t1, t2))

def emit_issue_stage(a, c):
    a("s_add_u32 m0, s%d, s%d" % (c.s_slot, c.s_mA))
    for j in range(c.a_ins):
        if j: a("s_add_u32 m0, m0, 0x400")
        a("s_nop 0")
        a("buffer_load_dwordx4 v%d, s[%d:%d], s%d offen lds" % (c.vA[j], c.srdA, c.srdA + 3, c.s_ka))
    a("s_add_u32 m0, s%d, s%d" % (c.s_slot, c.s_mB))
    for j in range(c.b_ins):
        if j: a("s_add_u32 m0, m0, 0x400")
        a("s_nop 0")
        a("buffer_load_dwordx4 v%d, s[%d:%d], s%d offen lds" % (c.vB[j], c.srdB, c.srdB + 3, c.s_kb))
    a("s_add_u32 s%d, s%d, %d" % (c.s_slot, c.s_slot, c.stage_bytes))
    a("s_cmp_eq_u32 s%d, %d" % (c.s_slot, c.S * c.stage_bytes))
    a("s_cselect_b32 s%d, 0, s%d" % (c.s_slot, c.s_slot))
    a("s_add_u32 s%d, s%d, 128" % (c.s_ka, c.s_ka))
    a("s_add_u32 s%d, s%d, %d" % (c.s_kb, c.s_kb, 64 * c.ldb))
    if c.rotate:
        a("s_cmp_eq_u32 s%d, %d" % (c.s_ka, c.NS * 128))
        a("s_cselect_b32 s%d, 0, s%d" % (c.s_ka, c.s_ka))
        a("s_cselect_b32 s%d, 0, s%d" % (c.s_kb, c.s_kb))

def emit_producer_loop(a, c):
    n = c.a_ins + c.b_ins
    S, NS = c.S, c.NS
    a("s_mul_i32 s%d, s%d, %d" % (c.s_mA, c.s_p, c.a_ins * 1024))
    a("s_mul_i32 s%d, s%d, %d" % (c.s_mB, c.s_p, c.b_ins * 1024))
    a("s_add_u32 s%d, s%d, %d" % (c.s_mB, c.s_mB, c.nA * 1024))
    a("s_mov_b32 s%d, 0" % c.s_slot)
    for st in range(S - 1):
        emit_issue_stage(a, c)
    nmain = NS - S + 1
    a("s_mov_b32 s%d, 0" % c.s_i)
    L = a.newlabel("Lprod")
    a.label(L)
    a("s_waitcnt vmcnt(%d)" % ((S - 2) * n))
    a("s_barrier")
    emit_issue_stage(a, c)
    a("s_add_u32 s%d, s%d, 1" % (c.s_i, c.s_i))
    a("s_cmp_lt_u32 s%d, %d" % (c.s_i, nmain))
    a("s_cbranch_scc1 %s" % L)
    for i in range(nmain, NS):
        a("s_waitcnt vmcnt(%d)" % ((NS - 1 - i) * n))
        a("s_barrier")

def emit_consumer16_setup(a, c):
    vl = c.v_lane
    t0, t1, t2, t3 = c.vt[0:4]
    st0, st1 = c.st[0:2]
    a("v_and_b32 v%d, 15, v%d" % (t0, vl))
    a("v_lshrrev_b32 v%d, 4, v%d" % (t1, vl))
    a("v_lshrrev_b32 v%d, 1, v%d" % (t2, t0))
    a("s_lshl_b32 s%d, s%d, 6" % (st0, c.s_wm))
    a("v_add_u32 v%d, s%d, v%d" % (t3, st0, t0))
    a("v_lshlrev_b32 v%d, 7, v%d" % (t3, t3))
    a("v_xor_b32 v%d, v%d, v%d" % (t2, t2, t1))
    for stp in range(2):
        if stp: a("v_xor_b32 v%d, 4, v%d" % (t2, t2))
        a("v_lshl_add_u32 v%d, v%d, 4, v%d" % (c.vX[stp], t2, t3))
    a("v_lshrrev_b32 v%d, 2, v%d" % (t2, t0))
    a("v_lshl_add_u32 v%d, v%d, 3, v%d" % (t3, t1, t2))
    a("v_mov_b32 v%d, 0" % c.vt[4])
    for (kb, jb) in c.swz:
        a("v_bfe_u32 v%d, v%d, %d, 1" % (c.vt[5], t3, kb))
        a("v_lshlrev_b32 v%d, %d, v%d" % (c.vt[5], jb - 1, c.vt[5]))
        a("v_or_b32 v%d, v%d, v%d" % (c.vt[4], c.vt[4], c.vt[5]))
    a("v_mul_u32_u24 v%d, %d, v%d" % (t3, c.P * 16, t3))
    a("v_and_b32 v%d, 3, v%d" % (t2, t0))
    a("v_lshl_add_u32 v%d, v%d, 3, v%d" % (t3, t2, t3))
    a("v_add_u32 v%d, %d, v%d" % (t3, c.nA * 1024, t3))
    a("s_mul_i32 s%d, s%d, %d" % (st0, c.s_wn, c.NT))
    for q in range(2):
        a("s_add_u32 s%d, s%d, %d" % (st1, st0, q))
        a("v_xor_b32 v%d, s%d, v%d" % (t2, st1, c.vt[4]))
        a("v_lshl_add_u32 v%d, v%d, 5, v%d" % (c.vW[q], t2, t3))
        if q: a("v_subrev_u32 v%d, 32, v%d" % (c.vW[q], c.vW[q]))

def reads16(c, buf, stp):
    r = []
    if "noread" in DBG: return []
    for mt in range(c.MT):
        r.append("ds_read_b128 %s, v%d offset:%d" % (vr(c.fX[buf] + 4 * mt, 4), c.vX[stp], mt * 2048))
    xs = r; ws = []
    for t in range(c.NT):
        for hf in range(2):
            off = (32 * stp + 4 * hf) * c.P * 16 + t * 32
            ws.append("ds_read_b64_tr_b16 %s, v%d offset:%d" % (vr(c.fW[buf] + 4 * t + 2 * hf, 2), c.vW[t & 1], off))
    out = ws[0:2] + xs + ws[2:]
    if "notr" in DBG: out = xs
    if "nox" in DBG: out = ws
    return out

def mfmas16(c, buf):
    m = []
    if "nomfma" in DBG: return []
    for t in range(c.NT):
        for mt in range(c.MT):
            acc = c.acc + 4 * (t * c.MT + mt)
            m.append("v_mfma_f32_16x16x32_bf16 %s, %s, %s, %s" % (vr(acc, 4), vr(c.fW[buf] + 4 * t, 4), vr(c.fX[buf] + 4 * mt, 4), vr(acc, 4)))
    return m

def interleave(a, mf, rd, first=1, per=1):
    ri = 0
    for i, m in enumerate(mf):
        a(m)
        if i + 1 >= first:
            for _ in range(per):
                if ri < len(rd):
                    a(rd[ri]); ri += 1
    while ri < len(rd):
        a(rd[ri]); ri += 1

def emit_addr_advance(a, c, regs):
    a("s_add_u32 s%d, s%d, %d" % (c.s_cslot, c.s_cslot, c.stage_bytes))
    a("s_mov_b32 s%d, %d" % (c.s_delta, c.stage_bytes))
    a("s_cmp_eq_u32 s%d, %d" % (c.s_cslot, c.S * c.stage_bytes))
    a("s_cselect_b32 s%d, 0, s%d" % (c.s_cslot, c.s_cslot))
    a("s_cselect_b32 s%d, %d, s%d" % (c.s_delta, -(c.S - 1) * c.stage_bytes, c.s_delta))
    for r in regs:
        a("v_add_u32 v%d, s%d, v%d" % (r, c.s_delta, r))

def emit_consumer16_loop(a, c):
    per = 1 if c.NT * c.MT >= 20 else 2
    for i in range(c.NT * c.MT * 4):
        a("v_mov_b32 v%d, 0" % (c.acc + i))
    a("s_mov_b32 s%d, 0" % c.s_cslot)
    a("s_barrier")
    for r in reads16(c, 0, 0): a(r)
    a("s_mov_b32 s%d, 0" % c.s_i)
    L = a.newlabel("Lcons")
    a.label(L)
    a("s_waitcnt lgkmcnt(0)")
    interleave(a, mfmas16(c, 0), reads16(c, 1, 1), 1, per)
    a("s_waitcnt lgkmcnt(0)")
    a("s_barrier")
    emit_addr_advance(a, c, [c.vX[0], c.vW[0], c.vW[1], c.vX[1]])
    interleave(a, mfmas16(c, 1), reads16(c, 0, 0), 1, per)
    a("s_add_u32 s%d, s%d, 1" % (c.s_i, c.s_i))
    a("s_cmp_lt_u32 s%d, %d" % (c.s_i, c.NS - 1))
    a("s_cbranch_scc1 %s" % L)
    a("s_waitcnt lgkmcnt(0)")
    interleave(a, mfmas16(c, 0), reads16(c, 1, 1), 1, per)
    a("s_waitcnt lgkmcnt(0)")
    for m in mfmas16(c, 1): a(m)
```

```python
from common import *
from gemm import *

def base_cfg(BM, BN, K, lda, ldb, S):
    c = Cfg()
    c.BM, c.BN, c.K, c.lda, c.ldb, c.S = BM, BN, K, lda, ldb, S
    c.NS = K // 64
    c.nA = BM // 8; c.nB = BN // 8
    c.a_ins = c.nA // 4; c.b_ins = c.nB // 4
    assert c.nA % 4 == 0 and c.nB % 4 == 0
    c.P = BN // 8
    c.stage_bytes = (c.nA + c.nB) * 1024
    c.rotate = False
    c.colmode = "lin"
    return c

def gemm_kernel(a, name, kind):
    if kind == "wo":
        c = base_cfg(128, 64, 1024, 2048, 2048, 6)
        XM, XN = 4, 8
    elif kind == "w1":
        c = base_cfg(128, 224, 1024, 2048, 7168, 3)
        XM, XN = 8, 4
    else:
        c = base_cfg(128, 64, 3584, 7168, 2048, 6)
        XM, XN = 4, 8
    c.swz = swz_mask_bits(c.P)
    c.MT = 4; c.NT = c.BN // 32
    tilesM, tilesN = 16, 16
    c.srdA, c.srdB, srdC, srdR, srdS, srdT = 16, 20, 24, 28, 32, 36
    s_wave, s_tm, s_tn = 40, 41, 42
    c.s_p = c.s_wm = 43; c.s_wn = 44
    c.s_slot = c.s_cslot = 45; c.s_ka = c.s_delta = 46; c.s_kb = 47; c.s_mA = 48; c.s_mB = 49; c.s_i = 50
    c.st = [52, 53, 54, 55]
    nacc = c.MT * c.NT * 4
    c.acc = 0
    fr = nacc
    c.fX = [fr, fr + 16 + 4 * c.NT]
    c.fW = [fr + 16, fr + 32 + 4 * c.NT]
    misc = fr + 2 * (16 + 4 * c.NT)
    c.v_lane = misc
    c.vX = [misc + 1, misc + 2]; c.vW = [misc + 3, misc + 4]
    c.vt = [misc + 5 + i for i in range(8)]
    vmax = misc + 13 + 8
    lds = c.S * c.stage_bytes
    side = lds
    if kind == "w1":
        lds += 128 * 8 + 224 * 4
    pitch = c.BN * 2 + 16
    ctile = 128 * pitch
    last_slot = (c.NS - 1) % c.S
    free = [s for s in range(c.S) if s != last_slot]
    need = -(-ctile // c.stage_bytes)
    cbase = None
    for s0 in range(c.S - need + 1):
        if all((s0 + i) in free for i in range(need)):
            cbase = s0 * c.stage_bytes; break
    assert cbase is not None

    kernel_header(a, name)
    Lend = a.newlabel("Lend")
    a("s_cmp_ge_u32 s2, 256")
    a("s_cbranch_scc1 %s" % Lend)
    ka_a = {"wo": KA_WS, "w1": KA_WS, "w2": KA_WS}[kind]
    a_off = {"wo": WS_O, "w1": WS_H, "w2": WS_H1}[kind]
    ka_b = {"wo": KA_WO, "w1": KA_W1, "w2": KA_W2}[kind]
    a("s_load_dwordx2 s[4:5], s[0:1], %d" % KA_WS)
    a("s_load_dwordx2 s[6:7], s[0:1], %d" % ka_b)
    a("s_load_dwordx2 s[8:9], s[0:1], %d" % KA_OUT)
    a("s_load_dwordx2 s[10:11], s[0:1], %d" % KA_X)
    a("v_and_b32 v%d, 63, v0" % c.v_lane)
    a("v_lshrrev_b32 v1, 6, v0")
    a("s_nop 0")
    a("v_readfirstlane_b32 s%d, v1" % s_wave)
    a("s_and_b32 s%d, s2, 7" % c.st[0])
    a("s_lshr_b32 s%d, s2, 3" % c.st[1])
    PM = tilesM // XM
    lgPM = PM.bit_length() - 1; lgXM = XM.bit_length() - 1; lgXN = XN.bit_length() - 1
    a("s_and_b32 s%d, s%d, %d" % (c.st[2], c.st[0], PM - 1))
    a("s_lshr_b32 s%d, s%d, %d" % (c.st[3], c.st[0], lgPM))
    a("s_lshl_b32 s%d, s%d, %d" % (s_tm, c.st[2], lgXM))
    a("s_and_b32 s%d, s%d, %d" % (c.st[2], c.st[1], XM - 1))
    a("s_add_u32 s%d, s%d, s%d" % (s_tm, s_tm, c.st[2]))
    a("s_lshl_b32 s%d, s%d, %d" % (s_tn, c.st[3], lgXN))
    a("s_lshr_b32 s%d, s%d, %d" % (c.st[2], c.st[1], lgXM))
    a("s_add_u32 s%d, s%d, s%d" % (s_tn, s_tn, c.st[2]))
    a("s_waitcnt lgkmcnt(0)")
    a("s_mul_i32 s%d, s%d, %d" % (c.st[0], s_tm, 128 * c.lda))
    a("s_add_u32 s%d, s%d, %d" % (c.st[0], c.st[0], a_off))
    a("s_add_u32 s12, s4, s%d" % c.st[0])
    a("s_addc_u32 s13, s5, 0")
    make_srd(a, c.srdA, "s12", "s13", 128 * c.lda)
    a("s_mul_i32 s%d, s%d, %d" % (c.st[0], s_tn, c.BN * 2))
    a("s_add_u32 s12, s6, s%d" % c.st[0])
    a("s_addc_u32 s13, s7, 0")
    a("s_sub_u32 s%d, %d, s%d" % (c.st[1], c.K * c.ldb, c.st[0]))
    make_srd(a, c.srdB, "s12", "s13", "s%d" % c.st[1])
    ldc = {"wo": 2048, "w1": 7168, "w2": 2048}[kind]
    a("s_mul_i32 s%d, s%d, %d" % (c.st[0], s_tm, 128 * ldc))
    a("s_mul_i32 s%d, s%d, %d" % (c.st[1], s_tn, c.BN * 2))
    a("s_add_u32 s%d, s%d, s%d" % (c.st[0], c.st[0], c.st[1]))
    if kind == "w2":
        a("s_add_u32 s12, s8, s%d" % c.st[0])
        a("s_addc_u32 s13, s9, 0")
    else:
        a("s_add_u32 s%d, s%d, %d" % (c.st[2], c.st[0], {"wo": WS_H, "w1": WS_H1}[kind]))
        a("s_add_u32 s12, s4, s%d" % c.st[2])
        a("s_addc_u32 s13, s5, 0")
    a("s_sub_u32 s%d, %d, s%d" % (c.st[1], S_ * ldc, c.st[0]))
    make_srd(a, srdC, "s12", "s13", "s%d" % c.st[1])
    if kind == "wo":
        a("s_add_u32 s12, s10, s%d" % c.st[0])
        a("s_addc_u32 s13, s11, 0")
        make_srd(a, srdR, "s12", "s13", "s%d" % c.st[1])
    if kind == "w2":
        a("s_add_u32 s%d, s%d, %d" % (c.st[2], c.st[0], WS_H))
        a("s_add_u32 s12, s4, s%d" % c.st[2])
        a("s_addc_u32 s13, s5, 0")
        make_srd(a, srdR, "s12", "s13", "s%d" % c.st[1])
    if kind == "wo":
        a("s_mul_i32 s%d, s%d, %d" % (c.st[0], s_tm, 128 * 128))
        a("s_lshl_b32 s%d, s%d, 3" % (c.st[1], s_tn))
        a("s_add_u32 s%d, s%d, s%d" % (c.st[0], c.st[0], c.st[1]))
        a("s_add_u32 s%d, s%d, %d" % (c.st[0], c.st[0], WS_ST2))
        a("s_add_u32 s12, s4, s%d" % c.st[0])
        a("s_addc_u32 s13, s5, 0")
        make_srd(a, srdS, "s12", "s13", 128 * 128)
    if kind == "w1":
        a("s_mul_i32 s%d, s%d, %d" % (c.st[0], s_tm, 128 * 128))
        a("s_add_u32 s%d, s%d, %d" % (c.st[0], c.st[0], WS_ST2))
        a("s_add_u32 s12, s4, s%d" % c.st[0])
        a("s_addc_u32 s13, s5, 0")
        make_srd(a, srdS, "s12", "s13", 128 * 128)
        a("s_mul_i32 s%d, s%d, %d" % (c.st[0], s_tn, 224 * 4))
        a("s_add_u32 s%d, s%d, %d" % (c.st[0], c.st[0], WS_CS1))
        a("s_add_u32 s12, s4, s%d" % c.st[0])
        a("s_addc_u32 s13, s5, 0")
        make_srd(a, srdT, "s12", "s13", 15 * 3584 * 4 + 224 * 4)
    kidx = {"wo": 1, "w1": 2, "w2": 3}[kind]
    vst = (vmax + 1) // 2 * 2
    vmax = vst + 4
    stamp(a, 0, s_wave, kidx, tmp_v=vst)
    Lcons = a.newlabel("Lconsumer")
    Lfin = a.newlabel("Lfinal")
    a("s_cmp_lt_u32 s%d, 4" % s_wave)
    a("s_cbranch_scc1 %s" % Lcons)

    a("s_sub_u32 s%d, s%d, 4" % (c.s_p, s_wave))
    a("s_mov_b32 s%d, 0" % c.s_ka)
    a("s_mov_b32 s%d, 0" % c.s_kb)
    emit_producer_setup(a, c, 32)
    stamp(a, 1, s_wave, kidx, tmp_v=vst)
    emit_producer_loop(a, c)
    stamp(a, 2, s_wave, kidx, tmp_v=vst)
    a("s_branch %s" % Lfin)

    a.label(Lcons)
    a("s_lshr_b32 s%d, s%d, 1" % (c.s_wm, s_wave))
    a("s_and_b32 s%d, s%d, 1" % (c.s_wn, s_wave))
    emit_consumer16_setup(a, c)
    if kind == "w1":
        emit_k3_side(a, c, s_wave, srdS, srdT, side)
    stamp(a, 1, s_wave, kidx, tmp_v=vst)
    stamp(a, 6, s_wave, kidx, tmp_v=vst)
    emit_consumer16_loop(a, c)
    stamp(a, 7, s_wave, kidx, tmp_v=vst)
    stamp(a, 2, s_wave, kidx, tmp_v=vst)
    a("s_nop 7"); a("s_nop 7")
    t = c.vt
    vl = c.v_lane
    a("v_and_b32 v%d, 15, v%d" % (t[0], vl))
    a("s_lshl_b32 s%d, s%d, 6" % (c.st[0], c.s_wm))
    a("v_add_u32 v%d, s%d, v%d" % (t[0], c.st[0], t[0]))
    a("v_mul_u32_u24 v%d, %d, v%d" % (t[1], pitch, t[0]))
    a("v_lshrrev_b32 v%d, 4, v%d" % (t[2], vl))
    a("v_lshl_add_u32 v%d, v%d, 3, v%d" % (t[1], t[2], t[1]))
    a("s_mul_i32 s%d, s%d, %d" % (c.st[0], c.s_wn, c.NT * 32))
    a("s_add_u32 s%d, s%d, %d" % (c.st[0], c.st[0], cbase))
    a("v_add_u32 v%d, s%d, v%d" % (t[1], c.st[0], t[1]))
    f0 = c.fX[0]
    if kind == "w1":
        a("v_lshlrev_b32 v%d, 3, v%d" % (t[3], t[0]))
        a("v_add_u32 v%d, %d, v%d" % (t[3], side, t[3]))
        for mt in range(4):
            a("ds_read_b64 %s, v%d offset:%d" % (vr(f0 + 2 * mt, 2), t[3], mt * 16 * 8))
        a("v_lshlrev_b32 v%d, 4, v%d" % (t[4], t[2]))
        a("s_mul_i32 s%d, s%d, %d" % (c.st[0], c.s_wn, c.NT * 64))
        a("v_add_u32 v%d, s%d, v%d" % (t[4], c.st[0], t[4]))
        a("v_add_u32 v%d, %d, v%d" % (t[4], side, t[4]))
        for tt in range(c.NT):
            a("ds_read_b128 %s, v%d offset:%d" % (vr(f0 + 8 + 4 * tt, 4), t[4], 1024 + tt * 64))
        a("s_waitcnt lgkmcnt(0)")
        rs = f0 + 8 + 4 * c.NT
        for mt in range(4):
            a("v_mov_b32 v%d, v%d" % (rs + 2 * mt, f0 + 2 * mt + 1))
    tmp = c.fX[1] + 16
    for tt in range(c.NT):
        for mt in range(4):
            acc = c.acc + 4 * (tt * 4 + mt)
            if kind == "w1":
                cs = f0 + 8 + 4 * tt
                for h in range(2):
                    a("v_pk_fma_f32 %s, %s, %s, %s op_sel_hi:[1,0,1]" % (vr(acc + 2 * h, 2), vr(cs + 2 * h, 2), vr(f0 + 2 * mt, 2), vr(acc + 2 * h, 2)))
                    a("v_pk_mul_f32 %s, %s, %s op_sel_hi:[1,0]" % (vr(acc + 2 * h, 2), vr(acc + 2 * h, 2), vr(rs + 2 * mt, 2)))
            d = tmp + 2 * ((tt * 4 + mt) % 4)
            a("v_cvt_pk_bf16_f32 v%d, v%d, v%d" % (d, acc, acc + 1))
            a("v_cvt_pk_bf16_f32 v%d, v%d, v%d" % (d + 1, acc + 2, acc + 3))
            if kind == "w1":
                a("v_pk_max_i16 v%d, v%d, 0" % (d, d))
                a("v_pk_max_i16 v%d, v%d, 0" % (d + 1, d + 1))
            a("ds_write_b64 v%d, %s offset:%d" % (t[1], vr(d, 2), mt * 16 * pitch + tt * 32))
    a("s_waitcnt lgkmcnt(0)")

    a.label(Lfin)
    G = c.BN // 8
    nf = 128 * G // 64 // 8
    vb = 0
    vL = [vb + i for i in range(nf)]
    vG = [vb + nf + i for i in range(nf)]
    vD = vb + 2 * nf + (2 * nf) % 2
    vD = (vD + 3) // 4 * 4
    vR = vD + 4 * nf
    mul, sh = magic_div(G, 128 * G + 64)
    t = [vR + 4 * nf + i for i in range(10)]
    vtop = vR + 4 * nf + 10
    assert vtop <= misc
    a("v_and_b32 v%d, 63, v%d" % (t[9], c.v_lane))
    a("s_mul_i32 s%d, s%d, %d" % (c.st[0], s_wave, nf * 64))
    for j in range(nf):
        a("v_add_u32 v%d, s%d, v%d" % (t[0], c.st[0], t[9]))
        if j: a("v_add_u32 v%d, %d, v%d" % (t[0], 64 * j, t[0]))
        a("v_mul_u32_u24 v%d, %d, v%d" % (t[1], mul, t[0]))
        a("v_lshrrev_b32 v%d, %d, v%d" % (t[1], sh, t[1]))
        a("v_mul_u32_u24 v%d, %d, v%d" % (t[2], G, t[1]))
        a("v_sub_u32 v%d, v%d, v%d" % (t[2], t[0], t[2]))
        a("v_lshlrev_b32 v%d, 4, v%d" % (t[2], t[2]))
        a("v_mul_u32_u24 v%d, %d, v%d" % (t[3], pitch, t[1]))
        a("v_add_u32 v%d, v%d, v%d" % (vL[j], t[3], t[2]))
        a("v_add_u32 v%d, %d, v%d" % (vL[j], cbase, vL[j]))
        a("v_mul_u32_u24 v%d, %d, v%d" % (t[3], ldc, t[1]))
        a("v_add_u32 v%d, v%d, v%d" % (vG[j], t[3], t[2]))
        if kind in ("wo", "w2"):
            a("buffer_load_dwordx4 %s, v%d, s[%d:%d], 0 offen" % (vr(vR + 4 * j, 4), vG[j], srdR, srdR + 3))
    stamp(a, 3, s_wave, kidx, tmp_v=vst)
    a("s_barrier")
    stamp(a, 4, s_wave, kidx, tmp_v=vst)
    for j in range(nf):
        a("ds_read_b128 %s, v%d" % (vr(vD + 4 * j, 4), vL[j]))
    a("s_waitcnt vmcnt(0) lgkmcnt(0)")
    for j in range(nf):
        if kind in ("wo", "w2"):
            for q in range(4):
                d = vD + 4 * j + q; r = vR + 4 * j + q
                a("v_lshlrev_b32 v%d, 16, v%d" % (t[0], d))
                a("v_and_b32 v%d, 0xffff0000, v%d" % (t[1], d))
                a("v_lshlrev_b32 v%d, 16, v%d" % (t[2], r))
                a("v_and_b32 v%d, 0xffff0000, v%d" % (t[3], r))
                a("v_add_f32 v%d, v%d, v%d" % (t[0], t[0], t[2]))
                a("v_add_f32 v%d, v%d, v%d" % (t[1], t[1], t[3]))
                a("v_cvt_pk_bf16_f32 v%d, v%d, v%d" % (d, t[0], t[1]))
                if kind == "wo":
                    a("v_lshlrev_b32 v%d, 16, v%d" % (t[0], d))
                    a("v_and_b32 v%d, 0xffff0000, v%d" % (t[1], d))
                    if q == 0:
                        a("v_add_f32 v%d, v%d, v%d" % (t[4], t[0], t[1]))
                        a("v_mul_f32 v%d, v%d, v%d" % (t[5], t[0], t[0]))
                    else:
                        a("v_add_f32 v%d, v%d, v%d" % (t[4], t[4], t[0]))
                        a("v_add_f32 v%d, v%d, v%d" % (t[4], t[4], t[1]))
                        a("v_fmac_f32 v%d, v%d, v%d" % (t[5], t[0], t[0]))
                    a("v_fmac_f32 v%d, v%d, v%d" % (t[5], t[1], t[1]))
        a("buffer_store_dwordx4 %s, v%d, s[%d:%d], 0 offen" % (vr(vD + 4 * j, 4), vG[j], srdC, srdC + 3))
        if kind == "wo":
            for dpp in ("quad_perm:[1,0,3,2]", "quad_perm:[2,3,0,1]", "row_half_mirror"):
                a("s_nop 1")
                a("v_add_f32_dpp v%d, v%d, v%d %s row_mask:0xf bank_mask:0xf" % (t[6], t[4], t[4], dpp))
                a("v_add_f32_dpp v%d, v%d, v%d %s row_mask:0xf bank_mask:0xf" % (t[7], t[5], t[5], dpp))
                a("v_mov_b32 v%d, v%d" % (t[4], t[6]))
                a("v_mov_b32 v%d, v%d" % (t[5], t[7]))
            a("v_add_u32 v%d, s%d, v%d" % (t[0], c.st[0], t[9]))
            if j: a("v_add_u32 v%d, %d, v%d" % (t[0], 64 * j, t[0]))
            a("v_lshrrev_b32 v%d, 3, v%d" % (t[1], t[0]))
            a("v_lshlrev_b32 v%d, 7, v%d" % (t[1], t[1]))
            a("v_and_b32 v%d, 7, v%d" % (t[2], t[9]))
            a("v_cmp_eq_u32 vcc, 0, v%d" % t[2])
            a("v_mov_b32 v%d, 0x7fffffff" % t[3])
            a("s_nop 1")
            a("v_cndmask_b32 v%d, v%d, v%d, vcc" % (t[1], t[3], t[1]))
            tt = (t[6] + 1) // 2 * 2
            a("v_mov_b32 v%d, v%d" % (vR, t[4]))
            a("v_mov_b32 v%d, v%d" % (vR + 1, t[5]))
            a("buffer_store_dwordx2 %s, v%d, s[%d:%d], 0 offen" % (vr(vR, 2), t[1], srdS, srdS + 3))
            a("s_nop 1")
    a("s_waitcnt vmcnt(0)") if STAMPS else None
    stamp(a, 5, s_wave, kidx, tmp_v=vst)
    a.label(Lend)
    a("s_endpgm")
    return kernel_desc(name, vmax, 64), lds

def emit_k3_side(a, c, s_wave, srdS, srdT, side):
    t = c.vt
    vl = c.v_lane
    f = c.fX[0]
    a("v_and_b32 v%d, 31, v%d" % (t[0], vl))
    a("s_lshl_b32 s%d, s%d, 5" % (c.st[0], s_wave))
    a("v_add_u32 v%d, s%d, v%d" % (t[0], c.st[0], t[0]))
    a("v_lshlrev_b32 v%d, 7, v%d" % (t[1], t[0]))
    a("v_lshrrev_b32 v%d, 5, v%d" % (t[2], vl))
    a("v_lshl_add_u32 v%d, v%d, 6, v%d" % (t[1], t[2], t[1]))
    for q in range(4):
        a("buffer_load_dwordx4 %s, v%d, s[%d:%d], 0 offen offset:%d" % (vr(f + 4 * q, 4), t[1], srdS, srdS + 3, q * 16))
    a("s_mul_i32 s%d, s%d, 56" % (c.st[0], s_wave))
    a("v_add_u32 v%d, s%d, v%d" % (t[3], c.st[0], vl))
    a("v_lshlrev_b32 v%d, 2, v%d" % (t[4], t[3]))
    a("v_cmp_gt_u32 vcc, 56, v%d" % vl)
    a("v_mov_b32 v%d, 0x7fffffff" % t[5])
    a("s_nop 0")
    a("v_cndmask_b32 v%d, v%d, v%d, vcc" % (t[4], t[5], t[4]))
    g = f + 16
    for q in range(16):
        a("s_mov_b32 s%d, %d" % (c.st[1], q * 3584 * 4))
        a("buffer_load_dword v%d, v%d, s[%d:%d], s%d offen" % (g + q, t[4], srdT, srdT + 3, c.st[1]))
    a("s_waitcnt vmcnt(16)")
    a("v_add_f32 v%d, v%d, v%d" % (t[5], f + 0, f + 2))
    a("v_add_f32 v%d, v%d, v%d" % (t[6], f + 1, f + 3))
    for q in range(2, 8):
        a("v_add_f32 v%d, v%d, v%d" % (t[5], t[5], f + 2 * q))
        a("v_add_f32 v%d, v%d, v%d" % (t[6], t[6], f + 2 * q + 1))
    a("v_mov_b32 v%d, v%d" % (f + 0, t[5]))
    a("v_mov_b32 v%d, v%d" % (f + 1, t[6]))
    a("s_nop 1")
    a("v_permlane32_swap_b32 v%d, v%d" % (f + 0, t[5]))
    a("v_permlane32_swap_b32 v%d, v%d" % (f + 1, t[6]))
    a("v_add_f32 v%d, v%d, v%d" % (t[5], t[5], f + 0))
    a("v_add_f32 v%d, v%d, v%d" % (t[6], t[6], f + 1))
    a("v_mul_f32 v%d, 0x3a800000, v%d" % (t[5], t[5]))
    a("v_mul_f32 v%d, 0x3a800000, v%d" % (t[6], t[6]))
    a("v_fma_f32 v%d, -v%d, v%d, v%d" % (t[6], t[5], t[5], t[6]))
    a("v_max_f32 v%d, 0, v%d" % (t[6], t[6]))
    a("v_add_f32 v%d, 0x3727c5ac, v%d" % (t[6], t[6]))
    a("v_rsq_f32 v%d, v%d" % (f + 1, t[6]))
    a("v_sub_f32 v%d, 0, v%d" % (f + 0, t[5]))
    a("v_lshlrev_b32 v%d, 3, v%d" % (t[0], t[0]))
    a("v_add_u32 v%d, %d, v%d" % (t[0], side, t[0]))
    a("ds_write_b64 v%d, %s" % (t[0], vr(f, 2)))
    a("s_waitcnt vmcnt(0)")
    for q in range(1, 16):
        a("v_add_f32 v%d, v%d, v%d" % (g, g, g + q))
    a("v_lshlrev_b32 v%d, 2, v%d" % (t[3], t[3]))
    a("v_add_u32 v%d, %d, v%d" % (t[3], side + 1024, t[3]))
    a("v_cmp_gt_u32 vcc, 56, v%d" % vl)
    a("s_and_saveexec_b64 s[56:57], vcc")
    a("ds_write_b32 v%d, v%d" % (t[3], g))
    a("s_mov_b64 exec, s[56:57]")
    a("s_waitcnt lgkmcnt(0)")
```

```python
from common import *
from gemm import *
import os

L2E = 0x3fb8aa3b

def mfma_wait(a):
    a("s_nop 7"); a("s_nop 4")

def mf32(d, A, B, C):
    return "v_mfma_f32_32x32x16_bf16 %s, %s, %s, %s" % (vr(d, 16), vr(A, 4), vr(B, 4), C if isinstance(C, str) else vr(C, 16))

def cross32(a, op, x, t):
    a("v_mov_b32 v%d, v%d" % (t, x))
    a("s_nop 1")
    a("v_permlane32_swap_b32 v%d, v%d" % (t, x))
    a("%s v%d, v%d, v%d" % (op, x, x, t))

def softmax2(a, p, pos, neg, e, t, s_l2e):
    mx, mn, t0, t1, sp, sn, rp, rn = t[0:8]
    a("v_max3_f32 v%d, v%d, v%d, v%d" % (mx, p, p + 1, p + 2))
    a("v_min3_f32 v%d, v%d, v%d, v%d" % (mn, p, p + 1, p + 2))
    for i in range(3, 15, 2):
        a("v_max3_f32 v%d, v%d, v%d, v%d" % (mx, mx, p + i, p + i + 1))
        a("v_min3_f32 v%d, v%d, v%d, v%d" % (mn, mn, p + i, p + i + 1))
    a("v_max_f32 v%d, v%d, v%d" % (mx, mx, p + 15))
    a("v_min_f32 v%d, v%d, v%d" % (mn, mn, p + 15))
    a("v_mov_b32 v%d, v%d" % (t0, mx))
    a("v_mov_b32 v%d, v%d" % (t1, mn))
    a("s_nop 1")
    a("v_permlane32_swap_b32 v%d, v%d" % (t0, mx))
    a("v_permlane32_swap_b32 v%d, v%d" % (t1, mn))
    a("v_max_f32 v%d, v%d, v%d" % (mx, mx, t0))
    a("v_min_f32 v%d, v%d, v%d" % (mn, mn, t1))
    a("v_mul_f32 v%d, s%d, v%d" % (mx, s_l2e, mx))
    a("v_mul_f32 v%d, s%d, v%d" % (mn, s_l2e, mn))
    for (sign, out, ssum, rr) in ((+1, pos, sp, rp), (-1, neg, sn, rn)):
        for i in range(16):
            if sign > 0: a("v_fma_f32 v%d, v%d, s%d, -v%d" % (e + i, p + i, s_l2e, mx))
            else: a("v_fma_f32 v%d, -v%d, s%d, v%d" % (e + i, p + i, s_l2e, mn))
        for i in range(16):
            a("v_exp_f32 v%d, v%d" % (e + i, e + i))
        a("s_nop 0")
        a("v_add_f32 v%d, v%d, v%d" % (ssum, e, e + 1))
        a("v_add_f32 v%d, v%d, v%d" % (t0, e + 2, e + 3))
        for i in range(4, 16, 2):
            a("v_add_f32 v%d, v%d, v%d" % (ssum, ssum, e + i))
            a("v_add_f32 v%d, v%d, v%d" % (t0, t0, e + i + 1))
        a("v_add_f32 v%d, v%d, v%d" % (ssum, ssum, t0))
        cross32(a, "v_add_f32", ssum, t0)
        a("v_rcp_f32 v%d, v%d" % (rr, ssum))
        a("s_nop 0")
        for i in range(0, 16, 2):
            a("v_mul_f32 v%d, v%d, v%d" % (e + i, e + i, rr))
            a("v_mul_f32 v%d, v%d, v%d" % (e + i + 1, e + i + 1, rr))
            a("v_cvt_pk_bf16_f32 v%d, v%d, v%d" % (out + i // 2, e + i, e + i + 1))

def wave_reduce_add(a, xs, ts):
    for dpp in ("quad_perm:[1,0,3,2]", "quad_perm:[2,3,0,1]", "row_half_mirror", "row_mirror"):
        a("s_nop 1")
        for x, t in zip(xs, ts):
            a("v_add_f32_dpp v%d, v%d, v%d %s row_mask:0xf bank_mask:0xf" % (t, x, x, dpp))
        for x, t in zip(xs, ts):
            a("v_mov_b32 v%d, v%d" % (x, t))
    for sw in ("v_permlane16_swap_b32", "v_permlane32_swap_b32"):
        a("s_nop 1")
        for x, t in zip(xs, ts):
            a("%s v%d, v%d" % (sw, t, x))
        for x, t in zip(xs, ts):
            a("v_add_f32 v%d, v%d, v%d" % (x, x, t))
        for x, t in zip(xs, ts):
            a("v_mov_b32 v%d, v%d" % (t, x))

def qkv_kernel(a, name):
    c = Cfg()
    c.BM, c.BN, c.K, c.lda, c.ldb, c.S = 256, 96, 1024, 2048, 6144, 3
    c.NS = 16; c.nA = 32; c.nB = 12; c.a_ins = 8; c.b_ins = 3; c.P = 12
    c.stage_bytes = 44 * 1024
    c.rotate = True
    c.colmode = "qkv"; c.swz = []
    c.srdA, c.srdB = 16, 20
    srdO, srdKV, srdW1 = 24, 28, 32
    s_wave, s_rb, s_h = 40, 41, 42
    c.s_p = 43
    c.s_slot = c.s_cslot = 45; c.s_ka = c.s_delta = 46; c.s_kb = 47; c.s_mA = 48; c.s_mB = 49; c.s_i = 50
    c.st = [52, 53, 54, 55]
    s_l2e, s_ones = 56, 57
    ring = c.S * c.stage_bytes
    L_WPHI = ring
    L_CS = L_WPHI + 2048
    L_RS = L_CS + 512
    L_NM = L_RS + 1024
    L_TOK = L_NM + 1024
    L_KVF = L_TOK + 64
    L_ZF = L_KVF + 4096
    lds = L_ZF + 128
    L_PK = c.stage_bytes
    PKP = 144
    L_RED = 2 * c.stage_bytes
    accQ = [0, 16]; accK = [32, 48]; accV = [64, 80]
    F = [96, 116]
    vcs = [136, 137, 138]
    c.vX = [139, 140, 141, 142]; vW = 143
    c.v_lane = 144
    c.vt = [145 + i for i in range(8)]
    vtok = 154
    vst = 160
    vmax = 256

    kernel_header(a, name)
    Lend = a.newlabel("Lend")
    a("s_cmp_ge_u32 s2, 256")
    a("s_cbranch_scc1 %s" % Lend)
    a("s_load_dwordx2 s[4:5], s[0:1], %d" % KA_WS)
    a("s_load_dwordx2 s[6:7], s[0:1], %d" % KA_WQKV)
    a("s_load_dwordx2 s[8:9], s[0:1], %d" % KA_DBG)
    a("s_load_dwordx2 s[10:11], s[0:1], %d" % KA_X)
    a("s_load_dwordx2 s[14:15], s[0:1], %d" % KA_WPHI)
    a("s_load_dwordx2 s[64:65], s[0:1], %d" % KA_W1)
    a("s_load_dwordx2 s[66:67], s[0:1], %d" % KA_W2)
    a("s_load_dwordx2 s[68:69], s[0:1], %d" % KA_WO)
    a("v_and_b32 v%d, 63, v0" % c.v_lane)
    a("v_lshrrev_b32 v1, 6, v0")
    a("s_nop 0")
    a("v_readfirstlane_b32 s%d, v1" % s_wave)
    a("s_and_b32 s%d, s2, 7" % c.st[0])
    a("s_lshr_b32 s%d, s2, 3" % c.st[1])
    a("s_and_b32 s%d, s%d, 1" % (c.st[2], c.st[0]))
    a("s_lshl_b32 s%d, s%d, 2" % (s_rb, c.st[2]))
    a("s_and_b32 s%d, s%d, 3" % (c.st[2], c.st[1]))
    a("s_add_u32 s%d, s%d, s%d" % (s_rb, s_rb, c.st[2]))
    a("s_lshr_b32 s%d, s%d, 1" % (c.st[2], c.st[0]))
    a("s_lshl_b32 s%d, s%d, 3" % (s_h, c.st[2]))
    a("s_lshr_b32 s%d, s%d, 2" % (c.st[2], c.st[1]))
    a("s_add_u32 s%d, s%d, s%d" % (s_h, s_h, c.st[2]))
    rot = os.environ.get("K1ROT", "1")
    if rot == "1":
        a("s_lshl_b32 s%d, s%d, 1" % (c.st[2], c.st[0]))
        a("s_add_u32 s%d, s%d, s%d" % (c.st[2], c.st[2], c.st[1]))
        a("s_and_b32 s%d, s%d, 15" % (c.st[2], c.st[2]))
    else:
        a("s_mov_b32 s%d, 0" % c.st[2])
    a("s_lshl_b32 s%d, s%d, 7" % (c.s_ka, c.st[2]))
    a("s_mul_i32 s%d, s%d, %d" % (c.s_kb, c.st[2], 64 * c.ldb))
    a("s_mov_b32 s%d, 0x%x" % (s_l2e, L2E))
    a("s_mov_b32 s%d, 0x3f803f80" % s_ones)
    a("s_waitcnt lgkmcnt(0)")
    a("s_lshl_b32 s%d, s%d, 19" % (c.st[0], s_rb))
    a("s_add_u32 s12, s10, s%d" % c.st[0])
    a("s_addc_u32 s13, s11, 0")
    make_srd(a, c.srdA, "s12", "s13", 256 * 2048)
    a("s_lshl_b32 s%d, s%d, 6" % (c.st[0], s_h))
    a("s_add_u32 s12, s6, s%d" % c.st[0])
    a("s_addc_u32 s13, s7, 0")
    a("s_sub_u32 s%d, %d, s%d" % (c.st[1], 1024 * 6144, c.st[0]))
    make_srd(a, c.srdB, "s12", "s13", "s%d" % c.st[1])
    a("s_lshl_b32 s%d, s%d, 19" % (c.st[1], s_rb))
    a("s_add_u32 s%d, s%d, s%d" % (c.st[0], c.st[0], c.st[1]))
    a("s_add_u32 s12, s4, s%d" % c.st[0])
    a("s_addc_u32 s13, s5, 0")
    make_srd(a, srdO, "s12", "s13", 256 * 2048 - 0)
    a("s_mul_i32 s%d, s%d, %d" % (c.st[0], s_h, 8 * KVP_BYTES))
    a("s_add_u32 s%d, s%d, %d" % (c.st[0], c.st[0], WS_KVP))
    a("s_add_u32 s12, s4, s%d" % c.st[0])
    a("s_addc_u32 s13, s5, 0")
    make_srd(a, srdKV, "s12", "s13", 8 * KVP_BYTES)
    kidx = 0
    stamp(a, 0, s_wave, kidx, tmp_v=vst)
    Lcons = a.newlabel("Lconsumer")
    a("s_cmp_lt_u32 s%d, 4" % s_wave)
    a("s_cbranch_scc1 %s" % Lcons)

    a("s_sub_u32 s%d, s%d, 4" % (c.s_p, s_wave))
    emit_producer_setup(a, c, 32)
    stamp(a, 1, s_wave, kidx, tmp_v=vst)
    emit_producer_loop(a, c)
    stamp(a, 2, s_wave, kidx, tmp_v=vst)
    vl = c.v_lane
    t = c.vt
    vP = 64
    a("s_lshl_b32 s%d, s2, 2" % c.st[0])
    a("s_add_u32 s%d, s%d, s%d" % (c.st[0], c.st[0], c.s_p))
    mul, sh = magic_div(56, 1024)
    a("s_mul_i32 s%d, s%d, %d" % (c.st[1], c.st[0], mul))
    a("s_lshr_b32 s%d, s%d, %d" % (c.st[1], c.st[1], sh))
    a("s_mul_i32 s%d, s%d, 56" % (c.st[2], c.st[1]))
    a("s_sub_u32 s%d, s%d, s%d" % (c.st[2], c.st[0], c.st[2]))
    make_srd(a, srdW1, "s64", "s65", 1024 * 7168)
    a("s_lshl_b32 s%d, s%d, 6" % (c.st[3], c.st[1]))
    a("v_lshrrev_b32 v%d, 3, v%d" % (t[0], vl))
    a("v_add_u32 v%d, s%d, v%d" % (t[0], c.st[3], t[0]))
    a("s_mov_b32 s%d, 7168" % c.st[3])
    a("v_mul_lo_u32 v%d, v%d, s%d" % (t[0], t[0], c.st[3]))
    a("v_and_b32 v%d, 7, v%d" % (t[1], vl))
    a("v_lshlrev_b32 v%d, 4, v%d" % (t[1], t[1]))
    a("s_lshl_b32 s%d, s%d, 7" % (c.st[3], c.st[2]))
    a("v_add3_u32 v%d, v%d, v%d, s%d" % (t[0], t[0], t[1], c.st[3]))
    a("v_mov_b32 v%d, v%d" % (60, t[0]))
    for j in range(8):
        a("s_mov_b32 s%d, %d" % (c.st[3], j * 8 * 7168))
        a("buffer_load_dwordx4 %s, v60, s[%d:%d], s%d offen" % (vr(vP + 4 * j, 4), srdW1, srdW1 + 3, c.st[3]))
    a("s_mov_b32 s70, s%d" % c.st[1])
    a("s_mov_b32 s71, s%d" % c.st[2])
    a("s_mov_b32 s72, s%d" % c.st[0])
    Lnp = a.newlabel("Lnopoll")
    a("s_cmp_lg_u32 s%d, 4" % s_wave)
    a("s_cbranch_scc1 %s" % Lnp)
    a("s_lshl_b32 s%d, s%d, 2" % (c.st[0], s_rb))
    a("s_add_u32 s%d, s%d, 16" % (c.st[0], c.st[0]))
    a("v_mov_b32 v%d, s%d" % (t[0], c.st[0]))
    Lp = a.newlabel("Lpoll")
    a("s_mov_b32 s75, 0")
    a.label(Lp)
    a("global_load_dword v%d, v%d, s[8:9] sc1" % (t[1], t[0]))
    a("s_waitcnt vmcnt(0)")
    a("v_readfirstlane_b32 s%d, v%d" % (c.st[1], t[1]))
    a("s_cmp_ge_u32 s%d, 32" % c.st[1])
    Lpd = a.newlabel("Lpolld")
    a("s_cbranch_scc1 %s" % Lpd)
    a("s_add_u32 s75, s75, 1")
    a("s_cmp_gt_u32 s75, 0x40000")
    a("s_cbranch_scc1 %s" % Lpd)
    a("s_sleep 2")
    a("s_branch %s" % Lp)
    a.label(Lpd)
    a("s_lshl_b32 s%d, s%d, 10" % (c.st[0], s_rb))
    a("s_add_u32 s%d, s%d, %d" % (c.st[0], c.st[0], WS_ST1))
    a("v_lshlrev_b32 v%d, 4, v%d" % (t[0], vl))
    a("v_add_u32 v%d, s%d, v%d" % (t[1], c.st[0], t[0]))
    a("global_load_dwordx4 v[40:43], v%d, s[4:5] sc1" % t[1])
    a("v_add_u32 v%d, 8192, v%d" % (t[1], t[1]))
    a("global_load_dwordx4 v[44:47], v%d, s[4:5] sc1" % t[1])
    a("v_add_u32 v%d, %d, v%d" % (t[0], L_RS, t[0]))
    a("s_waitcnt vmcnt(0)")
    a("ds_write_b128 v%d, v[40:43]" % t[0])
    a("ds_write_b128 v%d, v[44:47] offset:1024" % t[0])
    a("s_waitcnt lgkmcnt(0)")
    a.label(Lnp)
    a("s_barrier")
    a("s_barrier")
    a("s_barrier")
    stamp(a, 3, s_wave, kidx, tmp_v=vst)
    a("v_mov_b32 v%d, %d" % (t[0], L_TOK))
    a("ds_read_b64 v[40:41], v%d" % t[0])
    a("s_lshl_b32 s%d, s%d, 7" % (c.st[0], s_h))
    a("s_add_u32 s%d, s%d, %d" % (c.st[0], c.st[0], WS_FLAG))
    a("v_and_b32 v%d, 7, v%d" % (t[0], vl))
    a("v_lshlrev_b32 v%d, 3, v%d" % (t[0], t[0]))
    a("v_add_u32 v%d, s%d, v%d" % (t[0], c.st[0], t[0]))
    a("s_waitcnt lgkmcnt(0)")
    Lp = a.newlabel("Lpoll2"); Lpd = a.newlabel("Lpoll2d")
    a("s_mov_b32 s75, 0")
    a.label(Lp)
    a("global_load_dwordx2 v[42:43], v%d, s[4:5] sc1" % t[0])
    a("s_waitcnt vmcnt(0)")
    a("v_cmp_eq_u64 vcc, v[40:41], v[42:43]")
    a("s_nop 4")
    a("s_cmp_eq_u64 vcc, exec")
    a("s_cbranch_scc1 %s" % Lpd)
    a("s_add_u32 s75, s75, 1")
    a("s_cmp_gt_u32 s75, 0x40000")
    a("s_cbranch_scc1 %s" % Lpd)
    a("s_sleep 1")
    a("s_branch %s" % Lp)
    a.label(Lpd)
    stamp(a, 4, s_wave, kidx, tmp_v=vst)
    a("s_lshl_b32 s%d, s%d, 11" % (c.st[0], c.s_p))
    a("v_lshlrev_b32 v%d, 4, v%d" % (t[0], vl))
    a("v_add_u32 v%d, s%d, v%d" % (t[0], c.st[0], t[0]))
    vK = 164
    for rbi in range(8):
        a("s_mov_b32 s%d, %d" % (c.st[1], rbi * KVP_BYTES))
        for bb in range(2):
            a("buffer_load_dwordx4 %s, v%d, s[%d:%d], s%d offen offset:%d sc1" % (vr(vK + 8 * rbi + 4 * bb, 4), t[0], srdKV, srdKV + 3, c.st[1], bb * 1024))
    vZ = 96
    a("v_lshlrev_b32 v%d, 4, v%d" % (t[1], vl))
    a("v_add_u32 v%d, 8192, v%d" % (t[1], t[1]))
    a("v_cmp_gt_u32 vcc, 16, v%d" % vl)
    a("v_mov_b32 v%d, 0x7fffffff" % t[2])
    a("s_nop 0")
    a("v_cndmask_b32 v%d, v%d, v%d, vcc" % (t[1], t[2], t[1]))
    for rbi in range(8):
        a("s_mov_b32 s%d, %d" % (c.st[1], rbi * KVP_BYTES))
        a("buffer_load_dwordx4 %s, v%d, s[%d:%d], s%d offen sc1" % (vr(vZ + 4 * rbi, 4), t[1], srdKV, srdKV + 3, c.st[1]))
    a("s_waitcnt vmcnt(8)")
    for rbi in range(1, 8):
        for q in range(0, 8, 2):
            a("v_pk_add_f32 %s, %s, %s" % (vr(vK + q, 2), vr(vK + q, 2), vr(vK + 8 * rbi + q, 2)))
    for bb in range(2):
        a("v_cvt_pk_bf16_f32 v%d, v%d, v%d" % (vK + 8 + 2 * bb, vK + 4 * bb, vK + 4 * bb + 1))
        a("v_cvt_pk_bf16_f32 v%d, v%d, v%d" % (vK + 8 + 2 * bb + 1, vK + 4 * bb + 2, vK + 4 * bb + 3))
    a("s_lshl_b32 s%d, s%d, 10" % (c.st[0], c.s_p))
    a("s_add_u32 s%d, s%d, %d" % (c.st[0], c.st[0], L_KVF))
    a("v_lshlrev_b32 v%d, 4, v%d" % (t[0], vl))
    a("v_add_u32 v%d, s%d, v%d" % (t[0], c.st[0], t[0]))
    a("ds_write_b128 v%d, %s" % (t[0], vr(vK + 8, 4)))
    a("s_waitcnt vmcnt(0)")
    for rbi in range(1, 8):
        for q in range(0, 4, 2):
            a("v_pk_add_f32 %s, %s, %s" % (vr(vZ + q, 2), vr(vZ + q, 2), vr(vZ + 4 * rbi + q, 2)))
    a("v_cvt_pk_bf16_f32 v%d, v%d, v%d" % (vZ + 4, vZ, vZ + 1))
    a("v_cvt_pk_bf16_f32 v%d, v%d, v%d" % (vZ + 5, vZ + 2, vZ + 3))
    a("v_lshrrev_b32 v%d, 2, v%d" % (t[0], vl))
    a("v_lshlrev_b32 v%d, 5, v%d" % (t[0], t[0]))
    a("v_and_b32 v%d, 1, v%d" % (t[1], vl))
    a("v_lshl_add_u32 v%d, v%d, 4, v%d" % (t[0], t[1], t[0]))
    a("v_bfe_u32 v%d, v%d, 1, 1" % (t[1], vl))
    a("v_lshl_add_u32 v%d, v%d, 3, v%d" % (t[0], t[1], t[0]))
    a("v_add_u32 v%d, %d, v%d" % (t[0], L_ZF, t[0]))
    a("v_cmp_gt_u32 vcc, 16, v%d" % vl)
    a("s_and_saveexec_b64 s[58:59], vcc")
    a("ds_write_b64 v%d, %s" % (t[0], vr(vZ + 4, 2)))
    a("s_mov_b64 exec, s[58:59]")
    a("s_waitcnt lgkmcnt(0)")
    a("s_barrier")
    stamp(a, 5, s_wave, kidx, tmp_v=vst)
    Lskip = a.newlabel("Lskipcs")
    a("s_cmp_ge_u32 s72, 896")
    a("s_cbranch_scc1 %s" % Lskip)
    vS = 100
    for j in range(8):
        for q in range(4):
            src = vP + 4 * j + q
            a("v_lshlrev_b32 v%d, 16, v%d" % (t[0], src))
            a("v_and_b32 v%d, 0xffff0000, v%d" % (t[1], src))
            if j == 0:
                a("v_mov_b32 v%d, v%d" % (vS + 2 * q, t[0]))
                a("v_mov_b32 v%d, v%d" % (vS + 2 * q + 1, t[1]))
            else:
                a("v_add_f32 v%d, v%d, v%d" % (vS + 2 * q, vS + 2 * q, t[0]))
                a("v_add_f32 v%d, v%d, v%d" % (vS + 2 * q + 1, vS + 2 * q + 1, t[1]))
    xs = [vS + i for i in range(8)]; ts_ = [vS + 8 + i for i in range(8)]
    a("s_nop 1")
    for x, tt in zip(xs, ts_):
        a("v_add_f32_dpp v%d, v%d, v%d row_ror:8 row_mask:0xf bank_mask:0xf" % (tt, x, x))
    for x, tt in zip(xs, ts_):
        a("v_mov_b32 v%d, v%d" % (x, tt))
    for sw in ("v_permlane16_swap_b32", "v_permlane32_swap_b32"):
        a("s_nop 1")
        for x, tt in zip(xs, ts_):
            a("%s v%d, v%d" % (sw, tt, x))
        for x, tt in zip(xs, ts_):
            a("v_add_f32 v%d, v%d, v%d" % (x, x, tt))
        for x, tt in zip(xs, ts_):
            a("v_mov_b32 v%d, v%d" % (tt, x))
    a("s_mul_i32 s%d, s70, %d" % (c.st[0], 3584 * 4))
    a("s_lshl_b32 s%d, s71, 8" % c.st[1])
    a("s_add_u32 s%d, s%d, s%d" % (c.st[0], c.st[0], c.st[1]))
    a("s_add_u32 s%d, s%d, %d" % (c.st[0], c.st[0], WS_CS1))
    a("v_lshlrev_b32 v%d, 5, v%d" % (t[0], vl))
    a("v_add_u32 v%d, s%d, v%d" % (t[0], c.st[0], t[0]))
    a("v_cmp_gt_u32 vcc, 8, v%d" % vl)
    a("s_and_saveexec_b64 s[58:59], vcc")
    a("global_store_dwordx4 v%d, %s, s[4:5]" % (t[0], vr(vS, 4)))
    a("global_store_dwordx4 v%d, %s, s[4:5] offset:16" % (t[0], vr(vS + 4, 4)))
    a("s_mov_b64 exec, s[58:59]")
    a.label(Lskip)
    a("s_branch %s" % Lend)

    a.label(Lcons)
    vl = c.v_lane
    t = c.vt
    Lt = a.newlabel("Ltok")
    a("s_cmp_lg_u32 s%d, 0" % s_wave)
    a("s_cbranch_scc1 %s" % Lt)
    a("s_memrealtime s[58:59]")
    a("s_waitcnt lgkmcnt(0)")
    a("s_or_b32 s58, s58, 1")
    a("v_mov_b32 v%d, s58" % vtok)
    a("v_mov_b32 v%d, s59" % (vtok + 1))
    a("v_mov_b32 v%d, 0" % (vtok + 2))
    a("v_mov_b32 v%d, 0" % (vtok + 3))
    a("v_mov_b32 v%d, 0" % t[0])
    a("s_mov_b64 s[58:59], exec")
    a("s_mov_b64 exec, 1")
    a("global_atomic_cmpswap_x2 %s, v%d, %s, s[8:9] sc0" % (vr(vtok + 4, 2), t[0], vr(vtok, 4)))
    a("s_mov_b64 exec, s[58:59]")
    a("v_lshlrev_b32 v%d, 4, v%d" % (t[1], vl))
    a("s_lshl_b32 s%d, s%d, 11" % (c.st[0], s_h))
    a("s_add_u32 s12, s14, s%d" % c.st[0])
    a("s_addc_u32 s13, s15, 0")
    make_srd(a, srdW1, "s12", "s13", 2048)
    a("s_mov_b32 m0, %d" % L_WPHI)
    a("s_nop 0")
    a("buffer_load_dwordx4 v%d, s[%d:%d], 0 offen lds" % (t[1], srdW1, srdW1 + 3))
    a("s_nop 0")
    a("buffer_load_dwordx4 v%d, s[%d:%d], 0 offen offset:1024 lds" % (t[1], srdW1, srdW1 + 3))
    a("v_mov_b32 v%d, 0" % t[2])
    a("v_lshlrev_b32 v%d, 2, v%d" % (t[3], vl))
    a("v_add_u32 v%d, %d, v%d" % (t[3], L_CS, t[3]))
    a("ds_write_b32 v%d, v%d" % (t[3], t[2]))
    a("ds_write_b32 v%d, v%d offset:256" % (t[3], t[2]))
    a.label(Lt)
    a("s_lshl_b32 s%d, s%d, 8" % (c.st[0], s_rb))
    a("s_lshl_b32 s%d, s%d, 3" % (c.st[1], s_h))
    a("s_add_u32 s%d, s%d, s%d" % (c.st[0], c.st[0], c.st[1]))
    a("s_lshl_b32 s%d, s%d, 1" % (c.st[1], s_wave))
    a("s_add_u32 s%d, s%d, s%d" % (c.st[0], c.st[0], c.st[1]))
    a("s_mov_b32 s74, s%d" % c.st[0])
    a("s_lshl_b32 s%d, s%d, 11" % (c.st[1], c.st[0]))
    a("v_lshlrev_b32 v%d, 4, v%d" % (t[0], vl))
    a("v_add_u32 v%d, s%d, v%d" % (t[0], c.st[1], t[0]))
    xr = 0
    a("global_load_dwordx4 v[0:3], v%d, s[10:11]" % t[0])
    a("global_load_dwordx4 v[4:7], v%d, s[10:11] offset:1024" % t[0])
    a("global_load_dwordx4 v[8:11], v%d, s[10:11] offset:2048" % t[0])
    a("global_load_dwordx4 v[12:15], v%d, s[10:11] offset:3072" % t[0])
    a("v_and_b32 v%d, 31, v%d" % (t[0], vl))
    a("v_lshrrev_b32 v%d, 5, v%d" % (t[1], vl))
    a("v_bfe_u32 v%d, v%d, 1, 3" % (t[2], t[0]))
    a("s_lshl_b32 s%d, s%d, 6" % (c.st[2], s_wave))
    a("v_add_u32 v%d, s%d, v%d" % (t[3], c.st[2], t[0]))
    a("v_lshlrev_b32 v%d, 7, v%d" % (t[3], t[3]))
    for stp in range(4):
        a("v_add_u32 v%d, %d, v%d" % (t[4], 2 * stp, t[1]))
        a("v_xor_b32 v%d, v%d, v%d" % (t[4], t[4], t[2]))
        a("v_lshl_add_u32 v%d, v%d, 4, v%d" % (c.vX[stp], t[4], t[3]))
    a("v_lshrrev_b32 v%d, 4, v%d" % (t[0], vl))
    a("v_and_b32 v%d, 15, v%d" % (t[1], vl))
    a("v_lshrrev_b32 v%d, 2, v%d" % (t[2], t[1]))
    a("v_lshrrev_b32 v%d, 1, v%d" % (t[3], t[0]))
    a("v_lshl_add_u32 v%d, v%d, 3, v%d" % (t[2], t[3], t[2]))
    a("v_mul_u32_u24 v%d, 192, v%d" % (t[2], t[2]))
    a("v_and_b32 v%d, 1, v%d" % (t[0], t[0]))
    a("v_lshl_add_u32 v%d, v%d, 5, v%d" % (t[2], t[0], t[2]))
    a("v_and_b32 v%d, 3, v%d" % (t[1], t[1]))
    a("v_lshl_add_u32 v%d, v%d, 3, v%d" % (t[2], t[1], t[2]))
    a("v_add_u32 v%d, %d, v%d" % (vW, c.nA * 1024, t[2]))
    a("s_waitcnt vmcnt(0)")
    fp = 16
    for r in range(2):
        for q in range(8):
            a("v_lshlrev_b32 v%d, 16, v%d" % (fp + 16 * r + 2 * q, 8 * r + q))
            a("v_and_b32 v%d, 0xffff0000, v%d" % (fp + 16 * r + 2 * q + 1, 8 * r + q))
    sm = [48, 49]; tm_ = [50, 51]
    for r in range(2):
        a("v_add_f32 v%d, v%d, v%d" % (sm[r], fp + 16 * r, fp + 16 * r + 1))
        for q in range(2, 16):
            a("v_add_f32 v%d, v%d, v%d" % (sm[r], sm[r], fp + 16 * r + q))
    wave_reduce_add(a, sm, tm_)
    for r in range(2):
        a("v_mul_f32 v%d, 0x3a800000, v%d" % (sm[r], sm[r]))
    sq = [52, 53]
    for r in range(2):
        for q in range(16):
            a("v_sub_f32 v%d, v%d, v%d" % (fp + 16 * r + q, fp + 16 * r + q, sm[r]))
        a("v_mul_f32 v%d, v%d, v%d" % (sq[r], fp + 16 * r, fp + 16 * r))
        for q in range(1, 16):
            a("v_fmac_f32 v%d, v%d, v%d" % (sq[r], fp + 16 * r + q, fp + 16 * r + q))
    wave_reduce_add(a, sq, tm_)
    for r in range(2):
        a("v_mul_f32 v%d, 0x3a800000, v%d" % (sq[r], sq[r]))
        a("v_add_f32 v%d, 0x3727c5ac, v%d" % (sq[r], sq[r]))
        a("v_rsq_f32 v%d, v%d" % (54 + r, sq[r]))
    a("s_nop 0")
    for r in range(2):
        a("v_mul_f32 v%d, v%d, v%d" % (56 + r, sm[r], 54 + r))
        a("v_sub_f32 v%d, 0, v%d" % (56 + r, 56 + r))
    a("s_lshl_b32 s%d, s74, 2" % c.st[0])
    a("s_add_u32 s%d, s%d, %d" % (c.st[0], c.st[0], WS_ST1))
    a("v_mov_b32 v%d, s%d" % (t[0], c.st[0]))
    a("v_add_u32 v%d, 8192, v%d" % (t[1], t[0]))
    a("s_mov_b64 s[58:59], exec")
    a("s_mov_b64 exec, 1")
    a("global_store_dwordx2 v%d, v[54:55], s[4:5] sc1" % t[0])
    a("global_store_dwordx2 v%d, v[56:57], s[4:5] sc1" % t[1])
    a("s_mov_b64 exec, s[58:59]")
    stamp(a, 1, s_wave, kidx, tmp_v=vst)
    for i in range(96): a("v_mov_b32 v%d, 0" % i)
    for u in range(3): a("v_mov_b32 v%d, 0" % vcs[u])
    a("s_mov_b32 s%d, 0" % c.s_cslot)
    a("s_mov_b32 s%d, 0" % c.s_i)
    a("s_waitcnt lgkmcnt(0)")
    def reads(buf, stp):
        r = []
        fb = F[buf]
        W = lambda u, hf: "ds_read_b64_tr_b16 %s, v%d offset:%d" % (vr(fb + 8 + 4 * u + 2 * hf, 2), vW, (16 * stp + 4 * hf) * 192 + u * 64)
        X = lambda st: "ds_read_b128 %s, v%d offset:%d" % (vr(fb + 4 * st, 4), c.vX[stp], st * 4096)
        return [W(0, 0), W(0, 1), X(0), W(1, 0), W(1, 1), X(1), W(2, 0), W(2, 1)]
    def mfmas(buf):
        fb = F[buf]
        X = lambda st: fb + 4 * st
        W = lambda u: fb + 8 + 4 * u
        return [mf32(accQ[0], W(0), X(0), accQ[0]), mf32(accK[0], W(1), X(0), accK[0]), mf32(accQ[1], W(0), X(1), accQ[1]),
                mf32(accK[1], W(1), X(1), accK[1]), mf32(accV[0], X(0), W(2), accV[0]), mf32(accV[1], X(1), W(2), accV[1])]
    def csops(buf, w):
        fb = F[buf]
        o = []
        for u in range(3):
            src = fb + 8 + 4 * u + w
            tt = t[2 * (u % 2)]
            o.append("v_lshlrev_b32 v%d, 16, v%d" % (tt, src))
            o.append("v_and_b32 v%d, 0xffff0000, v%d" % (tt + 1, src))
            o.append("v_add_f32 v%d, v%d, v%d" % (vcs[u], vcs[u], tt))
            o.append("v_add_f32 v%d, v%d, v%d" % (vcs[u], vcs[u], tt + 1))
        return o
    def step(mf, rd, cs):
        ri = ci = 0
        for i, m in enumerate(mf):
            a(m)
            for _ in range(2):
                if ri < len(rd): a(rd[ri]); ri += 1
            for _ in range(2):
                if ci < len(cs): a(cs[ci]); ci += 1
        while ri < len(rd): a(rd[ri]); ri += 1
        while ci < len(cs): a(cs[ci]); ci += 1
    Lafter = a.newlabel("Lafter")
    Lw = [a.newlabel("Lw") for _ in range(4)]
    for w in range(1, 4):
        a("s_cmp_eq_u32 s%d, %d" % (s_wave, w))
        a("s_cbranch_scc1 %s" % Lw[w])
    for w in range(4):
        a.label(Lw[w])
        a("s_barrier")
        for r in reads(0, 0): a(r)
        L = a.newlabel("Lk1")
        a.label(L)
        for stp in range(3):
            a("s_waitcnt lgkmcnt(0)")
            step(mfmas(stp & 1), reads((stp + 1) & 1, stp + 1), csops(stp & 1, w))
        a("s_waitcnt vmcnt(0) lgkmcnt(0)")
        a("s_barrier")
        emit_addr_advance(a, c, [c.vX[0], vW, c.vX[1], c.vX[2], c.vX[3]])
        if w == 0:
            Ls = a.newlabel("Lsig")
            a("s_cmp_lg_u32 s%d, 1" % c.s_i)
            a("s_cbranch_scc1 %s" % Ls)
            a("s_lshl_b32 s%d, s%d, 2" % (c.st[0], s_rb))
            a("s_add_u32 s%d, s%d, 16" % (c.st[0], c.st[0]))
            a("v_mov_b32 v%d, s%d" % (t[4], c.st[0]))
            a("v_mov_b32 v%d, 1" % t[5])
            a("s_mov_b64 s[58:59], exec")
            a("s_mov_b64 exec, 1")
            a("global_atomic_add v%d, v%d, s[8:9]" % (t[4], t[5]))
            a("v_cmp_eq_u64 vcc, 0, %s" % vr(vtok + 4, 2))
            a("s_nop 1")
            a("v_cndmask_b32 v%d, v%d, v%d, vcc" % (vtok, vtok + 4, vtok))
            a("v_cndmask_b32 v%d, v%d, v%d, vcc" % (vtok + 1, vtok + 5, vtok + 1))
            a("v_mov_b32 v%d, %d" % (t[4], L_TOK))
            a("ds_write_b64 v%d, %s" % (t[4], vr(vtok, 2)))
            a("s_mov_b64 exec, s[58:59]")
            a.label(Ls)
        step(mfmas(1), reads(0, 0), csops(1, w))
        a("s_add_u32 s%d, s%d, 1" % (c.s_i, c.s_i))
        a("s_cmp_lt_u32 s%d, %d" % (c.s_i, c.NS - 1))
        a("s_cbranch_scc1 %s" % L)
        for stp in range(3):
            a("s_waitcnt lgkmcnt(0)")
            step(mfmas(stp & 1), reads((stp + 1) & 1, stp + 1), csops(stp & 1, w))
        a("s_waitcnt lgkmcnt(0)")
        step(mfmas(1), [], csops(1, w))
        if w < 3: a("s_branch %s" % Lafter)
    a.label(Lafter)
    stamp(a, 2, s_wave, kidx, tmp_v=vst)
    a("v_and_b32 v%d, 31, v%d" % (t[0], vl))
    a("v_lshlrev_b32 v%d, 2, v%d" % (t[0], t[0]))
    a("v_add_u32 v%d, %d, v%d" % (t[0], L_CS, t[0]))
    for u in range(3):
        a("ds_add_f32 v%d, v%d offset:%d" % (t[0], vcs[u], u * 128))
    a("s_waitcnt lgkmcnt(0)")
    a("s_barrier")
    csQ, csK = 96, 112
    rsL, nmL = [128, 130], [132, 134]
    csV = 136
    wph = 164
    kb = 172
    pD = 180
    eT = 196
    pos, neg = 212, 220
    sT = [228 + i for i in range(8)]
    rsV, nmV = 236, 240
    aF = 196
    vb = 244
    kvA = [32, 48]
    hi_ = t[7]
    a("v_lshrrev_b32 v%d, 5, v%d" % (hi_, vl))
    a("v_lshlrev_b32 v%d, 4, v%d" % (t[1], hi_))
    a("v_add_u32 v%d, %d, v%d" % (t[1], L_CS, t[1]))
    for aa in range(4):
        a("ds_read_b128 %s, v%d offset:%d" % (vr(csQ + 4 * aa, 4), t[1], aa * 32))
        a("ds_read_b128 %s, v%d offset:%d" % (vr(csK + 4 * aa, 4), t[1], 128 + aa * 32))
    a("ds_read_b32 v%d, v%d offset:256" % (csV, t[0]))
    a("v_and_b32 v%d, 31, v%d" % (t[2], vl))
    a("s_lshl_b32 s%d, s%d, 6" % (c.st[0], s_wave))
    a("v_add_u32 v%d, s%d, v%d" % (t[2], c.st[0], t[2]))
    a("v_lshlrev_b32 v%d, 2, v%d" % (t[2], t[2]))
    a("v_add_u32 v%d, %d, v%d" % (t[2], L_RS, t[2]))
    for st in range(2):
        a("ds_read_b32 v%d, v%d offset:%d" % (rsL[st], t[2], st * 128))
        a("ds_read_b32 v%d, v%d offset:%d" % (nmL[st], t[2], 1024 + st * 128))
    a("v_lshrrev_b32 v%d, 4, v%d" % (t[3], vl))
    a("v_and_b32 v%d, 15, v%d" % (t[4], vl))
    a("v_lshrrev_b32 v%d, 2, v%d" % (t[5], t[4]))
    a("v_lshrrev_b32 v%d, 1, v%d" % (t[6], t[3]))
    a("v_lshl_add_u32 v%d, v%d, 2, v%d" % (t[5], t[6], t[5]))
    a("v_mov_b32 v%d, v%d" % (sT[7], t[5]))
    a("v_lshlrev_b32 v%d, 6, v%d" % (t[5], t[5]))
    a("v_and_b32 v%d, 1, v%d" % (t[3], t[3]))
    a("v_lshlrev_b32 v%d, 5, v%d" % (t[3], t[3]))
    a("v_and_b32 v%d, 3, v%d" % (t[4], t[4]))
    a("v_lshl_add_u32 v%d, v%d, 3, v%d" % (t[3], t[4], t[3]))
    a("v_add_u32 v%d, v%d, v%d" % (t[5], t[5], t[3]))
    a("v_add_u32 v%d, %d, v%d" % (t[5], L_WPHI, t[5]))
    for tt in range(2):
        for hf in range(2):
            a("ds_read_b64_tr_b16 %s, v%d offset:%d" % (vr(wph + 4 * tt + 2 * hf, 2), t[5], (16 * tt + 8 * hf) * 64))
    vPKw, vPKr, vRSV = 160, 161, 162
    a("s_mul_i32 s%d, s%d, %d" % (c.st[0], s_wave, 64 * PKP))
    a("s_add_u32 s%d, s%d, %d" % (c.st[0], c.st[0], L_PK))
    a("v_and_b32 v%d, 31, v%d" % (t[2], vl))
    a("v_mul_u32_u24 v%d, %d, v%d" % (t[2], PKP, t[2]))
    a("v_lshl_add_u32 v%d, v%d, 3, v%d" % (t[2], hi_, t[2]))
    a("v_add_u32 v%d, s%d, v%d" % (vPKw, c.st[0], t[2]))
    a("v_mul_u32_u24 v%d, %d, v%d" % (t[2], PKP, sT[7]))
    a("v_add_u32 v%d, v%d, v%d" % (t[2], t[2], t[3]))
    a("v_add_u32 v%d, s%d, v%d" % (vPKr, c.st[0], t[2]))
    a("s_lshl_b32 s%d, s%d, 8" % (c.st[0], s_wave))
    a("v_lshlrev_b32 v%d, 4, v%d" % (t[2], hi_))
    a("v_add_u32 v%d, s%d, v%d" % (t[2], c.st[0], t[2]))
    a("v_add_u32 v%d, %d, v%d" % (vRSV, L_RS, t[2]))
    a("s_waitcnt lgkmcnt(0)")

    def ln_qk(acc, cs, st, dst):
        for i in range(0, 16, 2):
            a("v_pk_mul_f32 %s, %s, %s op_sel_hi:[1,0]" % (vr(acc + i, 2), vr(acc + i, 2), vr(rsL[st], 2)))
            a("v_pk_fma_f32 %s, %s, %s, %s op_sel_hi:[1,0,1]" % (vr(acc + i, 2), vr(cs + i, 2), vr(nmL[st], 2), vr(acc + i, 2)))
            a("v_cvt_pk_bf16_f32 v%d, v%d, v%d" % (dst + i // 2, acc + i, acc + i + 1))
    def phi(acc, cs, st):
        ln_qk(acc, cs, st, kb)
        a("s_nop 1")
        a(mf32(pD, wph, kb, "0"))
        a(mf32(pD, wph + 4, kb + 4, pD))
        mfma_wait(a)
        softmax2(a, pD, pos, neg, eT, sT, s_l2e)

    for st in range(2):
        phi(accK[st], csK, st)
        for aa in range(4):
            a("ds_write_b64 v%d, %s offset:%d" % (vPKw, vr(pos + 2 * aa, 2), st * 32 * PKP + aa * 16))
            a("ds_write_b64 v%d, %s offset:%d" % (vPKw, vr(neg + 2 * aa, 2), st * 32 * PKP + aa * 16 + 64))
    kvT = [32, 48]; zT = [180, 196]
    aF = 212
    ones = 112
    for q in range(4): a("v_mov_b32 v%d, s%d" % (ones + q, s_ones))
    a("s_waitcnt lgkmcnt(0)")
    first = True
    for st in range(2):
        for aa in range(4):
            a("ds_read_b128 %s, v%d offset:%d" % (vr(rsV, 4), vRSV, (32 * st + 8 * aa) * 4))
            a("ds_read_b128 %s, v%d offset:%d" % (vr(nmV, 4), vRSV, 1024 + (32 * st + 8 * aa) * 4))
            a("s_waitcnt lgkmcnt(0)")
            for h2 in range(2):
                r = accV[st] + 4 * aa + 2 * h2
                a("v_pk_mul_f32 %s, %s, %s" % (vr(r, 2), vr(r, 2), vr(rsV + 2 * h2, 2)))
                a("v_pk_fma_f32 %s, %s, %s, %s op_sel_hi:[1,0,1]" % (vr(r, 2), vr(nmV + 2 * h2, 2), vr(csV, 2), vr(r, 2)))
                a("v_cvt_pk_bf16_f32 v%d, v%d, v%d" % (vb + 2 * aa + h2, r, r + 1))
        for ft in range(2):
            for u in range(2):
                for hf in range(2):
                    a("ds_read_b64_tr_b16 %s, v%d offset:%d" % (vr(aF + 8 * ft + 4 * u + 2 * hf, 2), vPKr, (st * 32 + 16 * u + 8 * hf) * PKP + ft * 64))
        a("s_waitcnt lgkmcnt(0)")
        for u in range(2):
            for ft in range(2):
                a(mf32(kvT[ft], aF + 8 * ft + 4 * u, vb + 4 * u, "0" if (st == 0 and u == 0) else kvT[ft]))
                a(mf32(zT[ft], aF + 8 * ft + 4 * u, ones, "0" if (st == 0 and u == 0) else zT[ft]))
        a("s_nop 7")
    mfma_wait(a)
    a("s_mul_i32 s%d, s%d, %d" % (c.st[0], s_wave, KVP_BYTES))
    a("s_add_u32 s%d, s%d, %d" % (c.st[0], c.st[0], L_RED))
    a("v_lshlrev_b32 v%d, 4, v%d" % (t[0], vl))
    a("v_add_u32 v%d, s%d, v%d" % (t[1], c.st[0], t[0]))
    for ft in range(2):
        for rq in range(4):
            a("ds_write_b128 v%d, %s offset:%d" % (t[1], vr(kvT[ft] + 4 * rq, 4), (ft * 4 + rq) * 1024))
    a("v_lshlrev_b32 v%d, 4, v%d" % (t[2], hi_))
    a("v_add_u32 v%d, s%d, v%d" % (t[2], c.st[0], t[2]))
    a("v_and_b32 v%d, 31, v%d" % (t[3], vl))
    a("v_cmp_eq_u32 vcc, 0, v%d" % t[3])
    a("s_and_saveexec_b64 s[58:59], vcc")
    for ft in range(2):
        for rq in range(4):
            a("ds_write_b128 v%d, %s offset:%d" % (t[2], vr(zT[ft] + 4 * rq, 4), 8192 + (ft * 8 + rq * 2) * 16))
    a("s_mov_b64 exec, s[58:59]")
    a("s_waitcnt lgkmcnt(0)")
    a("s_barrier")
    a("s_lshl_b32 s%d, s%d, 11" % (c.st[0], s_wave))
    a("s_add_u32 s%d, s%d, %d" % (c.st[0], c.st[0], L_RED))
    a("v_add_u32 v%d, s%d, v%d" % (t[1], c.st[0], t[0]))
    rr = 32
    for ww in range(4):
        for bb in range(2):
            a("ds_read_b128 %s, v%d offset:%d" % (vr(rr + 8 * ww + 4 * bb, 4), t[1], ww * KVP_BYTES + bb * 1024))
    a("v_add_u32 v%d, %d, v%d" % (t[2], L_RED + 8192, t[0]))
    a("v_and_b32 v%d, 0xff, v%d" % (t[3], t[0]))
    a("v_add_u32 v%d, %d, v%d" % (t[2], L_RED + 8192, t[3]))
    zr = 180
    for ww in range(4):
        a("ds_read_b128 %s, v%d offset:%d" % (vr(zr + 4 * ww, 4), t[2], ww * KVP_BYTES))
    a("s_waitcnt lgkmcnt(0)")
    for ww in range(1, 4):
        for q in range(0, 8, 2):
            a("v_pk_add_f32 %s, %s, %s" % (vr(rr + q, 2), vr(rr + q, 2), vr(rr + 8 * ww + q, 2)))
        for q in range(0, 4, 2):
            a("v_pk_add_f32 %s, %s, %s" % (vr(zr + q, 2), vr(zr + q, 2), vr(zr + 4 * ww + q, 2)))
    a("s_mul_i32 s%d, s%d, %d" % (c.st[0], s_rb, KVP_BYTES))
    a("s_lshl_b32 s%d, s%d, 11" % (c.st[1], s_wave))
    a("s_add_u32 s%d, s%d, s%d" % (c.st[1], c.st[1], c.st[0]))
    for bb in range(2):
        a("buffer_store_dwordx4 %s, v%d, s[%d:%d], s%d offen offset:%d sc1" % (vr(rr + 4 * bb, 4), t[0], srdKV, srdKV + 3, c.st[1], bb * 1024))
    Lz = a.newlabel("Lz")
    a("s_cmp_lg_u32 s%d, 0" % s_wave)
    a("s_cbranch_scc1 %s" % Lz)
    a("v_add_u32 v%d, 8192, v%d" % (t[2], t[0]))
    a("v_cmp_gt_u32 vcc, 16, v%d" % vl)
    a("v_mov_b32 v%d, 0x7fffffff" % t[3])
    a("s_nop 0")
    a("v_cndmask_b32 v%d, v%d, v%d, vcc" % (t[2], t[3], t[2]))
    a("buffer_store_dwordx4 %s, v%d, s[%d:%d], s%d offen sc1" % (vr(zr, 4), t[2], srdKV, srdKV + 3, c.st[0]))
    a.label(Lz)
    a("s_waitcnt vmcnt(0)")
    a("s_barrier")
    stamp(a, 3, s_wave, kidx, tmp_v=vst)
    Lf = a.newlabel("Lflag")
    a("s_cmp_lg_u32 s%d, 0" % s_wave)
    a("s_cbranch_scc1 %s" % Lf)
    a("s_lshl_b32 s%d, s%d, 7" % (c.st[0], s_h))
    a("s_lshl_b32 s%d, s%d, 3" % (c.st[1], s_rb))
    a("s_add_u32 s%d, s%d, s%d" % (c.st[0], c.st[0], c.st[1]))
    a("s_add_u32 s%d, s%d, %d" % (c.st[0], c.st[0], WS_FLAG))
    a("v_mov_b32 v%d, s%d" % (t[0], c.st[0]))
    a("s_mov_b64 s[58:59], exec")
    a("s_mov_b64 exec, 1")
    a("global_store_dwordx2 v%d, %s, s[4:5] sc1" % (t[0], vr(vtok, 2)))
    a("s_mov_b64 exec, s[58:59]")
    a.label(Lf)
    phq = [32, 48]
    for st in range(2):
        phi(accQ[st], csQ, st)
        for i in range(8):
            a("v_mov_b32 v%d, v%d" % (phq[st] + i, pos + i))
            a("v_mov_b32 v%d, v%d" % (phq[st] + 8 + i, neg + i))
    stamp(a, 4, s_wave, kidx, tmp_v=vst)
    a("s_barrier")
    kvf, zf = 64, 80
    a("v_lshlrev_b32 v%d, 4, v%d" % (t[0], vl))
    a("v_add_u32 v%d, %d, v%d" % (t[0], L_KVF, t[0]))
    a("v_lshlrev_b32 v%d, 4, v%d" % (t[1], hi_))
    a("v_add_u32 v%d, %d, v%d" % (t[1], L_ZF, t[1]))
    for tp in range(4):
        a("ds_read_b128 %s, v%d offset:%d" % (vr(kvf + 4 * tp, 4), t[0], tp * 1024))
        a("ds_read_b128 %s, v%d offset:%d" % (vr(zf + 4 * tp, 4), t[1], tp * 32))
    a("s_waitcnt lgkmcnt(0)")
    num = [96, 112]; den = [180, 196]
    for st in range(2):
        for tp in range(4):
            a(mf32(num[st], kvf + 4 * tp, phq[st] + 4 * tp, "0" if tp == 0 else num[st]))
            a(mf32(den[st], zf + 4 * tp, phq[st] + 4 * tp, "0" if tp == 0 else den[st]))
    mfma_wait(a)
    a("v_and_b32 v%d, 31, v%d" % (t[0], vl))
    a("s_lshl_b32 s%d, s%d, 6" % (c.st[0], s_wave))
    a("v_add_u32 v%d, s%d, v%d" % (t[0], c.st[0], t[0]))
    a("v_lshlrev_b32 v%d, 11, v%d" % (t[0], t[0]))
    a("v_lshl_add_u32 v%d, v%d, 4, v%d" % (t[0], hi_, t[0]))
    for st in range(2):
        a("v_add_f32 v%d, 0x358637bd, v%d" % (t[1], den[st]))
        a("v_rcp_f32 v%d, v%d" % (t[1], t[1]))
        a("s_nop 0")
        for i in range(16):
            a("v_mul_f32 v%d, v%d, v%d" % (num[st] + i, num[st] + i, t[1]))
        ob = 212 + 8 * st
        for i in range(8):
            a("v_cvt_pk_bf16_f32 v%d, v%d, v%d" % (ob + i, num[st] + 2 * i, num[st] + 2 * i + 1))
        a("s_nop 1")
        for pr in range(2):
            a("v_permlane32_swap_b32 v%d, v%d" % (ob + 4 * pr, ob + 4 * pr + 2))
            a("v_permlane32_swap_b32 v%d, v%d" % (ob + 4 * pr + 1, ob + 4 * pr + 3))
        for pr in range(2):
            a("s_mov_b32 s%d, %d" % (c.st[1], st * 32 * 2048))
            a("buffer_store_dwordx4 %s, v%d, s[%d:%d], s%d offen offset:%d" % (vr(ob + 4 * pr, 4), t[0], srdO, srdO + 3, c.st[1], pr * 32))
    a("s_waitcnt vmcnt(0)") if STAMPS else None
    stamp(a, 5, s_wave, kidx, tmp_v=vst)
    a.label(Lend)
    a("s_endpgm")
    return kernel_desc(name, vmax, 80), lds
```

```python
import sys
from common import *
from kgemm import gemm_kernel

NAME = "sequential_preLN__linear_kernel_hedgehog__dense_activation_relu__prompt"
HDR = open("cdna_kernels/%s.s.ref" % NAME).read().split("; Override launch geometry")[0]

def build(kinds):
    a = Asm()
    descs = []; launches = []
    for k in kinds:
        if k == "qkv":
            from kqkv import qkv_kernel
            d, lds = qkv_kernel(a, "qkv_kernel")
            launches.append(("qkv_kernel", 256, 512, lds))
        else:
            d, lds = gemm_kernel(a, k + "_kernel", k)
            launches.append((k + "_kernel", 256, 512, lds))
        descs.append(d)
    out = HDR
    for (n, g, b, lds) in launches:
        out += "; @launch kernel=%s grid=(%d,1,1) block=(%d,1,1) lds=%d\n" % (n, g, b, lds)
    out += '.amdgcn_target "amdgcn-amd-amdhsa--gfx950"\n.text\n'
    out += a.text()
    out += '.section .rodata,"a"\n' + "".join(descs)
    return out

if __name__ == "__main__":
    kinds = sys.argv[2].split(",")
    open(sys.argv[1], "w").write(build(kinds))
```

```python
from common import *
import os
DBG = os.environ.get("GDBG", "")

def magic_div(P, maxs):
    for sh in range(8, 24):
        mul = -(-(1 << sh) // P)
        if mul >= (1 << 24): continue
        if all(((s * mul) >> sh) == s // P for s in range(maxs)) and (maxs * mul) < (1 << 32):
            return mul, sh
    raise Exception("no magic")

def swz_mask_bits(P):
    if P % 16 in (4, 12):
        return [(3, 1)]
    if P % 16 == 8:
        return [(1, 1), (3, 2)]
    if P % 16 == 0:
        return [(0, 1), (1, 2), (3, 3)]
    raise Exception("P")

class Cfg:
    pass

def emit_producer_setup(a, c, vbase):
    vl = c.v_lane
    t0, t1, t2, t3 = c.vt[0:4]
    st = c.st[0]
    c.vA = [vbase + i for i in range(c.a_ins)]
    c.vB = [vbase + c.a_ins + i for i in range(c.b_ins)]
    a("v_lshrrev_b32 v%d, 3, v%d" % (t0, vl))
    a("v_and_b32 v%d, 7, v%d" % (t1, vl))
    a("s_mul_i32 s%d, s%d, %d" % (st, c.s_p, c.a_ins * 8))
    for j in range(c.a_ins):
        a("v_add_u32 v%d, s%d, v%d" % (t2, st, t0))
        if j: a("v_add_u32 v%d, %d, v%d" % (t2, 8 * j, t2))
        a("v_bfe_u32 v%d, v%d, 1, 3" % (t3, t2))
        if "noswzA" in DBG: a("v_mov_b32 v%d, v%d" % (t3, t1))
        else: a("v_xor_b32 v%d, v%d, v%d" % (t3, t3, t1))
        a("v_lshlrev_b32 v%d, 4, v%d" % (t3, t3))
        a("s_mov_b32 s%d, %d" % (c.st[1], c.lda))
        a("v_mul_lo_u32 v%d, v%d, s%d" % (t2, t2, c.st[1]))
        a("v_add_u32 v%d, v%d, v%d" % (c.vA[j], t2, t3))
    P = c.P
    mul, sh = magic_div(P, 64 * P + 64)
    a("s_mul_i32 s%d, s%d, %d" % (st, c.s_p, c.b_ins * 64))
    for j in range(c.b_ins):
        a("v_add_u32 v%d, s%d, v%d" % (t0, st, vl))
        if j: a("v_add_u32 v%d, %d, v%d" % (t0, 64 * j, t0))
        a("v_mul_u32_u24 v%d, %d, v%d" % (t1, mul, t0))
        a("v_lshrrev_b32 v%d, %d, v%d" % (t1, sh, t1))
        a("v_mul_u32_u24 v%d, %d, v%d" % (t2, P, t1))
        a("v_sub_u32 v%d, v%d, v%d" % (t2, t0, t2))
        for (kb, jb) in (c.swz if "noswzB" not in DBG else []):
            a("v_bfe_u32 v%d, v%d, %d, 1" % (t3, t1, kb))
            a("v_lshlrev_b32 v%d, %d, v%d" % (t3, jb, t3))
            a("v_xor_b32 v%d, v%d, v%d" % (t2, t2, t3))
        if c.colmode == "lin":
            a("v_lshlrev_b32 v%d, 4, v%d" % (t2, t2))
        else:
            a("v_lshrrev_b32 v%d, 2, v%d" % (t3, t2))
            a("v_lshlrev_b32 v%d, 11, v%d" % (t3, t3))
            a("v_and_b32 v%d, 3, v%d" % (t2, t2))
            a("v_lshlrev_b32 v%d, 4, v%d" % (t2, t2))
            a("v_add_u32 v%d, v%d, v%d" % (t2, t2, t3))
        a("s_mov_b32 s%d, %d" % (c.st[1], c.ldb))
        a("v_mul_lo_u32 v%d, v%d, s%d" % (t1, t1, c.st[1]))
        a("v_add_u32 v%d, v%d, v%d" % (c.vB[j], t1, t2))

def emit_dbg_hot(a, c):
    if "hotA" in DBG:
        for r in c.vA: a("v_lshlrev_b32 v%d, 4, v%d" % (r, c.v_lane))
        c.hotA = True
    if "hotB" in DBG:
        for r in c.vB: a("v_lshlrev_b32 v%d, 4, v%d" % (r, c.v_lane))
        c.hotB = True

def emit_issue_A(a, c):
    a("s_add_u32 m0, s%d, s%d" % (c.s_slotA, c.s_mA))
    for j in range(c.a_ins):
        if j: a("s_add_u32 m0, m0, 0x400")
        a("s_nop 0")
        a("buffer_load_dwordx4 v%d, s[%d:%d], %s offen lds" % (c.vA[j], c.srdA, c.srdA + 3, "0" if "hotA" in DBG else "s%d" % c.s_ka))
    a("s_add_u32 s%d, s%d, %d" % (c.s_slotA, c.s_slotA, c.Abytes))
    a("s_cmp_eq_u32 s%d, %d" % (c.s_slotA, c.SA * c.Abytes))
    a("s_cselect_b32 s%d, 0, s%d" % (c.s_slotA, c.s_slotA))
    a("s_add_u32 s%d, s%d, 128" % (c.s_ka, c.s_ka))
    if c.rotate:
        a("s_cmp_eq_u32 s%d, %d" % (c.s_ka, c.NS * 128))
        a("s_cselect_b32 s%d, 0, s%d" % (c.s_ka, c.s_ka))

def emit_issue_B(a, c):
    a("s_add_u32 m0, s%d, s%d" % (c.s_slotB, c.s_mB))
    for j in range(c.b_ins):
        if j: a("s_add_u32 m0, m0, 0x400")
        a("s_nop 0")
        a("buffer_load_dwordx4 v%d, s[%d:%d], %s offen lds" % (c.vB[j], c.srdB, c.srdB + 3, "0" if "hotB" in DBG else "s%d" % c.s_kb))
    a("s_add_u32 s%d, s%d, %d" % (c.s_slotB, c.s_slotB, c.Bbytes))
    a("s_cmp_eq_u32 s%d, %d" % (c.s_slotB, c.SB * c.Bbytes))
    a("s_cselect_b32 s%d, 0, s%d" % (c.s_slotB, c.s_slotB))
    a("s_add_u32 s%d, s%d, %d" % (c.s_kb, c.s_kb, 64 * c.ldb))
    if c.rotate:
        a("s_cmp_eq_u32 s%d, %d" % (c.s_kb, c.NS * 64 * c.ldb))
        a("s_cselect_b32 s%d, 0, s%d" % (c.s_kb, c.s_kb))

def emit_producer_loop(a, c):
    emit_dbg_hot(a, c)
    SA, SB, NS = c.SA, c.SB, c.NS
    na, nb = c.a_ins, c.b_ins
    a("s_mul_i32 s%d, s%d, %d" % (c.s_mA, c.s_p, c.a_ins * 1024))
    a("s_mul_i32 s%d, s%d, %d" % (c.s_mB, c.s_p, c.b_ins * 1024))
    a("s_add_u32 s%d, s%d, %d" % (c.s_mB, c.s_mB, c.Bbase))
    a("s_mov_b32 s%d, 0" % c.s_slotA)
    a("s_mov_b32 s%d, 0" % c.s_slotB)
    Smax = max(SA, SB)
    log = []
    def virt(j, emit=True):
        ops = []
        if 0 <= j + SB - 1 < NS: ops.append(("B", j + SB - 1, nb))
        if 0 <= j + SA - 1 < NS: ops.append(("A", j + SA - 1, na))
        if SA > SB: ops.reverse()
        for o in ops:
            log.append(o)
            if emit: (emit_issue_A if o[0] == "A" else emit_issue_B)(a, c)
    def need(stage):
        last = max(i for i, o in enumerate(log) if o[1] == stage and o[0] in "AB" and ((o[0], stage) in (("A", stage), ("B", stage))))
        return sum(o[2] for o in log[last + 1:])
    for j in range(-(Smax - 1), 0): virt(j)
    nmain = NS - Smax + 1
    cnt0 = need(0)
    a("s_mov_b32 s%d, 0" % c.s_i)
    L = a.newlabel("Lprod")
    a.label(L)
    a("s_waitcnt vmcnt(%d)" % cnt0)
    a("s_barrier")
    virt(0)
    assert need(1) == cnt0, (need(1), cnt0)
    if getattr(c, "prod_iter_hook", None): c.prod_iter_hook()
    a("s_add_u32 s%d, s%d, 1" % (c.s_i, c.s_i))
    a("s_cmp_lt_u32 s%d, %d" % (c.s_i, nmain))
    a("s_cbranch_scc1 %s" % L)
    for j in range(1, nmain): virt(j, emit=False)
    for i in range(nmain, NS):
        a("s_waitcnt vmcnt(%d)" % need(i))
        a("s_barrier")
        virt(i)

def emit_consumer16_setup(a, c):
    vl = c.v_lane
    t0, t1, t2, t3 = c.vt[0:4]
    st0, st1 = c.st[0:2]
    a("v_and_b32 v%d, 15, v%d" % (t0, vl))
    a("v_lshrrev_b32 v%d, 4, v%d" % (t1, vl))
    a("v_lshrrev_b32 v%d, 1, v%d" % (t2, t0))
    a("s_lshl_b32 s%d, s%d, 6" % (st0, c.s_wm))
    a("v_add_u32 v%d, s%d, v%d" % (t3, st0, t0))
    a("v_lshlrev_b32 v%d, 7, v%d" % (t3, t3))
    a("v_xor_b32 v%d, v%d, v%d" % (t2, t2, t1))
    for stp in range(2):
        if stp: a("v_xor_b32 v%d, 4, v%d" % (t2, t2))
        a("v_lshl_add_u32 v%d, v%d, 4, v%d" % (c.vX[stp], t2, t3))
    a("v_lshrrev_b32 v%d, 2, v%d" % (t2, t0))
    a("v_lshl_add_u32 v%d, v%d, 3, v%d" % (t3, t1, t2))
    a("v_mov_b32 v%d, 0" % c.vt[4])
    for (kb, jb) in c.swz:
        a("v_bfe_u32 v%d, v%d, %d, 1" % (c.vt[5], t3, kb))
        a("v_lshlrev_b32 v%d, %d, v%d" % (c.vt[5], jb - 1, c.vt[5]))
        a("v_or_b32 v%d, v%d, v%d" % (c.vt[4], c.vt[4], c.vt[5]))
    a("v_mul_u32_u24 v%d, %d, v%d" % (t3, c.P * 16, t3))
    a("v_and_b32 v%d, 3, v%d" % (t2, t0))
    a("v_lshl_add_u32 v%d, v%d, 3, v%d" % (t3, t2, t3))
    a("v_add_u32 v%d, %d, v%d" % (t3, c.Bbase, t3))
    a("s_mul_i32 s%d, s%d, %d" % (st0, c.s_wn, c.NT))
    for q in range(2):
        a("s_add_u32 s%d, s%d, %d" % (st1, st0, q))
        a("v_xor_b32 v%d, s%d, v%d" % (t2, st1, c.vt[4]))
        a("v_lshl_add_u32 v%d, v%d, 5, v%d" % (c.vW[q], t2, t3))
        if q: a("v_subrev_u32 v%d, 32, v%d" % (c.vW[q], c.vW[q]))

def reads16(c, buf, stp):
    r = []
    if "noread" in DBG: return []
    for mt in range(c.MT):
        r.append("ds_read_b128 %s, v%d offset:%d" % (vr(c.fX[buf] + 4 * mt, 4), c.vX[stp], mt * 2048))
    xs = r; ws = []
    for t in range(c.NT):
        for hf in range(2):
            off = (32 * stp + 4 * hf) * c.P * 16 + t * 32
            ws.append("ds_read_b64_tr_b16 %s, v%d offset:%d" % (vr(c.fW[buf] + 4 * t + 2 * hf, 2), c.vW[t & 1], off))
    out = ws[0:2] + xs + ws[2:]
    if "notr" in DBG: out = xs
    if "nox" in DBG: out = ws
    return out

def mfmas16(c, buf):
    m = []
    if "nomfma" in DBG: return []
    for t in range(c.NT):
        for mt in range(c.MT):
            acc = c.acc + 4 * (t * c.MT + mt)
            m.append("v_mfma_f32_16x16x32_bf16 %s, %s, %s, %s" % (vr(acc, 4), vr(c.fW[buf] + 4 * t, 4), vr(c.fX[buf] + 4 * mt, 4), vr(acc, 4)))
    return m

def interleave(a, mf, rd, first=1, per=1):
    ri = 0
    for i, m in enumerate(mf):
        a(m)
        if i + 1 >= first:
            for _ in range(per):
                if ri < len(rd):
                    a(rd[ri]); ri += 1
    while ri < len(rd):
        a(rd[ri]); ri += 1

def emit_addr_advance(a, c, regsA, regsB):
    for (sl, dl, nb, S, regs) in ((c.s_cslotA, c.s_deltaA, c.Abytes, c.SA, regsA), (c.s_cslotB, c.s_deltaB, c.Bbytes, c.SB, regsB)):
        a("s_add_u32 s%d, s%d, %d" % (sl, sl, nb))
        a("s_mov_b32 s%d, %d" % (dl, nb))
        a("s_cmp_eq_u32 s%d, %d" % (sl, S * nb))
        a("s_cselect_b32 s%d, 0, s%d" % (sl, sl))
        a("s_cselect_b32 s%d, %d, s%d" % (dl, -(S - 1) * nb, dl))
    for r in regsA: a("v_add_u32 v%d, s%d, v%d" % (r, c.s_deltaA, r))
    for r in regsB: a("v_add_u32 v%d, s%d, v%d" % (r, c.s_deltaB, r))

def set_rings(c, SA, SB):
    c.SA, c.SB = SA, SB
    c.Abytes = c.nA * 1024; c.Bbytes = c.nB * 1024
    if "fakering" in DBG: c.Abytes //= 2; c.Bbytes //= 2
    c.Bbase = SA * c.Abytes
    c.ring_bytes = SA * c.Abytes + SB * c.Bbytes

def emit_consumer16_loop(a, c):
    per = 1 if c.NT * c.MT >= 20 else 2
    for i in range(c.NT * c.MT * 4):
        a("v_mov_b32 v%d, 0" % (c.acc + i))
    a("s_mov_b32 s%d, 0" % c.s_cslotA)
    a("s_mov_b32 s%d, 0" % c.s_cslotB)
    a("s_barrier")
    for r in reads16(c, 0, 0): a(r)
    a("s_mov_b32 s%d, 0" % c.s_i)
    L = a.newlabel("Lcons")
    a.label(L)
    a("s_waitcnt lgkmcnt(0)")
    interleave(a, mfmas16(c, 0), reads16(c, 1, 1), 1, per)
    a("s_waitcnt lgkmcnt(0)")
    a("s_barrier")
    emit_addr_advance(a, c, [c.vX[0], c.vX[1]], [c.vW[0], c.vW[1]])
    interleave(a, mfmas16(c, 1), reads16(c, 0, 0), 1, per)
    a("s_add_u32 s%d, s%d, 1" % (c.s_i, c.s_i))
    a("s_cmp_lt_u32 s%d, %d" % (c.s_i, c.NS - 1))
    a("s_cbranch_scc1 %s" % L)
    a("s_waitcnt lgkmcnt(0)")
    interleave(a, mfmas16(c, 0), reads16(c, 1, 1), 1, per)
    a("s_waitcnt lgkmcnt(0)")
    for m in mfmas16(c, 1): a(m)
```

```python
from common import *
from gemm import *

import os
RINGS = {"wo": (6, 6), "w1": (3, 3), "w2": (6, 6)}
for k_ in RINGS:
    if os.environ.get("RING_" + k_): RINGS[k_] = tuple(int(x) for x in os.environ["RING_" + k_].split(","))

def base_cfg(BM, BN, K, lda, ldb, S):
    c = Cfg()
    c.BM, c.BN, c.K, c.lda, c.ldb, c.S = BM, BN, K, lda, ldb, S
    c.NS = K // 64
    c.nA = BM // 8; c.nB = BN // 8
    c.a_ins = c.nA // 4; c.b_ins = c.nB // 4
    assert c.nA % 4 == 0 and c.nB % 4 == 0
    c.P = BN // 8
    c.stage_bytes = (c.nA + c.nB) * 1024
    c.rotate = False
    c.colmode = "lin"
    return c

def gemm_kernel(a, name, kind):
    if kind == "wo":
        c = base_cfg(128, 64, 1024, 2048, 2048, 6); set_rings(c, *RINGS["wo"])
        XM, XN = 4, 8
    elif kind == "w1":
        c = base_cfg(128, 224, 1024, 2048, 7168, 3); set_rings(c, *RINGS["w1"])
        XM, XN = 8, 4
    else:
        c = base_cfg(128, 64, 3584, 7168, 2048, 6); set_rings(c, *RINGS["w2"])
        XM, XN = 4, 8
    c.swz = swz_mask_bits(c.P)
    c.MT = 4; c.NT = c.BN // 32
    tilesM, tilesN = 16, 16
    c.srdA, c.srdB, srdC, srdR, srdS, srdT = 16, 20, 24, 28, 32, 36
    s_wave, s_tm, s_tn = 40, 41, 42
    c.s_p = c.s_wm = 43; c.s_wn = 44
    c.s_slotA = c.s_cslotA = 45; c.s_ka = c.s_deltaA = 46; c.s_kb = c.s_deltaB = 47; c.s_mA = 48; c.s_mB = 49; c.s_i = 50; c.s_slotB = c.s_cslotB = 51
    c.st = [52, 53, 54, 55]
    nacc = c.MT * c.NT * 4
    c.acc = 0
    fr = nacc
    c.fX = [fr, fr + 16 + 4 * c.NT]
    c.fW = [fr + 16, fr + 32 + 4 * c.NT]
    misc = fr + 2 * (16 + 4 * c.NT)
    c.v_lane = misc
    c.vX = [misc + 1, misc + 2]; c.vW = [misc + 3, misc + 4]
    c.vt = [misc + 5 + i for i in range(8)]
    vmax = misc + 13 + 8
    lds = c.ring_bytes
    side = lds
    if kind == "w1":
        lds += 128 * 8 + 224 * 4
    pitch = c.BN * 2 + 16
    ctile = 128 * pitch
    cbase = 0
    assert ctile <= c.ring_bytes

    kernel_header(a, name)
    Lend = a.newlabel("Lend")
    a("s_cmp_ge_u32 s2, 256")
    a("s_cbranch_scc1 %s" % Lend)
    ka_a = {"wo": KA_WS, "w1": KA_WS, "w2": KA_WS}[kind]
    a_off = {"wo": WS_O, "w1": WS_H, "w2": WS_H1}[kind]
    ka_b = {"wo": KA_WO, "w1": KA_W1, "w2": KA_W2}[kind]
    a("s_load_dwordx2 s[4:5], s[0:1], %d" % KA_WS)
    a("s_load_dwordx2 s[6:7], s[0:1], %d" % ka_b)
    a("s_load_dwordx2 s[8:9], s[0:1], %d" % KA_OUT)
    a("s_load_dwordx2 s[10:11], s[0:1], %d" % KA_X)
    a("v_and_b32 v%d, 63, v0" % c.v_lane)
    a("v_lshrrev_b32 v1, 6, v0")
    a("s_nop 0")
    a("v_readfirstlane_b32 s%d, v1" % s_wave)
    a("s_and_b32 s%d, s2, 7" % c.st[0])
    a("s_lshr_b32 s%d, s2, 3" % c.st[1])
    PM = tilesM // XM
    lgPM = PM.bit_length() - 1; lgXM = XM.bit_length() - 1; lgXN = XN.bit_length() - 1
    a("s_and_b32 s%d, s%d, %d" % (c.st[2], c.st[0], PM - 1))
    a("s_lshr_b32 s%d, s%d, %d" % (c.st[3], c.st[0], lgPM))
    a("s_lshl_b32 s%d, s%d, %d" % (s_tm, c.st[2], lgXM))
    a("s_and_b32 s%d, s%d, %d" % (c.st[2], c.st[1], XM - 1))
    a("s_add_u32 s%d, s%d, s%d" % (s_tm, s_tm, c.st[2]))
    a("s_lshl_b32 s%d, s%d, %d" % (s_tn, c.st[3], lgXN))
    a("s_lshr_b32 s%d, s%d, %d" % (c.st[2], c.st[1], lgXM))
    a("s_add_u32 s%d, s%d, s%d" % (s_tn, s_tn, c.st[2]))
    a("s_waitcnt lgkmcnt(0)")
    a("s_mul_i32 s%d, s%d, %d" % (c.st[0], s_tm, 128 * c.lda))
    a("s_add_u32 s%d, s%d, %d" % (c.st[0], c.st[0], a_off))
    a("s_add_u32 s12, s4, s%d" % c.st[0])
    a("s_addc_u32 s13, s5, 0")
    make_srd(a, c.srdA, "s12", "s13", 128 * c.lda)
    a("s_mul_i32 s%d, s%d, %d" % (c.st[0], s_tn, c.BN * 2))
    a("s_add_u32 s12, s6, s%d" % c.st[0])
    a("s_addc_u32 s13, s7, 0")
    a("s_sub_u32 s%d, %d, s%d" % (c.st[1], c.K * c.ldb, c.st[0]))
    make_srd(a, c.srdB, "s12", "s13", "s%d" % c.st[1])
    ldc = {"wo": 2048, "w1": 7168, "w2": 2048}[kind]
    a("s_mul_i32 s%d, s%d, %d" % (c.st[0], s_tm, 128 * ldc))
    a("s_mul_i32 s%d, s%d, %d" % (c.st[1], s_tn, c.BN * 2))
    a("s_add_u32 s%d, s%d, s%d" % (c.st[0], c.st[0], c.st[1]))
    if kind == "w2":
        a("s_add_u32 s12, s8, s%d" % c.st[0])
        a("s_addc_u32 s13, s9, 0")
    else:
        a("s_add_u32 s%d, s%d, %d" % (c.st[2], c.st[0], {"wo": WS_H, "w1": WS_H1}[kind]))
        a("s_add_u32 s12, s4, s%d" % c.st[2])
        a("s_addc_u32 s13, s5, 0")
    a("s_sub_u32 s%d, %d, s%d" % (c.st[1], S_ * ldc, c.st[0]))
    make_srd(a, srdC, "s12", "s13", "s%d" % c.st[1])
    if kind == "wo":
        a("s_add_u32 s12, s10, s%d" % c.st[0])
        a("s_addc_u32 s13, s11, 0")
        make_srd(a, srdR, "s12", "s13", "s%d" % c.st[1])
    if kind == "w2":
        a("s_add_u32 s%d, s%d, %d" % (c.st[2], c.st[0], WS_H))
        a("s_add_u32 s12, s4, s%d" % c.st[2])
        a("s_addc_u32 s13, s5, 0")
        make_srd(a, srdR, "s12", "s13", "s%d" % c.st[1])
    if kind == "wo":
        a("s_mul_i32 s%d, s%d, %d" % (c.st[0], s_tm, 128 * 128))
        a("s_lshl_b32 s%d, s%d, 3" % (c.st[1], s_tn))
        a("s_add_u32 s%d, s%d, s%d" % (c.st[0], c.st[0], c.st[1]))
        a("s_add_u32 s%d, s%d, %d" % (c.st[0], c.st[0], WS_ST2))
        a("s_add_u32 s12, s4, s%d" % c.st[0])
        a("s_addc_u32 s13, s5, 0")
        make_srd(a, srdS, "s12", "s13", 128 * 128)
    if kind == "w1":
        a("s_mul_i32 s%d, s%d, %d" % (c.st[0], s_tm, 128 * 128))
        a("s_add_u32 s%d, s%d, %d" % (c.st[0], c.st[0], WS_ST2))
        a("s_add_u32 s12, s4, s%d" % c.st[0])
        a("s_addc_u32 s13, s5, 0")
        make_srd(a, srdS, "s12", "s13", 128 * 128)
        a("s_mul_i32 s%d, s%d, %d" % (c.st[0], s_tn, 224 * 4))
        a("s_add_u32 s%d, s%d, %d" % (c.st[0], c.st[0], WS_CS1))
        a("s_add_u32 s12, s4, s%d" % c.st[0])
        a("s_addc_u32 s13, s5, 0")
        make_srd(a, srdT, "s12", "s13", 15 * 3584 * 4 + 224 * 4)
    kidx = {"wo": 1, "w1": 2, "w2": 3}[kind]
    vst = (vmax + 1) // 2 * 2
    vmax = vst + 4
    stamp(a, 0, s_wave, kidx, tmp_v=vst)
    Lcons = a.newlabel("Lconsumer")
    Lfin = a.newlabel("Lfinal")
    a("s_cmp_lt_u32 s%d, 4" % s_wave)
    a("s_cbranch_scc1 %s" % Lcons)

    a("s_sub_u32 s%d, s%d, 4" % (c.s_p, s_wave))
    a("s_mov_b32 s%d, 0" % c.s_ka)
    a("s_mov_b32 s%d, 0" % c.s_kb)
    emit_producer_setup(a, c, 32)
    stamp(a, 1, s_wave, kidx, tmp_v=vst)
    emit_producer_loop(a, c)
    a("s_barrier")
    stamp(a, 2, s_wave, kidx, tmp_v=vst)
    a("s_branch %s" % Lfin)

    a.label(Lcons)
    a("s_lshr_b32 s%d, s%d, 1" % (c.s_wm, s_wave))
    a("s_and_b32 s%d, s%d, 1" % (c.s_wn, s_wave))
    emit_consumer16_setup(a, c)
    if kind == "w1":
        emit_k3_side(a, c, s_wave, srdS, srdT, side)
    stamp(a, 1, s_wave, kidx, tmp_v=vst)
    stamp(a, 6, s_wave, kidx, tmp_v=vst)
    emit_consumer16_loop(a, c)
    stamp(a, 7, s_wave, kidx, tmp_v=vst)
    stamp(a, 2, s_wave, kidx, tmp_v=vst)
    a("s_barrier")
    a("s_nop 7"); a("s_nop 7")
    t = c.vt
    vl = c.v_lane
    a("v_and_b32 v%d, 15, v%d" % (t[0], vl))
    a("s_lshl_b32 s%d, s%d, 6" % (c.st[0], c.s_wm))
    a("v_add_u32 v%d, s%d, v%d" % (t[0], c.st[0], t[0]))
    a("v_mul_u32_u24 v%d, %d, v%d" % (t[1], pitch, t[0]))
    a("v_lshrrev_b32 v%d, 4, v%d" % (t[2], vl))
    a("v_lshl_add_u32 v%d, v%d, 3, v%d" % (t[1], t[2], t[1]))
    a("s_mul_i32 s%d, s%d, %d" % (c.st[0], c.s_wn, c.NT * 32))
    a("s_add_u32 s%d, s%d, %d" % (c.st[0], c.st[0], cbase))
    a("v_add_u32 v%d, s%d, v%d" % (t[1], c.st[0], t[1]))
    f0 = c.fX[0]
    if kind == "w1":
        a("v_lshlrev_b32 v%d, 3, v%d" % (t[3], t[0]))
        a("v_add_u32 v%d, %d, v%d" % (t[3], side, t[3]))
        for mt in range(4):
            a("ds_read_b64 %s, v%d offset:%d" % (vr(f0 + 2 * mt, 2), t[3], mt * 16 * 8))
        a("v_lshlrev_b32 v%d, 4, v%d" % (t[4], t[2]))
        a("s_mul_i32 s%d, s%d, %d" % (c.st[0], c.s_wn, c.NT * 64))
        a("v_add_u32 v%d, s%d, v%d" % (t[4], c.st[0], t[4]))
        a("v_add_u32 v%d, %d, v%d" % (t[4], side, t[4]))
        for tt in range(c.NT):
            a("ds_read_b128 %s, v%d offset:%d" % (vr(f0 + 8 + 4 * tt, 4), t[4], 1024 + tt * 64))
        a("s_waitcnt lgkmcnt(0)")
        rs = f0 + 8 + 4 * c.NT
        for mt in range(4):
            a("v_mov_b32 v%d, v%d" % (rs + 2 * mt, f0 + 2 * mt + 1))
    tmp = c.fX[1] + 16
    for tt in range(c.NT):
        for mt in range(4):
            acc = c.acc + 4 * (tt * 4 + mt)
            if kind == "w1":
                cs = f0 + 8 + 4 * tt
                for h in range(2):
                    a("v_pk_fma_f32 %s, %s, %s, %s op_sel_hi:[1,0,1]" % (vr(acc + 2 * h, 2), vr(cs + 2 * h, 2), vr(f0 + 2 * mt, 2), vr(acc + 2 * h, 2)))
                    a("v_pk_mul_f32 %s, %s, %s op_sel_hi:[1,0]" % (vr(acc + 2 * h, 2), vr(acc + 2 * h, 2), vr(rs + 2 * mt, 2)))
            d = tmp + 2 * ((tt * 4 + mt) % 4)
            a("v_cvt_pk_bf16_f32 v%d, v%d, v%d" % (d, acc, acc + 1))
            a("v_cvt_pk_bf16_f32 v%d, v%d, v%d" % (d + 1, acc + 2, acc + 3))
            if kind == "w1":
                a("v_pk_max_i16 v%d, v%d, 0" % (d, d))
                a("v_pk_max_i16 v%d, v%d, 0" % (d + 1, d + 1))
            a("ds_write_b64 v%d, %s offset:%d" % (t[1], vr(d, 2), mt * 16 * pitch + tt * 32))
    a("s_waitcnt lgkmcnt(0)")

    a.label(Lfin)
    G = c.BN // 8
    nf = 128 * G // 64 // 8
    vb = 0
    vL = [vb + i for i in range(nf)]
    vG = [vb + nf + i for i in range(nf)]
    vD = vb + 2 * nf + (2 * nf) % 2
    vD = (vD + 3) // 4 * 4
    vR = vD + 4 * nf
    mul, sh = magic_div(G, 128 * G + 64)
    t = [vR + 4 * nf + i for i in range(10)]
    vtop = vR + 4 * nf + 10
    assert vtop <= misc
    a("v_and_b32 v%d, 63, v%d" % (t[9], c.v_lane))
    a("s_mul_i32 s%d, s%d, %d" % (c.st[0], s_wave, nf * 64))
    for j in range(nf):
        a("v_add_u32 v%d, s%d, v%d" % (t[0], c.st[0], t[9]))
        if j: a("v_add_u32 v%d, %d, v%d" % (t[0], 64 * j, t[0]))
        a("v_mul_u32_u24 v%d, %d, v%d" % (t[1], mul, t[0]))
        a("v_lshrrev_b32 v%d, %d, v%d" % (t[1], sh, t[1]))
        a("v_mul_u32_u24 v%d, %d, v%d" % (t[2], G, t[1]))
        a("v_sub_u32 v%d, v%d, v%d" % (t[2], t[0], t[2]))
        a("v_lshlrev_b32 v%d, 4, v%d" % (t[2], t[2]))
        a("v_mul_u32_u24 v%d, %d, v%d" % (t[3], pitch, t[1]))
        a("v_add_u32 v%d, v%d, v%d" % (vL[j], t[3], t[2]))
        a("v_add_u32 v%d, %d, v%d" % (vL[j], cbase, vL[j]))
        a("v_mul_u32_u24 v%d, %d, v%d" % (t[3], ldc, t[1]))
        a("v_add_u32 v%d, v%d, v%d" % (vG[j], t[3], t[2]))
        if kind in ("wo", "w2"):
            a("buffer_load_dwordx4 %s, v%d, s[%d:%d], 0 offen" % (vr(vR + 4 * j, 4), vG[j], srdR, srdR + 3))
    stamp(a, 3, s_wave, kidx, tmp_v=vst)
    a("s_barrier")
    stamp(a, 4, s_wave, kidx, tmp_v=vst)
    for j in range(nf):
        a("ds_read_b128 %s, v%d" % (vr(vD + 4 * j, 4), vL[j]))
    a("s_waitcnt vmcnt(0) lgkmcnt(0)")
    for j in range(nf):
        if kind in ("wo", "w2"):
            for q in range(4):
                d = vD + 4 * j + q; r = vR + 4 * j + q
                a("v_lshlrev_b32 v%d, 16, v%d" % (t[0], d))
                a("v_and_b32 v%d, 0xffff0000, v%d" % (t[1], d))
                a("v_lshlrev_b32 v%d, 16, v%d" % (t[2], r))
                a("v_and_b32 v%d, 0xffff0000, v%d" % (t[3], r))
                a("v_add_f32 v%d, v%d, v%d" % (t[0], t[0], t[2]))
                a("v_add_f32 v%d, v%d, v%d" % (t[1], t[1], t[3]))
                a("v_cvt_pk_bf16_f32 v%d, v%d, v%d" % (d, t[0], t[1]))
                if kind == "wo":
                    a("v_lshlrev_b32 v%d, 16, v%d" % (t[0], d))
                    a("v_and_b32 v%d, 0xffff0000, v%d" % (t[1], d))
                    if q == 0:
                        a("v_add_f32 v%d, v%d, v%d" % (t[4], t[0], t[1]))
                        a("v_mul_f32 v%d, v%d, v%d" % (t[5], t[0], t[0]))
                    else:
                        a("v_add_f32 v%d, v%d, v%d" % (t[4], t[4], t[0]))
                        a("v_add_f32 v%d, v%d, v%d" % (t[4], t[4], t[1]))
                        a("v_fmac_f32 v%d, v%d, v%d" % (t[5], t[0], t[0]))
                    a("v_fmac_f32 v%d, v%d, v%d" % (t[5], t[1], t[1]))
        a("buffer_store_dwordx4 %s, v%d, s[%d:%d], 0 offen%s" % (vr(vD + 4 * j, 4), vG[j], srdC, srdC + 3, os.environ.get("STFLAG", "")))
        if kind == "wo":
            for dpp in ("quad_perm:[1,0,3,2]", "quad_perm:[2,3,0,1]", "row_half_mirror"):
                a("s_nop 1")
                a("v_add_f32_dpp v%d, v%d, v%d %s row_mask:0xf bank_mask:0xf" % (t[6], t[4], t[4], dpp))
                a("v_add_f32_dpp v%d, v%d, v%d %s row_mask:0xf bank_mask:0xf" % (t[7], t[5], t[5], dpp))
                a("v_mov_b32 v%d, v%d" % (t[4], t[6]))
                a("v_mov_b32 v%d, v%d" % (t[5], t[7]))
            a("v_add_u32 v%d, s%d, v%d" % (t[0], c.st[0], t[9]))
            if j: a("v_add_u32 v%d, %d, v%d" % (t[0], 64 * j, t[0]))
            a("v_lshrrev_b32 v%d, 3, v%d" % (t[1], t[0]))
            a("v_lshlrev_b32 v%d, 7, v%d" % (t[1], t[1]))
            a("v_and_b32 v%d, 7, v%d" % (t[2], t[9]))
            a("v_cmp_eq_u32 vcc, 0, v%d" % t[2])
            a("v_mov_b32 v%d, 0x7fffffff" % t[3])
            a("s_nop 1")
            a("v_cndmask_b32 v%d, v%d, v%d, vcc" % (t[1], t[3], t[1]))
            tt = (t[6] + 1) // 2 * 2
            a("v_mov_b32 v%d, v%d" % (vR, t[4]))
            a("v_mov_b32 v%d, v%d" % (vR + 1, t[5]))
            a("buffer_store_dwordx2 %s, v%d, s[%d:%d], 0 offen" % (vr(vR, 2), t[1], srdS, srdS + 3))
            a("s_nop 1")
    a("s_waitcnt vmcnt(0)") if STAMPS else None
    stamp(a, 5, s_wave, kidx, tmp_v=vst)
    a.label(Lend)
    a("s_endpgm")
    return kernel_desc(name, vmax, 64), lds

def emit_k3_side(a, c, s_wave, srdS, srdT, side):
    t = c.vt
    vl = c.v_lane
    f = c.fX[0]
    a("v_and_b32 v%d, 31, v%d" % (t[0], vl))
    a("s_lshl_b32 s%d, s%d, 5" % (c.st[0], s_wave))
    a("v_add_u32 v%d, s%d, v%d" % (t[0], c.st[0], t[0]))
    a("v_lshlrev_b32 v%d, 7, v%d" % (t[1], t[0]))
    a("v_lshrrev_b32 v%d, 5, v%d" % (t[2], vl))
    a("v_lshl_add_u32 v%d, v%d, 6, v%d" % (t[1], t[2], t[1]))
    for q in range(4):
        a("buffer_load_dwordx4 %s, v%d, s[%d:%d], 0 offen offset:%d" % (vr(f + 4 * q, 4), t[1], srdS, srdS + 3, q * 16))
    a("s_mul_i32 s%d, s%d, 56" % (c.st[0], s_wave))
    a("v_add_u32 v%d, s%d, v%d" % (t[3], c.st[0], vl))
    a("v_lshlrev_b32 v%d, 2, v%d" % (t[4], t[3]))
    a("v_cmp_gt_u32 vcc, 56, v%d" % vl)
    a("v_mov_b32 v%d, 0x7fffffff" % t[5])
    a("s_nop 0")
    a("v_cndmask_b32 v%d, v%d, v%d, vcc" % (t[4], t[5], t[4]))
    g = f + 16
    for q in range(16):
        a("s_mov_b32 s%d, %d" % (c.st[1], q * 3584 * 4))
        a("buffer_load_dword v%d, v%d, s[%d:%d], s%d offen" % (g + q, t[4], srdT, srdT + 3, c.st[1]))
    a("s_waitcnt vmcnt(16)")
    a("v_add_f32 v%d, v%d, v%d" % (t[5], f + 0, f + 2))
    a("v_add_f32 v%d, v%d, v%d" % (t[6], f + 1, f + 3))
    for q in range(2, 8):
        a("v_add_f32 v%d, v%d, v%d" % (t[5], t[5], f + 2 * q))
        a("v_add_f32 v%d, v%d, v%d" % (t[6], t[6], f + 2 * q + 1))
    a("v_mov_b32 v%d, v%d" % (f + 0, t[5]))
    a("v_mov_b32 v%d, v%d" % (f + 1, t[6]))
    a("s_nop 1")
    a("v_permlane32_swap_b32 v%d, v%d" % (f + 0, t[5]))
    a("v_permlane32_swap_b32 v%d, v%d" % (f + 1, t[6]))
    a("v_add_f32 v%d, v%d, v%d" % (t[5], t[5], f + 0))
    a("v_add_f32 v%d, v%d, v%d" % (t[6], t[6], f + 1))
    a("v_mul_f32 v%d, 0x3a800000, v%d" % (t[5], t[5]))
    a("v_mul_f32 v%d, 0x3a800000, v%d" % (t[6], t[6]))
    a("v_fma_f32 v%d, -v%d, v%d, v%d" % (t[6], t[5], t[5], t[6]))
    a("v_max_f32 v%d, 0, v%d" % (t[6], t[6]))
    a("v_add_f32 v%d, 0x3727c5ac, v%d" % (t[6], t[6]))
    a("v_rsq_f32 v%d, v%d" % (f + 1, t[6]))
    a("v_sub_f32 v%d, 0, v%d" % (f + 0, t[5]))
    a("v_lshlrev_b32 v%d, 3, v%d" % (t[0], t[0]))
    a("v_add_u32 v%d, %d, v%d" % (t[0], side, t[0]))
    a("ds_write_b64 v%d, %s" % (t[0], vr(f, 2)))
    a("s_waitcnt vmcnt(0)")
    for q in range(1, 16):
        a("v_add_f32 v%d, v%d, v%d" % (g, g, g + q))
    a("v_lshlrev_b32 v%d, 2, v%d" % (t[3], t[3]))
    a("v_add_u32 v%d, %d, v%d" % (t[3], side + 1024, t[3]))
    a("v_cmp_gt_u32 vcc, 56, v%d" % vl)
    a("s_and_saveexec_b64 s[56:57], vcc")
    a("ds_write_b32 v%d, v%d" % (t[3], g))
    a("s_mov_b64 exec, s[56:57]")
    a("s_waitcnt lgkmcnt(0)")
```

```python
from common import *
from gemm import *
import os

L2E = 0x3fb8aa3b

def mfma_wait(a):
    a("s_nop 7"); a("s_nop 4")

def mf32(d, A, B, C):
    return "v_mfma_f32_32x32x16_bf16 %s, %s, %s, %s" % (vr(d, 16), vr(A, 4), vr(B, 4), C if isinstance(C, str) else vr(C, 16))

def cross32(a, op, x, t):
    a("v_mov_b32 v%d, v%d" % (t, x))
    a("s_nop 1")
    a("v_permlane32_swap_b32 v%d, v%d" % (t, x))
    a("%s v%d, v%d, v%d" % (op, x, x, t))

def softmax2(a, p, pos, neg, e, t, s_l2e):
    mx, mn, t0, t1, sp, sn, rp, rn = t[0:8]
    a("v_max3_f32 v%d, v%d, v%d, v%d" % (mx, p, p + 1, p + 2))
    a("v_min3_f32 v%d, v%d, v%d, v%d" % (mn, p, p + 1, p + 2))
    for i in range(3, 15, 2):
        a("v_max3_f32 v%d, v%d, v%d, v%d" % (mx, mx, p + i, p + i + 1))
        a("v_min3_f32 v%d, v%d, v%d, v%d" % (mn, mn, p + i, p + i + 1))
    a("v_max_f32 v%d, v%d, v%d" % (mx, mx, p + 15))
    a("v_min_f32 v%d, v%d, v%d" % (mn, mn, p + 15))
    a("v_mov_b32 v%d, v%d" % (t0, mx))
    a("v_mov_b32 v%d, v%d" % (t1, mn))
    a("s_nop 1")
    a("v_permlane32_swap_b32 v%d, v%d" % (t0, mx))
    a("v_permlane32_swap_b32 v%d, v%d" % (t1, mn))
    a("v_max_f32 v%d, v%d, v%d" % (mx, mx, t0))
    a("v_min_f32 v%d, v%d, v%d" % (mn, mn, t1))
    a("v_mul_f32 v%d, s%d, v%d" % (mx, s_l2e, mx))
    a("v_mul_f32 v%d, s%d, v%d" % (mn, s_l2e, mn))
    for (sign, out, ssum, rr) in ((+1, pos, sp, rp), (-1, neg, sn, rn)):
        for i in range(16):
            if sign > 0: a("v_fma_f32 v%d, v%d, s%d, -v%d" % (e + i, p + i, s_l2e, mx))
            else: a("v_fma_f32 v%d, -v%d, s%d, v%d" % (e + i, p + i, s_l2e, mn))
        for i in range(16):
            a("v_exp_f32 v%d, v%d" % (e + i, e + i))
        a("s_nop 0")
        a("v_add_f32 v%d, v%d, v%d" % (ssum, e, e + 1))
        a("v_add_f32 v%d, v%d, v%d" % (t0, e + 2, e + 3))
        for i in range(4, 16, 2):
            a("v_add_f32 v%d, v%d, v%d" % (ssum, ssum, e + i))
            a("v_add_f32 v%d, v%d, v%d" % (t0, t0, e + i + 1))
        a("v_add_f32 v%d, v%d, v%d" % (ssum, ssum, t0))
        cross32(a, "v_add_f32", ssum, t0)
        a("v_rcp_f32 v%d, v%d" % (rr, ssum))
        a("s_nop 0")
        for i in range(0, 16, 2):
            a("v_mul_f32 v%d, v%d, v%d" % (e + i, e + i, rr))
            a("v_mul_f32 v%d, v%d, v%d" % (e + i + 1, e + i + 1, rr))
            a("v_cvt_pk_bf16_f32 v%d, v%d, v%d" % (out + i // 2, e + i, e + i + 1))

def wave_reduce_add(a, xs, ts):
    for dpp in ("quad_perm:[1,0,3,2]", "quad_perm:[2,3,0,1]", "row_half_mirror", "row_mirror"):
        a("s_nop 1")
        for x, t in zip(xs, ts):
            a("v_add_f32_dpp v%d, v%d, v%d %s row_mask:0xf bank_mask:0xf" % (t, x, x, dpp))
        for x, t in zip(xs, ts):
            a("v_mov_b32 v%d, v%d" % (x, t))
    for sw in ("v_permlane16_swap_b32", "v_permlane32_swap_b32"):
        a("s_nop 1")
        for x, t in zip(xs, ts):
            a("%s v%d, v%d" % (sw, t, x))
        for x, t in zip(xs, ts):
            a("v_add_f32 v%d, v%d, v%d" % (x, x, t))
        for x, t in zip(xs, ts):
            a("v_mov_b32 v%d, v%d" % (t, x))

def qkv_kernel(a, name):
    c = Cfg()
    c.BM, c.BN, c.K, c.lda, c.ldb, c.S = 256, 96, 1024, 2048, 6144, 3
    c.NS = 16; c.nA = 32; c.nB = 12; c.a_ins = 8; c.b_ins = 3; c.P = 12
    c.stage_bytes = 44 * 1024
    c.rotate = True
    c.colmode = "qkv"; c.swz = []
    set_rings(c, *[int(x) for x in os.environ.get("RING_qkv", "3,3").split(",")])
    c.srdA, c.srdB = 16, 20
    srdO, srdKV, srdW1 = 24, 28, 32
    s_wave, s_rb, s_h = 40, 41, 42
    c.s_p = 43
    c.s_slotA = c.s_cslotA = 45; c.s_ka = c.s_deltaA = 46; c.s_kb = c.s_deltaB = 47; c.s_mA = 48; c.s_mB = 49; c.s_i = 50; c.s_slotB = c.s_cslotB = 51
    c.st = [52, 53, 54, 55]
    s_l2e, s_ones = 56, 57
    ring = c.ring_bytes
    L_WPHI = ring
    L_CS = L_WPHI + 2048
    L_RS = L_CS + 512
    L_NM = L_RS + 1024
    L_TOK = L_NM + 1024
    L_STAT = L_TOK + 64
    lds = L_STAT + 64
    assert lds <= 163840
    L_PK = 0
    PKP = 144
    L_RED = 36864
    L_KVF = L_RED + 4 * KVP_BYTES
    L_ZF = L_KVF + 4096
    accQ = [0, 16]; accK = [32, 48]; accV = [64, 80]
    F = [96, 116, 176, 196]
    vcs = [136, 137, 138]
    c.vX = [139, 140, 141, 142]; vW = 143
    c.v_lane = 144
    c.vt = [145 + i for i in range(8)]
    vtok = 154
    vst = 160
    vmax = 256

    kernel_header(a, name)
    Lend = a.newlabel("Lend")
    a("s_cmp_ge_u32 s2, 256")
    a("s_cbranch_scc1 %s" % Lend)
    a("s_load_dwordx2 s[4:5], s[0:1], %d" % KA_WS)
    a("s_load_dwordx2 s[6:7], s[0:1], %d" % KA_WQKV)
    a("s_load_dwordx2 s[8:9], s[0:1], %d" % KA_DBG)
    a("s_load_dwordx2 s[10:11], s[0:1], %d" % KA_X)
    a("s_load_dwordx2 s[14:15], s[0:1], %d" % KA_WPHI)
    a("s_load_dwordx2 s[64:65], s[0:1], %d" % KA_W1)
    a("s_load_dwordx2 s[66:67], s[0:1], %d" % KA_W2)
    a("s_load_dwordx2 s[68:69], s[0:1], %d" % KA_WO)
    a("v_and_b32 v%d, 63, v0" % c.v_lane)
    a("v_lshrrev_b32 v1, 6, v0")
    a("s_nop 0")
    a("v_readfirstlane_b32 s%d, v1" % s_wave)
    a("s_and_b32 s%d, s2, 7" % c.st[0])
    a("s_lshr_b32 s%d, s2, 3" % c.st[1])
    a("s_and_b32 s%d, s%d, 1" % (c.st[2], c.st[0]))
    a("s_lshl_b32 s%d, s%d, 2" % (s_rb, c.st[2]))
    a("s_and_b32 s%d, s%d, 3" % (c.st[2], c.st[1]))
    a("s_add_u32 s%d, s%d, s%d" % (s_rb, s_rb, c.st[2]))
    a("s_lshr_b32 s%d, s%d, 1" % (c.st[2], c.st[0]))
    a("s_lshl_b32 s%d, s%d, 3" % (s_h, c.st[2]))
    a("s_lshr_b32 s%d, s%d, 2" % (c.st[2], c.st[1]))
    a("s_add_u32 s%d, s%d, s%d" % (s_h, s_h, c.st[2]))
    rot = os.environ.get("K1ROT", "1")
    if rot == "1":
        a("s_lshl_b32 s%d, s%d, 1" % (c.st[2], c.st[0]))
        a("s_add_u32 s%d, s%d, s%d" % (c.st[2], c.st[2], c.st[1]))
        a("s_and_b32 s%d, s%d, 15" % (c.st[2], c.st[2]))
    elif rot == "2":
        a("s_lshr_b32 s%d, s%d, 2" % (c.st[2], c.st[1]))
        a("s_lshl_b32 s%d, s%d, 1" % (c.st[2], c.st[2]))
    elif rot == "3":
        a("s_and_b32 s%d, s%d, 3" % (c.st[2], c.st[1]))
        a("s_lshl_b32 s%d, s%d, 2" % (c.st[2], c.st[2]))
        a("s_bfe_u32 s%d, s%d, 0x20002" % (c.st[3], c.st[1]))
        a("s_add_u32 s%d, s%d, s%d" % (c.st[2], c.st[2], c.st[3]))
    elif rot == "4":
        a("s_lshl_b32 s%d, s%d, 1" % (c.st[2], c.st[0]))
    elif rot == "5":
        a("s_and_b32 s%d, s%d, 3" % (c.st[2], c.st[1]))
        a("s_lshl_b32 s%d, s%d, 1" % (c.st[2], c.st[2]))
        a("s_lshr_b32 s%d, s%d, 2" % (c.st[3], c.st[1]))
        a("s_add_u32 s%d, s%d, s%d" % (c.st[2], c.st[2], c.st[3]))
    else:
        a("s_mov_b32 s%d, 0" % c.st[2])
    a("s_lshl_b32 s%d, s%d, 7" % (c.s_ka, c.st[2]))
    a("s_mul_i32 s%d, s%d, %d" % (c.s_kb, c.st[2], 64 * c.ldb))
    a("s_mov_b32 s%d, 0x%x" % (s_l2e, L2E))
    a("s_mov_b32 s%d, 0x3f803f80" % s_ones)
    a("s_waitcnt lgkmcnt(0)")
    a("s_lshl_b32 s%d, s%d, 19" % (c.st[0], s_rb))
    a("s_add_u32 s12, s10, s%d" % c.st[0])
    a("s_addc_u32 s13, s11, 0")
    make_srd(a, c.srdA, "s12", "s13", 256 * 2048)
    a("s_lshl_b32 s%d, s%d, 6" % (c.st[0], s_h))
    a("s_add_u32 s12, s6, s%d" % c.st[0])
    a("s_addc_u32 s13, s7, 0")
    a("s_sub_u32 s%d, %d, s%d" % (c.st[1], 1024 * 6144, c.st[0]))
    make_srd(a, c.srdB, "s12", "s13", "s%d" % c.st[1])
    a("s_lshl_b32 s%d, s%d, 19" % (c.st[1], s_rb))
    a("s_add_u32 s%d, s%d, s%d" % (c.st[0], c.st[0], c.st[1]))
    a("s_add_u32 s12, s4, s%d" % c.st[0])
    a("s_addc_u32 s13, s5, 0")
    make_srd(a, srdO, "s12", "s13", 256 * 2048 - 0)
    a("s_mul_i32 s%d, s%d, %d" % (c.st[0], s_h, 8 * KVP_BYTES))
    a("s_add_u32 s%d, s%d, %d" % (c.st[0], c.st[0], WS_KVP))
    a("s_add_u32 s12, s4, s%d" % c.st[0])
    a("s_addc_u32 s13, s5, 0")
    make_srd(a, srdKV, "s12", "s13", 8 * KVP_BYTES)
    kidx = 0
    stamp(a, 0, s_wave, kidx, tmp_v=vst)
    Lcons = a.newlabel("Lconsumer")
    a("s_cmp_lt_u32 s%d, 4" % s_wave)
    a("s_cbranch_scc1 %s" % Lcons)

    a("s_sub_u32 s%d, s%d, 4" % (c.s_p, s_wave))
    vl = c.v_lane
    t = c.vt
    a("s_lshl_b32 s%d, s%d, 8" % (c.st[0], s_rb))
    a("s_lshl_b32 s%d, s%d, 3" % (c.st[1], s_h))
    a("s_add_u32 s%d, s%d, s%d" % (c.st[0], c.st[0], c.st[1]))
    a("s_lshl_b32 s%d, s%d, 1" % (c.st[1], c.s_p))
    a("s_add_u32 s74, s%d, s%d" % (c.st[0], c.st[1]))
    a("s_lshl_b32 s%d, s74, 11" % c.st[1])
    a("v_lshlrev_b32 v%d, 4, v%d" % (t[0], vl))
    a("v_add_u32 v%d, s%d, v%d" % (t[0], c.st[1], t[0]))
    a("global_load_dwordx4 v[64:67], v%d, s[10:11]" % t[0])
    a("global_load_dwordx4 v[68:71], v%d, s[10:11] offset:1024" % t[0])
    a("global_load_dwordx4 v[72:75], v%d, s[10:11] offset:2048" % t[0])
    a("global_load_dwordx4 v[76:79], v%d, s[10:11] offset:3072" % t[0])
    emit_producer_setup(a, c, 32)
    stamp(a, 1, s_wave, kidx, tmp_v=vst)
    def prod_hook():
        Lhk = a.newlabel("Lhook")
        a("s_cmp_lg_u32 s%d, 0" % c.s_i)
        a("s_cbranch_scc1 %s" % Lhk)
        raw = 64; fp = 80
        for r in range(2):
            for q in range(8):
                a("v_lshlrev_b32 v%d, 16, v%d" % (fp + 16 * r + 2 * q, raw + 8 * r + q))
                a("v_and_b32 v%d, 0xffff0000, v%d" % (fp + 16 * r + 2 * q + 1, raw + 8 * r + q))
        sm = [112, 113]; tm_ = [114, 115]
        for r in range(2):
            a("v_add_f32 v%d, v%d, v%d" % (sm[r], fp + 16 * r, fp + 16 * r + 1))
            a("v_add_f32 v%d, v%d, v%d" % (tm_[r], fp + 16 * r + 2, fp + 16 * r + 3))
        for q in range(4, 16, 2):
            for r in range(2):
                a("v_add_f32 v%d, v%d, v%d" % (sm[r], sm[r], fp + 16 * r + q))
                a("v_add_f32 v%d, v%d, v%d" % (tm_[r], tm_[r], fp + 16 * r + q + 1))
        for r in range(2):
            a("v_add_f32 v%d, v%d, v%d" % (sm[r], sm[r], tm_[r]))
        wave_reduce_add(a, sm, tm_)
        for r in range(2):
            a("v_mul_f32 v%d, 0x3a800000, v%d" % (sm[r], sm[r]))
        sq = [116, 117]
        for r in range(2):
            for q in range(16):
                a("v_sub_f32 v%d, v%d, v%d" % (fp + 16 * r + q, fp + 16 * r + q, sm[r]))
        for r in range(2):
            a("v_mul_f32 v%d, v%d, v%d" % (sq[r], fp + 16 * r, fp + 16 * r))
            a("v_mul_f32 v%d, v%d, v%d" % (tm_[r], fp + 16 * r + 1, fp + 16 * r + 1))
        for q in range(2, 16, 2):
            for r in range(2):
                a("v_fmac_f32 v%d, v%d, v%d" % (sq[r], fp + 16 * r + q, fp + 16 * r + q))
                a("v_fmac_f32 v%d, v%d, v%d" % (tm_[r], fp + 16 * r + q + 1, fp + 16 * r + q + 1))
        for r in range(2):
            a("v_add_f32 v%d, v%d, v%d" % (sq[r], sq[r], tm_[r]))
        wave_reduce_add(a, sq, tm_)
        for r in range(2):
            a("v_mul_f32 v%d, 0x3a800000, v%d" % (sq[r], sq[r]))
            a("v_add_f32 v%d, 0x3727c5ac, v%d" % (sq[r], sq[r]))
            a("v_rsq_f32 v%d, v%d" % (118 + r, sq[r]))
        a("s_nop 0")
        for r in range(2):
            a("v_mul_f32 v%d, v%d, v%d" % (120 + r, sm[r], 118 + r))
            a("v_sub_f32 v%d, 0, v%d" % (120 + r, 120 + r))
        a("s_lshl_b32 s%d, s%d, 3" % (c.st[0], c.s_p))
        a("s_add_u32 s%d, s%d, %d" % (c.st[0], c.st[0], L_STAT))
        a("v_mov_b32 v%d, s%d" % (t[0], c.st[0]))
        a("s_mov_b64 s[58:59], exec")
        a("s_mov_b64 exec, 1")
        a("ds_write_b64 v%d, v[118:119]" % t[0])
        a("ds_write_b64 v%d, v[120:121] offset:32" % t[0])
        a("s_mov_b64 exec, s[58:59]")
        Lt = a.newlabel("Ltok")
        a("s_cmp_lg_u32 s%d, 4" % s_wave)
        a("s_cbranch_scc1 %s" % Lt)
        a("v_lshlrev_b32 v%d, 4, v%d" % (t[1], vl))
        a("s_lshl_b32 s%d, s%d, 11" % (c.st[0], s_h))
        a("s_add_u32 s12, s14, s%d" % c.st[0])
        a("s_addc_u32 s13, s15, 0")
        make_srd(a, srdW1, "s12", "s13", 2048)
        a("s_mov_b32 m0, %d" % L_WPHI)
        a("s_nop 0")
        a("buffer_load_dwordx4 v%d, s[%d:%d], 0 offen lds" % (t[1], srdW1, srdW1 + 3))
        a("s_nop 0")
        a("buffer_load_dwordx4 v%d, s[%d:%d], 0 offen offset:1024 lds" % (t[1], srdW1, srdW1 + 3))
        a("v_mov_b32 v%d, 0" % t[2])
        a("v_lshlrev_b32 v%d, 2, v%d" % (t[3], vl))
        a("v_add_u32 v%d, %d, v%d" % (t[3], L_CS, t[3]))
        a("ds_write_b32 v%d, v%d" % (t[3], t[2]))
        a("ds_write_b32 v%d, v%d offset:256" % (t[3], t[2]))
        a.label(Lt)
        a("s_waitcnt lgkmcnt(0)")
        a.label(Lhk)
    c.prod_iter_hook = prod_hook
    emit_producer_loop(a, c)
    stamp(a, 2, s_wave, kidx, tmp_v=vst)
    vl = c.v_lane
    t = c.vt
    vP = 64
    a("s_lshl_b32 s%d, s2, 2" % c.st[0])
    a("s_add_u32 s%d, s%d, s%d" % (c.st[0], c.st[0], c.s_p))
    mul, sh = magic_div(56, 1024)
    a("s_mul_i32 s%d, s%d, %d" % (c.st[1], c.st[0], mul))
    a("s_lshr_b32 s%d, s%d, %d" % (c.st[1], c.st[1], sh))
    a("s_mul_i32 s%d, s%d, 56" % (c.st[2], c.st[1]))
    a("s_sub_u32 s%d, s%d, s%d" % (c.st[2], c.st[0], c.st[2]))
    make_srd(a, srdW1, "s64", "s65", 1024 * 7168)
    a("s_lshl_b32 s%d, s%d, 6" % (c.st[3], c.st[1]))
    a("v_lshrrev_b32 v%d, 3, v%d" % (t[0], vl))
    a("v_add_u32 v%d, s%d, v%d" % (t[0], c.st[3], t[0]))
    a("s_mov_b32 s%d, 7168" % c.st[3])
    a("v_mul_lo_u32 v%d, v%d, s%d" % (t[0], t[0], c.st[3]))
    a("v_and_b32 v%d, 7, v%d" % (t[1], vl))
    a("v_lshlrev_b32 v%d, 4, v%d" % (t[1], t[1]))
    a("s_lshl_b32 s%d, s%d, 7" % (c.st[3], c.st[2]))
    a("v_add3_u32 v%d, v%d, v%d, s%d" % (t[0], t[0], t[1], c.st[3]))
    a("v_mov_b32 v%d, v%d" % (60, t[0]))
    for j in range(8 if "now1" not in os.environ.get("GDBG", "") else 0):
        a("s_mov_b32 s%d, %d" % (c.st[3], j * 8 * 7168))
        a("buffer_load_dwordx4 %s, v60, s[%d:%d], s%d offen" % (vr(vP + 4 * j, 4), srdW1, srdW1 + 3, c.st[3]))
    if "nopf" not in os.environ.get("GDBG", ""):
        a("v_lshlrev_b32 v61, 4, v%d" % vl)
        a("s_lshl_b32 s%d, s%d, 11" % (c.st[3], c.st[0]))
        a("v_add_u32 v62, s%d, v61" % c.st[3])
        a("global_load_dwordx4 v[228:231], v62, s[68:69]")
        a("global_load_dwordx4 v[232:235], v62, s[68:69] offset:1024")
        a("s_mul_i32 s%d, s%d, 7168" % (c.st[3], c.st[0]))
        a("v_add_u32 v62, s%d, v61" % c.st[3])
        for j in range(7):
            if j == 4: a("v_add_u32 v62, 4096, v62")
            a("global_load_dwordx4 v[%d:%d], v62, s[66:67] offset:%d" % (236 + 4 * (j % 4), 239 + 4 * (j % 4), (j % 4) * 1024))
    a("s_mov_b32 s70, s%d" % c.st[1])
    a("s_mov_b32 s71, s%d" % c.st[2])
    a("s_mov_b32 s72, s%d" % c.st[0])
    Lnp = a.newlabel("Lnopoll")
    a("s_cmp_lg_u32 s%d, 4" % s_wave)
    a("s_cbranch_scc1 %s" % Lnp)
    a("s_lshl_b32 s%d, s%d, 2" % (c.st[0], s_rb))
    a("s_add_u32 s%d, s%d, 16" % (c.st[0], c.st[0]))
    a("v_mov_b32 v%d, s%d" % (t[0], c.st[0]))
    Lp = a.newlabel("Lpoll")
    a("s_mov_b32 s75, 0")
    a.label(Lp)
    a("global_load_dword v%d, v%d, s[8:9] sc1" % (t[1], t[0]))
    a("s_waitcnt vmcnt(0)")
    a("v_readfirstlane_b32 s%d, v%d" % (c.st[1], t[1]))
    a("s_cmp_ge_u32 s%d, 32" % c.st[1])
    Lpd = a.newlabel("Lpolld")
    a("s_cbranch_scc1 %s" % Lpd)
    a("s_add_u32 s75, s75, 1")
    a("s_cmp_gt_u32 s75, 0x40000")
    a("s_cbranch_scc1 %s" % Lpd)
    a("s_sleep 2")
    a("s_branch %s" % Lp)
    a.label(Lpd)
    a("s_lshl_b32 s%d, s%d, 10" % (c.st[0], s_rb))
    a("s_add_u32 s%d, s%d, %d" % (c.st[0], c.st[0], WS_ST1))
    a("v_lshlrev_b32 v%d, 4, v%d" % (t[0], vl))
    a("v_add_u32 v%d, s%d, v%d" % (t[1], c.st[0], t[0]))
    a("global_load_dwordx4 v[40:43], v%d, s[4:5] sc1" % t[1])
    a("v_add_u32 v%d, 8192, v%d" % (t[1], t[1]))
    a("global_load_dwordx4 v[44:47], v%d, s[4:5] sc1" % t[1])
    a("v_add_u32 v%d, %d, v%d" % (t[0], L_RS, t[0]))
    a("s_waitcnt vmcnt(0)")
    a("ds_write_b128 v%d, v[40:43]" % t[0])
    a("ds_write_b128 v%d, v[44:47] offset:1024" % t[0])
    a("s_waitcnt lgkmcnt(0)")
    a.label(Lnp)
    a("s_barrier")
    a("s_barrier")
    a("s_barrier")
    stamp(a, 3, s_wave, kidx, tmp_v=vst)
    a("v_mov_b32 v%d, %d" % (t[0], L_TOK))
    a("ds_read_b64 v[40:41], v%d" % t[0])
    a("s_lshl_b32 s%d, s%d, 7" % (c.st[0], s_h))
    a("s_add_u32 s%d, s%d, %d" % (c.st[0], c.st[0], WS_FLAG))
    a("v_and_b32 v%d, 7, v%d" % (t[0], vl))
    a("v_lshlrev_b32 v%d, 3, v%d" % (t[0], t[0]))
    a("v_add_u32 v%d, s%d, v%d" % (t[0], c.st[0], t[0]))
    a("s_waitcnt lgkmcnt(0)")
    Lp = a.newlabel("Lpoll2"); Lpd = a.newlabel("Lpoll2d")
    a("s_mov_b32 s75, 0")
    a.label(Lp)
    a("global_load_dwordx2 v[42:43], v%d, s[4:5] sc1" % t[0])
    a("s_waitcnt vmcnt(0)")
    a("v_cmp_eq_u64 vcc, v[40:41], v[42:43]")
    a("s_nop 4")
    a("s_cmp_eq_u64 vcc, exec")
    a("s_cbranch_scc1 %s" % Lpd)
    a("s_add_u32 s75, s75, 1")
    a("s_cmp_gt_u32 s75, 0x40000")
    a("s_cbranch_scc1 %s" % Lpd)
    a("s_sleep 1")
    a("s_branch %s" % Lp)
    a.label(Lpd)
    stamp(a, 4, s_wave, kidx, tmp_v=vst)
    a("s_lshl_b32 s%d, s%d, 11" % (c.st[0], c.s_p))
    a("v_lshlrev_b32 v%d, 4, v%d" % (t[0], vl))
    a("v_add_u32 v%d, s%d, v%d" % (t[0], c.st[0], t[0]))
    vK = 164
    for rbi in range(8):
        a("s_mov_b32 s%d, %d" % (c.st[1], rbi * KVP_BYTES))
        for bb in range(2):
            a("buffer_load_dwordx4 %s, v%d, s[%d:%d], s%d offen offset:%d sc1" % (vr(vK + 8 * rbi + 4 * bb, 4), t[0], srdKV, srdKV + 3, c.st[1], bb * 1024))
    vZ = 96
    a("v_lshlrev_b32 v%d, 4, v%d" % (t[1], vl))
    a("v_add_u32 v%d, 8192, v%d" % (t[1], t[1]))
    a("v_cmp_gt_u32 vcc, 16, v%d" % vl)
    a("v_mov_b32 v%d, 0x7fffffff" % t[2])
    a("s_nop 0")
    a("v_cndmask_b32 v%d, v%d, v%d, vcc" % (t[1], t[2], t[1]))
    for rbi in range(8):
        a("s_mov_b32 s%d, %d" % (c.st[1], rbi * KVP_BYTES))
        a("buffer_load_dwordx4 %s, v%d, s[%d:%d], s%d offen sc1" % (vr(vZ + 4 * rbi, 4), t[1], srdKV, srdKV + 3, c.st[1]))
    a("s_waitcnt vmcnt(8)")
    for rbi in range(1, 8):
        for q in range(0, 8, 2):
            a("v_pk_add_f32 %s, %s, %s" % (vr(vK + q, 2), vr(vK + q, 2), vr(vK + 8 * rbi + q, 2)))
    for bb in range(2):
        a("v_cvt_pk_bf16_f32 v%d, v%d, v%d" % (vK + 8 + 2 * bb, vK + 4 * bb, vK + 4 * bb + 1))
        a("v_cvt_pk_bf16_f32 v%d, v%d, v%d" % (vK + 8 + 2 * bb + 1, vK + 4 * bb + 2, vK + 4 * bb + 3))
    a("s_lshl_b32 s%d, s%d, 10" % (c.st[0], c.s_p))
    a("s_add_u32 s%d, s%d, %d" % (c.st[0], c.st[0], L_KVF))
    a("v_lshlrev_b32 v%d, 4, v%d" % (t[0], vl))
    a("v_add_u32 v%d, s%d, v%d" % (t[0], c.st[0], t[0]))
    a("ds_write_b128 v%d, %s" % (t[0], vr(vK + 8, 4)))
    a("s_waitcnt vmcnt(0)")
    for rbi in range(1, 8):
        for q in range(0, 4, 2):
            a("v_pk_add_f32 %s, %s, %s" % (vr(vZ + q, 2), vr(vZ + q, 2), vr(vZ + 4 * rbi + q, 2)))
    a("v_cvt_pk_bf16_f32 v%d, v%d, v%d" % (vZ + 4, vZ, vZ + 1))
    a("v_cvt_pk_bf16_f32 v%d, v%d, v%d" % (vZ + 5, vZ + 2, vZ + 3))
    a("v_lshrrev_b32 v%d, 2, v%d" % (t[0], vl))
    a("v_lshlrev_b32 v%d, 5, v%d" % (t[0], t[0]))
    a("v_and_b32 v%d, 1, v%d" % (t[1], vl))
    a("v_lshl_add_u32 v%d, v%d, 4, v%d" % (t[0], t[1], t[0]))
    a("v_bfe_u32 v%d, v%d, 1, 1" % (t[1], vl))
    a("v_lshl_add_u32 v%d, v%d, 3, v%d" % (t[0], t[1], t[0]))
    a("v_add_u32 v%d, %d, v%d" % (t[0], L_ZF, t[0]))
    a("v_cmp_gt_u32 vcc, 16, v%d" % vl)
    a("s_and_saveexec_b64 s[58:59], vcc")
    a("ds_write_b64 v%d, %s" % (t[0], vr(vZ + 4, 2)))
    a("s_mov_b64 exec, s[58:59]")
    a("s_waitcnt lgkmcnt(0)")
    a("s_barrier")
    stamp(a, 5, s_wave, kidx, tmp_v=vst)
    Lskip = a.newlabel("Lskipcs")
    a("s_cmp_ge_u32 s72, 896")
    a("s_cbranch_scc1 %s" % Lskip)
    vS = 100
    for j in range(8):
        for q in range(4):
            src = vP + 4 * j + q
            a("v_lshlrev_b32 v%d, 16, v%d" % (t[0], src))
            a("v_and_b32 v%d, 0xffff0000, v%d" % (t[1], src))
            if j == 0:
                a("v_mov_b32 v%d, v%d" % (vS + 2 * q, t[0]))
                a("v_mov_b32 v%d, v%d" % (vS + 2 * q + 1, t[1]))
            else:
                a("v_add_f32 v%d, v%d, v%d" % (vS + 2 * q, vS + 2 * q, t[0]))
                a("v_add_f32 v%d, v%d, v%d" % (vS + 2 * q + 1, vS + 2 * q + 1, t[1]))
    xs = [vS + i for i in range(8)]; ts_ = [vS + 8 + i for i in range(8)]
    a("s_nop 1")
    for x, tt in zip(xs, ts_):
        a("v_add_f32_dpp v%d, v%d, v%d row_ror:8 row_mask:0xf bank_mask:0xf" % (tt, x, x))
    for x, tt in zip(xs, ts_):
        a("v_mov_b32 v%d, v%d" % (x, tt))
    for sw in ("v_permlane16_swap_b32", "v_permlane32_swap_b32"):
        a("s_nop 1")
        for x, tt in zip(xs, ts_):
            a("%s v%d, v%d" % (sw, tt, x))
        for x, tt in zip(xs, ts_):
            a("v_add_f32 v%d, v%d, v%d" % (x, x, tt))
        for x, tt in zip(xs, ts_):
            a("v_mov_b32 v%d, v%d" % (tt, x))
    a("s_mul_i32 s%d, s70, %d" % (c.st[0], 3584 * 4))
    a("s_lshl_b32 s%d, s71, 8" % c.st[1])
    a("s_add_u32 s%d, s%d, s%d" % (c.st[0], c.st[0], c.st[1]))
    a("s_add_u32 s%d, s%d, %d" % (c.st[0], c.st[0], WS_CS1))
    a("v_lshlrev_b32 v%d, 5, v%d" % (t[0], vl))
    a("v_add_u32 v%d, s%d, v%d" % (t[0], c.st[0], t[0]))
    a("v_cmp_gt_u32 vcc, 8, v%d" % vl)
    a("s_and_saveexec_b64 s[58:59], vcc")
    a("global_store_dwordx4 v%d, %s, s[4:5]" % (t[0], vr(vS, 4)))
    a("global_store_dwordx4 v%d, %s, s[4:5] offset:16" % (t[0], vr(vS + 4, 4)))
    a("s_mov_b64 exec, s[58:59]")
    a.label(Lskip)
    a("s_branch %s" % Lend)

    a.label(Lcons)
    vl = c.v_lane
    t = c.vt
    Lt0 = a.newlabel("Ltok0")
    a("s_cmp_lg_u32 s%d, 0" % s_wave)
    a("s_cbranch_scc1 %s" % Lt0)
    a("s_memrealtime s[58:59]")
    a("s_waitcnt lgkmcnt(0)")
    a("s_or_b32 s58, s58, 1")
    a("v_mov_b32 v%d, s58" % vtok)
    a("v_mov_b32 v%d, s59" % (vtok + 1))
    a("v_mov_b32 v%d, 0" % (vtok + 2))
    a("v_mov_b32 v%d, 0" % (vtok + 3))
    a("v_mov_b32 v%d, 0" % t[0])
    a("s_mov_b64 s[58:59], exec")
    a("s_mov_b64 exec, 1")
    a("global_atomic_cmpswap_x2 %s, v%d, %s, s[8:9] sc0" % (vr(vtok + 4, 2), t[0], vr(vtok, 4)))
    a("s_mov_b64 exec, s[58:59]")
    a.label(Lt0)
    a("v_and_b32 v%d, 31, v%d" % (t[0], vl))
    a("v_lshrrev_b32 v%d, 5, v%d" % (t[1], vl))
    a("v_bfe_u32 v%d, v%d, 1, 3" % (t[2], t[0]))
    a("s_lshl_b32 s%d, s%d, 6" % (c.st[2], s_wave))
    a("v_add_u32 v%d, s%d, v%d" % (t[3], c.st[2], t[0]))
    a("v_lshlrev_b32 v%d, 7, v%d" % (t[3], t[3]))
    for stp in range(4):
        a("v_add_u32 v%d, %d, v%d" % (t[4], 2 * stp, t[1]))
        a("v_xor_b32 v%d, v%d, v%d" % (t[4], t[4], t[2]))
        a("v_lshl_add_u32 v%d, v%d, 4, v%d" % (c.vX[stp], t[4], t[3]))
    a("v_lshrrev_b32 v%d, 4, v%d" % (t[0], vl))
    a("v_and_b32 v%d, 15, v%d" % (t[1], vl))
    a("v_lshrrev_b32 v%d, 2, v%d" % (t[2], t[1]))
    a("v_lshrrev_b32 v%d, 1, v%d" % (t[3], t[0]))
    a("v_lshl_add_u32 v%d, v%d, 3, v%d" % (t[2], t[3], t[2]))
    a("v_mul_u32_u24 v%d, 192, v%d" % (t[2], t[2]))
    a("v_and_b32 v%d, 1, v%d" % (t[0], t[0]))
    a("v_lshl_add_u32 v%d, v%d, 5, v%d" % (t[2], t[0], t[2]))
    a("v_and_b32 v%d, 3, v%d" % (t[1], t[1]))
    a("v_lshl_add_u32 v%d, v%d, 3, v%d" % (t[2], t[1], t[2]))
    a("v_add_u32 v%d, %d, v%d" % (vW, c.Bbase, t[2]))
    stamp(a, 1, s_wave, kidx, tmp_v=vst)
    stamp(a, 6, s_wave, kidx, tmp_v=vst)
    for i in range(96): a("v_mov_b32 v%d, 0" % i)
    for u in range(3): a("v_mov_b32 v%d, 0" % vcs[u])
    a("s_mov_b32 s%d, 0" % c.s_cslotA)
    a("s_mov_b32 s%d, 0" % c.s_cslotB)
    a("s_mov_b32 s%d, 0" % c.s_i)
    a("s_waitcnt lgkmcnt(0)")
    def reads(buf, stp):
        r = []
        fb = F[buf]
        W = lambda u, hf: "ds_read_b64_tr_b16 %s, v%d offset:%d" % (vr(fb + 8 + 4 * u + 2 * hf, 2), vW, (16 * stp + 4 * hf) * 192 + u * 64)
        X = lambda st: "ds_read_b128 %s, v%d offset:%d" % (vr(fb + 4 * st, 4), c.vX[stp], st * 4096)
        if "noread" in DBG: return []
        return [W(0, 0), W(0, 1), X(0), W(1, 0), W(1, 1), X(1), W(2, 0), W(2, 1)]
    def mfmas(buf):
        fb = F[buf]
        X = lambda st: fb + 4 * st
        W = lambda u: fb + 8 + 4 * u
        if "nomfma" in DBG: return ["s_nop 0"] * 6
        return [mf32(accQ[0], W(0), X(0), accQ[0]), mf32(accK[0], W(1), X(0), accK[0]), mf32(accQ[1], W(0), X(1), accQ[1]),
                mf32(accK[1], W(1), X(1), accK[1]), mf32(accV[0], X(0), W(2), accV[0]), mf32(accV[1], X(1), W(2), accV[1])]
    def csops(buf, w):
        fb = F[buf]
        o = []
        if "nocs" in DBG: return []
        for u in range(3):
            src = fb + 8 + 4 * u + w
            tt = t[2 * (u % 2)]
            o.append("v_lshlrev_b32 v%d, 16, v%d" % (tt, src))
            o.append("v_and_b32 v%d, 0xffff0000, v%d" % (tt + 1, src))
            o.append("v_add_f32 v%d, v%d, v%d" % (vcs[u], vcs[u], tt))
            o.append("v_add_f32 v%d, v%d, v%d" % (vcs[u], vcs[u], tt + 1))
        return o
    def step(mf, rd, cs):
        ri = ci = 0
        for i, m in enumerate(mf):
            a(m)
            for _ in range(3):
                if ri < len(rd): a(rd[ri]); ri += 1
            for _ in range(2 if i < 3 else 3):
                if ci < len(cs): a(cs[ci]); ci += 1
        while ri < len(rd): a(rd[ri]); ri += 1
        while ci < len(cs): a(cs[ci]); ci += 1
    Lafter = a.newlabel("Lafter")
    Lw = [a.newlabel("Lw") for _ in range(4)]
    for w in range(1, 4):
        a("s_cmp_eq_u32 s%d, %d" % (s_wave, w))
        a("s_cbranch_scc1 %s" % Lw[w])
    for w in range(4):
        a.label(Lw[w])
        a("s_barrier")
        for r in reads(0, 0): a(r)
        for r in reads(1, 1): a(r)
        L = a.newlabel("Lk1")
        a.label(L)
        for stp in range(2):
            a("s_waitcnt lgkmcnt(8)")
            step(mfmas(stp), reads(stp + 2, stp + 2), csops(stp, w))
        a("s_waitcnt lgkmcnt(0)")
        a("s_barrier")
        emit_addr_advance(a, c, [c.vX[0], c.vX[1], c.vX[2], c.vX[3]], [vW])
        if w == 0:
            La = a.newlabel("Lh1"); Lb = a.newlabel("Lh2")
            a("s_cmp_lg_u32 s%d, 1" % c.s_i)
            a("s_cbranch_scc1 %s" % La)
            a("v_lshlrev_b32 v%d, 2, v%d" % (vst + 4, vl))
            a("v_add_u32 v%d, %d, v%d" % (vst + 5, L_STAT, vst + 4))
            a("ds_read_b32 v%d, v%d" % (vst + 6, vst + 5))
            a("ds_read_b32 v%d, v%d offset:32" % (vst + 7, vst + 5))
            a("s_lshl_b32 s%d, s%d, 8" % (c.st[0], s_rb))
            a("s_lshl_b32 s%d, s%d, 3" % (c.st[1], s_h))
            a("s_add_u32 s%d, s%d, s%d" % (c.st[0], c.st[0], c.st[1]))
            a("s_lshl_b32 s%d, s%d, 2" % (c.st[0], c.st[0]))
            a("s_add_u32 s%d, s%d, %d" % (c.st[0], c.st[0], WS_ST1))
            a("v_add_u32 v%d, s%d, v%d" % (vst + 4, c.st[0], vst + 4))
            a("v_add_u32 v%d, 8192, v%d" % (vst + 5, vst + 4))
            a("s_waitcnt lgkmcnt(0)")
            a("s_mov_b64 s[58:59], exec")
            a("s_mov_b64 exec, 0xff")
            a("global_store_dword v%d, v%d, s[4:5] sc1" % (vst + 4, vst + 6))
            a("global_store_dword v%d, v%d, s[4:5] sc1" % (vst + 5, vst + 7))
            a("s_mov_b64 exec, s[58:59]")
            a.label(La)
            a("s_cmp_lg_u32 s%d, 8" % c.s_i)
            a("s_cbranch_scc1 %s" % Lb)
            a("s_waitcnt vmcnt(0)")
            a("s_lshl_b32 s%d, s%d, 2" % (c.st[0], s_rb))
            a("s_add_u32 s%d, s%d, 16" % (c.st[0], c.st[0]))
            a("v_mov_b32 v%d, s%d" % (vst + 4, c.st[0]))
            a("v_mov_b32 v%d, 1" % (vst + 5))
            a("s_mov_b64 s[58:59], exec")
            a("s_mov_b64 exec, 1")
            a("global_atomic_add v%d, v%d, s[8:9]" % (vst + 4, vst + 5))
            a("v_cmp_eq_u64 vcc, 0, %s" % vr(vtok + 4, 2))
            a("s_nop 1")
            a("v_cndmask_b32 v%d, v%d, v%d, vcc" % (vtok, vtok + 4, vtok))
            a("v_cndmask_b32 v%d, v%d, v%d, vcc" % (vtok + 1, vtok + 5, vtok + 1))
            a("v_mov_b32 v%d, %d" % (vst + 4, L_TOK))
            a("ds_write_b64 v%d, %s" % (vst + 4, vr(vtok, 2)))
            a("s_mov_b64 exec, s[58:59]")
            a("s_waitcnt lgkmcnt(0)")
            a.label(Lb)
        step(mfmas(2), reads(0, 0), csops(2, w))
        a("s_nop 0")
        step(mfmas(3), reads(1, 1), csops(3, w))
        a("s_add_u32 s%d, s%d, 1" % (c.s_i, c.s_i))
        a("s_cmp_lt_u32 s%d, %d" % (c.s_i, c.NS - 1))
        a("s_cbranch_scc1 %s" % L)
        for stp in range(2):
            a("s_waitcnt lgkmcnt(8)")
            step(mfmas(stp), reads(stp + 2, stp + 2), csops(stp, w))
        a("s_waitcnt lgkmcnt(8)")
        step(mfmas(2), [], csops(2, w))
        a("s_waitcnt lgkmcnt(0)")
        step(mfmas(3), [], csops(3, w))
        if w < 3: a("s_branch %s" % Lafter)
    a.label(Lafter)
    stamp(a, 7, s_wave, kidx, tmp_v=vst)
    stamp(a, 2, s_wave, kidx, tmp_v=vst)
    a("v_and_b32 v%d, 31, v%d" % (t[0], vl))
    a("v_lshlrev_b32 v%d, 2, v%d" % (t[0], t[0]))
    a("v_add_u32 v%d, %d, v%d" % (t[0], L_CS, t[0]))
    for u in range(3):
        a("ds_add_f32 v%d, v%d offset:%d" % (t[0], vcs[u], u * 128))
    a("s_waitcnt lgkmcnt(0)")
    a("s_barrier")
    csQ, csK = 96, 112
    rsL, nmL = [128, 130], [132, 134]
    csV = 136
    wph = 164
    kb = 172
    pD = 180
    eT = 196
    pos, neg = 212, 220
    sT = [228 + i for i in range(8)]
    rsV, nmV = 236, 240
    aF = 196
    vb = 244
    kvA = [32, 48]
    hi_ = t[7]
    a("v_lshrrev_b32 v%d, 5, v%d" % (hi_, vl))
    a("v_lshlrev_b32 v%d, 4, v%d" % (t[1], hi_))
    a("v_add_u32 v%d, %d, v%d" % (t[1], L_CS, t[1]))
    for aa in range(4):
        a("ds_read_b128 %s, v%d offset:%d" % (vr(csQ + 4 * aa, 4), t[1], aa * 32))
        a("ds_read_b128 %s, v%d offset:%d" % (vr(csK + 4 * aa, 4), t[1], 128 + aa * 32))
    a("ds_read_b32 v%d, v%d offset:256" % (csV, t[0]))
    a("v_mov_b32 v%d, %d" % (vtok + 2, L_TOK))
    a("ds_read_b64 %s, v%d" % (vr(vtok, 2), vtok + 2))
    a("v_and_b32 v%d, 31, v%d" % (t[2], vl))
    a("s_lshl_b32 s%d, s%d, 6" % (c.st[0], s_wave))
    a("v_add_u32 v%d, s%d, v%d" % (t[2], c.st[0], t[2]))
    a("v_lshlrev_b32 v%d, 2, v%d" % (t[2], t[2]))
    a("v_add_u32 v%d, %d, v%d" % (t[2], L_RS, t[2]))
    for st in range(2):
        a("ds_read_b32 v%d, v%d offset:%d" % (rsL[st], t[2], st * 128))
        a("ds_read_b32 v%d, v%d offset:%d" % (nmL[st], t[2], 1024 + st * 128))
    a("v_lshrrev_b32 v%d, 4, v%d" % (t[3], vl))
    a("v_and_b32 v%d, 15, v%d" % (t[4], vl))
    a("v_lshrrev_b32 v%d, 2, v%d" % (t[5], t[4]))
    a("v_lshrrev_b32 v%d, 1, v%d" % (t[6], t[3]))
    a("v_lshl_add_u32 v%d, v%d, 2, v%d" % (t[5], t[6], t[5]))
    a("v_mov_b32 v%d, v%d" % (sT[7], t[5]))
    a("v_lshlrev_b32 v%d, 6, v%d" % (t[5], t[5]))
    a("v_and_b32 v%d, 1, v%d" % (t[3], t[3]))
    a("v_lshlrev_b32 v%d, 5, v%d" % (t[3], t[3]))
    a("v_and_b32 v%d, 3, v%d" % (t[4], t[4]))
    a("v_lshl_add_u32 v%d, v%d, 3, v%d" % (t[3], t[4], t[3]))
    a("v_add_u32 v%d, v%d, v%d" % (t[5], t[5], t[3]))
    a("v_add_u32 v%d, %d, v%d" % (t[5], L_WPHI, t[5]))
    for tt in range(2):
        for hf in range(2):
            a("ds_read_b64_tr_b16 %s, v%d offset:%d" % (vr(wph + 4 * tt + 2 * hf, 2), t[5], (16 * tt + 8 * hf) * 64))
    vPKw, vPKr, vRSV = 160, 161, 162
    a("s_mul_i32 s%d, s%d, %d" % (c.st[0], s_wave, 64 * PKP))
    a("s_add_u32 s%d, s%d, %d" % (c.st[0], c.st[0], L_PK))
    a("v_and_b32 v%d, 31, v%d" % (t[2], vl))
    a("v_mul_u32_u24 v%d, %d, v%d" % (t[2], PKP, t[2]))
    a("v_lshl_add_u32 v%d, v%d, 3, v%d" % (t[2], hi_, t[2]))
    a("v_add_u32 v%d, s%d, v%d" % (vPKw, c.st[0], t[2]))
    a("v_mul_u32_u24 v%d, %d, v%d" % (t[2], PKP, sT[7]))
    a("v_add_u32 v%d, v%d, v%d" % (t[2], t[2], t[3]))
    a("v_add_u32 v%d, s%d, v%d" % (vPKr, c.st[0], t[2]))
    a("s_lshl_b32 s%d, s%d, 8" % (c.st[0], s_wave))
    a("v_lshlrev_b32 v%d, 4, v%d" % (t[2], hi_))
    a("v_add_u32 v%d, s%d, v%d" % (t[2], c.st[0], t[2]))
    a("v_add_u32 v%d, %d, v%d" % (vRSV, L_RS, t[2]))
    a("s_waitcnt lgkmcnt(0)")

    def ln_qk(acc, cs, st, dst):
        for i in range(0, 16, 2):
            a("v_pk_mul_f32 %s, %s, %s op_sel_hi:[1,0]" % (vr(acc + i, 2), vr(acc + i, 2), vr(rsL[st], 2)))
            a("v_pk_fma_f32 %s, %s, %s, %s op_sel_hi:[1,0,1]" % (vr(acc + i, 2), vr(cs + i, 2), vr(nmL[st], 2), vr(acc + i, 2)))
            a("v_cvt_pk_bf16_f32 v%d, v%d, v%d" % (dst + i // 2, acc + i, acc + i + 1))
    def phi(acc, cs, st):
        ln_qk(acc, cs, st, kb)
        a("s_nop 1")
        a(mf32(pD, wph, kb, "0"))
        a(mf32(pD, wph + 4, kb + 4, pD))
        mfma_wait(a)
        softmax2(a, pD, pos, neg, eT, sT, s_l2e)

    for st in range(2):
        phi(accK[st], csK, st)
        for aa in range(4):
            a("ds_write_b64 v%d, %s offset:%d" % (vPKw, vr(pos + 2 * aa, 2), st * 32 * PKP + aa * 16))
            a("ds_write_b64 v%d, %s offset:%d" % (vPKw, vr(neg + 2 * aa, 2), st * 32 * PKP + aa * 16 + 64))
    kvT = [32, 48]; zT = [180, 196]
    aF = 212
    ones = 112
    for q in range(4): a("v_mov_b32 v%d, s%d" % (ones + q, s_ones))
    a("s_waitcnt lgkmcnt(0)")
    first = True
    for st in range(2):
        for aa in range(4):
            a("ds_read_b128 %s, v%d offset:%d" % (vr(rsV, 4), vRSV, (32 * st + 8 * aa) * 4))
            a("ds_read_b128 %s, v%d offset:%d" % (vr(nmV, 4), vRSV, 1024 + (32 * st + 8 * aa) * 4))
            a("s_waitcnt lgkmcnt(0)")
            for h2 in range(2):
                r = accV[st] + 4 * aa + 2 * h2
                a("v_pk_mul_f32 %s, %s, %s" % (vr(r, 2), vr(r, 2), vr(rsV + 2 * h2, 2)))
                a("v_pk_fma_f32 %s, %s, %s, %s op_sel_hi:[1,0,1]" % (vr(r, 2), vr(nmV + 2 * h2, 2), vr(csV, 2), vr(r, 2)))
                a("v_cvt_pk_bf16_f32 v%d, v%d, v%d" % (vb + 2 * aa + h2, r, r + 1))
        for ft in range(2):
            for u in range(2):
                for hf in range(2):
                    a("ds_read_b64_tr_b16 %s, v%d offset:%d" % (vr(aF + 8 * ft + 4 * u + 2 * hf, 2), vPKr, (st * 32 + 16 * u + 8 * hf) * PKP + ft * 64))
        a("s_waitcnt lgkmcnt(0)")
        for u in range(2):
            for ft in range(2):
                a(mf32(kvT[ft], aF + 8 * ft + 4 * u, vb + 4 * u, "0" if (st == 0 and u == 0) else kvT[ft]))
                a(mf32(zT[ft], aF + 8 * ft + 4 * u, ones, "0" if (st == 0 and u == 0) else zT[ft]))
        a("s_nop 7")
    mfma_wait(a)
    a("s_mul_i32 s%d, s%d, %d" % (c.st[0], s_wave, KVP_BYTES))
    a("s_add_u32 s%d, s%d, %d" % (c.st[0], c.st[0], L_RED))
    a("v_lshlrev_b32 v%d, 4, v%d" % (t[0], vl))
    a("v_add_u32 v%d, s%d, v%d" % (t[1], c.st[0], t[0]))
    for ft in range(2):
        for rq in range(4):
            a("ds_write_b128 v%d, %s offset:%d" % (t[1], vr(kvT[ft] + 4 * rq, 4), (ft * 4 + rq) * 1024))
    a("v_lshlrev_b32 v%d, 4, v%d" % (t[2], hi_))
    a("v_add_u32 v%d, s%d, v%d" % (t[2], c.st[0], t[2]))
    a("v_and_b32 v%d, 31, v%d" % (t[3], vl))
    a("v_cmp_eq_u32 vcc, 0, v%d" % t[3])
    a("s_and_saveexec_b64 s[58:59], vcc")
    for ft in range(2):
        for rq in range(4):
            a("ds_write_b128 v%d, %s offset:%d" % (t[2], vr(zT[ft] + 4 * rq, 4), 8192 + (ft * 8 + rq * 2) * 16))
    a("s_mov_b64 exec, s[58:59]")
    a("s_waitcnt lgkmcnt(0)")
    a("s_barrier")
    a("s_lshl_b32 s%d, s%d, 11" % (c.st[0], s_wave))
    a("s_add_u32 s%d, s%d, %d" % (c.st[0], c.st[0], L_RED))
    a("v_add_u32 v%d, s%d, v%d" % (t[1], c.st[0], t[0]))
    rr = 32
    for ww in range(4):
        for bb in range(2):
            a("ds_read_b128 %s, v%d offset:%d" % (vr(rr + 8 * ww + 4 * bb, 4), t[1], ww * KVP_BYTES + bb * 1024))
    a("v_add_u32 v%d, %d, v%d" % (t[2], L_RED + 8192, t[0]))
    a("v_and_b32 v%d, 0xff, v%d" % (t[3], t[0]))
    a("v_add_u32 v%d, %d, v%d" % (t[2], L_RED + 8192, t[3]))
    zr = 180
    for ww in range(4):
        a("ds_read_b128 %s, v%d offset:%d" % (vr(zr + 4 * ww, 4), t[2], ww * KVP_BYTES))
    a("s_waitcnt lgkmcnt(0)")
    for ww in range(1, 4):
        for q in range(0, 8, 2):
            a("v_pk_add_f32 %s, %s, %s" % (vr(rr + q, 2), vr(rr + q, 2), vr(rr + 8 * ww + q, 2)))
        for q in range(0, 4, 2):
            a("v_pk_add_f32 %s, %s, %s" % (vr(zr + q, 2), vr(zr + q, 2), vr(zr + 4 * ww + q, 2)))
    a("s_mul_i32 s%d, s%d, %d" % (c.st[0], s_rb, KVP_BYTES))
    a("s_lshl_b32 s%d, s%d, 11" % (c.st[1], s_wave))
    a("s_add_u32 s%d, s%d, s%d" % (c.st[1], c.st[1], c.st[0]))
    for bb in range(2):
        a("buffer_store_dwordx4 %s, v%d, s[%d:%d], s%d offen offset:%d sc1" % (vr(rr + 4 * bb, 4), t[0], srdKV, srdKV + 3, c.st[1], bb * 1024))
    Lz = a.newlabel("Lz")
    a("s_cmp_lg_u32 s%d, 0" % s_wave)
    a("s_cbranch_scc1 %s" % Lz)
    a("v_add_u32 v%d, 8192, v%d" % (t[2], t[0]))
    a("v_cmp_gt_u32 vcc, 16, v%d" % vl)
    a("v_mov_b32 v%d, 0x7fffffff" % t[3])
    a("s_nop 0")
    a("v_cndmask_b32 v%d, v%d, v%d, vcc" % (t[2], t[3], t[2]))
    a("buffer_store_dwordx4 %s, v%d, s[%d:%d], s%d offen sc1" % (vr(zr, 4), t[2], srdKV, srdKV + 3, c.st[0]))
    a.label(Lz)
    a("s_waitcnt vmcnt(0)")
    a("s_barrier")
    stamp(a, 3, s_wave, kidx, tmp_v=vst)
    Lf = a.newlabel("Lflag")
    a("s_cmp_lg_u32 s%d, 0" % s_wave)
    a("s_cbranch_scc1 %s" % Lf)
    a("s_lshl_b32 s%d, s%d, 7" % (c.st[0], s_h))
    a("s_lshl_b32 s%d, s%d, 3" % (c.st[1], s_rb))
    a("s_add_u32 s%d, s%d, s%d" % (c.st[0], c.st[0], c.st[1]))
    a("s_add_u32 s%d, s%d, %d" % (c.st[0], c.st[0], WS_FLAG))
    a("v_mov_b32 v%d, s%d" % (t[0], c.st[0]))
    a("s_mov_b64 s[58:59], exec")
    a("s_mov_b64 exec, 1")
    a("global_store_dwordx2 v%d, %s, s[4:5] sc1" % (t[0], vr(vtok, 2)))
    a("s_mov_b64 exec, s[58:59]")
    a.label(Lf)
    phq = [32, 48]
    for st in range(2):
        phi(accQ[st], csQ, st)
        for i in range(8):
            a("v_mov_b32 v%d, v%d" % (phq[st] + i, pos + i))
            a("v_mov_b32 v%d, v%d" % (phq[st] + 8 + i, neg + i))
    stamp(a, 4, s_wave, kidx, tmp_v=vst)
    a("s_barrier")
    kvf, zf = 64, 80
    a("v_lshlrev_b32 v%d, 4, v%d" % (t[0], vl))
    a("v_add_u32 v%d, %d, v%d" % (t[0], L_KVF, t[0]))
    a("v_lshlrev_b32 v%d, 4, v%d" % (t[1], hi_))
    a("v_add_u32 v%d, %d, v%d" % (t[1], L_ZF, t[1]))
    for tp in range(4):
        a("ds_read_b128 %s, v%d offset:%d" % (vr(kvf + 4 * tp, 4), t[0], tp * 1024))
        a("ds_read_b128 %s, v%d offset:%d" % (vr(zf + 4 * tp, 4), t[1], tp * 32))
    a("s_waitcnt lgkmcnt(0)")
    num = [96, 112]; den = [180, 196]
    for st in range(2):
        for tp in range(4):
            a(mf32(num[st], kvf + 4 * tp, phq[st] + 4 * tp, "0" if tp == 0 else num[st]))
            a(mf32(den[st], zf + 4 * tp, phq[st] + 4 * tp, "0" if tp == 0 else den[st]))
    mfma_wait(a)
    a("v_and_b32 v%d, 31, v%d" % (t[0], vl))
    a("s_lshl_b32 s%d, s%d, 6" % (c.st[0], s_wave))
    a("v_add_u32 v%d, s%d, v%d" % (t[0], c.st[0], t[0]))
    a("v_lshlrev_b32 v%d, 11, v%d" % (t[0], t[0]))
    a("v_lshl_add_u32 v%d, v%d, 4, v%d" % (t[0], hi_, t[0]))
    for st in range(2):
        a("v_add_f32 v%d, 0x358637bd, v%d" % (t[1], den[st]))
        a("v_rcp_f32 v%d, v%d" % (t[1], t[1]))
        a("s_nop 0")
        for i in range(16):
            a("v_mul_f32 v%d, v%d, v%d" % (num[st] + i, num[st] + i, t[1]))
        ob = 212 + 8 * st
        for i in range(8):
            a("v_cvt_pk_bf16_f32 v%d, v%d, v%d" % (ob + i, num[st] + 2 * i, num[st] + 2 * i + 1))
        a("s_nop 1")
        for pr in range(2):
            a("v_permlane32_swap_b32 v%d, v%d" % (ob + 4 * pr, ob + 4 * pr + 2))
            a("v_permlane32_swap_b32 v%d, v%d" % (ob + 4 * pr + 1, ob + 4 * pr + 3))
        for pr in range(2):
            a("s_mov_b32 s%d, %d" % (c.st[1], st * 32 * 2048))
            a("buffer_store_dwordx4 %s, v%d, s[%d:%d], s%d offen offset:%d%s" % (vr(ob + 4 * pr, 4), t[0], srdO, srdO + 3, c.st[1], pr * 32, os.environ.get("STFLAG", "")))
    a("s_waitcnt vmcnt(0)") if STAMPS else None
    stamp(a, 5, s_wave, kidx, tmp_v=vst)
    a.label(Lend)
    a("s_endpgm")
    return kernel_desc(name, vmax, 80), lds
```

```python
import sys
from common import *
from kgemm import gemm_kernel

NAME = "sequential_preLN__linear_kernel_hedgehog__dense_activation_relu__prompt"
HDR = open("cdna_kernels/%s.s.ref" % NAME).read().split("; Override launch geometry")[0]

def build(kinds):
    a = Asm()
    descs = []; launches = []
    for k in kinds:
        if k == "nop":
            if "nop_kernel" not in [l[0] for l in launches]:
                kernel_header(a, "nop_kernel"); a("s_endpgm")
                descs.append(kernel_desc("nop_kernel", 8, 16))
            launches.append(("nop_kernel", 256, 64, 0))
            continue
        if k == "qkv":
            from kqkv import qkv_kernel
            d, lds = qkv_kernel(a, "qkv_kernel")
            launches.append(("qkv_kernel", 256, 512, lds))
        else:
            d, lds = gemm_kernel(a, k + "_kernel", k)
            launches.append((k + "_kernel", 256, 512, lds))
        descs.append(d)
    out = HDR
    for (n, g, b, lds) in launches:
        out += "; @launch kernel=%s grid=(%d,1,1) block=(%d,1,1) lds=%d\n" % (n, g, b, lds)
    out += '.amdgcn_target "amdgcn-amd-amdhsa--gfx950"\n.text\n'
    out += a.text()
    out += '.section .rodata,"a"\n' + "".join(descs)
    return out

if __name__ == "__main__":
    kinds = sys.argv[2].split(",")
    open(sys.argv[1], "w").write(build(kinds))
```

```python
from common import *
import os
DBG = os.environ.get("GDBG", "")

def magic_div(P, maxs):
    for sh in range(8, 24):
        mul = -(-(1 << sh) // P)
        if mul >= (1 << 24): continue
        if all(((s * mul) >> sh) == s // P for s in range(maxs)) and (maxs * mul) < (1 << 32):
            return mul, sh
    raise Exception("no magic")

def swz_mask_bits(P):
    if P % 16 in (4, 12):
        return [(3, 1)]
    if P % 16 == 8:
        return [(1, 1), (3, 2)]
    if P % 16 == 0:
        return [(0, 1), (1, 2), (3, 3)]
    raise Exception("P")

class Cfg:
    pass

def emit_producer_setup(a, c, vbase):
    vl = c.v_lane
    t0, t1, t2, t3 = c.vt[0:4]
    st = c.st[0]
    c.vA = [vbase + i for i in range(c.a_ins)]
    c.vB = [vbase + c.a_ins + i for i in range(c.b_ins)]
    a("v_lshrrev_b32 v%d, 3, v%d" % (t0, vl))
    a("v_and_b32 v%d, 7, v%d" % (t1, vl))
    a("s_mul_i32 s%d, s%d, %d" % (st, c.s_p, c.a_ins * 8))
    for j in range(c.a_ins):
        a("v_add_u32 v%d, s%d, v%d" % (t2, st, t0))
        if j: a("v_add_u32 v%d, %d, v%d" % (t2, 8 * j, t2))
        a("v_bfe_u32 v%d, v%d, 1, 3" % (t3, t2))
        if "noswzA" in DBG: a("v_mov_b32 v%d, v%d" % (t3, t1))
        else: a("v_xor_b32 v%d, v%d, v%d" % (t3, t3, t1))
        a("v_lshlrev_b32 v%d, 4, v%d" % (t3, t3))
        a("s_mov_b32 s%d, %d" % (c.st[1], c.lda))
        a("v_mul_lo_u32 v%d, v%d, s%d" % (t2, t2, c.st[1]))
        a("v_add_u32 v%d, v%d, v%d" % (c.vA[j], t2, t3))
    P = c.P
    mul, sh = magic_div(P, 64 * P + 64)
    a("s_mul_i32 s%d, s%d, %d" % (st, c.s_p, c.b_ins * 64))
    for j in range(c.b_ins):
        a("v_add_u32 v%d, s%d, v%d" % (t0, st, vl))
        if j: a("v_add_u32 v%d, %d, v%d" % (t0, 64 * j, t0))
        a("v_mul_u32_u24 v%d, %d, v%d" % (t1, mul, t0))
        a("v_lshrrev_b32 v%d, %d, v%d" % (t1, sh, t1))
        a("v_mul_u32_u24 v%d, %d, v%d" % (t2, P, t1))
        a("v_sub_u32 v%d, v%d, v%d" % (t2, t0, t2))
        for (kb, jb) in (c.swz if "noswzB" not in DBG else []):
            a("v_bfe_u32 v%d, v%d, %d, 1" % (t3, t1, kb))
            a("v_lshlrev_b32 v%d, %d, v%d" % (t3, jb, t3))
            a("v_xor_b32 v%d, v%d, v%d" % (t2, t2, t3))
        if c.colmode == "lin":
            a("v_lshlrev_b32 v%d, 4, v%d" % (t2, t2))
        else:
            a("v_lshrrev_b32 v%d, 2, v%d" % (t3, t2))
            a("v_lshlrev_b32 v%d, 11, v%d" % (t3, t3))
            a("v_and_b32 v%d, 3, v%d" % (t2, t2))
            a("v_lshlrev_b32 v%d, 4, v%d" % (t2, t2))
            a("v_add_u32 v%d, v%d, v%d" % (t2, t2, t3))
        a("s_mov_b32 s%d, %d" % (c.st[1], c.ldb))
        a("v_mul_lo_u32 v%d, v%d, s%d" % (t1, t1, c.st[1]))
        a("v_add_u32 v%d, v%d, v%d" % (c.vB[j], t1, t2))

def emit_dbg_hot(a, c):
    if "hotA" in DBG:
        for r in c.vA: a("v_lshlrev_b32 v%d, 4, v%d" % (r, c.v_lane))
        c.hotA = True
    if "hotB" in DBG:
        for r in c.vB: a("v_lshlrev_b32 v%d, 4, v%d" % (r, c.v_lane))
        c.hotB = True

def emit_issue_A(a, c):
    a("s_add_u32 m0, s%d, s%d" % (c.s_slotA, c.s_mA))
    for j in range(c.a_ins):
        if j: a("s_add_u32 m0, m0, 0x400")
        a("s_nop 0")
        a("buffer_load_dwordx4 v%d, s[%d:%d], %s offen lds" % (c.vA[j], c.srdA, c.srdA + 3, "0" if "hotA" in DBG else "s%d" % c.s_ka))
    a("s_add_u32 s%d, s%d, %d" % (c.s_slotA, c.s_slotA, c.Abytes))
    a("s_cmp_eq_u32 s%d, %d" % (c.s_slotA, c.SA * c.Abytes))
    a("s_cselect_b32 s%d, 0, s%d" % (c.s_slotA, c.s_slotA))
    a("s_add_u32 s%d, s%d, 128" % (c.s_ka, c.s_ka))
    if c.rotate:
        a("s_cmp_eq_u32 s%d, %d" % (c.s_ka, c.NS * 128))
        a("s_cselect_b32 s%d, 0, s%d" % (c.s_ka, c.s_ka))

def emit_issue_B(a, c):
    a("s_add_u32 m0, s%d, s%d" % (c.s_slotB, c.s_mB))
    for j in range(c.b_ins):
        if j: a("s_add_u32 m0, m0, 0x400")
        a("s_nop 0")
        a("buffer_load_dwordx4 v%d, s[%d:%d], %s offen lds" % (c.vB[j], c.srdB, c.srdB + 3, "0" if "hotB" in DBG else "s%d" % c.s_kb))
    a("s_add_u32 s%d, s%d, %d" % (c.s_slotB, c.s_slotB, c.Bbytes))
    a("s_cmp_eq_u32 s%d, %d" % (c.s_slotB, c.SB * c.Bbytes))
    a("s_cselect_b32 s%d, 0, s%d" % (c.s_slotB, c.s_slotB))
    a("s_add_u32 s%d, s%d, %d" % (c.s_kb, c.s_kb, 64 * c.ldb))
    if c.rotate:
        a("s_cmp_eq_u32 s%d, %d" % (c.s_kb, c.NS * 64 * c.ldb))
        a("s_cselect_b32 s%d, 0, s%d" % (c.s_kb, c.s_kb))

def emit_pf_setup(a, c):
    pf = c.pf
    vl = c.v_lane; t = c.vt
    nA, nB, seg = pf["nA"], pf["nB"], pf["segB"]
    ns = len(seg)
    Smax = max(c.SA, c.SB)
    a("v_add_u32 v%d, s%d, v%d" % (t[0], pf["rowA"], vl))
    a("s_mov_b32 s%d, %d" % (c.st[0], c.lda))
    a("v_mul_lo_u32 v%d, v%d, s%d" % (t[0], t[0], c.st[0]))
    a("s_add_u32 s%d, s%d, %d" % (c.st[0], c.s_ka, (Smax - 1) * 128))
    a("v_add_u32 v%d, s%d, v%d" % (t[0], c.st[0], t[0]))
    a("v_subrev_u32 v%d, %d, v%d" % (t[1], nA, vl))
    a("v_and_b32 v%d, 63, v%d" % (t[1], t[1]))
    mul, sh = magic_div(ns, 64) if ns > 1 else (1, 0)
    a("v_mul_u32_u24 v%d, %d, v%d" % (t[2], mul, t[1]))
    a("v_lshrrev_b32 v%d, %d, v%d" % (t[2], sh, t[2]))
    a("v_mul_u32_u24 v%d, %d, v%d" % (t[3], ns, t[2]))
    a("v_sub_u32 v%d, v%d, v%d" % (t[3], t[1], t[3]))
    a("v_lshlrev_b32 v%d, 7, v%d" % (t[3], t[3]))
    a("v_min_u32 v%d, %d, v%d" % (t[3], seg[-1], t[3]))
    a("v_add_u32 v%d, s%d, v%d" % (t[2], pf["rowB"], t[2]))
    a("s_mov_b32 s%d, %d" % (c.st[0], c.ldb))
    a("v_mul_lo_u32 v%d, v%d, s%d" % (t[2], t[2], c.st[0]))
    a("v_add_u32 v%d, v%d, v%d" % (t[2], t[2], t[3]))
    a("s_add_u32 s%d, s%d, %d" % (c.st[0], c.s_kb, (Smax - 1) * 64 * c.ldb))
    a("v_add_u32 v%d, s%d, v%d" % (t[2], c.st[0], t[2]))
    a("v_cmp_le_u32 vcc, %d, v%d" % (nA, vl))
    a("v_cmp_gt_u32 s[74:75], %d, v%d" % (nA + nB * ns, vl))
    a("s_nop 1")
    a("s_and_b64 vcc, vcc, s[74:75]")
    a("v_cmp_gt_u32 s[74:75], %d, v%d" % (nA, vl))
    a("v_mov_b32 v%d, s%d" % (t[4], pf["rowA"]))
    a("s_mov_b32 s%d, %d" % (c.st[0], c.lda))
    a("v_mul_lo_u32 v%d, v%d, s%d" % (t[4], t[4], c.st[0]))
    a("s_add_u32 s%d, s%d, %d" % (c.st[0], c.s_ka, (Smax - 1) * 128))
    a("v_add_u32 v%d, s%d, v%d" % (t[4], c.st[0], t[4]))
    a("v_cndmask_b32 v%d, v%d, v%d, s[74:75]" % (t[0], t[4], t[0]))
    a("v_cndmask_b32 v%d, v%d, v%d, vcc" % (t[0], t[0], t[2]))
    a("v_mov_b32 v%d, 128" % c.v_pfi)
    a("v_mov_b32 v%d, %d" % (t[1], 64 * c.ldb))
    a("v_cndmask_b32 v%d, v%d, v%d, vcc" % (c.v_pfi, c.v_pfi, t[1]))
    a("v_mov_b32 v%d, s%d" % (t[1], c.srdA))
    a("v_mov_b32 v%d, s%d" % (t[2], c.srdB))
    a("v_cndmask_b32 v%d, v%d, v%d, vcc" % (t[1], t[1], t[2]))
    a("v_mov_b32 v%d, s%d" % (t[2], c.srdA + 1))
    a("v_mov_b32 v%d, s%d" % (t[3], c.srdB + 1))
    a("v_cndmask_b32 v%d, v%d, v%d, vcc" % (t[2], t[2], t[3]))
    a("v_add_co_u32 v%d, vcc, v%d, v%d" % (c.v_pf, t[1], t[0]))
    a("s_nop 1")
    a("v_addc_co_u32 v%d, vcc, 0, v%d, vcc" % (c.v_pf + 1, t[2]))
    a("s_mov_b32 s%d, %d" % (c.s_pfn, Smax - 1))

def emit_pf_issue(a, c):
    a("global_load_dword v%d, v[%d:%d], off" % (c.v_pfd, c.v_pf, c.v_pf + 1))
    a("s_add_u32 s%d, s%d, 1" % (c.s_pfn, c.s_pfn))
    a("s_cmp_lt_u32 s%d, %d" % (c.s_pfn, c.NS))
    a("s_cselect_b32 s%d, -1, 0" % c.st[2])
    a("v_and_b32 v%d, s%d, v%d" % (c.v_pfd + 1, c.st[2], c.v_pfi))
    a("v_add_co_u32 v%d, vcc, v%d, v%d" % (c.v_pf, c.v_pf, c.v_pfd + 1))
    a("s_nop 1")
    a("v_addc_co_u32 v%d, vcc, 0, v%d, vcc" % (c.v_pf + 1, c.v_pf + 1))

def emit_producer_loop(a, c):
    emit_dbg_hot(a, c)
    pf = getattr(c, "pf", None)
    SA, SB, NS = c.SA, c.SB, c.NS
    na, nb = c.a_ins, c.b_ins
    a("s_mul_i32 s%d, s%d, %d" % (c.s_mA, c.s_p, c.a_ins * 1024))
    a("s_mul_i32 s%d, s%d, %d" % (c.s_mB, c.s_p, c.b_ins * 1024))
    a("s_add_u32 s%d, s%d, %d" % (c.s_mB, c.s_mB, c.Bbase))
    a("s_mov_b32 s%d, 0" % c.s_slotA)
    a("s_mov_b32 s%d, 0" % c.s_slotB)
    Smax = max(SA, SB)
    log = []
    def virt(j, emit=True):
        ops = []
        if 0 <= j + SB - 1 < NS: ops.append(("B", j + SB - 1, nb))
        if 0 <= j + SA - 1 < NS: ops.append(("A", j + SA - 1, na))
        if SA > SB: ops.reverse()
        for o in ops:
            log.append(o)
            if emit: (emit_issue_A if o[0] == "A" else emit_issue_B)(a, c)
    def need(stage):
        last = max(i for i, o in enumerate(log) if o[1] == stage and o[0] in "AB" and ((o[0], stage) in (("A", stage), ("B", stage))))
        return sum(o[2] for o in log[last + 1:])
    if pf:
        assert not c.rotate
        emit_pf_setup(a, c)
    for j in range(-(Smax - 1), 0): virt(j)
    if pf:
        for d in range(pf["D"]):
            emit_pf_issue(a, c); log.append(("P", -1, 1))
    nmain = NS - Smax + 1
    cnt0 = need(0)
    if pf:
        cnt0 = min(cnt0, (min(SA, SB) - 2) * (na + nb + 1) + 1)
    a("s_mov_b32 s%d, 0" % c.s_i)
    L = a.newlabel("Lprod")
    a.label(L)
    a("s_waitcnt vmcnt(%d)" % cnt0)
    a("s_barrier")
    virt(0)
    if pf:
        emit_pf_issue(a, c); log.append(("P", -1, 1))
    PFLOOP = True
    if getattr(c, "prod_iter_hook", None): c.prod_iter_hook()
    a("s_add_u32 s%d, s%d, 1" % (c.s_i, c.s_i))
    a("s_cmp_lt_u32 s%d, %d" % (c.s_i, nmain))
    a("s_cbranch_scc1 %s" % L)
    if not pf: assert need(1) == cnt0, (need(1), cnt0)
    for j in range(1, nmain):
        if pf: assert need(j) >= cnt0, (j, need(j), cnt0)
        virt(j, emit=False)
        if pf: log.append(("P", -1, 1))
    for i in range(nmain, NS):
        a("s_waitcnt vmcnt(%d)" % need(i))
        a("s_barrier")
        virt(i)

def emit_consumer16_setup(a, c):
    vl = c.v_lane
    t0, t1, t2, t3 = c.vt[0:4]
    st0, st1 = c.st[0:2]
    a("v_and_b32 v%d, 15, v%d" % (t0, vl))
    a("v_lshrrev_b32 v%d, 4, v%d" % (t1, vl))
    a("v_lshrrev_b32 v%d, 1, v%d" % (t2, t0))
    a("s_lshl_b32 s%d, s%d, 6" % (st0, c.s_wm))
    a("v_add_u32 v%d, s%d, v%d" % (t3, st0, t0))
    a("v_lshlrev_b32 v%d, 7, v%d" % (t3, t3))
    a("v_xor_b32 v%d, v%d, v%d" % (t2, t2, t1))
    for stp in range(2):
        if stp: a("v_xor_b32 v%d, 4, v%d" % (t2, t2))
        a("v_lshl_add_u32 v%d, v%d, 4, v%d" % (c.vX[stp], t2, t3))
    a("v_lshrrev_b32 v%d, 2, v%d" % (t2, t0))
    a("v_lshl_add_u32 v%d, v%d, 3, v%d" % (t3, t1, t2))
    a("v_mov_b32 v%d, 0" % c.vt[4])
    for (kb, jb) in c.swz:
        a("v_bfe_u32 v%d, v%d, %d, 1" % (c.vt[5], t3, kb))
        a("v_lshlrev_b32 v%d, %d, v%d" % (c.vt[5], jb - 1, c.vt[5]))
        a("v_or_b32 v%d, v%d, v%d" % (c.vt[4], c.vt[4], c.vt[5]))
    a("v_mul_u32_u24 v%d, %d, v%d" % (t3, c.P * 16, t3))
    a("v_and_b32 v%d, 3, v%d" % (t2, t0))
    a("v_lshl_add_u32 v%d, v%d, 3, v%d" % (t3, t2, t3))
    a("v_add_u32 v%d, %d, v%d" % (t3, c.Bbase, t3))
    a("s_mul_i32 s%d, s%d, %d" % (st0, c.s_wn, c.NT))
    for q in range(len(c.vW)):
        a("s_add_u32 s%d, s%d, %d" % (st1, st0, q))
        a("v_xor_b32 v%d, s%d, v%d" % (t2, st1, c.vt[4]))
        a("v_lshl_add_u32 v%d, v%d, 5, v%d" % (c.vW[q], t2, t3))
        if q: a("v_subrev_u32 v%d, %d, v%d" % (c.vW[q], 32 * q, c.vW[q]))

def reads16(c, buf, stp):
    r = []
    if "noread" in DBG: return []
    for mt in range(c.MT):
        r.append("ds_read_b128 %s, v%d offset:%d" % (vr(c.fX[buf] + 4 * mt, 4), c.vX[stp], mt * 2048))
    xs = r; ws = []
    for t in range(c.NT):
        for hf in range(2):
            off = (32 * stp + 4 * hf) * c.P * 16 + t * 32
            ws.append("ds_read_b64_tr_b16 %s, v%d offset:%d" % (vr(c.fW[buf] + 4 * t + 2 * hf, 2), c.vW[t % len(c.vW)], off))
    out = ws[0:2] + xs + ws[2:]
    if "notr" in DBG: out = xs
    if "nox" in DBG: out = ws
    return out

def mfmas16(c, buf):
    m = []
    if "nomfma" in DBG: return []
    for t in range(c.NT):
        for mt in range(c.MT):
            acc = c.acc + 4 * (t * c.MT + mt)
            m.append("v_mfma_f32_16x16x32_bf16 %s, %s, %s, %s" % (vr(acc, 4), vr(c.fW[buf] + 4 * t, 4), vr(c.fX[buf] + 4 * mt, 4), vr(acc, 4)))
    return m

def interleave(a, mf, rd, first=1, per=1):
    ri = 0
    for i, m in enumerate(mf):
        a(m)
        if i + 1 >= first:
            for _ in range(per):
                if ri < len(rd):
                    a(rd[ri]); ri += 1
    while ri < len(rd):
        a(rd[ri]); ri += 1

def emit_addr_advance(a, c, regsA, regsB):
    for (sl, dl, nb, S, regs) in ((c.s_cslotA, c.s_deltaA, c.Abytes, c.SA, regsA), (c.s_cslotB, c.s_deltaB, c.Bbytes, c.SB, regsB)):
        a("s_add_u32 s%d, s%d, %d" % (sl, sl, nb))
        a("s_mov_b32 s%d, %d" % (dl, nb))
        a("s_cmp_eq_u32 s%d, %d" % (sl, S * nb))
        a("s_cselect_b32 s%d, 0, s%d" % (sl, sl))
        a("s_cselect_b32 s%d, %d, s%d" % (dl, -(S - 1) * nb, dl))
    for r in regsA: a("v_add_u32 v%d, s%d, v%d" % (r, c.s_deltaA, r))
    for r in regsB: a("v_add_u32 v%d, s%d, v%d" % (r, c.s_deltaB, r))

def set_rings(c, SA, SB):
    c.SA, c.SB = SA, SB
    c.Abytes = c.nA * 1024; c.Bbytes = c.nB * 1024
    if "fakering" in DBG: c.Abytes //= 2; c.Bbytes //= 2
    c.Bbase = SA * c.Abytes
    c.ring_bytes = SA * c.Abytes + SB * c.Bbytes

def emit_consumer16_loop(a, c):
    per = 1 if c.NT * c.MT >= 16 else 2
    if os.environ.get("PER"): per = int(os.environ["PER"])
    for i in range(c.NT * c.MT * 4):
        a("v_mov_b32 v%d, 0" % (c.acc + i))
    a("s_mov_b32 s%d, 0" % c.s_cslotA)
    a("s_mov_b32 s%d, 0" % c.s_cslotB)
    a("s_barrier")
    for r in reads16(c, 0, 0): a(r)
    a("s_mov_b32 s%d, 0" % c.s_i)
    L = a.newlabel("Lcons")
    a.label(L)
    a("s_waitcnt lgkmcnt(0)")
    interleave(a, mfmas16(c, 0), reads16(c, 1, 1), 1, per)
    a("s_waitcnt lgkmcnt(0)")
    a("s_barrier")
    emit_addr_advance(a, c, [c.vX[0], c.vX[1]], c.vW)
    interleave(a, mfmas16(c, 1), reads16(c, 0, 0), 1, per)
    a("s_add_u32 s%d, s%d, 1" % (c.s_i, c.s_i))
    a("s_cmp_lt_u32 s%d, %d" % (c.s_i, c.NS - 1))
    a("s_cbranch_scc1 %s" % L)
    a("s_waitcnt lgkmcnt(0)")
    interleave(a, mfmas16(c, 0), reads16(c, 1, 1), 1, per)
    a("s_waitcnt lgkmcnt(0)")
    for m in mfmas16(c, 1): a(m)
```

```python
from common import *
from gemm import *

import os
RINGS = {"wo": (6, 6), "w1": (3, 3), "w2": (6, 6)}
for k_ in RINGS:
    if os.environ.get("RING_" + k_): RINGS[k_] = tuple(int(x) for x in os.environ["RING_" + k_].split(","))

def base_cfg(BM, BN, K, lda, ldb, S):
    c = Cfg()
    c.BM, c.BN, c.K, c.lda, c.ldb, c.S = BM, BN, K, lda, ldb, S
    c.NS = K // 64
    c.nA = BM // 8; c.nB = BN // 8
    c.a_ins = c.nA // 4; c.b_ins = c.nB // 4
    assert c.nA % 4 == 0 and c.nB % 4 == 0
    c.P = BN // 8
    c.stage_bytes = (c.nA + c.nB) * 1024
    c.rotate = False
    c.colmode = "lin"
    return c

def gemm_kernel(a, name, kind):
    if kind == "wo":
        c = base_cfg(128, 64, 1024, 2048, 2048, 6); set_rings(c, *RINGS["wo"])
        XM, XN = 4, 8
    elif kind == "w1":
        c = base_cfg(128, 224, 1024, 2048, 7168, 3); set_rings(c, *RINGS["w1"])
        XM, XN = 8, 4
    else:
        c = base_cfg(128, 64, 3584, 7168, 2048, 6); set_rings(c, *RINGS["w2"])
        XM, XN = 4, 8
    c.swz = swz_mask_bits(c.P)
    c.MT = 4; c.NT = c.BN // 32
    tilesM, tilesN = 16, 16
    c.srdA, c.srdB, srdC, srdR, srdS, srdT = 16, 20, 24, 28, 32, 36
    s_wave, s_tm, s_tn = 40, 41, 42
    c.s_p = c.s_wm = 43; c.s_wn = 44
    c.s_slotA = c.s_cslotA = 45; c.s_ka = c.s_deltaA = 46; c.s_kb = c.s_deltaB = 47; c.s_mA = 48; c.s_mB = 49; c.s_i = 50; c.s_slotB = c.s_cslotB = 51
    c.st = [52, 53, 54, 55]
    nacc = c.MT * c.NT * 4
    c.acc = 0
    fr = nacc
    c.fX = [fr, fr + 16 + 4 * c.NT]
    c.fW = [fr + 16, fr + 32 + 4 * c.NT]
    misc = fr + 2 * (16 + 4 * c.NT)
    c.v_lane = misc
    c.vX = [misc + 1, misc + 2]; c.vW = [misc + 3, misc + 4]
    c.vt = [misc + 5 + i for i in range(8)]
    vmax = misc + 13 + 8
    lds = c.ring_bytes
    side = lds
    if kind == "w1":
        lds += 128 * 8 + 224 * 4
    pitch = c.BN * 2 + 16
    ctile = 128 * pitch
    cbase = 0
    assert ctile <= c.ring_bytes

    kernel_header(a, name)
    Lend = a.newlabel("Lend")
    a("s_cmp_ge_u32 s2, 256")
    a("s_cbranch_scc1 %s" % Lend)
    ka_a = {"wo": KA_WS, "w1": KA_WS, "w2": KA_WS}[kind]
    a_off = {"wo": WS_O, "w1": WS_H, "w2": WS_H1}[kind]
    ka_b = {"wo": KA_WO, "w1": KA_W1, "w2": KA_W2}[kind]
    a("s_load_dwordx2 s[4:5], s[0:1], %d" % KA_WS)
    a("s_load_dwordx2 s[6:7], s[0:1], %d" % ka_b)
    a("s_load_dwordx2 s[8:9], s[0:1], %d" % KA_OUT)
    a("s_load_dwordx2 s[10:11], s[0:1], %d" % KA_X)
    a("v_and_b32 v%d, 63, v0" % c.v_lane)
    a("v_lshrrev_b32 v1, 6, v0")
    a("s_nop 0")
    a("v_readfirstlane_b32 s%d, v1" % s_wave)
    a("s_and_b32 s%d, s2, 7" % c.st[0])
    a("s_lshr_b32 s%d, s2, 3" % c.st[1])
    PM = tilesM // XM
    lgPM = PM.bit_length() - 1; lgXM = XM.bit_length() - 1; lgXN = XN.bit_length() - 1
    a("s_and_b32 s%d, s%d, %d" % (c.st[2], c.st[0], PM - 1))
    a("s_lshr_b32 s%d, s%d, %d" % (c.st[3], c.st[0], lgPM))
    a("s_lshl_b32 s%d, s%d, %d" % (s_tm, c.st[2], lgXM))
    a("s_and_b32 s%d, s%d, %d" % (c.st[2], c.st[1], XM - 1))
    a("s_add_u32 s%d, s%d, s%d" % (s_tm, s_tm, c.st[2]))
    a("s_lshl_b32 s%d, s%d, %d" % (s_tn, c.st[3], lgXN))
    a("s_lshr_b32 s%d, s%d, %d" % (c.st[2], c.st[1], lgXM))
    if "tnx" in os.environ.get("GDBG", ""): a("s_xor_b32 s%d, s%d, 1" % (c.st[2], c.st[2]))
    a("s_add_u32 s%d, s%d, s%d" % (s_tn, s_tn, c.st[2]))
    a("s_waitcnt lgkmcnt(0)")
    a("s_mul_i32 s%d, s%d, %d" % (c.st[0], s_tm, 128 * c.lda))
    a("s_add_u32 s%d, s%d, %d" % (c.st[0], c.st[0], a_off))
    a("s_add_u32 s12, s4, s%d" % c.st[0])
    a("s_addc_u32 s13, s5, 0")
    make_srd(a, c.srdA, "s12", "s13", 128 * c.lda)
    a("s_mul_i32 s%d, s%d, %d" % (c.st[0], s_tn, c.BN * 2))
    a("s_add_u32 s12, s6, s%d" % c.st[0])
    a("s_addc_u32 s13, s7, 0")
    a("s_sub_u32 s%d, %d, s%d" % (c.st[1], c.K * c.ldb, c.st[0]))
    make_srd(a, c.srdB, "s12", "s13", "s%d" % c.st[1])
    ldc = {"wo": 2048, "w1": 7168, "w2": 2048}[kind]
    a("s_mul_i32 s%d, s%d, %d" % (c.st[0], s_tm, 128 * ldc))
    a("s_mul_i32 s%d, s%d, %d" % (c.st[1], s_tn, c.BN * 2))
    a("s_add_u32 s%d, s%d, s%d" % (c.st[0], c.st[0], c.st[1]))
    if kind == "w2":
        a("s_add_u32 s12, s8, s%d" % c.st[0])
        a("s_addc_u32 s13, s9, 0")
    else:
        a("s_add_u32 s%d, s%d, %d" % (c.st[2], c.st[0], {"wo": WS_H, "w1": WS_H1}[kind]))
        a("s_add_u32 s12, s4, s%d" % c.st[2])
        a("s_addc_u32 s13, s5, 0")
    a("s_sub_u32 s%d, %d, s%d" % (c.st[1], S_ * ldc, c.st[0]))
    make_srd(a, srdC, "s12", "s13", "s%d" % c.st[1])
    if kind == "wo":
        a("s_add_u32 s12, s10, s%d" % c.st[0])
        a("s_addc_u32 s13, s11, 0")
        make_srd(a, srdR, "s12", "s13", "s%d" % c.st[1])
    if kind == "w2":
        a("s_add_u32 s%d, s%d, %d" % (c.st[2], c.st[0], WS_H))
        a("s_add_u32 s12, s4, s%d" % c.st[2])
        a("s_addc_u32 s13, s5, 0")
        make_srd(a, srdR, "s12", "s13", "s%d" % c.st[1])
    if kind == "wo":
        a("s_mul_i32 s%d, s%d, %d" % (c.st[0], s_tm, 128 * 128))
        a("s_lshl_b32 s%d, s%d, 3" % (c.st[1], s_tn))
        a("s_add_u32 s%d, s%d, s%d" % (c.st[0], c.st[0], c.st[1]))
        a("s_add_u32 s%d, s%d, %d" % (c.st[0], c.st[0], WS_ST2))
        a("s_add_u32 s12, s4, s%d" % c.st[0])
        a("s_addc_u32 s13, s5, 0")
        make_srd(a, srdS, "s12", "s13", 128 * 128)
    if kind == "w1":
        a("s_mul_i32 s%d, s%d, %d" % (c.st[0], s_tm, 128 * 128))
        a("s_add_u32 s%d, s%d, %d" % (c.st[0], c.st[0], WS_ST2))
        a("s_add_u32 s12, s4, s%d" % c.st[0])
        a("s_addc_u32 s13, s5, 0")
        make_srd(a, srdS, "s12", "s13", 128 * 128)
        a("s_mul_i32 s%d, s%d, %d" % (c.st[0], s_tn, 224 * 4))
        a("s_add_u32 s%d, s%d, %d" % (c.st[0], c.st[0], WS_CS1))
        a("s_add_u32 s12, s4, s%d" % c.st[0])
        a("s_addc_u32 s13, s5, 0")
        make_srd(a, srdT, "s12", "s13", 15 * 3584 * 4 + 224 * 4)
    kidx = {"wo": 1, "w1": 2, "w2": 3}[kind]
    vst = (vmax + 1) // 2 * 2
    vmax = vst + 4
    stamp(a, 0, s_wave, kidx, tmp_v=vst)
    Lcons = a.newlabel("Lconsumer")
    Lfin = a.newlabel("Lfinal")
    a("s_cmp_lt_u32 s%d, 4" % s_wave)
    a("s_cbranch_scc1 %s" % Lcons)

    a("s_sub_u32 s%d, s%d, 4" % (c.s_p, s_wave))
    a("s_mov_b32 s%d, 0" % c.s_ka)
    a("s_mov_b32 s%d, 0" % c.s_kb)
    emit_producer_setup(a, c, 32)
    PFD = int(os.environ.get("PF_" + kind, "0"))
    if PFD:
        nAr = 128 // XN // 4; nBr = 64 // XM // 4
        c.s_pfn = 70; c.v_pf = 60; c.v_pfi = 62; c.v_pfd = 56
        a("s_and_b32 s71, s%d, %d" % (s_tn, XN - 1))
        a("s_mul_i32 s71, s71, %d" % (128 // XN))
        a("s_mul_i32 s%d, s%d, %d" % (c.st[0], c.s_p, nAr))
        a("s_add_u32 s71, s71, s%d" % c.st[0])
        a("s_and_b32 s72, s%d, %d" % (s_tm, XM - 1))
        a("s_mul_i32 s72, s72, %d" % (64 // XM))
        a("s_mul_i32 s%d, s%d, %d" % (c.st[0], c.s_p, nBr))
        a("s_add_u32 s72, s72, s%d" % c.st[0])
        nlines = (c.BN * 2 + 127) // 128 + (1 if (c.BN * 2) % 128 else 0)
        half = os.environ.get("PFHALF", "0") == "1"
        seg = [x * (64 if half else 128) for x in range((c.BN * 2 + (63 if half else 127)) // (64 if half else 128))]
        if (c.BN * 2) % 128 and not half: seg.append(c.BN * 2 - 4)
        assert nAr + nBr * len(seg) <= 64
        c.pf = dict(D=PFD, rowA=71, rowB=72, nA=nAr, nB=nBr, half=half, segB=seg)
    stamp(a, 1, s_wave, kidx, tmp_v=vst)
    emit_producer_loop(a, c)
    a("s_barrier")
    stamp(a, 2, s_wave, kidx, tmp_v=vst)
    a("s_branch %s" % Lfin)

    a.label(Lcons)
    a("s_lshr_b32 s%d, s%d, 1" % (c.s_wm, s_wave))
    a("s_and_b32 s%d, s%d, 1" % (c.s_wn, s_wave))
    emit_consumer16_setup(a, c)
    if kind == "w1":
        emit_k3_side(a, c, s_wave, srdS, srdT, side)
    stamp(a, 1, s_wave, kidx, tmp_v=vst)
    stamp(a, 6, s_wave, kidx, tmp_v=vst)
    emit_consumer16_loop(a, c)
    stamp(a, 7, s_wave, kidx, tmp_v=vst)
    stamp(a, 2, s_wave, kidx, tmp_v=vst)
    a("s_barrier")
    a("s_nop 7"); a("s_nop 7")
    t = c.vt
    vl = c.v_lane
    a("v_and_b32 v%d, 15, v%d" % (t[0], vl))
    a("s_lshl_b32 s%d, s%d, 6" % (c.st[0], c.s_wm))
    a("v_add_u32 v%d, s%d, v%d" % (t[0], c.st[0], t[0]))
    a("v_mul_u32_u24 v%d, %d, v%d" % (t[1], pitch, t[0]))
    a("v_lshrrev_b32 v%d, 4, v%d" % (t[2], vl))
    a("v_lshl_add_u32 v%d, v%d, 3, v%d" % (t[1], t[2], t[1]))
    a("s_mul_i32 s%d, s%d, %d" % (c.st[0], c.s_wn, c.NT * 32))
    a("s_add_u32 s%d, s%d, %d" % (c.st[0], c.st[0], cbase))
    a("v_add_u32 v%d, s%d, v%d" % (t[1], c.st[0], t[1]))
    f0 = c.fX[0]
    if kind == "w1":
        a("v_lshlrev_b32 v%d, 3, v%d" % (t[3], t[0]))
        a("v_add_u32 v%d, %d, v%d" % (t[3], side, t[3]))
        for mt in range(4):
            a("ds_read_b64 %s, v%d offset:%d" % (vr(f0 + 2 * mt, 2), t[3], mt * 16 * 8))
        a("v_lshlrev_b32 v%d, 4, v%d" % (t[4], t[2]))
        a("s_mul_i32 s%d, s%d, %d" % (c.st[0], c.s_wn, c.NT * 64))
        a("v_add_u32 v%d, s%d, v%d" % (t[4], c.st[0], t[4]))
        a("v_add_u32 v%d, %d, v%d" % (t[4], side, t[4]))
        for tt in range(c.NT):
            a("ds_read_b128 %s, v%d offset:%d" % (vr(f0 + 8 + 4 * tt, 4), t[4], 1024 + tt * 64))
        a("s_waitcnt lgkmcnt(0)")
        rs = f0 + 8 + 4 * c.NT
        for mt in range(4):
            a("v_mov_b32 v%d, v%d" % (rs + 2 * mt, f0 + 2 * mt + 1))
    tmp = c.fX[1] + 16
    for tt in range(c.NT):
        for mt in range(4):
            acc = c.acc + 4 * (tt * 4 + mt)
            if kind == "w1":
                cs = f0 + 8 + 4 * tt
                for h in range(2):
                    a("v_pk_fma_f32 %s, %s, %s, %s op_sel_hi:[1,0,1]" % (vr(acc + 2 * h, 2), vr(cs + 2 * h, 2), vr(f0 + 2 * mt, 2), vr(acc + 2 * h, 2)))
                    a("v_pk_mul_f32 %s, %s, %s op_sel_hi:[1,0]" % (vr(acc + 2 * h, 2), vr(acc + 2 * h, 2), vr(rs + 2 * mt, 2)))
            d = tmp + 2 * ((tt * 4 + mt) % 4)
            a("v_cvt_pk_bf16_f32 v%d, v%d, v%d" % (d, acc, acc + 1))
            a("v_cvt_pk_bf16_f32 v%d, v%d, v%d" % (d + 1, acc + 2, acc + 3))
            if kind == "w1":
                a("v_pk_max_i16 v%d, v%d, 0" % (d, d))
                a("v_pk_max_i16 v%d, v%d, 0" % (d + 1, d + 1))
            a("ds_write_b64 v%d, %s offset:%d" % (t[1], vr(d, 2), mt * 16 * pitch + tt * 32))
    a("s_waitcnt lgkmcnt(0)")

    a.label(Lfin)
    G = c.BN // 8
    nf = 128 * G // 64 // 8
    vb = 0
    vL = [vb + i for i in range(nf)]
    vG = [vb + nf + i for i in range(nf)]
    vD = vb + 2 * nf + (2 * nf) % 2
    vD = (vD + 3) // 4 * 4
    vR = vD + 4 * nf
    mul, sh = magic_div(G, 128 * G + 64)
    t = [vR + 4 * nf + i for i in range(10)]
    vtop = vR + 4 * nf + 10
    assert vtop <= misc
    a("v_and_b32 v%d, 63, v%d" % (t[9], c.v_lane))
    a("s_mul_i32 s%d, s%d, %d" % (c.st[0], s_wave, nf * 64))
    for j in range(nf):
        a("v_add_u32 v%d, s%d, v%d" % (t[0], c.st[0], t[9]))
        if j: a("v_add_u32 v%d, %d, v%d" % (t[0], 64 * j, t[0]))
        a("v_mul_u32_u24 v%d, %d, v%d" % (t[1], mul, t[0]))
        a("v_lshrrev_b32 v%d, %d, v%d" % (t[1], sh, t[1]))
        a("v_mul_u32_u24 v%d, %d, v%d" % (t[2], G, t[1]))
        a("v_sub_u32 v%d, v%d, v%d" % (t[2], t[0], t[2]))
        a("v_lshlrev_b32 v%d, 4, v%d" % (t[2], t[2]))
        a("v_mul_u32_u24 v%d, %d, v%d" % (t[3], pitch, t[1]))
        a("v_add_u32 v%d, v%d, v%d" % (vL[j], t[3], t[2]))
        a("v_add_u32 v%d, %d, v%d" % (vL[j], cbase, vL[j]))
        a("v_mul_u32_u24 v%d, %d, v%d" % (t[3], ldc, t[1]))
        a("v_add_u32 v%d, v%d, v%d" % (vG[j], t[3], t[2]))
        if kind in ("wo", "w2"):
            a("buffer_load_dwordx4 %s, v%d, s[%d:%d], 0 offen" % (vr(vR + 4 * j, 4), vG[j], srdR, srdR + 3))
    stamp(a, 3, s_wave, kidx, tmp_v=vst)
    a("s_barrier")
    stamp(a, 4, s_wave, kidx, tmp_v=vst)
    for j in range(nf):
        a("ds_read_b128 %s, v%d" % (vr(vD + 4 * j, 4), vL[j]))
    a("s_waitcnt vmcnt(0) lgkmcnt(0)")
    for j in range(nf):
        if kind in ("wo", "w2"):
            for q in range(4):
                d = vD + 4 * j + q; r = vR + 4 * j + q
                a("v_lshlrev_b32 v%d, 16, v%d" % (t[0], d))
                a("v_and_b32 v%d, 0xffff0000, v%d" % (t[1], d))
                a("v_lshlrev_b32 v%d, 16, v%d" % (t[2], r))
                a("v_and_b32 v%d, 0xffff0000, v%d" % (t[3], r))
                a("v_add_f32 v%d, v%d, v%d" % (t[0], t[0], t[2]))
                a("v_add_f32 v%d, v%d, v%d" % (t[1], t[1], t[3]))
                a("v_cvt_pk_bf16_f32 v%d, v%d, v%d" % (d, t[0], t[1]))
                if kind == "wo":
                    a("v_lshlrev_b32 v%d, 16, v%d" % (t[0], d))
                    a("v_and_b32 v%d, 0xffff0000, v%d" % (t[1], d))
                    if q == 0:
                        a("v_add_f32 v%d, v%d, v%d" % (t[4], t[0], t[1]))
                        a("v_mul_f32 v%d, v%d, v%d" % (t[5], t[0], t[0]))
                    else:
                        a("v_add_f32 v%d, v%d, v%d" % (t[4], t[4], t[0]))
                        a("v_add_f32 v%d, v%d, v%d" % (t[4], t[4], t[1]))
                        a("v_fmac_f32 v%d, v%d, v%d" % (t[5], t[0], t[0]))
                    a("v_fmac_f32 v%d, v%d, v%d" % (t[5], t[1], t[1]))
        a("buffer_store_dwordx4 %s, v%d, s[%d:%d], 0 offen%s" % (vr(vD + 4 * j, 4), vG[j], srdC, srdC + 3, os.environ.get("STFLAG", "")))
        if kind == "wo":
            for dpp in ("quad_perm:[1,0,3,2]", "quad_perm:[2,3,0,1]", "row_half_mirror"):
                a("s_nop 1")
                a("v_add_f32_dpp v%d, v%d, v%d %s row_mask:0xf bank_mask:0xf" % (t[6], t[4], t[4], dpp))
                a("v_add_f32_dpp v%d, v%d, v%d %s row_mask:0xf bank_mask:0xf" % (t[7], t[5], t[5], dpp))
                a("v_mov_b32 v%d, v%d" % (t[4], t[6]))
                a("v_mov_b32 v%d, v%d" % (t[5], t[7]))
            a("v_add_u32 v%d, s%d, v%d" % (t[0], c.st[0], t[9]))
            if j: a("v_add_u32 v%d, %d, v%d" % (t[0], 64 * j, t[0]))
            a("v_lshrrev_b32 v%d, 3, v%d" % (t[1], t[0]))
            a("v_lshlrev_b32 v%d, 7, v%d" % (t[1], t[1]))
            a("v_and_b32 v%d, 7, v%d" % (t[2], t[9]))
            a("v_cmp_eq_u32 vcc, 0, v%d" % t[2])
            a("v_mov_b32 v%d, 0x7fffffff" % t[3])
            a("s_nop 1")
            a("v_cndmask_b32 v%d, v%d, v%d, vcc" % (t[1], t[3], t[1]))
            tt = (t[6] + 1) // 2 * 2
            a("v_mov_b32 v%d, v%d" % (vR, t[4]))
            a("v_mov_b32 v%d, v%d" % (vR + 1, t[5]))
            a("buffer_store_dwordx2 %s, v%d, s[%d:%d], 0 offen" % (vr(vR, 2), t[1], srdS, srdS + 3))
            a("s_nop 1")
    a("s_waitcnt vmcnt(0)") if STAMPS else None
    stamp(a, 5, s_wave, kidx, tmp_v=vst)
    a.label(Lend)
    a("s_endpgm")
    return kernel_desc(name, vmax, 80), lds

def emit_k3_side(a, c, s_wave, srdS, srdT, side):
    t = c.vt
    vl = c.v_lane
    f = c.fX[0]
    a("v_and_b32 v%d, 31, v%d" % (t[0], vl))
    a("s_lshl_b32 s%d, s%d, 5" % (c.st[0], s_wave))
    a("v_add_u32 v%d, s%d, v%d" % (t[0], c.st[0], t[0]))
    a("v_lshlrev_b32 v%d, 7, v%d" % (t[1], t[0]))
    a("v_lshrrev_b32 v%d, 5, v%d" % (t[2], vl))
    a("v_lshl_add_u32 v%d, v%d, 6, v%d" % (t[1], t[2], t[1]))
    for q in range(4):
        a("buffer_load_dwordx4 %s, v%d, s[%d:%d], 0 offen offset:%d" % (vr(f + 4 * q, 4), t[1], srdS, srdS + 3, q * 16))
    a("s_mul_i32 s%d, s%d, 56" % (c.st[0], s_wave))
    a("v_add_u32 v%d, s%d, v%d" % (t[3], c.st[0], vl))
    a("v_lshlrev_b32 v%d, 2, v%d" % (t[4], t[3]))
    a("v_cmp_gt_u32 vcc, 56, v%d" % vl)
    a("v_mov_b32 v%d, 0x7fffffff" % t[5])
    a("s_nop 0")
    a("v_cndmask_b32 v%d, v%d, v%d, vcc" % (t[4], t[5], t[4]))
    g = f + 16
    for q in range(16):
        a("s_mov_b32 s%d, %d" % (c.st[1], q * 3584 * 4))
        a("buffer_load_dword v%d, v%d, s[%d:%d], s%d offen" % (g + q, t[4], srdT, srdT + 3, c.st[1]))
    a("s_waitcnt vmcnt(16)")
    a("v_add_f32 v%d, v%d, v%d" % (t[5], f + 0, f + 2))
    a("v_add_f32 v%d, v%d, v%d" % (t[6], f + 1, f + 3))
    for q in range(2, 8):
        a("v_add_f32 v%d, v%d, v%d" % (t[5], t[5], f + 2 * q))
        a("v_add_f32 v%d, v%d, v%d" % (t[6], t[6], f + 2 * q + 1))
    a("v_mov_b32 v%d, v%d" % (f + 0, t[5]))
    a("v_mov_b32 v%d, v%d" % (f + 1, t[6]))
    a("s_nop 1")
    a("v_permlane32_swap_b32 v%d, v%d" % (f + 0, t[5]))
    a("v_permlane32_swap_b32 v%d, v%d" % (f + 1, t[6]))
    a("v_add_f32 v%d, v%d, v%d" % (t[5], t[5], f + 0))
    a("v_add_f32 v%d, v%d, v%d" % (t[6], t[6], f + 1))
    a("v_mul_f32 v%d, 0x3a800000, v%d" % (t[5], t[5]))
    a("v_mul_f32 v%d, 0x3a800000, v%d" % (t[6], t[6]))
    a("v_fma_f32 v%d, -v%d, v%d, v%d" % (t[6], t[5], t[5], t[6]))
    a("v_max_f32 v%d, 0, v%d" % (t[6], t[6]))
    a("v_add_f32 v%d, 0x3727c5ac, v%d" % (t[6], t[6]))
    a("v_rsq_f32 v%d, v%d" % (f + 1, t[6]))
    a("v_sub_f32 v%d, 0, v%d" % (f + 0, t[5]))
    a("v_lshlrev_b32 v%d, 3, v%d" % (t[0], t[0]))
    a("v_add_u32 v%d, %d, v%d" % (t[0], side, t[0]))
    a("ds_write_b64 v%d, %s" % (t[0], vr(f, 2)))
    a("s_waitcnt vmcnt(0)")
    for q in range(1, 16):
        a("v_add_f32 v%d, v%d, v%d" % (g, g, g + q))
    a("v_lshlrev_b32 v%d, 2, v%d" % (t[3], t[3]))
    a("v_add_u32 v%d, %d, v%d" % (t[3], side + 1024, t[3]))
    a("v_cmp_gt_u32 vcc, 56, v%d" % vl)
    a("s_and_saveexec_b64 s[56:57], vcc")
    a("ds_write_b32 v%d, v%d" % (t[3], g))
    a("s_mov_b64 exec, s[56:57]")
    a("s_waitcnt lgkmcnt(0)")
```

```python
from common import *
from gemm import *
import os

L2E = 0x3fb8aa3b

def mfma_wait(a):
    a("s_nop 7"); a("s_nop 4")

def mf32(d, A, B, C):
    return "v_mfma_f32_32x32x16_bf16 %s, %s, %s, %s" % (vr(d, 16), vr(A, 4), vr(B, 4), C if isinstance(C, str) else vr(C, 16))

def cross32(a, op, x, t):
    a("v_mov_b32 v%d, v%d" % (t, x))
    a("s_nop 1")
    a("v_permlane32_swap_b32 v%d, v%d" % (t, x))
    a("%s v%d, v%d, v%d" % (op, x, x, t))

def softmax2(a, p, pos, neg, e, t, s_l2e):
    mx, mn, t0, t1, sp, sn, rp, rn = t[0:8]
    a("v_max3_f32 v%d, v%d, v%d, v%d" % (mx, p, p + 1, p + 2))
    a("v_min3_f32 v%d, v%d, v%d, v%d" % (mn, p, p + 1, p + 2))
    for i in range(3, 15, 2):
        a("v_max3_f32 v%d, v%d, v%d, v%d" % (mx, mx, p + i, p + i + 1))
        a("v_min3_f32 v%d, v%d, v%d, v%d" % (mn, mn, p + i, p + i + 1))
    a("v_max_f32 v%d, v%d, v%d" % (mx, mx, p + 15))
    a("v_min_f32 v%d, v%d, v%d" % (mn, mn, p + 15))
    a("v_mov_b32 v%d, v%d" % (t0, mx))
    a("v_mov_b32 v%d, v%d" % (t1, mn))
    a("s_nop 1")
    a("v_permlane32_swap_b32 v%d, v%d" % (t0, mx))
    a("v_permlane32_swap_b32 v%d, v%d" % (t1, mn))
    a("v_max_f32 v%d, v%d, v%d" % (mx, mx, t0))
    a("v_min_f32 v%d, v%d, v%d" % (mn, mn, t1))
    a("v_mul_f32 v%d, s%d, v%d" % (mx, s_l2e, mx))
    a("v_mul_f32 v%d, s%d, v%d" % (mn, s_l2e, mn))
    for (sign, out, ssum, rr) in ((+1, pos, sp, rp), (-1, neg, sn, rn)):
        for i in range(16):
            if sign > 0: a("v_fma_f32 v%d, v%d, s%d, -v%d" % (e + i, p + i, s_l2e, mx))
            else: a("v_fma_f32 v%d, -v%d, s%d, v%d" % (e + i, p + i, s_l2e, mn))
        for i in range(16):
            a("v_exp_f32 v%d, v%d" % (e + i, e + i))
        a("s_nop 0")
        a("v_add_f32 v%d, v%d, v%d" % (ssum, e, e + 1))
        a("v_add_f32 v%d, v%d, v%d" % (t0, e + 2, e + 3))
        for i in range(4, 16, 2):
            a("v_add_f32 v%d, v%d, v%d" % (ssum, ssum, e + i))
            a("v_add_f32 v%d, v%d, v%d" % (t0, t0, e + i + 1))
        a("v_add_f32 v%d, v%d, v%d" % (ssum, ssum, t0))
        cross32(a, "v_add_f32", ssum, t0)
        a("v_rcp_f32 v%d, v%d" % (rr, ssum))
        a("s_nop 0")
        for i in range(0, 16, 2):
            a("v_mul_f32 v%d, v%d, v%d" % (e + i, e + i, rr))
            a("v_mul_f32 v%d, v%d, v%d" % (e + i + 1, e + i + 1, rr))
            a("v_cvt_pk_bf16_f32 v%d, v%d, v%d" % (out + i // 2, e + i, e + i + 1))

def wave_reduce_add(a, xs, ts):
    for dpp in ("quad_perm:[1,0,3,2]", "quad_perm:[2,3,0,1]", "row_half_mirror", "row_mirror"):
        a("s_nop 1")
        for x, t in zip(xs, ts):
            a("v_add_f32_dpp v%d, v%d, v%d %s row_mask:0xf bank_mask:0xf" % (t, x, x, dpp))
        for x, t in zip(xs, ts):
            a("v_mov_b32 v%d, v%d" % (x, t))
    for sw in ("v_permlane16_swap_b32", "v_permlane32_swap_b32"):
        a("s_nop 1")
        for x, t in zip(xs, ts):
            a("%s v%d, v%d" % (sw, t, x))
        for x, t in zip(xs, ts):
            a("v_add_f32 v%d, v%d, v%d" % (x, x, t))
        for x, t in zip(xs, ts):
            a("v_mov_b32 v%d, v%d" % (t, x))

def qkv_kernel(a, name):
    c = Cfg()
    c.BM, c.BN, c.K, c.lda, c.ldb, c.S = 256, 96, 1024, 2048, 6144, 3
    c.NS = 16; c.nA = 32; c.nB = 12; c.a_ins = 8; c.b_ins = 3; c.P = 12
    c.stage_bytes = 44 * 1024
    c.rotate = True
    c.colmode = "qkv"; c.swz = []
    set_rings(c, *[int(x) for x in os.environ.get("RING_qkv", "3,3").split(",")])
    c.srdA, c.srdB = 16, 20
    srdO, srdKV, srdW1 = 24, 28, 32
    s_wave, s_rb, s_h = 40, 41, 42
    c.s_p = 43
    c.s_slotA = c.s_cslotA = 45; c.s_ka = c.s_deltaA = 46; c.s_kb = c.s_deltaB = 47; c.s_mA = 48; c.s_mB = 49; c.s_i = 50; c.s_slotB = c.s_cslotB = 51
    c.st = [52, 53, 54, 55]
    s_l2e, s_ones = 56, 57
    ring = c.ring_bytes
    L_WPHI = ring
    L_CS = L_WPHI + 2048
    L_RS = L_CS + 512
    L_NM = L_RS + 1024
    L_TOK = L_NM + 1024
    L_STAT = L_TOK + 64
    lds = L_STAT + 64
    assert lds <= 163840
    L_PK = 0
    PKP = 144
    L_RED = 36864
    L_KVF = L_RED + 4 * KVP_BYTES
    L_ZF = L_KVF + 4096
    accQ = [0, 16]; accK = [32, 48]; accV = [64, 80]
    F = [96, 116, 176, 196]
    vcs = [136, 137, 138]
    c.vX = [139, 140, 141, 142]; vW = 143
    c.v_lane = 144
    c.vt = [145 + i for i in range(8)]
    vtok = 154
    vst = 160
    vmax = 256

    kernel_header(a, name)
    Lend = a.newlabel("Lend")
    a("s_cmp_ge_u32 s2, 256")
    a("s_cbranch_scc1 %s" % Lend)
    a("s_load_dwordx2 s[4:5], s[0:1], %d" % KA_WS)
    a("s_load_dwordx2 s[6:7], s[0:1], %d" % KA_WQKV)
    a("s_load_dwordx2 s[8:9], s[0:1], %d" % KA_DBG)
    a("s_load_dwordx2 s[10:11], s[0:1], %d" % KA_X)
    a("s_load_dwordx2 s[14:15], s[0:1], %d" % KA_WPHI)
    a("s_load_dwordx2 s[64:65], s[0:1], %d" % KA_W1)
    a("s_load_dwordx2 s[66:67], s[0:1], %d" % KA_W2)
    a("s_load_dwordx2 s[68:69], s[0:1], %d" % KA_WO)
    a("v_and_b32 v%d, 63, v0" % c.v_lane)
    a("v_lshrrev_b32 v1, 6, v0")
    a("s_nop 0")
    a("v_readfirstlane_b32 s%d, v1" % s_wave)
    a("s_and_b32 s%d, s2, 7" % c.st[0])
    a("s_lshr_b32 s%d, s2, 3" % c.st[1])
    a("s_and_b32 s%d, s%d, 1" % (c.st[2], c.st[0]))
    a("s_lshl_b32 s%d, s%d, 2" % (s_rb, c.st[2]))
    a("s_and_b32 s%d, s%d, 3" % (c.st[2], c.st[1]))
    a("s_add_u32 s%d, s%d, s%d" % (s_rb, s_rb, c.st[2]))
    a("s_lshr_b32 s%d, s%d, 1" % (c.st[2], c.st[0]))
    a("s_lshl_b32 s%d, s%d, 3" % (s_h, c.st[2]))
    a("s_lshr_b32 s%d, s%d, 2" % (c.st[2], c.st[1]))
    a("s_add_u32 s%d, s%d, s%d" % (s_h, s_h, c.st[2]))
    rot = os.environ.get("K1ROT", "1")
    if rot == "1":
        a("s_lshl_b32 s%d, s%d, 1" % (c.st[2], c.st[0]))
        a("s_add_u32 s%d, s%d, s%d" % (c.st[2], c.st[2], c.st[1]))
        a("s_and_b32 s%d, s%d, 15" % (c.st[2], c.st[2]))
    elif rot == "2":
        a("s_lshr_b32 s%d, s%d, 2" % (c.st[2], c.st[1]))
        a("s_lshl_b32 s%d, s%d, 1" % (c.st[2], c.st[2]))
    elif rot == "3":
        a("s_and_b32 s%d, s%d, 3" % (c.st[2], c.st[1]))
        a("s_lshl_b32 s%d, s%d, 2" % (c.st[2], c.st[2]))
        a("s_bfe_u32 s%d, s%d, 0x20002" % (c.st[3], c.st[1]))
        a("s_add_u32 s%d, s%d, s%d" % (c.st[2], c.st[2], c.st[3]))
    elif rot == "4":
        a("s_lshl_b32 s%d, s%d, 1" % (c.st[2], c.st[0]))
    elif rot == "5":
        a("s_and_b32 s%d, s%d, 3" % (c.st[2], c.st[1]))
        a("s_lshl_b32 s%d, s%d, 1" % (c.st[2], c.st[2]))
        a("s_lshr_b32 s%d, s%d, 2" % (c.st[3], c.st[1]))
        a("s_add_u32 s%d, s%d, s%d" % (c.st[2], c.st[2], c.st[3]))
    else:
        a("s_mov_b32 s%d, 0" % c.st[2])
    a("s_lshl_b32 s%d, s%d, 7" % (c.s_ka, c.st[2]))
    a("s_mul_i32 s%d, s%d, %d" % (c.s_kb, c.st[2], 64 * c.ldb))
    a("s_mov_b32 s%d, 0x%x" % (s_l2e, L2E))
    a("s_mov_b32 s%d, 0x3f803f80" % s_ones)
    a("s_waitcnt lgkmcnt(0)")
    a("s_lshl_b32 s%d, s%d, 19" % (c.st[0], s_rb))
    a("s_add_u32 s12, s10, s%d" % c.st[0])
    a("s_addc_u32 s13, s11, 0")
    make_srd(a, c.srdA, "s12", "s13", 256 * 2048)
    a("s_lshl_b32 s%d, s%d, 6" % (c.st[0], s_h))
    a("s_add_u32 s12, s6, s%d" % c.st[0])
    a("s_addc_u32 s13, s7, 0")
    a("s_sub_u32 s%d, %d, s%d" % (c.st[1], 1024 * 6144, c.st[0]))
    make_srd(a, c.srdB, "s12", "s13", "s%d" % c.st[1])
    a("s_lshl_b32 s%d, s%d, 19" % (c.st[1], s_rb))
    a("s_add_u32 s%d, s%d, s%d" % (c.st[0], c.st[0], c.st[1]))
    a("s_add_u32 s12, s4, s%d" % c.st[0])
    a("s_addc_u32 s13, s5, 0")
    make_srd(a, srdO, "s12", "s13", 256 * 2048 - 0)
    a("s_mul_i32 s%d, s%d, %d" % (c.st[0], s_h, 8 * KVP_BYTES))
    a("s_add_u32 s%d, s%d, %d" % (c.st[0], c.st[0], WS_KVP))
    a("s_add_u32 s12, s4, s%d" % c.st[0])
    a("s_addc_u32 s13, s5, 0")
    make_srd(a, srdKV, "s12", "s13", 8 * KVP_BYTES)
    kidx = 0
    stamp(a, 0, s_wave, kidx, tmp_v=vst)
    Lcons = a.newlabel("Lconsumer")
    a("s_cmp_lt_u32 s%d, 4" % s_wave)
    a("s_cbranch_scc1 %s" % Lcons)

    a("s_sub_u32 s%d, s%d, 4" % (c.s_p, s_wave))
    vl = c.v_lane
    t = c.vt
    a("s_lshl_b32 s%d, s%d, 8" % (c.st[0], s_rb))
    a("s_lshl_b32 s%d, s%d, 3" % (c.st[1], s_h))
    a("s_add_u32 s%d, s%d, s%d" % (c.st[0], c.st[0], c.st[1]))
    a("s_lshl_b32 s%d, s%d, 1" % (c.st[1], c.s_p))
    a("s_add_u32 s74, s%d, s%d" % (c.st[0], c.st[1]))
    a("s_lshl_b32 s%d, s74, 11" % c.st[1])
    a("v_lshlrev_b32 v%d, 4, v%d" % (t[0], vl))
    a("v_add_u32 v%d, s%d, v%d" % (t[0], c.st[1], t[0]))
    a("global_load_dwordx4 v[64:67], v%d, s[10:11]" % t[0])
    a("global_load_dwordx4 v[68:71], v%d, s[10:11] offset:1024" % t[0])
    a("global_load_dwordx4 v[72:75], v%d, s[10:11] offset:2048" % t[0])
    a("global_load_dwordx4 v[76:79], v%d, s[10:11] offset:3072" % t[0])
    emit_producer_setup(a, c, 32)
    stamp(a, 1, s_wave, kidx, tmp_v=vst)
    def prod_hook():
        Lhk = a.newlabel("Lhook")
        a("s_cmp_lg_u32 s%d, 0" % c.s_i)
        a("s_cbranch_scc1 %s" % Lhk)
        raw = 64; fp = 80
        for r in range(2):
            for q in range(8):
                a("v_lshlrev_b32 v%d, 16, v%d" % (fp + 16 * r + 2 * q, raw + 8 * r + q))
                a("v_and_b32 v%d, 0xffff0000, v%d" % (fp + 16 * r + 2 * q + 1, raw + 8 * r + q))
        sm = [112, 113]; tm_ = [114, 115]
        for r in range(2):
            a("v_add_f32 v%d, v%d, v%d" % (sm[r], fp + 16 * r, fp + 16 * r + 1))
            a("v_add_f32 v%d, v%d, v%d" % (tm_[r], fp + 16 * r + 2, fp + 16 * r + 3))
        for q in range(4, 16, 2):
            for r in range(2):
                a("v_add_f32 v%d, v%d, v%d" % (sm[r], sm[r], fp + 16 * r + q))
                a("v_add_f32 v%d, v%d, v%d" % (tm_[r], tm_[r], fp + 16 * r + q + 1))
        for r in range(2):
            a("v_add_f32 v%d, v%d, v%d" % (sm[r], sm[r], tm_[r]))
        wave_reduce_add(a, sm, tm_)
        for r in range(2):
            a("v_mul_f32 v%d, 0x3a800000, v%d" % (sm[r], sm[r]))
        sq = [116, 117]
        for r in range(2):
            for q in range(16):
                a("v_sub_f32 v%d, v%d, v%d" % (fp + 16 * r + q, fp + 16 * r + q, sm[r]))
        for r in range(2):
            a("v_mul_f32 v%d, v%d, v%d" % (sq[r], fp + 16 * r, fp + 16 * r))
            a("v_mul_f32 v%d, v%d, v%d" % (tm_[r], fp + 16 * r + 1, fp + 16 * r + 1))
        for q in range(2, 16, 2):
            for r in range(2):
                a("v_fmac_f32 v%d, v%d, v%d" % (sq[r], fp + 16 * r + q, fp + 16 * r + q))
                a("v_fmac_f32 v%d, v%d, v%d" % (tm_[r], fp + 16 * r + q + 1, fp + 16 * r + q + 1))
        for r in range(2):
            a("v_add_f32 v%d, v%d, v%d" % (sq[r], sq[r], tm_[r]))
        wave_reduce_add(a, sq, tm_)
        for r in range(2):
            a("v_mul_f32 v%d, 0x3a800000, v%d" % (sq[r], sq[r]))
            a("v_add_f32 v%d, 0x3727c5ac, v%d" % (sq[r], sq[r]))
            a("v_rsq_f32 v%d, v%d" % (118 + r, sq[r]))
        a("s_nop 0")
        for r in range(2):
            a("v_mul_f32 v%d, v%d, v%d" % (120 + r, sm[r], 118 + r))
            a("v_sub_f32 v%d, 0, v%d" % (120 + r, 120 + r))
        a("s_lshl_b32 s%d, s%d, 3" % (c.st[0], c.s_p))
        a("s_add_u32 s%d, s%d, %d" % (c.st[0], c.st[0], L_STAT))
        a("v_mov_b32 v%d, s%d" % (t[0], c.st[0]))
        a("s_mov_b64 s[58:59], exec")
        a("s_mov_b64 exec, 1")
        a("ds_write_b64 v%d, v[118:119]" % t[0])
        a("ds_write_b64 v%d, v[120:121] offset:32" % t[0])
        a("s_mov_b64 exec, s[58:59]")
        Lt = a.newlabel("Ltok")
        a("s_cmp_lg_u32 s%d, 4" % s_wave)
        a("s_cbranch_scc1 %s" % Lt)
        a("v_lshlrev_b32 v%d, 4, v%d" % (t[1], vl))
        a("s_lshl_b32 s%d, s%d, 11" % (c.st[0], s_h))
        a("s_add_u32 s12, s14, s%d" % c.st[0])
        a("s_addc_u32 s13, s15, 0")
        make_srd(a, srdW1, "s12", "s13", 2048)
        a("s_mov_b32 m0, %d" % L_WPHI)
        a("s_nop 0")
        a("buffer_load_dwordx4 v%d, s[%d:%d], 0 offen lds" % (t[1], srdW1, srdW1 + 3))
        a("s_nop 0")
        a("buffer_load_dwordx4 v%d, s[%d:%d], 0 offen offset:1024 lds" % (t[1], srdW1, srdW1 + 3))
        a("v_mov_b32 v%d, 0" % t[2])
        a("v_lshlrev_b32 v%d, 2, v%d" % (t[3], vl))
        a("v_add_u32 v%d, %d, v%d" % (t[3], L_CS, t[3]))
        a("ds_write_b32 v%d, v%d" % (t[3], t[2]))
        a("ds_write_b32 v%d, v%d offset:256" % (t[3], t[2]))
        a.label(Lt)
        a("s_waitcnt lgkmcnt(0)")
        a.label(Lhk)
    c.prod_iter_hook = prod_hook
    emit_producer_loop(a, c)
    stamp(a, 2, s_wave, kidx, tmp_v=vst)
    vl = c.v_lane
    t = c.vt
    Lpfr = a.newlabel("Lpfrole")
    a("s_cmp_ge_u32 s%d, 6" % s_wave)
    a("s_cbranch_scc1 %s" % Lpfr)
    a("s_barrier")
    a("s_barrier")
    a("s_barrier")
    stamp(a, 3, s_wave, kidx, tmp_v=vst)
    a("v_mov_b32 v%d, %d" % (t[0], L_TOK))
    a("ds_read_b64 v[40:41], v%d" % t[0])
    a("s_lshl_b32 s%d, s%d, 7" % (c.st[0], s_h))
    a("s_add_u32 s%d, s%d, %d" % (c.st[0], c.st[0], WS_FLAG))
    a("v_and_b32 v%d, 7, v%d" % (t[0], vl))
    a("v_lshlrev_b32 v%d, 3, v%d" % (t[0], t[0]))
    a("v_add_u32 v%d, s%d, v%d" % (t[0], c.st[0], t[0]))
    a("s_waitcnt lgkmcnt(0)")
    Lp = a.newlabel("Lpoll2"); Lpd = a.newlabel("Lpoll2d")
    a("s_mov_b32 s75, 0")
    a.label(Lp)
    a("global_load_dwordx2 v[42:43], v%d, s[4:5] sc1" % t[0])
    a("s_waitcnt vmcnt(0)")
    a("v_cmp_eq_u64 vcc, v[40:41], v[42:43]")
    a("s_nop 4")
    a("s_cmp_eq_u64 vcc, exec")
    a("s_cbranch_scc1 %s" % Lpd)
    a("s_add_u32 s75, s75, 1")
    a("s_cmp_gt_u32 s75, 0x40000")
    a("s_cbranch_scc1 %s" % Lpd)
    a("s_branch %s" % Lp)
    a.label(Lpd)
    stamp(a, 4, s_wave, kidx, tmp_v=vst)
    a("s_lshl_b32 s%d, s%d, 12" % (c.st[0], c.s_p))
    a("v_lshlrev_b32 v%d, 4, v%d" % (t[0], vl))
    a("v_add_u32 v%d, s%d, v%d" % (t[0], c.st[0], t[0]))
    vZ = 40
    a("v_lshlrev_b32 v%d, 4, v%d" % (t[1], vl))
    a("v_add_u32 v%d, 8192, v%d" % (t[1], t[1]))
    a("v_cmp_gt_u32 vcc, 16, v%d" % vl)
    a("v_mov_b32 v%d, 0x7fffffff" % t[2])
    a("s_nop 0")
    a("v_cndmask_b32 v%d, v%d, v%d, vcc" % (t[1], t[2], t[1]))
    vKa = [72, 164]
    def kreg(rbi, bb): return vKa[rbi // 4] + 16 * (rbi % 4) + 4 * bb
    for rbi in range(8):
        a("s_mov_b32 s%d, %d" % (c.st[1], rbi * KVP_BYTES))
        for bb in range(4):
            a("buffer_load_dwordx4 %s, v%d, s[%d:%d], s%d offen offset:%d sc1" % (vr(kreg(rbi, bb), 4), t[0], srdKV, srdKV + 3, c.st[1], bb * 1024))
    for rbi in range(8):
        a("s_mov_b32 s%d, %d" % (c.st[1], rbi * KVP_BYTES))
        a("buffer_load_dwordx4 %s, v%d, s[%d:%d], s%d offen sc1" % (vr(vZ + 4 * rbi, 4), t[1], srdKV, srdKV + 3, c.st[1]))
    for rbi in range(1, 8):
        a("s_waitcnt vmcnt(%d)" % (8 + 4 * (7 - rbi)))
        for q in range(0, 16, 2):
            a("v_pk_add_f32 %s, %s, %s" % (vr(vKa[0] + q, 2), vr(vKa[0] + q, 2), vr(kreg(rbi, 0) + q, 2)))
    ko = 228
    for bb in range(4):
        a("v_cvt_pk_bf16_f32 v%d, v%d, v%d" % (ko + 2 * bb, vKa[0] + 4 * bb, vKa[0] + 4 * bb + 1))
        a("v_cvt_pk_bf16_f32 v%d, v%d, v%d" % (ko + 2 * bb + 1, vKa[0] + 4 * bb + 2, vKa[0] + 4 * bb + 3))
    a("s_lshl_b32 s%d, s%d, 11" % (c.st[0], c.s_p))
    a("s_add_u32 s%d, s%d, %d" % (c.st[0], c.st[0], L_KVF))
    a("v_lshlrev_b32 v%d, 4, v%d" % (t[0], vl))
    a("v_add_u32 v%d, s%d, v%d" % (t[0], c.st[0], t[0]))
    a("ds_write_b128 v%d, %s" % (t[0], vr(ko, 4)))
    a("ds_write_b128 v%d, %s offset:1024" % (t[0], vr(ko + 4, 4)))
    a("s_waitcnt vmcnt(0)")
    for rbi in range(1, 8):
        for q in range(0, 4, 2):
            a("v_pk_add_f32 %s, %s, %s" % (vr(vZ + q, 2), vr(vZ + q, 2), vr(vZ + 4 * rbi + q, 2)))
    a("v_cvt_pk_bf16_f32 v%d, v%d, v%d" % (vZ + 4, vZ, vZ + 1))
    a("v_cvt_pk_bf16_f32 v%d, v%d, v%d" % (vZ + 5, vZ + 2, vZ + 3))
    a("v_lshrrev_b32 v%d, 2, v%d" % (t[0], vl))
    a("v_lshlrev_b32 v%d, 5, v%d" % (t[0], t[0]))
    a("v_and_b32 v%d, 1, v%d" % (t[1], vl))
    a("v_lshl_add_u32 v%d, v%d, 4, v%d" % (t[0], t[1], t[0]))
    a("v_bfe_u32 v%d, v%d, 1, 1" % (t[1], vl))
    a("v_lshl_add_u32 v%d, v%d, 3, v%d" % (t[0], t[1], t[0]))
    a("v_add_u32 v%d, %d, v%d" % (t[0], L_ZF, t[0]))
    a("v_cmp_gt_u32 vcc, 16, v%d" % vl)
    a("s_and_saveexec_b64 s[58:59], vcc")
    a("ds_write_b64 v%d, %s" % (t[0], vr(vZ + 4, 2)))
    a("s_mov_b64 exec, s[58:59]")
    a("s_waitcnt lgkmcnt(0)")
    a("s_barrier")
    stamp(a, 5, s_wave, kidx, tmp_v=vst)
    a("s_branch %s" % Lend)

    a.label(Lpfr)
    a("s_lshl_b32 s72, s2, 1")
    a("s_add_u32 s72, s72, s%d" % s_wave)
    a("s_sub_u32 s72, s72, 6")
    make_srd(a, srdW1, "s64", "s65", 1024 * 7168)
    a("s_barrier")
    vP = 64
    mul, sh = magic_div(56, 1024)
    for un in range(2):
        a("s_lshl_b32 s%d, s72, 1" % c.st[0])
        if un: a("s_add_u32 s%d, s%d, 1" % (c.st[0], c.st[0]))
        a("s_mul_i32 s%d, s%d, %d" % (c.st[1], c.st[0], mul))
        a("s_lshr_b32 s%d, s%d, %d" % (76 + 2 * un, c.st[1], sh))
        a("s_mul_i32 s%d, s%d, 56" % (c.st[2], 76 + 2 * un))
        a("s_sub_u32 s%d, s%d, s%d" % (77 + 2 * un, c.st[0], c.st[2]))
        a("s_lshl_b32 s%d, s%d, 6" % (c.st[3], 76 + 2 * un))
        a("v_lshrrev_b32 v%d, 3, v%d" % (t[0], vl))
        a("v_add_u32 v%d, s%d, v%d" % (t[0], c.st[3], t[0]))
        a("s_mov_b32 s%d, 7168" % c.st[3])
        a("v_mul_lo_u32 v%d, v%d, s%d" % (t[0], t[0], c.st[3]))
        a("v_and_b32 v%d, 7, v%d" % (t[1], vl))
        a("v_lshlrev_b32 v%d, 4, v%d" % (t[1], t[1]))
        a("s_lshl_b32 s%d, s%d, 7" % (c.st[3], 77 + 2 * un))
        a("v_add3_u32 v%d, v%d, v%d, s%d" % (60 + un, t[0], t[1], c.st[3]))
        for j in range(8):
            a("s_mov_b32 s%d, %d" % (c.st[3], j * 8 * 7168))
            a("buffer_load_dwordx4 %s, v%d, s[%d:%d], s%d offen" % (vr(vP + 32 * un + 4 * j, 4), 60 + un, srdW1, srdW1 + 3, c.st[3]))
    a("s_barrier")
    a("s_barrier")
    if "nopf" not in os.environ.get("GDBG", ""):
        a("v_lshlrev_b32 v62, 4, v%d" % vl)
        a("s_lshl_b32 s%d, s72, 12" % c.st[3])
        a("v_add_u32 v63, s%d, v62" % c.st[3])
        for j in range(4):
            a("global_load_dwordx4 v[%d:%d], v63, s[68:69] offset:%d" % (228 + 4 * (j % 4), 231 + 4 * (j % 4), j * 1024))
        a("s_mul_i32 s%d, s72, 14336" % c.st[3])
        a("v_add_u32 v63, s%d, v62" % c.st[3])
        for j in range(14):
            if j and j % 4 == 0: a("v_add_u32 v63, 4096, v63")
            a("global_load_dwordx4 v[%d:%d], v63, s[66:67] offset:%d" % (236 + 4 * (j % 4), 239 + 4 * (j % 4), (j % 4) * 1024))
    a("s_barrier")
    a("s_waitcnt vmcnt(%d)" % (0 if "nopf" in os.environ.get("GDBG", "") else 18))
    for un in range(2):
        Lskip = a.newlabel("Lskipcs")
        a("s_cmp_ge_u32 s%d, 16" % (76 + 2 * un))
        a("s_cbranch_scc1 %s" % Lskip)
        vS = 132
        for j in range(8):
            for q in range(4):
                src = vP + 32 * un + 4 * j + q
                a("v_lshlrev_b32 v%d, 16, v%d" % (t[0], src))
                a("v_and_b32 v%d, 0xffff0000, v%d" % (t[1], src))
                if j == 0:
                    a("v_mov_b32 v%d, v%d" % (vS + 2 * q, t[0]))
                    a("v_mov_b32 v%d, v%d" % (vS + 2 * q + 1, t[1]))
                else:
                    a("v_add_f32 v%d, v%d, v%d" % (vS + 2 * q, vS + 2 * q, t[0]))
                    a("v_add_f32 v%d, v%d, v%d" % (vS + 2 * q + 1, vS + 2 * q + 1, t[1]))
        xs = [vS + i for i in range(8)]; ts_ = [164 + i for i in range(8)]
        a("s_nop 1")
        for x, tt in zip(xs, ts_):
            a("v_add_f32_dpp v%d, v%d, v%d row_ror:8 row_mask:0xf bank_mask:0xf" % (tt, x, x))
        for x, tt in zip(xs, ts_):
            a("v_mov_b32 v%d, v%d" % (x, tt))
        for sw in ("v_permlane16_swap_b32", "v_permlane32_swap_b32"):
            a("s_nop 1")
            for x, tt in zip(xs, ts_):
                a("%s v%d, v%d" % (sw, tt, x))
            for x, tt in zip(xs, ts_):
                a("v_add_f32 v%d, v%d, v%d" % (x, x, tt))
            for x, tt in zip(xs, ts_):
                a("v_mov_b32 v%d, v%d" % (tt, x))
        a("s_mul_i32 s%d, s%d, %d" % (c.st[0], 76 + 2 * un, 3584 * 4))
        a("s_lshl_b32 s%d, s%d, 8" % (c.st[1], 77 + 2 * un))
        a("s_add_u32 s%d, s%d, s%d" % (c.st[0], c.st[0], c.st[1]))
        a("s_add_u32 s%d, s%d, %d" % (c.st[0], c.st[0], WS_CS1))
        a("v_lshlrev_b32 v%d, 5, v%d" % (t[0], vl))
        a("v_add_u32 v%d, s%d, v%d" % (t[0], c.st[0], t[0]))
        a("v_cmp_gt_u32 vcc, 8, v%d" % vl)
        a("s_and_saveexec_b64 s[58:59], vcc")
        a("global_store_dwordx4 v%d, %s, s[4:5]" % (t[0], vr(vS, 4)))
        a("global_store_dwordx4 v%d, %s, s[4:5] offset:16" % (t[0], vr(vS + 4, 4)))
        a("s_mov_b64 exec, s[58:59]")
        a.label(Lskip)
    a("s_branch %s" % Lend)

    a.label(Lcons)
    vl = c.v_lane
    t = c.vt
    Lt0 = a.newlabel("Ltok0")
    a("s_cmp_lg_u32 s%d, 0" % s_wave)
    a("s_cbranch_scc1 %s" % Lt0)
    a("s_memrealtime s[58:59]")
    a("s_waitcnt lgkmcnt(0)")
    a("s_or_b32 s58, s58, 1")
    a("v_mov_b32 v%d, s58" % vtok)
    a("v_mov_b32 v%d, s59" % (vtok + 1))
    a("v_mov_b32 v%d, 0" % (vtok + 2))
    a("v_mov_b32 v%d, 0" % (vtok + 3))
    a("v_mov_b32 v%d, 0" % t[0])
    a("s_mov_b64 s[58:59], exec")
    a("s_mov_b64 exec, 1")
    a("global_atomic_cmpswap_x2 %s, v%d, %s, s[8:9] sc0" % (vr(vtok + 4, 2), t[0], vr(vtok, 4)))
    a("s_mov_b64 exec, s[58:59]")
    a.label(Lt0)
    a("v_and_b32 v%d, 31, v%d" % (t[0], vl))
    a("v_lshrrev_b32 v%d, 5, v%d" % (t[1], vl))
    a("v_bfe_u32 v%d, v%d, 1, 3" % (t[2], t[0]))
    a("s_lshl_b32 s%d, s%d, 6" % (c.st[2], s_wave))
    a("v_add_u32 v%d, s%d, v%d" % (t[3], c.st[2], t[0]))
    a("v_lshlrev_b32 v%d, 7, v%d" % (t[3], t[3]))
    for stp in range(4):
        a("v_add_u32 v%d, %d, v%d" % (t[4], 2 * stp, t[1]))
        a("v_xor_b32 v%d, v%d, v%d" % (t[4], t[4], t[2]))
        a("v_lshl_add_u32 v%d, v%d, 4, v%d" % (c.vX[stp], t[4], t[3]))
    a("v_lshrrev_b32 v%d, 4, v%d" % (t[0], vl))
    a("v_and_b32 v%d, 15, v%d" % (t[1], vl))
    a("v_lshrrev_b32 v%d, 2, v%d" % (t[2], t[1]))
    a("v_lshrrev_b32 v%d, 1, v%d" % (t[3], t[0]))
    a("v_lshl_add_u32 v%d, v%d, 3, v%d" % (t[2], t[3], t[2]))
    a("v_mul_u32_u24 v%d, 192, v%d" % (t[2], t[2]))
    a("v_and_b32 v%d, 1, v%d" % (t[0], t[0]))
    a("v_lshl_add_u32 v%d, v%d, 5, v%d" % (t[2], t[0], t[2]))
    a("v_and_b32 v%d, 3, v%d" % (t[1], t[1]))
    a("v_lshl_add_u32 v%d, v%d, 3, v%d" % (t[2], t[1], t[2]))
    a("v_add_u32 v%d, %d, v%d" % (vW, c.Bbase, t[2]))
    stamp(a, 1, s_wave, kidx, tmp_v=vst)
    stamp(a, 6, s_wave, kidx, tmp_v=vst)
    for i in range(96): a("v_mov_b32 v%d, 0" % i)
    for u in range(3): a("v_mov_b32 v%d, 0" % vcs[u])
    a("s_mov_b32 s%d, 0" % c.s_cslotA)
    a("s_mov_b32 s%d, 0" % c.s_cslotB)
    a("s_mov_b32 s%d, 0" % c.s_i)
    a("s_waitcnt lgkmcnt(0)")
    def reads(buf, stp):
        r = []
        fb = F[buf]
        W = lambda u, hf: "ds_read_b64_tr_b16 %s, v%d offset:%d" % (vr(fb + 8 + 4 * u + 2 * hf, 2), vW, (16 * stp + 4 * hf) * 192 + u * 64)
        X = lambda st: "ds_read_b128 %s, v%d offset:%d" % (vr(fb + 4 * st, 4), c.vX[stp], st * 4096)
        if "noread" in DBG: return []
        return [W(0, 0), W(0, 1), X(0), W(1, 0), W(1, 1), X(1), W(2, 0), W(2, 1)]
    def mfmas(buf):
        fb = F[buf]
        X = lambda st: fb + 4 * st
        W = lambda u: fb + 8 + 4 * u
        if "nomfma" in DBG: return ["s_nop 0"] * 6
        return [mf32(accQ[0], W(0), X(0), accQ[0]), mf32(accK[0], W(1), X(0), accK[0]), mf32(accQ[1], W(0), X(1), accQ[1]),
                mf32(accK[1], W(1), X(1), accK[1]), mf32(accV[0], X(0), W(2), accV[0]), mf32(accV[1], X(1), W(2), accV[1])]
    def csops(buf, w):
        fb = F[buf]
        o = []
        if "nocs" in DBG: return []
        for u in range(3):
            src = fb + 8 + 4 * u + w
            tt = t[2 * (u % 2)]
            o.append("v_lshlrev_b32 v%d, 16, v%d" % (tt, src))
            o.append("v_and_b32 v%d, 0xffff0000, v%d" % (tt + 1, src))
            o.append("v_add_f32 v%d, v%d, v%d" % (vcs[u], vcs[u], tt))
            o.append("v_add_f32 v%d, v%d, v%d" % (vcs[u], vcs[u], tt + 1))
        return o
    def step(mf, rd, cs):
        ri = ci = 0
        for i, m in enumerate(mf):
            a(m)
            for _ in range(3):
                if ri < len(rd): a(rd[ri]); ri += 1
            for _ in range(2 if i < 3 else 3):
                if ci < len(cs): a(cs[ci]); ci += 1
        while ri < len(rd): a(rd[ri]); ri += 1
        while ci < len(cs): a(cs[ci]); ci += 1
    vSt = 216
    def emit_stats_loads():
        a("s_lshl_b32 s%d, s%d, 10" % (c.st[0], s_rb))
        a("s_add_u32 s%d, s%d, %d" % (c.st[0], c.st[0], WS_ST1))
        a("v_lshlrev_b32 v%d, 4, v%d" % (vst + 6, vl))
        a("v_add_u32 v%d, s%d, v%d" % (vst + 6, c.st[0], vst + 6))
        a("global_load_dwordx4 %s, v%d, s[4:5] sc1" % (vr(vSt, 4), vst + 6))
        a("v_add_u32 v%d, 8192, v%d" % (vst + 6, vst + 6))
        a("global_load_dwordx4 %s, v%d, s[4:5] sc1" % (vr(vSt + 4, 4), vst + 6))
    a("s_mov_b32 s73, 0")
    Lafter = a.newlabel("Lafter")
    Lw = [a.newlabel("Lw") for _ in range(4)]
    for w in range(1, 4):
        a("s_cmp_eq_u32 s%d, %d" % (s_wave, w))
        a("s_cbranch_scc1 %s" % Lw[w])
    for w in range(4):
        a.label(Lw[w])
        a("s_barrier")
        for r in reads(0, 0): a(r)
        for r in reads(1, 1): a(r)
        L = a.newlabel("Lk1")
        a.label(L)
        for stp in range(2):
            a("s_waitcnt lgkmcnt(8)")
            step(mfmas(stp), reads(stp + 2, stp + 2), csops(stp, w))
        a("s_waitcnt lgkmcnt(0)")
        a("s_barrier")
        emit_addr_advance(a, c, [c.vX[0], c.vX[1], c.vX[2], c.vX[3]], [vW])
        if w == 1:
            La = a.newlabel("Le1"); Lb = a.newlabel("Le2")
            a("s_cmp_lg_u32 s%d, 11" % c.s_i)
            a("s_cbranch_scc1 %s" % La)
            a("s_lshl_b32 s%d, s%d, 2" % (c.st[0], s_rb))
            a("s_add_u32 s%d, s%d, 16" % (c.st[0], c.st[0]))
            a("v_mov_b32 v%d, s%d" % (vst + 4, c.st[0]))
            a("global_load_dword v%d, v%d, s[8:9] sc1" % (vst + 5, vst + 4))
            a.label(La)
            a("s_cmp_lg_u32 s%d, 13" % c.s_i)
            a("s_cbranch_scc1 %s" % Lb)
            a("s_waitcnt vmcnt(0)")
            a("v_readfirstlane_b32 s%d, v%d" % (c.st[1], vst + 5))
            a("s_cmp_lt_u32 s%d, 32" % c.st[1])
            a("s_cbranch_scc1 %s" % Lb)
            emit_stats_loads()
            a("s_mov_b32 s73, 1")
            a.label(Lb)
        if w == 0:
            La = a.newlabel("Lh1"); Lb = a.newlabel("Lh2")
            a("s_cmp_lg_u32 s%d, 1" % c.s_i)
            a("s_cbranch_scc1 %s" % La)
            a("v_lshlrev_b32 v%d, 2, v%d" % (vst + 4, vl))
            a("v_add_u32 v%d, %d, v%d" % (vst + 5, L_STAT, vst + 4))
            a("ds_read_b32 v%d, v%d" % (vst + 6, vst + 5))
            a("ds_read_b32 v%d, v%d offset:32" % (vst + 7, vst + 5))
            a("s_lshl_b32 s%d, s%d, 8" % (c.st[0], s_rb))
            a("s_lshl_b32 s%d, s%d, 3" % (c.st[1], s_h))
            a("s_add_u32 s%d, s%d, s%d" % (c.st[0], c.st[0], c.st[1]))
            a("s_lshl_b32 s%d, s%d, 2" % (c.st[0], c.st[0]))
            a("s_add_u32 s%d, s%d, %d" % (c.st[0], c.st[0], WS_ST1))
            a("v_add_u32 v%d, s%d, v%d" % (vst + 4, c.st[0], vst + 4))
            a("v_add_u32 v%d, 8192, v%d" % (vst + 5, vst + 4))
            a("s_waitcnt lgkmcnt(0)")
            a("s_mov_b64 s[58:59], exec")
            a("s_mov_b64 exec, 0xff")
            a("global_store_dword v%d, v%d, s[4:5] sc1" % (vst + 4, vst + 6))
            a("global_store_dword v%d, v%d, s[4:5] sc1" % (vst + 5, vst + 7))
            a("s_mov_b64 exec, s[58:59]")
            a.label(La)
            a("s_cmp_lg_u32 s%d, 5" % c.s_i)
            a("s_cbranch_scc1 %s" % Lb)
            a("s_waitcnt vmcnt(0)")
            a("s_lshl_b32 s%d, s%d, 2" % (c.st[0], s_rb))
            a("s_add_u32 s%d, s%d, 16" % (c.st[0], c.st[0]))
            a("v_mov_b32 v%d, s%d" % (vst + 4, c.st[0]))
            a("v_mov_b32 v%d, 1" % (vst + 5))
            a("s_mov_b64 s[58:59], exec")
            a("s_mov_b64 exec, 1")
            a("global_atomic_add v%d, v%d, s[8:9]" % (vst + 4, vst + 5))
            a("v_cmp_eq_u64 vcc, 0, %s" % vr(vtok + 4, 2))
            a("s_nop 1")
            a("v_cndmask_b32 v%d, v%d, v%d, vcc" % (vtok, vtok + 4, vtok))
            a("v_cndmask_b32 v%d, v%d, v%d, vcc" % (vtok + 1, vtok + 5, vtok + 1))
            a("v_mov_b32 v%d, %d" % (vst + 4, L_TOK))
            a("ds_write_b64 v%d, %s" % (vst + 4, vr(vtok, 2)))
            a("s_mov_b64 exec, s[58:59]")
            a("s_waitcnt lgkmcnt(0)")
            a.label(Lb)
        step(mfmas(2), reads(0, 0), csops(2, w))
        a("s_nop 0")
        step(mfmas(3), reads(1, 1), csops(3, w))
        a("s_add_u32 s%d, s%d, 1" % (c.s_i, c.s_i))
        a("s_cmp_lt_u32 s%d, %d" % (c.s_i, c.NS - 1))
        a("s_cbranch_scc1 %s" % L)
        for stp in range(2):
            a("s_waitcnt lgkmcnt(8)")
            step(mfmas(stp), reads(stp + 2, stp + 2), csops(stp, w))
        a("s_waitcnt lgkmcnt(8)")
        step(mfmas(2), [], csops(2, w))
        a("s_waitcnt lgkmcnt(0)")
        step(mfmas(3), [], csops(3, w))
        if w < 3: a("s_branch %s" % Lafter)
    a.label(Lafter)
    stamp(a, 7, s_wave, kidx, tmp_v=vst)
    stamp(a, 2, s_wave, kidx, tmp_v=vst)
    Le = a.newlabel("Lesync"); Lg = a.newlabel("Lgot")
    a("s_cmp_lg_u32 s%d, 1" % s_wave)
    a("s_cbranch_scc1 %s" % Le)
    a("s_cmp_eq_u32 s73, 1")
    a("s_cbranch_scc1 %s" % Lg)
    a("s_lshl_b32 s%d, s%d, 2" % (c.st[0], s_rb))
    a("s_add_u32 s%d, s%d, 16" % (c.st[0], c.st[0]))
    a("v_mov_b32 v%d, s%d" % (vst + 4, c.st[0]))
    Lp = a.newlabel("Lpoll"); Lpd = a.newlabel("Lpolld")
    a("s_mov_b32 s75, 0")
    a.label(Lp)
    a("global_load_dword v%d, v%d, s[8:9] sc1" % (vst + 5, vst + 4))
    a("s_waitcnt vmcnt(0)")
    a("v_readfirstlane_b32 s%d, v%d" % (c.st[1], vst + 5))
    a("s_cmp_ge_u32 s%d, 32" % c.st[1])
    a("s_cbranch_scc1 %s" % Lpd)
    a("s_add_u32 s75, s75, 1")
    a("s_cmp_gt_u32 s75, 0x40000")
    a("s_cbranch_scc1 %s" % Lpd)
    a("s_sleep 1")
    a("s_branch %s" % Lp)
    a.label(Lpd)
    emit_stats_loads()
    a.label(Lg)
    a("v_lshlrev_b32 v%d, 4, v%d" % (vst + 4, vl))
    a("v_add_u32 v%d, %d, v%d" % (vst + 4, L_RS, vst + 4))
    a("s_waitcnt vmcnt(0)")
    a("ds_write_b128 v%d, %s" % (vst + 4, vr(vSt, 4)))
    a("ds_write_b128 v%d, %s offset:1024" % (vst + 4, vr(vSt + 4, 4)))
    a.label(Le)
    a("v_and_b32 v%d, 31, v%d" % (t[0], vl))
    a("v_lshlrev_b32 v%d, 2, v%d" % (t[0], t[0]))
    a("v_add_u32 v%d, %d, v%d" % (t[0], L_CS, t[0]))
    for u in range(3):
        a("ds_add_f32 v%d, v%d offset:%d" % (t[0], vcs[u], u * 128))
    a("s_waitcnt lgkmcnt(0)")
    a("s_barrier")
    stamp(a, 8, s_wave, kidx, tmp_v=156)
    csQ, csK = 96, 112
    rsL, nmL = [128, 130], [132, 134]
    csV = 136
    wph = 164
    kb = 172
    pD = 180
    eT = 196
    pos, neg = 212, 220
    sT = [228 + i for i in range(8)]
    rsV, nmV = 236, 240
    aF = 196
    vb = 244
    kvA = [32, 48]
    hi_ = t[7]
    a("v_lshrrev_b32 v%d, 5, v%d" % (hi_, vl))
    a("v_lshlrev_b32 v%d, 4, v%d" % (t[1], hi_))
    a("v_add_u32 v%d, %d, v%d" % (t[1], L_CS, t[1]))
    for aa in range(4):
        a("ds_read_b128 %s, v%d offset:%d" % (vr(csQ + 4 * aa, 4), t[1], aa * 32))
        a("ds_read_b128 %s, v%d offset:%d" % (vr(csK + 4 * aa, 4), t[1], 128 + aa * 32))
    a("ds_read_b32 v%d, v%d offset:256" % (csV, t[0]))
    a("v_mov_b32 v%d, %d" % (vtok + 2, L_TOK))
    a("ds_read_b64 %s, v%d" % (vr(vtok, 2), vtok + 2))
    a("v_and_b32 v%d, 31, v%d" % (t[2], vl))
    a("s_lshl_b32 s%d, s%d, 6" % (c.st[0], s_wave))
    a("v_add_u32 v%d, s%d, v%d" % (t[2], c.st[0], t[2]))
    a("v_lshlrev_b32 v%d, 2, v%d" % (t[2], t[2]))
    a("v_add_u32 v%d, %d, v%d" % (t[2], L_RS, t[2]))
    for st in range(2):
        a("ds_read_b32 v%d, v%d offset:%d" % (rsL[st], t[2], st * 128))
        a("ds_read_b32 v%d, v%d offset:%d" % (nmL[st], t[2], 1024 + st * 128))
    a("v_lshrrev_b32 v%d, 4, v%d" % (t[3], vl))
    a("v_and_b32 v%d, 15, v%d" % (t[4], vl))
    a("v_lshrrev_b32 v%d, 2, v%d" % (t[5], t[4]))
    a("v_lshrrev_b32 v%d, 1, v%d" % (t[6], t[3]))
    a("v_lshl_add_u32 v%d, v%d, 2, v%d" % (t[5], t[6], t[5]))
    a("v_mov_b32 v%d, v%d" % (sT[7], t[5]))
    a("v_lshlrev_b32 v%d, 6, v%d" % (t[5], t[5]))
    a("v_and_b32 v%d, 1, v%d" % (t[3], t[3]))
    a("v_lshlrev_b32 v%d, 5, v%d" % (t[3], t[3]))
    a("v_and_b32 v%d, 3, v%d" % (t[4], t[4]))
    a("v_lshl_add_u32 v%d, v%d, 3, v%d" % (t[3], t[4], t[3]))
    a("v_add_u32 v%d, v%d, v%d" % (t[5], t[5], t[3]))
    a("v_add_u32 v%d, %d, v%d" % (t[5], L_WPHI, t[5]))
    for tt in range(2):
        for hf in range(2):
            a("ds_read_b64_tr_b16 %s, v%d offset:%d" % (vr(wph + 4 * tt + 2 * hf, 2), t[5], (16 * tt + 8 * hf) * 64))
    vPKw, vPKr, vRSV = 160, 161, 162
    a("s_mul_i32 s%d, s%d, %d" % (c.st[0], s_wave, 64 * PKP))
    a("s_add_u32 s%d, s%d, %d" % (c.st[0], c.st[0], L_PK))
    a("v_and_b32 v%d, 31, v%d" % (t[2], vl))
    a("v_mul_u32_u24 v%d, %d, v%d" % (t[2], PKP, t[2]))
    a("v_lshl_add_u32 v%d, v%d, 3, v%d" % (t[2], hi_, t[2]))
    a("v_add_u32 v%d, s%d, v%d" % (vPKw, c.st[0], t[2]))
    a("v_mul_u32_u24 v%d, %d, v%d" % (t[2], PKP, sT[7]))
    a("v_add_u32 v%d, v%d, v%d" % (t[2], t[2], t[3]))
    a("v_add_u32 v%d, s%d, v%d" % (vPKr, c.st[0], t[2]))
    a("s_lshl_b32 s%d, s%d, 8" % (c.st[0], s_wave))
    a("v_lshlrev_b32 v%d, 4, v%d" % (t[2], hi_))
    a("v_add_u32 v%d, s%d, v%d" % (t[2], c.st[0], t[2]))
    a("v_add_u32 v%d, %d, v%d" % (vRSV, L_RS, t[2]))
    a("s_waitcnt lgkmcnt(0)")

    def ln_qk(acc, cs, st, dst):
        for i in range(0, 16, 2):
            a("v_pk_mul_f32 %s, %s, %s op_sel_hi:[1,0]" % (vr(acc + i, 2), vr(acc + i, 2), vr(rsL[st], 2)))
            a("v_pk_fma_f32 %s, %s, %s, %s op_sel_hi:[1,0,1]" % (vr(acc + i, 2), vr(cs + i, 2), vr(nmL[st], 2), vr(acc + i, 2)))
            a("v_cvt_pk_bf16_f32 v%d, v%d, v%d" % (dst + i // 2, acc + i, acc + i + 1))
    def phi(acc, cs, st):
        ln_qk(acc, cs, st, kb)
        a("s_nop 1")
        a(mf32(pD, wph, kb, "0"))
        a(mf32(pD, wph + 4, kb + 4, pD))
        mfma_wait(a)
        softmax2(a, pD, pos, neg, eT, sT, s_l2e)

    for st in range(2):
        phi(accK[st], csK, st)
        for aa in range(4):
            a("ds_write_b64 v%d, %s offset:%d" % (vPKw, vr(pos + 2 * aa, 2), st * 32 * PKP + aa * 16))
            a("ds_write_b64 v%d, %s offset:%d" % (vPKw, vr(neg + 2 * aa, 2), st * 32 * PKP + aa * 16 + 64))
    stamp(a, 9, s_wave, kidx, tmp_v=156)
    kvT = [32, 48]; zT = [180, 196]
    aF = 212
    ones = 252
    for q in range(4): a("v_mov_b32 v%d, s%d" % (ones + q, s_ones))
    a("s_waitcnt lgkmcnt(0)")
    first = True
    for st in range(2):
        for aa in range(4):
            a("ds_read_b128 %s, v%d offset:%d" % (vr(228 + 4 * aa, 4), vRSV, (32 * st + 8 * aa) * 4))
            a("ds_read_b128 %s, v%d offset:%d" % (vr(112 + 4 * aa, 4), vRSV, 1024 + (32 * st + 8 * aa) * 4))
        for ft in range(2):
            for u in range(2):
                for hf in range(2):
                    a("ds_read_b64_tr_b16 %s, v%d offset:%d" % (vr(aF + 8 * ft + 4 * u + 2 * hf, 2), vPKr, (st * 32 + 16 * u + 8 * hf) * PKP + ft * 64))
        a("s_waitcnt lgkmcnt(8)")
        for aa in range(4):
            for h2 in range(2):
                r = accV[st] + 4 * aa + 2 * h2
                a("v_pk_mul_f32 %s, %s, %s" % (vr(r, 2), vr(r, 2), vr(228 + 4 * aa + 2 * h2, 2)))
                a("v_pk_fma_f32 %s, %s, %s, %s op_sel_hi:[1,0,1]" % (vr(r, 2), vr(112 + 4 * aa + 2 * h2, 2), vr(csV, 2), vr(r, 2)))
                a("v_cvt_pk_bf16_f32 v%d, v%d, v%d" % (vb + 2 * aa + h2, r, r + 1))
        a("s_waitcnt lgkmcnt(0)")
        for u in range(2):
            for ft in range(2):
                a(mf32(kvT[ft], aF + 8 * ft + 4 * u, vb + 4 * u, "0" if (st == 0 and u == 0) else kvT[ft]))
                a(mf32(zT[ft], aF + 8 * ft + 4 * u, ones, "0" if (st == 0 and u == 0) else zT[ft]))
        a("s_nop 7")
    mfma_wait(a)
    stamp(a, 10, s_wave, kidx, tmp_v=156)
    a("s_mul_i32 s%d, s%d, %d" % (c.st[0], s_wave, KVP_BYTES))
    a("s_add_u32 s%d, s%d, %d" % (c.st[0], c.st[0], L_RED))
    a("v_lshlrev_b32 v%d, 4, v%d" % (t[0], vl))
    a("v_add_u32 v%d, s%d, v%d" % (t[1], c.st[0], t[0]))
    for ft in range(2):
        for rq in range(4):
            a("ds_write_b128 v%d, %s offset:%d" % (t[1], vr(kvT[ft] + 4 * rq, 4), (ft * 4 + rq) * 1024))
    a("v_lshlrev_b32 v%d, 4, v%d" % (t[2], hi_))
    a("v_add_u32 v%d, s%d, v%d" % (t[2], c.st[0], t[2]))
    a("v_and_b32 v%d, 31, v%d" % (t[3], vl))
    a("v_cmp_eq_u32 vcc, 0, v%d" % t[3])
    a("s_and_saveexec_b64 s[58:59], vcc")
    for ft in range(2):
        for rq in range(4):
            a("ds_write_b128 v%d, %s offset:%d" % (t[2], vr(zT[ft] + 4 * rq, 4), 8192 + (ft * 8 + rq * 2) * 16))
    a("s_mov_b64 exec, s[58:59]")
    a("s_waitcnt lgkmcnt(0)")
    a("s_barrier")
    stamp(a, 11, s_wave, kidx, tmp_v=156)
    a("s_lshl_b32 s%d, s%d, 11" % (c.st[0], s_wave))
    a("s_add_u32 s%d, s%d, %d" % (c.st[0], c.st[0], L_RED))
    a("v_add_u32 v%d, s%d, v%d" % (t[1], c.st[0], t[0]))
    rr = 32
    for ww in range(4):
        for bb in range(2):
            a("ds_read_b128 %s, v%d offset:%d" % (vr(rr + 8 * ww + 4 * bb, 4), t[1], ww * KVP_BYTES + bb * 1024))
    a("v_add_u32 v%d, %d, v%d" % (t[2], L_RED + 8192, t[0]))
    a("v_and_b32 v%d, 0xff, v%d" % (t[3], t[0]))
    a("v_add_u32 v%d, %d, v%d" % (t[2], L_RED + 8192, t[3]))
    zr = 180
    for ww in range(4):
        a("ds_read_b128 %s, v%d offset:%d" % (vr(zr + 4 * ww, 4), t[2], ww * KVP_BYTES))
    a("s_waitcnt lgkmcnt(0)")
    for ww in range(1, 4):
        for q in range(0, 8, 2):
            a("v_pk_add_f32 %s, %s, %s" % (vr(rr + q, 2), vr(rr + q, 2), vr(rr + 8 * ww + q, 2)))
        for q in range(0, 4, 2):
            a("v_pk_add_f32 %s, %s, %s" % (vr(zr + q, 2), vr(zr + q, 2), vr(zr + 4 * ww + q, 2)))
    a("s_mul_i32 s%d, s%d, %d" % (c.st[0], s_rb, KVP_BYTES))
    a("s_lshl_b32 s%d, s%d, 11" % (c.st[1], s_wave))
    a("s_add_u32 s%d, s%d, s%d" % (c.st[1], c.st[1], c.st[0]))
    for bb in range(2):
        a("buffer_store_dwordx4 %s, v%d, s[%d:%d], s%d offen offset:%d sc1" % (vr(rr + 4 * bb, 4), t[0], srdKV, srdKV + 3, c.st[1], bb * 1024))
    Lz = a.newlabel("Lz")
    a("s_cmp_lg_u32 s%d, 0" % s_wave)
    a("s_cbranch_scc1 %s" % Lz)
    a("v_add_u32 v%d, 8192, v%d" % (t[2], t[0]))
    a("v_cmp_gt_u32 vcc, 16, v%d" % vl)
    a("v_mov_b32 v%d, 0x7fffffff" % t[3])
    a("s_nop 0")
    a("v_cndmask_b32 v%d, v%d, v%d, vcc" % (t[2], t[3], t[2]))
    a("buffer_store_dwordx4 %s, v%d, s[%d:%d], s%d offen sc1" % (vr(zr, 4), t[2], srdKV, srdKV + 3, c.st[0]))
    a.label(Lz)
    stamp(a, 12, s_wave, kidx, tmp_v=156)
    a("s_waitcnt vmcnt(0)")
    a("s_barrier")
    stamp(a, 3, s_wave, kidx, tmp_v=vst)
    Lf = a.newlabel("Lflag")
    a("s_cmp_lg_u32 s%d, 0" % s_wave)
    a("s_cbranch_scc1 %s" % Lf)
    a("s_lshl_b32 s%d, s%d, 7" % (c.st[0], s_h))
    a("s_lshl_b32 s%d, s%d, 3" % (c.st[1], s_rb))
    a("s_add_u32 s%d, s%d, s%d" % (c.st[0], c.st[0], c.st[1]))
    a("s_add_u32 s%d, s%d, %d" % (c.st[0], c.st[0], WS_FLAG))
    a("v_mov_b32 v%d, s%d" % (t[0], c.st[0]))
    a("s_mov_b64 s[58:59], exec")
    a("s_mov_b64 exec, 1")
    a("global_store_dwordx2 v%d, %s, s[4:5] sc1" % (t[0], vr(vtok, 2)))
    a("s_mov_b64 exec, s[58:59]")
    a.label(Lf)
    phq = [32, 48]
    for st in range(2):
        phi(accQ[st], csQ, st)
        for i in range(8):
            a("v_mov_b32 v%d, v%d" % (phq[st] + i, pos + i))
            a("v_mov_b32 v%d, v%d" % (phq[st] + 8 + i, neg + i))
    stamp(a, 4, s_wave, kidx, tmp_v=vst)
    a("s_barrier")
    kvf, zf = 64, 80
    a("v_lshlrev_b32 v%d, 4, v%d" % (t[0], vl))
    a("v_add_u32 v%d, %d, v%d" % (t[0], L_KVF, t[0]))
    a("v_lshlrev_b32 v%d, 4, v%d" % (t[1], hi_))
    a("v_add_u32 v%d, %d, v%d" % (t[1], L_ZF, t[1]))
    for tp in range(4):
        a("ds_read_b128 %s, v%d offset:%d" % (vr(kvf + 4 * tp, 4), t[0], tp * 1024))
        a("ds_read_b128 %s, v%d offset:%d" % (vr(zf + 4 * tp, 4), t[1], tp * 32))
    a("s_waitcnt lgkmcnt(0)")
    num = [96, 112]; den = [180, 196]
    for st in range(2):
        for tp in range(4):
            a(mf32(num[st], kvf + 4 * tp, phq[st] + 4 * tp, "0" if tp == 0 else num[st]))
            a(mf32(den[st], zf + 4 * tp, phq[st] + 4 * tp, "0" if tp == 0 else den[st]))
    mfma_wait(a)
    a("v_and_b32 v%d, 31, v%d" % (t[0], vl))
    a("s_lshl_b32 s%d, s%d, 6" % (c.st[0], s_wave))
    a("v_add_u32 v%d, s%d, v%d" % (t[0], c.st[0], t[0]))
    a("v_lshlrev_b32 v%d, 11, v%d" % (t[0], t[0]))
    a("v_lshl_add_u32 v%d, v%d, 4, v%d" % (t[0], hi_, t[0]))
    for st in range(2):
        a("v_add_f32 v%d, 0x358637bd, v%d" % (t[1], den[st]))
        a("v_rcp_f32 v%d, v%d" % (t[1], t[1]))
        a("s_nop 0")
        for i in range(16):
            a("v_mul_f32 v%d, v%d, v%d" % (num[st] + i, num[st] + i, t[1]))
        ob = 212 + 8 * st
        for i in range(8):
            a("v_cvt_pk_bf16_f32 v%d, v%d, v%d" % (ob + i, num[st] + 2 * i, num[st] + 2 * i + 1))
        a("s_nop 1")
        for pr in range(2):
            a("v_permlane32_swap_b32 v%d, v%d" % (ob + 4 * pr, ob + 4 * pr + 2))
            a("v_permlane32_swap_b32 v%d, v%d" % (ob + 4 * pr + 1, ob + 4 * pr + 3))
        for pr in range(2):
            a("s_mov_b32 s%d, %d" % (c.st[1], st * 32 * 2048))
            a("buffer_store_dwordx4 %s, v%d, s[%d:%d], s%d offen offset:%d%s" % (vr(ob + 4 * pr, 4), t[0], srdO, srdO + 3, c.st[1], pr * 32, os.environ.get("STFLAG", "")))
    a("s_waitcnt vmcnt(0)") if STAMPS else None
    stamp(a, 5, s_wave, kidx, tmp_v=vst)
    a.label(Lend)
    a("s_endpgm")
    return kernel_desc(name, vmax, 88), lds
```

```python
from common import *
from gemm import *
from kgemm import base_cfg, RINGS
import os

WS_XCH = 48 * MB
FLAG2 = WS_FLAG + 65536

def w2s_kernel(a, name):
    c = base_cfg(128, 128, 1792, 7168, 2048, 4)
    set_rings(c, *[int(x) for x in os.environ.get("RING_w2s", "4,4").split(",")])
    c.swz = swz_mask_bits(c.P)
    c.MT = 4; c.NT = 4
    c.srdA, c.srdB, srdC, srdR, srdX, srdY = 16, 20, 24, 28, 32, 36
    s_wave, s_tm, s_tn, s_s = 40, 41, 42, 56
    c.s_p = c.s_wm = 43; c.s_wn = 44
    c.s_slotA = c.s_cslotA = 45; c.s_ka = c.s_deltaA = 46; c.s_kb = c.s_deltaB = 47; c.s_mA = 48; c.s_mB = 49; c.s_i = 50; c.s_slotB = c.s_cslotB = 51
    c.st = [52, 53, 54, 55]
    nacc = 64
    c.acc = 0
    fr = nacc
    c.fX = [fr, fr + 32]; c.fW = [fr + 16, fr + 48]
    misc = fr + 64
    c.v_lane = misc
    c.vX = [misc + 1, misc + 2]; c.vW = [misc + 3 + i for i in range(4)]
    c.vt = [misc + 7 + i for i in range(8)]
    vtok = misc + 16
    vst = misc + 22
    vmax = vst + 4
    L_TOK = c.ring_bytes
    lds = c.ring_bytes + 64
    pitch = 128 * 2 + 16
    cbase = 0
    kidx = 3
    t = c.vt; vl = c.v_lane

    kernel_header(a, name)
    Lend = a.newlabel("Lend")
    a("s_cmp_ge_u32 s2, 256")
    a("s_cbranch_scc1 %s" % Lend)
    a("s_load_dwordx2 s[4:5], s[0:1], %d" % KA_WS)
    a("s_load_dwordx2 s[6:7], s[0:1], %d" % KA_W2)
    a("s_load_dwordx2 s[8:9], s[0:1], %d" % KA_OUT)
    a("s_load_dwordx2 s[10:11], s[0:1], %d" % KA_DBG)
    a("v_and_b32 v%d, 63, v0" % vl)
    a("v_lshrrev_b32 v1, 6, v0")
    a("s_nop 0")
    a("v_readfirstlane_b32 s%d, v1" % s_wave)
    a("s_and_b32 s%d, s2, 7" % c.st[0])
    a("s_lshr_b32 s%d, s2, 3" % c.st[1])
    a("s_and_b32 s%d, s%d, 1" % (s_s, c.st[1]))
    a("s_lshr_b32 s%d, s%d, 1" % (c.st[1], c.st[1]))
    a("s_and_b32 s%d, s%d, 3" % (c.st[2], c.st[0]))
    a("s_lshl_b32 s%d, s%d, 2" % (s_tm, c.st[2]))
    a("s_and_b32 s%d, s%d, 3" % (c.st[2], c.st[1]))
    a("s_add_u32 s%d, s%d, s%d" % (s_tm, s_tm, c.st[2]))
    a("s_lshr_b32 s%d, s%d, 2" % (c.st[2], c.st[0]))
    a("s_lshl_b32 s%d, s%d, 2" % (s_tn, c.st[2]))
    a("s_lshr_b32 s%d, s%d, 2" % (c.st[2], c.st[1]))
    a("s_add_u32 s%d, s%d, s%d" % (s_tn, s_tn, c.st[2]))
    a("s_waitcnt lgkmcnt(0)")
    a("s_mul_i32 s%d, s%d, %d" % (c.st[0], s_tm, 128 * 7168))
    a("s_mul_i32 s%d, s%d, 3584" % (c.st[1], s_s))
    a("s_add_u32 s%d, s%d, s%d" % (c.st[0], c.st[0], c.st[1]))
    a("s_add_u32 s%d, s%d, %d" % (c.st[0], c.st[0], WS_H1))
    a("s_add_u32 s12, s4, s%d" % c.st[0])
    a("s_addc_u32 s13, s5, 0")
    make_srd(a, c.srdA, "s12", "s13", 128 * 7168 - 3584)
    a("s_mul_i32 s%d, s%d, %d" % (c.st[0], s_s, 1792 * 2048))
    a("s_lshl_b32 s%d, s%d, 8" % (c.st[1], s_tn))
    a("s_add_u32 s%d, s%d, s%d" % (c.st[0], c.st[0], c.st[1]))
    a("s_add_u32 s12, s6, s%d" % c.st[0])
    a("s_addc_u32 s13, s7, 0")
    a("s_sub_u32 s%d, %d, s%d" % (c.st[1], 3584 * 2048, c.st[0]))
    make_srd(a, c.srdB, "s12", "s13", "s%d" % c.st[1])
    a("s_lshl_b32 s%d, s%d, 1" % (c.st[0], s_tm))
    a("s_add_u32 s%d, s%d, s%d" % (c.st[0], c.st[0], s_s))
    a("s_lshl_b32 s%d, s%d, 17" % (c.st[0], c.st[0]))
    a("s_lshl_b32 s%d, s%d, 8" % (c.st[1], s_tn))
    a("s_add_u32 s%d, s%d, s%d" % (c.st[0], c.st[0], c.st[1]))
    a("s_add_u32 s12, s8, s%d" % c.st[0])
    a("s_addc_u32 s13, s9, 0")
    a("s_sub_u32 s%d, %d, s%d" % (c.st[1], S_ * 2048, c.st[0]))
    make_srd(a, srdC, "s12", "s13", "s%d" % c.st[1])
    a("s_add_u32 s%d, s%d, %d" % (c.st[2], c.st[0], WS_H))
    a("s_add_u32 s12, s4, s%d" % c.st[2])
    a("s_addc_u32 s13, s5, 0")
    make_srd(a, srdR, "s12", "s13", "s%d" % c.st[1])
    a("s_lshl_b32 s%d, s2, 15" % c.st[0])
    a("s_add_u32 s%d, s%d, %d" % (c.st[0], c.st[0], WS_XCH))
    a("s_add_u32 s12, s4, s%d" % c.st[0])
    a("s_addc_u32 s13, s5, 0")
    make_srd(a, srdX, "s12", "s13", 32768)
    a("s_xor_b32 s%d, s2, 8" % c.st[1])
    a("s_lshl_b32 s%d, s%d, 15" % (c.st[0], c.st[1]))
    a("s_add_u32 s%d, s%d, %d" % (c.st[0], c.st[0], WS_XCH))
    a("s_add_u32 s12, s4, s%d" % c.st[0])
    a("s_addc_u32 s13, s5, 0")
    make_srd(a, srdY, "s12", "s13", 32768)
    stamp(a, 0, s_wave, kidx, tmp_v=vst)
    Lcons = a.newlabel("Lconsumer"); Lfin = a.newlabel("Lfinal")
    a("s_cmp_lt_u32 s%d, 4" % s_wave)
    a("s_cbranch_scc1 %s" % Lcons)
    a("s_sub_u32 s%d, s%d, 4" % (c.s_p, s_wave))
    D = int(os.environ.get("W2D", "0"))
    if D:
        c.rotate = True
        a("s_and_b32 s%d, s%d, 3" % (c.st[0], s_tm))
        a("s_and_b32 s%d, s%d, 3" % (c.st[1], s_tn))
        a("s_add_u32 s%d, s%d, s%d" % (c.st[0], c.st[0], c.st[1]))
        a("s_mul_i32 s%d, s%d, %d" % (c.st[0], c.st[0], D))
        a("s_lshl_b32 s%d, s%d, 7" % (c.s_ka, c.st[0]))
        a("s_mul_i32 s%d, s%d, %d" % (c.s_kb, c.st[0], 64 * c.ldb))
    else:
        a("s_mov_b32 s%d, 0" % c.s_ka)
        a("s_mov_b32 s%d, 0" % c.s_kb)
    emit_producer_setup(a, c, 32)
    stamp(a, 1, s_wave, kidx, tmp_v=vst)
    emit_producer_loop(a, c)
    a("s_barrier")
    stamp(a, 2, s_wave, kidx, tmp_v=vst)
    a("s_barrier")
    a("s_branch %s" % Lfin)
    a.label(Lcons)
    a("s_lshr_b32 s%d, s%d, 1" % (c.s_wm, s_wave))
    a("s_and_b32 s%d, s%d, 1" % (c.s_wn, s_wave))
    Lt0 = a.newlabel("Ltok0")
    a("s_cmp_lg_u32 s%d, 0" % s_wave)
    a("s_cbranch_scc1 %s" % Lt0)
    a("s_memrealtime s[58:59]")
    a("s_waitcnt lgkmcnt(0)")
    a("s_or_b32 s58, s58, 1")
    a("v_mov_b32 v%d, s58" % vtok)
    a("v_mov_b32 v%d, s59" % (vtok + 1))
    a("v_mov_b32 v%d, 0" % (vtok + 2))
    a("v_mov_b32 v%d, 0" % (vtok + 3))
    a("v_mov_b32 v%d, 0" % t[0])
    a("s_mov_b64 s[58:59], exec")
    a("s_mov_b64 exec, 1")
    a("global_atomic_cmpswap_x2 %s, v%d, %s, s[10:11] sc0" % (vr(vtok + 4, 2), t[0], vr(vtok, 4)))
    a("s_mov_b64 exec, s[58:59]")
    a.label(Lt0)
    emit_consumer16_setup(a, c)
    stamp(a, 1, s_wave, kidx, tmp_v=vst)
    stamp(a, 6, s_wave, kidx, tmp_v=vst)
    emit_consumer16_loop(a, c)
    stamp(a, 7, s_wave, kidx, tmp_v=vst)
    stamp(a, 2, s_wave, kidx, tmp_v=vst)
    Lt1 = a.newlabel("Ltok1")
    a("s_cmp_lg_u32 s%d, 0" % s_wave)
    a("s_cbranch_scc1 %s" % Lt1)
    a("s_waitcnt vmcnt(0)")
    a("s_mov_b64 s[58:59], exec")
    a("s_mov_b64 exec, 1")
    a("v_cmp_eq_u64 vcc, 0, %s" % vr(vtok + 4, 2))
    a("s_nop 1")
    a("v_cndmask_b32 v%d, v%d, v%d, vcc" % (vtok, vtok + 4, vtok))
    a("v_cndmask_b32 v%d, v%d, v%d, vcc" % (vtok + 1, vtok + 5, vtok + 1))
    a("v_mov_b32 v%d, %d" % (t[0], L_TOK))
    a("ds_write_b64 v%d, %s" % (t[0], vr(vtok, 2)))
    a("s_mov_b64 exec, s[58:59]")
    a("s_waitcnt lgkmcnt(0)")
    a.label(Lt1)
    Lkeep = a.newlabel("Lkeep")
    a("s_nop 7")
    a("v_lshlrev_b32 v%d, 4, v%d" % (t[1], vl))
    a("s_lshl_b32 s%d, s%d, 14" % (c.st[0], c.s_wn))
    a("v_add_u32 v%d, s%d, v%d" % (t[1], c.st[0], t[1]))
    a("s_cmp_eq_u32 s%d, s%d" % (c.s_wm, s_s))
    a("s_cbranch_scc1 %s" % Lkeep)
    for r4 in range(16):
        a("s_mov_b32 s%d, %d" % (c.st[1], (r4 // 4) * 4096))
        a("buffer_store_dwordx4 %s, v%d, s[%d:%d], s%d offen offset:%d sc1" % (vr(4 * r4, 4), t[1], srdX, srdX + 3, c.st[1], (r4 % 4) * 1024))
    a("s_barrier")
    a("s_waitcnt vmcnt(0)")
    a("s_barrier")
    a("s_branch %s" % Lfin)
    a.label(Lkeep)
    a("s_barrier")
    a("v_mov_b32 v%d, %d" % (t[0], L_TOK))
    a("ds_read_b64 %s, v%d" % (vr(vtok, 2), t[0]))
    a("s_waitcnt lgkmcnt(0)")
    a("s_barrier")
    Lnf = a.newlabel("Lnf")
    a("s_cmp_lg_u32 s%d, 0" % c.s_wn)
    a("s_cbranch_scc1 %s" % Lnf)
    a("s_lshl_b32 s%d, s2, 7" % c.st[0])
    a("s_add_u32 s%d, s%d, %d" % (c.st[0], c.st[0], FLAG2))
    a("v_mov_b32 v%d, s%d" % (t[0], c.st[0]))
    a("s_mov_b64 s[58:59], exec")
    a("s_mov_b64 exec, 1")
    a("global_store_dwordx2 v%d, %s, s[4:5] sc1" % (t[0], vr(vtok, 2)))
    a("s_mov_b64 exec, s[58:59]")
    a.label(Lnf)
    stamp(a, 3, s_wave, kidx, tmp_v=vst)
    a("s_xor_b32 s%d, s2, 8" % c.st[0])
    a("s_lshl_b32 s%d, s%d, 7" % (c.st[0], c.st[0]))
    a("s_add_u32 s%d, s%d, %d" % (c.st[0], c.st[0], FLAG2))
    a("v_mov_b32 v%d, s%d" % (t[0], c.st[0]))
    Lp = a.newlabel("Lpoll"); Lpd = a.newlabel("Lpolld")
    a("s_mov_b32 s57, 0")
    a.label(Lp)
    a("global_load_dwordx2 %s, v%d, s[4:5] sc1" % (vr(vtok + 2, 2), t[0]))
    a("s_waitcnt vmcnt(0)")
    a("v_cmp_eq_u64 vcc, %s, %s" % (vr(vtok, 2), vr(vtok + 2, 2)))
    a("s_nop 4")
    a("s_cmp_eq_u64 vcc, exec")
    a("s_cbranch_scc1 %s" % Lpd)
    a("s_add_u32 s57, s57, 1")
    a("s_cmp_gt_u32 s57, 0x40000")
    a("s_cbranch_scc1 %s" % Lpd)
    a("s_sleep 1")
    a("s_branch %s" % Lp)
    a.label(Lpd)
    stamp(a, 4, s_wave, kidx, tmp_v=vst)
    rv = 64
    for r4 in range(16):
        a("s_mov_b32 s%d, %d" % (c.st[1], (r4 // 4) * 4096))
        a("buffer_load_dwordx4 %s, v%d, s[%d:%d], s%d offen offset:%d sc1" % (vr(rv + 4 * r4, 4), t[1], srdY, srdY + 3, c.st[1], (r4 % 4) * 1024))
    a("v_and_b32 v%d, 15, v%d" % (t[0], vl))
    a("v_mul_u32_u24 v%d, %d, v%d" % (t[2], pitch, t[0]))
    a("v_lshrrev_b32 v%d, 4, v%d" % (t[3], vl))
    a("v_lshl_add_u32 v%d, v%d, 3, v%d" % (t[2], t[3], t[2]))
    a("s_lshl_b32 s%d, s%d, 7" % (c.st[0], c.s_wn))
    a("v_add_u32 v%d, s%d, v%d" % (t[2], c.st[0], t[2]))
    for tt in range(4):
        for mt in range(4):
            r4 = tt * 4 + mt
            a("s_waitcnt vmcnt(%d)" % (15 - r4))
            for h in range(2):
                a("v_pk_add_f32 %s, %s, %s" % (vr(4 * r4 + 2 * h, 2), vr(4 * r4 + 2 * h, 2), vr(rv + 4 * r4 + 2 * h, 2)))
            d = rv + 4 * r4
            a("v_cvt_pk_bf16_f32 v%d, v%d, v%d" % (d, 4 * r4, 4 * r4 + 1))
            a("v_cvt_pk_bf16_f32 v%d, v%d, v%d" % (d + 1, 4 * r4 + 2, 4 * r4 + 3))
            a("ds_write_b64 v%d, %s offset:%d" % (t[2], vr(d, 2), cbase + mt * 16 * pitch + tt * 32))
    a("s_waitcnt lgkmcnt(0)")
    a.label(Lfin)
    nf = 2
    vL = [0, 1]; vG = [2, 3]; vD = 4; vR = 12
    t = [20 + i for i in range(10)]
    for j in range(nf):
        a("s_lshl_b32 s%d, s%d, 7" % (c.st[0], s_wave))
        a("v_add_u32 v%d, s%d, v%d" % (t[0], c.st[0], vl))
        if j: a("v_add_u32 v%d, 64, v%d" % (t[0], t[0]))
        a("v_lshrrev_b32 v%d, 4, v%d" % (t[1], t[0]))
        a("v_and_b32 v%d, 15, v%d" % (t[2], t[0]))
        a("v_lshlrev_b32 v%d, 4, v%d" % (t[2], t[2]))
        a("v_mul_u32_u24 v%d, %d, v%d" % (t[3], pitch, t[1]))
        a("v_add_u32 v%d, v%d, v%d" % (vL[j], t[3], t[2]))
        a("v_lshlrev_b32 v%d, 11, v%d" % (t[3], t[1]))
        a("v_add_u32 v%d, v%d, v%d" % (vG[j], t[3], t[2]))
        a("buffer_load_dwordx4 %s, v%d, s[%d:%d], 0 offen" % (vr(vR + 4 * j, 4), vG[j], srdR, srdR + 3))
    a("s_barrier")
    for j in range(nf):
        a("ds_read_b128 %s, v%d offset:%d" % (vr(vD + 4 * j, 4), vL[j], cbase))
    a("s_waitcnt vmcnt(0) lgkmcnt(0)")
    for j in range(nf):
        for q in range(4):
            d = vD + 4 * j + q; r = vR + 4 * j + q
            a("v_lshlrev_b32 v%d, 16, v%d" % (t[0], d))
            a("v_and_b32 v%d, 0xffff0000, v%d" % (t[1], d))
            a("v_lshlrev_b32 v%d, 16, v%d" % (t[2], r))
            a("v_and_b32 v%d, 0xffff0000, v%d" % (t[3], r))
            a("v_add_f32 v%d, v%d, v%d" % (t[0], t[0], t[2]))
            a("v_add_f32 v%d, v%d, v%d" % (t[1], t[1], t[3]))
            a("v_cvt_pk_bf16_f32 v%d, v%d, v%d" % (d, t[0], t[1]))
        a("buffer_store_dwordx4 %s, v%d, s[%d:%d], 0 offen" % (vr(vD + 4 * j, 4), vG[j], srdC, srdC + 3))
    a("s_waitcnt vmcnt(0)") if STAMPS else None
    stamp(a, 5, s_wave, kidx, tmp_v=vst)
    a.label(Lend)
    a("s_endpgm")
    return kernel_desc(name, vmax, 64), lds
```

```python
import sys
from common import *
from kgemm import gemm_kernel

NAME = "sequential_preLN__linear_kernel_hedgehog__dense_activation_relu__prompt"
HDR = open("cdna_kernels/%s.s.ref" % NAME).read().split("; Override launch geometry")[0]

def build(kinds):
    a = Asm()
    descs = []; launches = []
    for k in kinds:
        if k == "nop":
            if "nop_kernel" not in [l[0] for l in launches]:
                kernel_header(a, "nop_kernel"); a("s_endpgm")
                descs.append(kernel_desc("nop_kernel", 8, 16))
            launches.append(("nop_kernel", 256, 64, 0))
            continue
        if k == "w2s":
            from kw2s import w2s_kernel
            d, lds = w2s_kernel(a, "w2_kernel")
            launches.append(("w2_kernel", 256, 512, lds))
        elif k == "qkv":
            from kqkv import qkv_kernel
            d, lds = qkv_kernel(a, "qkv_kernel")
            launches.append(("qkv_kernel", 256, 512, lds))
        else:
            d, lds = gemm_kernel(a, k + "_kernel", k)
            launches.append((k + "_kernel", 256, 512, lds))
        descs.append(d)
    out = HDR
    for (n, g, b, lds) in launches:
        out += "; @launch kernel=%s grid=(%d,1,1) block=(%d,1,1) lds=%d\n" % (n, g, b, lds)
    out += '.amdgcn_target "amdgcn-amd-amdhsa--gfx950"\n.text\n'
    out += a.text()
    out += '.section .rodata,"a"\n' + "".join(descs)
    return out

if __name__ == "__main__":
    kinds = sys.argv[2].split(",")
    open(sys.argv[1], "w").write(build(kinds))
```

```python
class Asm:
    def __init__(self):
        self.lines = []
        self.uid = 0
    def __call__(self, s):
        for l in s.split("\n"):
            self.lines.append("  " + l.strip())
    def raw(self, s):
        self.lines.append(s)
    def label(self, name):
        self.lines.append(name + ":")
    def newlabel(self, base="L"):
        self.uid += 1
        return "%s_%d" % (base, self.uid)
    def comment(self, s):
        self.lines.append("  ; " + s)
    def text(self):
        return "\n".join(self.lines) + "\n"

def vr(base, n=1):
    if n == 1:
        return "v%d" % base
    return "v[%d:%d]" % (base, base + n - 1)

def sr(base, n=1):
    if n == 1:
        return "s%d" % base
    return "s[%d:%d]" % (base, base + n - 1)

KA_X, KA_WQKV, KA_WPHI, KA_WO, KA_BX, KA_W1, KA_W2, KA_OUT, KA_DBG, KA_WS = [8 * i for i in range(10)]

MB = 1 << 20
import os as _os
PAD = int(_os.environ.get("PAD", "128"))
LD_O = 2048 + PAD; LD_H = 2048 + PAD; LD_H1 = 7168 + PAD
WS_O = 0
WS_H = 5 * MB
WS_H1 = 10 * MB
WS_KVP = 25 * MB
KVP_BYTES = 8704
WS_ST1 = 28 * MB
WS_ST2 = 29 * MB
WS_CS1 = 30 * MB
WS_CSQ = 31 * MB
WS_FLAG = 32 * MB
WS_SIZE = 256 * MB

S_, D_, DFF = 2048, 1024, 3584

def kernel_header(a, name):
    a.raw(".globl %s" % name)
    a.raw(".p2align 8")
    a.raw(".type %s,@function" % name)
    a.label(name)

def kernel_desc(name, vgpr, sgpr):
    acc = (vgpr + 3) // 4 * 4
    return """.p2align 6
.amdhsa_kernel %s
  .amdhsa_next_free_vgpr %d
  .amdhsa_next_free_sgpr %d
  .amdhsa_accum_offset %d
  .amdhsa_group_segment_fixed_size 0
  .amdhsa_kernarg_size 80
  .amdhsa_user_sgpr_count 2
  .amdhsa_user_sgpr_kernarg_segment_ptr 1
  .amdhsa_system_sgpr_workgroup_id_x 1
.end_amdhsa_kernel
""" % (name, vgpr, sgpr, acc)

def make_srd(a, s, base_lo, base_hi, nbytes):
    a("s_mov_b32 s%d, %s" % (s, base_lo))
    a("s_and_b32 s%d, %s, 0xffff" % (s + 1, base_hi))
    a("s_mov_b32 s%d, %s" % (s + 2, nbytes if isinstance(nbytes, str) else hex(nbytes)))
    a("s_mov_b32 s%d, 0x00020000" % (s + 3))

import os
STAMPS = "stamp" in os.environ.get("GDBG", "")
SPAN = "span" in os.environ.get("GDBG", "")
WS_STAMP = 40 * MB
def stamp(a, idx, s_wave, kidx, sws=4, tmp_s=60, tmp_v=None):
    if not STAMPS and not (SPAN and ((kidx == 0 and idx == 0) or (kidx == 3 and idx == 5))): return
    if idx in (6, 7): a("s_memtime s[60:61]")
    else: a("s_memrealtime s[60:61]")
    a("s_lshl_b32 s62, s2, 3")
    a("s_add_u32 s62, s62, s%d" % s_wave)
    a("s_lshl_b32 s62, s62, 7")
    a("s_add_u32 s62, s62, %d" % (WS_STAMP + kidx * 256 * 8 * 128 + idx * 8))
    a("s_waitcnt lgkmcnt(0)")
    a("v_mov_b32 v%d, s60" % tmp_v)
    a("v_mov_b32 v%d, s61" % (tmp_v + 1))
    a("v_mov_b32 v%d, s62" % (tmp_v + 2))
    a("global_store_dwordx2 v%d, v[%d:%d], s[4:5]" % (tmp_v + 2, tmp_v, tmp_v + 1))

FS_LG = int(os.environ.get('FSLG', '6'))
FMASK = '1' if FS_LG == 3 else '0xff'
```

```python
from common import *
import os
DBG = os.environ.get("GDBG", "")

def magic_div(P, maxs):
    for sh in range(8, 24):
        mul = -(-(1 << sh) // P)
        if mul >= (1 << 24): continue
        if all(((s * mul) >> sh) == s // P for s in range(maxs)) and (maxs * mul) < (1 << 32):
            return mul, sh
    raise Exception("no magic")

def swz_mask_bits(P):
    if P % 16 in (4, 12):
        return [(3, 1)]
    if P % 16 == 8:
        return [(1, 1), (3, 2)]
    if P % 16 == 0:
        return [(0, 1), (1, 2), (3, 3)]
    raise Exception("P")

class Cfg:
    pass

def emit_producer_setup(a, c, vbase):
    vl = c.v_lane
    t0, t1, t2, t3 = c.vt[0:4]
    st = c.st[0]
    c.vA = [vbase + i for i in range(c.a_ins)]
    c.vB = [vbase + c.a_ins + i for i in range(c.b_ins)]
    a("v_lshrrev_b32 v%d, 3, v%d" % (t0, vl))
    a("v_and_b32 v%d, 7, v%d" % (t1, vl))
    a("s_mul_i32 s%d, s%d, %d" % (st, c.s_p, c.a_ins * 8))
    for j in range(c.a_ins):
        a("v_add_u32 v%d, s%d, v%d" % (t2, st, t0))
        if j: a("v_add_u32 v%d, %d, v%d" % (t2, 8 * j, t2))
        a("v_bfe_u32 v%d, v%d, 1, 3" % (t3, t2))
        if "noswzA" in DBG: a("v_mov_b32 v%d, v%d" % (t3, t1))
        else: a("v_xor_b32 v%d, v%d, v%d" % (t3, t3, t1))
        a("v_lshlrev_b32 v%d, 4, v%d" % (t3, t3))
        a("s_mov_b32 s%d, %d" % (c.st[1], c.lda))
        a("v_mul_lo_u32 v%d, v%d, s%d" % (t2, t2, c.st[1]))
        a("v_add_u32 v%d, v%d, v%d" % (c.vA[j], t2, t3))
    P = c.P
    mul, sh = magic_div(P, 64 * P + 64)
    a("s_mul_i32 s%d, s%d, %d" % (st, c.s_p, c.b_ins * 64))
    for j in range(c.b_ins):
        a("v_add_u32 v%d, s%d, v%d" % (t0, st, vl))
        if j: a("v_add_u32 v%d, %d, v%d" % (t0, 64 * j, t0))
        a("v_mul_u32_u24 v%d, %d, v%d" % (t1, mul, t0))
        a("v_lshrrev_b32 v%d, %d, v%d" % (t1, sh, t1))
        a("v_mul_u32_u24 v%d, %d, v%d" % (t2, P, t1))
        a("v_sub_u32 v%d, v%d, v%d" % (t2, t0, t2))
        for (kb, jb) in (c.swz if "noswzB" not in DBG else []):
            a("v_bfe_u32 v%d, v%d, %d, 1" % (t3, t1, kb))
            a("v_lshlrev_b32 v%d, %d, v%d" % (t3, jb, t3))
            a("v_xor_b32 v%d, v%d, v%d" % (t2, t2, t3))
        if c.colmode == "lin":
            a("v_lshlrev_b32 v%d, 4, v%d" % (t2, t2))
        else:
            a("v_lshrrev_b32 v%d, 2, v%d" % (t3, t2))
            a("v_lshlrev_b32 v%d, 11, v%d" % (t3, t3))
            a("v_and_b32 v%d, 3, v%d" % (t2, t2))
            a("v_lshlrev_b32 v%d, 4, v%d" % (t2, t2))
            a("v_add_u32 v%d, v%d, v%d" % (t2, t2, t3))
        a("s_mov_b32 s%d, %d" % (c.st[1], c.ldb))
        a("v_mul_lo_u32 v%d, v%d, s%d" % (t1, t1, c.st[1]))
        a("v_add_u32 v%d, v%d, v%d" % (c.vB[j], t1, t2))

def emit_dbg_hot(a, c):
    if "hotA" in DBG:
        for r in c.vA: a("v_lshlrev_b32 v%d, 4, v%d" % (r, c.v_lane))
        c.hotA = True
    if "hotB" in DBG:
        for r in c.vB: a("v_lshlrev_b32 v%d, 4, v%d" % (r, c.v_lane))
        c.hotB = True

def emit_issue_A(a, c):
    a("s_add_u32 m0, s%d, s%d" % (c.s_slotA, c.s_mA))
    for j in range(c.a_ins):
        if j: a("s_add_u32 m0, m0, 0x400")
        a("s_nop 0")
        a("buffer_load_dwordx4 v%d, s[%d:%d], %s offen%s lds" % (c.vA[j], c.srdA, c.srdA + 3, "0" if "hotA" in DBG else "s%d" % c.s_ka, " sc1" if getattr(c, "a_sc1", False) else ""))
    a("s_add_u32 s%d, s%d, %d" % (c.s_slotA, c.s_slotA, c.Abytes))
    a("s_cmp_eq_u32 s%d, %d" % (c.s_slotA, c.SA * c.Abytes))
    a("s_cselect_b32 s%d, 0, s%d" % (c.s_slotA, c.s_slotA))
    a("s_add_u32 s%d, s%d, 128" % (c.s_ka, c.s_ka))
    if c.rotate:
        a("s_cmp_eq_u32 s%d, %d" % (c.s_ka, c.NS * 128))
        a("s_cselect_b32 s%d, 0, s%d" % (c.s_ka, c.s_ka))

def emit_issue_B(a, c):
    a("s_add_u32 m0, s%d, s%d" % (c.s_slotB, c.s_mB))
    for j in range(c.b_ins):
        if j: a("s_add_u32 m0, m0, 0x400")
        a("s_nop 0")
        a("buffer_load_dwordx4 v%d, s[%d:%d], %s offen lds" % (c.vB[j], c.srdB, c.srdB + 3, "0" if "hotB" in DBG else "s%d" % c.s_kb))
    a("s_add_u32 s%d, s%d, %d" % (c.s_slotB, c.s_slotB, c.Bbytes))
    a("s_cmp_eq_u32 s%d, %d" % (c.s_slotB, c.SB * c.Bbytes))
    a("s_cselect_b32 s%d, 0, s%d" % (c.s_slotB, c.s_slotB))
    a("s_add_u32 s%d, s%d, %d" % (c.s_kb, c.s_kb, 64 * c.ldb))
    if c.rotate:
        a("s_cmp_eq_u32 s%d, %d" % (c.s_kb, c.NS * 64 * c.ldb))
        a("s_cselect_b32 s%d, 0, s%d" % (c.s_kb, c.s_kb))

def emit_pf_setup(a, c):
    pf = c.pf
    vl = c.v_lane; t = c.vt
    nA, nB, seg = pf["nA"], pf["nB"], pf["segB"]
    ns = len(seg)
    Smax = max(c.SA, c.SB)
    a("v_add_u32 v%d, s%d, v%d" % (t[0], pf["rowA"], vl))
    a("s_mov_b32 s%d, %d" % (c.st[0], c.lda))
    a("v_mul_lo_u32 v%d, v%d, s%d" % (t[0], t[0], c.st[0]))
    a("s_add_u32 s%d, s%d, %d" % (c.st[0], c.s_ka, (Smax - 1) * 128))
    a("v_add_u32 v%d, s%d, v%d" % (t[0], c.st[0], t[0]))
    a("v_subrev_u32 v%d, %d, v%d" % (t[1], nA, vl))
    a("v_and_b32 v%d, 63, v%d" % (t[1], t[1]))
    mul, sh = magic_div(ns, 64) if ns > 1 else (1, 0)
    a("v_mul_u32_u24 v%d, %d, v%d" % (t[2], mul, t[1]))
    a("v_lshrrev_b32 v%d, %d, v%d" % (t[2], sh, t[2]))
    a("v_mul_u32_u24 v%d, %d, v%d" % (t[3], ns, t[2]))
    a("v_sub_u32 v%d, v%d, v%d" % (t[3], t[1], t[3]))
    a("v_lshlrev_b32 v%d, 7, v%d" % (t[3], t[3]))
    a("v_min_u32 v%d, %d, v%d" % (t[3], seg[-1], t[3]))
    a("v_add_u32 v%d, s%d, v%d" % (t[2], pf["rowB"], t[2]))
    a("s_mov_b32 s%d, %d" % (c.st[0], c.ldb))
    a("v_mul_lo_u32 v%d, v%d, s%d" % (t[2], t[2], c.st[0]))
    a("v_add_u32 v%d, v%d, v%d" % (t[2], t[2], t[3]))
    a("s_add_u32 s%d, s%d, %d" % (c.st[0], c.s_kb, (Smax - 1) * 64 * c.ldb))
    a("v_add_u32 v%d, s%d, v%d" % (t[2], c.st[0], t[2]))
    a("v_cmp_le_u32 vcc, %d, v%d" % (nA, vl))
    a("v_cmp_gt_u32 s[74:75], %d, v%d" % (nA + nB * ns, vl))
    a("s_nop 1")
    a("s_and_b64 vcc, vcc, s[74:75]")
    a("v_cmp_gt_u32 s[74:75], %d, v%d" % (nA, vl))
    a("v_mov_b32 v%d, s%d" % (t[4], pf["rowA"]))
    a("s_mov_b32 s%d, %d" % (c.st[0], c.lda))
    a("v_mul_lo_u32 v%d, v%d, s%d" % (t[4], t[4], c.st[0]))
    a("s_add_u32 s%d, s%d, %d" % (c.st[0], c.s_ka, (Smax - 1) * 128))
    a("v_add_u32 v%d, s%d, v%d" % (t[4], c.st[0], t[4]))
    a("v_cndmask_b32 v%d, v%d, v%d, s[74:75]" % (t[0], t[4], t[0]))
    a("v_cndmask_b32 v%d, v%d, v%d, vcc" % (t[0], t[0], t[2]))
    a("v_mov_b32 v%d, 128" % c.v_pfi)
    a("v_mov_b32 v%d, %d" % (t[1], 64 * c.ldb))
    a("v_cndmask_b32 v%d, v%d, v%d, vcc" % (c.v_pfi, c.v_pfi, t[1]))
    a("v_mov_b32 v%d, s%d" % (t[1], c.srdA))
    a("v_mov_b32 v%d, s%d" % (t[2], c.srdB))
    a("v_cndmask_b32 v%d, v%d, v%d, vcc" % (t[1], t[1], t[2]))
    a("v_mov_b32 v%d, s%d" % (t[2], c.srdA + 1))
    a("v_mov_b32 v%d, s%d" % (t[3], c.srdB + 1))
    a("v_cndmask_b32 v%d, v%d, v%d, vcc" % (t[2], t[2], t[3]))
    a("v_add_co_u32 v%d, vcc, v%d, v%d" % (c.v_pf, t[1], t[0]))
    a("s_nop 1")
    a("v_addc_co_u32 v%d, vcc, 0, v%d, vcc" % (c.v_pf + 1, t[2]))
    a("s_mov_b32 s%d, %d" % (c.s_pfn, Smax - 1))

def emit_pf_issue(a, c):
    a("global_load_dword v%d, v[%d:%d], off" % (c.v_pfd, c.v_pf, c.v_pf + 1))
    a("s_add_u32 s%d, s%d, 1" % (c.s_pfn, c.s_pfn))
    a("s_cmp_lt_u32 s%d, %d" % (c.s_pfn, c.NS))
    a("s_cselect_b32 s%d, -1, 0" % c.st[2])
    a("v_and_b32 v%d, s%d, v%d" % (c.v_pfd + 1, c.st[2], c.v_pfi))
    a("v_add_co_u32 v%d, vcc, v%d, v%d" % (c.v_pf, c.v_pf, c.v_pfd + 1))
    a("s_nop 1")
    a("v_addc_co_u32 v%d, vcc, 0, v%d, vcc" % (c.v_pf + 1, c.v_pf + 1))

def emit_producer_loop(a, c):
    emit_dbg_hot(a, c)
    pf = getattr(c, "pf", None)
    SA, SB, NS = c.SA, c.SB, c.NS
    na, nb = c.a_ins, c.b_ins
    a("s_mul_i32 s%d, s%d, %d" % (c.s_mA, c.s_p, c.a_ins * 1024))
    a("s_mul_i32 s%d, s%d, %d" % (c.s_mB, c.s_p, c.b_ins * 1024))
    a("s_add_u32 s%d, s%d, %d" % (c.s_mB, c.s_mB, c.Bbase))
    a("s_mov_b32 s%d, 0" % c.s_slotA)
    a("s_mov_b32 s%d, 0" % c.s_slotB)
    Smax = max(SA, SB)
    log = []
    def virt(j, emit=True):
        ops = []
        if 0 <= j + SB - 1 < NS: ops.append(("B", j + SB - 1, nb))
        if 0 <= j + SA - 1 < NS: ops.append(("A", j + SA - 1, na))
        if SA > SB: ops.reverse()
        for o in ops:
            log.append(o)
            if emit: (emit_issue_A if o[0] == "A" else emit_issue_B)(a, c)
    def need(stage):
        last = max(i for i, o in enumerate(log) if o[1] == stage and o[0] in "AB" and ((o[0], stage) in (("A", stage), ("B", stage))))
        return sum(o[2] for o in log[last + 1:])
    if pf:
        assert not c.rotate
        emit_pf_setup(a, c)
    for j in range(-(Smax - 1), 0): virt(j)
    if pf:
        for d in range(pf["D"]):
            emit_pf_issue(a, c); log.append(("P", -1, 1))
    nmain = NS - Smax + 1
    cnt0 = need(0)
    if pf:
        cnt0 = min(cnt0, (min(SA, SB) - 2) * (na + nb + 1) + 1)
    a("s_mov_b32 s%d, 0" % c.s_i)
    L = a.newlabel("Lprod")
    a.label(L)
    a("s_waitcnt vmcnt(%d)" % cnt0)
    a("s_barrier")
    virt(0)
    if pf:
        emit_pf_issue(a, c); log.append(("P", -1, 1))
    PFLOOP = True
    if getattr(c, "prod_iter_hook", None): c.prod_iter_hook()
    a("s_add_u32 s%d, s%d, 1" % (c.s_i, c.s_i))
    a("s_cmp_lt_u32 s%d, %d" % (c.s_i, nmain))
    a("s_cbranch_scc1 %s" % L)
    if not pf: assert need(1) == cnt0, (need(1), cnt0)
    for j in range(1, nmain):
        if pf: assert need(j) >= cnt0, (j, need(j), cnt0)
        virt(j, emit=False)
        if pf: log.append(("P", -1, 1))
    for i in range(nmain, NS):
        a("s_waitcnt vmcnt(%d)" % need(i))
        a("s_barrier")
        virt(i)

def emit_consumer16_setup(a, c):
    vl = c.v_lane
    t0, t1, t2, t3 = c.vt[0:4]
    st0, st1 = c.st[0:2]
    a("v_and_b32 v%d, 15, v%d" % (t0, vl))
    a("v_lshrrev_b32 v%d, 4, v%d" % (t1, vl))
    a("v_lshrrev_b32 v%d, 1, v%d" % (t2, t0))
    a("s_mul_i32 s%d, s%d, %d" % (st0, c.s_wm, getattr(c, "WM", 64)))
    a("v_add_u32 v%d, s%d, v%d" % (t3, st0, t0))
    a("v_lshlrev_b32 v%d, 7, v%d" % (t3, t3))
    a("v_xor_b32 v%d, v%d, v%d" % (t2, t2, t1))
    for stp in range(2):
        if stp: a("v_xor_b32 v%d, 4, v%d" % (t2, t2))
        a("v_lshl_add_u32 v%d, v%d, 4, v%d" % (c.vX[stp], t2, t3))
    a("v_lshrrev_b32 v%d, 2, v%d" % (t2, t0))
    a("v_lshl_add_u32 v%d, v%d, 3, v%d" % (t3, t1, t2))
    a("v_mov_b32 v%d, 0" % c.vt[4])
    for (kb, jb) in c.swz:
        a("v_bfe_u32 v%d, v%d, %d, 1" % (c.vt[5], t3, kb))
        a("v_lshlrev_b32 v%d, %d, v%d" % (c.vt[5], jb - 1, c.vt[5]))
        a("v_or_b32 v%d, v%d, v%d" % (c.vt[4], c.vt[4], c.vt[5]))
    a("v_mul_u32_u24 v%d, %d, v%d" % (t3, c.P * 16, t3))
    a("v_and_b32 v%d, 3, v%d" % (t2, t0))
    a("v_lshl_add_u32 v%d, v%d, 3, v%d" % (t3, t2, t3))
    a("v_add_u32 v%d, %d, v%d" % (t3, c.Bbase, t3))
    a("s_mul_i32 s%d, s%d, %d" % (st0, c.s_wn, c.NT))
    for q in range(len(c.vW)):
        a("s_add_u32 s%d, s%d, %d" % (st1, st0, q))
        a("v_xor_b32 v%d, s%d, v%d" % (t2, st1, c.vt[4]))
        a("v_lshl_add_u32 v%d, v%d, 5, v%d" % (c.vW[q], t2, t3))
        if q: a("v_subrev_u32 v%d, %d, v%d" % (c.vW[q], 32 * q, c.vW[q]))

def reads16(c, buf, stp):
    r = []
    if "noread" in DBG: return []
    for mt in range(c.MT):
        r.append("ds_read_b128 %s, v%d offset:%d" % (vr(c.fX[buf] + 4 * mt, 4), c.vX[stp], mt * 2048))
    xs = r; ws = []
    for t in range(c.NT):
        for hf in range(2):
            off = (32 * stp + 4 * hf) * c.P * 16 + t * 32
            ws.append("ds_read_b64_tr_b16 %s, v%d offset:%d" % (vr(c.fW[buf] + 4 * t + 2 * hf, 2), c.vW[t % len(c.vW)], off))
    out = ws[0:2] + xs + ws[2:]
    if "notr" in DBG: out = xs
    if "nox" in DBG: out = ws
    return out

def mfmas16(c, buf):
    m = []
    if "nomfma" in DBG: return []
    for t in range(c.NT):
        for mt in range(c.MT):
            acc = c.acc + 4 * (t * c.MT + mt)
            m.append("v_mfma_f32_16x16x32_bf16 %s, %s, %s, %s" % (vr(acc, 4), vr(c.fW[buf] + 4 * t, 4), vr(c.fX[buf] + 4 * mt, 4), vr(acc, 4)))
    return m

def interleave(a, mf, rd, first=1, per=1):
    ri = 0
    for i, m in enumerate(mf):
        a(m)
        if i + 1 >= first:
            for _ in range(per):
                if ri < len(rd):
                    a(rd[ri]); ri += 1
    while ri < len(rd):
        a(rd[ri]); ri += 1

def emit_addr_advance(a, c, regsA, regsB):
    for (sl, dl, nb, S, regs) in ((c.s_cslotA, c.s_deltaA, c.Abytes, c.SA, regsA), (c.s_cslotB, c.s_deltaB, c.Bbytes, c.SB, regsB)):
        a("s_add_u32 s%d, s%d, %d" % (sl, sl, nb))
        a("s_mov_b32 s%d, %d" % (dl, nb))
        a("s_cmp_eq_u32 s%d, %d" % (sl, S * nb))
        a("s_cselect_b32 s%d, 0, s%d" % (sl, sl))
        a("s_cselect_b32 s%d, %d, s%d" % (dl, -(S - 1) * nb, dl))
    for r in regsA: a("v_add_u32 v%d, s%d, v%d" % (r, c.s_deltaA, r))
    for r in regsB: a("v_add_u32 v%d, s%d, v%d" % (r, c.s_deltaB, r))

def set_rings(c, SA, SB):
    c.SA, c.SB = SA, SB
    c.Abytes = c.nA * 1024; c.Bbytes = c.nB * 1024
    if "fakering" in DBG: c.Abytes //= 2; c.Bbytes //= 2
    c.Bbase = SA * c.Abytes
    c.ring_bytes = SA * c.Abytes + SB * c.Bbytes

def emit_consumer16_loop(a, c):
    per = 1 if c.NT * c.MT >= 16 else 2
    if os.environ.get("PER"): per = int(os.environ["PER"])
    for i in range(c.NT * c.MT * 4):
        a("v_mov_b32 v%d, 0" % (c.acc + i))
    a("s_mov_b32 s%d, 0" % c.s_cslotA)
    a("s_mov_b32 s%d, 0" % c.s_cslotB)
    a("s_barrier")
    for r in reads16(c, 0, 0): a(r)
    if getattr(c, "cons_hook0", None): c.cons_hook0()
    a("s_mov_b32 s%d, 0" % c.s_i)
    L = a.newlabel("Lcons")
    a.label(L)
    a("s_waitcnt lgkmcnt(0)")
    interleave(a, mfmas16(c, 0), reads16(c, 1, 1), 1, per)
    a("s_waitcnt lgkmcnt(0)")
    a("s_barrier")
    emit_addr_advance(a, c, [c.vX[0], c.vX[1]], c.vW)
    if getattr(c, "cons_iter_hook", None): c.cons_iter_hook()
    interleave(a, mfmas16(c, 1), reads16(c, 0, 0), 1, per)
    a("s_add_u32 s%d, s%d, 1" % (c.s_i, c.s_i))
    a("s_cmp_lt_u32 s%d, %d" % (c.s_i, c.NS - 1))
    a("s_cbranch_scc1 %s" % L)
    a("s_waitcnt lgkmcnt(0)")
    interleave(a, mfmas16(c, 0), reads16(c, 1, 1), 1, per)
    a("s_waitcnt lgkmcnt(0)")
    for m in mfmas16(c, 1): a(m)

def emit_producer_loop2(a, c, pre_poll=None):
    SA, SB, NS = c.SA, c.SB, c.NS
    na, nb = c.a_ins, c.b_ins
    a("s_mul_i32 s%d, s%d, %d" % (c.s_mA, c.s_p, c.a_ins * 1024))
    a("s_mul_i32 s%d, s%d, %d" % (c.s_mB, c.s_p, c.b_ins * 1024))
    a("s_add_u32 s%d, s%d, %d" % (c.s_mB, c.s_mB, c.Bbase))
    a("s_mov_b32 s%d, 0" % c.s_slotA)
    a("s_mov_b32 s%d, 0" % c.s_slotB)
    log = []
    def ops_of(j):
        ops = []
        if 0 <= j + SB - 1 < NS: ops.append(("B", j + SB - 1, nb))
        if 0 <= j + SA - 1 < NS: ops.append(("A", j + SA - 1, na))
        if SA > SB: ops.reverse()
        return ops
    def emit_ops(ops):
        for o in ops: (emit_issue_A if o[0] == "A" else emit_issue_B)(a, c)
    def need(stage):
        idx = [i for i, o in enumerate(log) if o[1] == stage]
        if not idx: return None
        return sum(o[2] for o in log[max(idx) + 1:])
    if pre_poll:
        for s in range(SB - 1):
            emit_issue_B(a, c); log.append(("B", s, nb))
        pre_poll()
        for s in range(SA - 1):
            emit_issue_A(a, c); log.append(("A", s, na))
    else:
        for j in range(-(max(SA, SB) - 1), 0):
            o = ops_of(j); emit_ops(o); log.extend(o)
    sched = []
    for i in range(NS):
        n = need(i)
        o = ops_of(i)
        sched.append((n, tuple(x[0] for x in o), o))
        log.extend(o)
    best = (0, 0)
    i = 0
    while i < NS:
        j = i
        while j < NS and sched[j][0] == sched[i][0] and sched[j][1] == sched[i][1]: j += 1
        if j - i > best[1] - best[0]: best = (i, j)
        i = j
    i = 0
    while i < NS:
        if i == best[0] and best[1] - best[0] >= 3:
            a("s_mov_b32 s%d, 0" % c.s_i)
            L = a.newlabel("Lprod")
            a.label(L)
            a("s_waitcnt vmcnt(%d)" % sched[i][0])
            a("s_barrier")
            emit_ops(sched[i][2])
            a("s_add_u32 s%d, s%d, 1" % (c.s_i, c.s_i))
            a("s_cmp_lt_u32 s%d, %d" % (c.s_i, best[1] - best[0]))
            a("s_cbranch_scc1 %s" % L)
            if getattr(c, "prod_mid_hook", None): c.prod_mid_hook()
            i = best[1]
        else:
            a("s_waitcnt vmcnt(%d)" % sched[i][0])
            a("s_barrier")
            emit_ops(sched[i][2])
            i += 1
```

```python
from common import *
from gemm import *
import os

def env_tuple(name, default):
    v = os.environ.get(name)
    return tuple(int(x) for x in v.replace("x", ",").split(",")) if v else default

def base_cfg(BM, BN, K, lda, ldb):
    c = Cfg()
    c.BM, c.BN, c.K, c.lda, c.ldb = BM, BN, K, lda, ldb
    c.NS = K // 64
    c.nA = BM // 8; c.nB = BN // 8
    c.a_ins = c.nA // 4; c.b_ins = c.nB // 4
    assert c.nA % 4 == 0 and c.nB % 4 == 0
    c.P = BN // 8
    c.rotate = False
    c.colmode = "lin"
    return c

L_TOK = 147456
FH = WS_FLAG + 65536
FH1 = WS_FLAG + 131072
NP2 = None
def wo_tile():
    return env_tuple("TILE_wo", (64, 128))

def gemm_phase(a, kind, first, last):
    DBG = os.environ.get("GDBG", "")
    if kind == "wo":
        BM, BN = wo_tile(); c = base_cfg(BM, BN, 1024, LD_O, 2048); set_rings(c, *env_tuple("RING_wo", (6, 6)))
    elif kind == "w1":
        BM, BN = 128, 224; c = base_cfg(BM, BN, 1024, LD_H, 7168); set_rings(c, *env_tuple("RING_w1", (3, 3)))
    else:
        BM, BN = env_tuple("TILE_w2", (64, 128)); c = base_cfg(BM, BN, 3584, LD_H1, 2048); set_rings(c, *env_tuple("RING_w2", (6, 6)))
    N = {"wo": 1024, "w1": 3584, "w2": 1024}[kind]
    tilesM, tilesN = 2048 // BM, N // BN
    assert tilesM * tilesN == 256
    XM = env_tuple("XROWS_" + kind, (1024 if kind == "w1" else 512,))[0] // BM; XN = 32 // XM
    np2 = 1024 // wo_tile()[1]
    c.swz = swz_mask_bits(c.P)
    c.MT = BM // 32; c.NT = BN // 32
    c.WM = BM // 2
    nW = 1
    for (kb, jb) in c.swz: nW = max(nW, 1 << jb)
    nW = min(nW, 1 << (c.NT - 1).bit_length()) if c.NT <= 4 else 2
    nW = max(nW, 2) if c.NT >= 2 else 1
    if c.NT <= 4: nW = c.NT
    c.srdA, c.srdB, srdC, srdR, srdS, srdT = 16, 20, 24, 28, 32, 36
    s_wave, s_tm, s_tn = 40, 41, 42
    c.s_p = c.s_wm = 43; c.s_wn = 44
    c.s_slotA = c.s_cslotA = 45; c.s_ka = c.s_deltaA = 46; c.s_kb = c.s_deltaB = 47; c.s_mA = 48; c.s_mB = 49; c.s_i = 50; c.s_slotB = c.s_cslotB = 51
    c.st = [52, 53, 54, 55]
    nacc = c.MT * c.NT * 4
    c.acc = 0
    fr = nacc
    fsz = 4 * c.MT + 4 * c.NT
    c.fX = [fr, fr + fsz]; c.fW = [fr + 4 * c.MT, fr + fsz + 4 * c.MT]
    misc = max(fr + 2 * fsz, 96)
    c.v_lane = misc
    c.vX = [misc + 1, misc + 2]; c.vW = [misc + 3 + i for i in range(nW)]
    c.vt = [misc + 3 + nW + i for i in range(8)]
    vside = (misc + 11 + nW + 3) // 4 * 4
    vst = vside + (24 if kind == "w1" else 0)
    vtok = (vst + 4 + 1) // 2 * 2
    vmax = vtok + 6
    assert vmax <= 256
    lds = c.ring_bytes
    side = lds
    if kind == "w1": lds += 128 * 8 + 224 * 4
    pitch = BN * 2 + 16
    ctile = BM * pitch
    cbase = 0
    assert ctile <= c.ring_bytes
    kidx = {"wo": 1, "w1": 2, "w2": 3}[kind]
    vl = c.v_lane; t = c.vt

    a_off = {"wo": WS_O, "w1": WS_H, "w2": WS_H1}[kind]
    sW = {"wo": 64, "w1": 66, "w2": 68}[kind]
    a("v_mbcnt_lo_u32_b32 v%d, -1, 0" % vl)
    a("v_mbcnt_hi_u32_b32 v%d, -1, v%d" % (vl, vl))
    c.a_sc1 = not first
    SC = " sc1"
    a("s_and_b32 s%d, s2, 7" % c.st[0])
    a("s_lshr_b32 s%d, s2, 3" % c.st[1])
    PM = tilesM // XM
    lgPM = PM.bit_length() - 1; lgXM = XM.bit_length() - 1; lgXN = XN.bit_length() - 1
    a("s_and_b32 s%d, s%d, %d" % (c.st[2], c.st[0], PM - 1))
    a("s_lshr_b32 s%d, s%d, %d" % (c.st[3], c.st[0], lgPM))
    a("s_lshl_b32 s%d, s%d, %d" % (s_tm, c.st[2], lgXM))
    a("s_and_b32 s%d, s%d, %d" % (c.st[2], c.st[1], XM - 1))
    a("s_add_u32 s%d, s%d, s%d" % (s_tm, s_tm, c.st[2]))
    a("s_lshl_b32 s%d, s%d, %d" % (s_tn, c.st[3], lgXN))
    a("s_lshr_b32 s%d, s%d, %d" % (c.st[2], c.st[1], lgXM))
    a("s_add_u32 s%d, s%d, s%d" % (s_tn, s_tn, c.st[2]))
    a("s_mul_i32 s%d, s%d, %d" % (c.st[0], s_tm, BM * c.lda))
    a("s_add_u32 s%d, s%d, %d" % (c.st[0], c.st[0], a_off))
    a("s_add_u32 s12, s4, s%d" % c.st[0])
    a("s_addc_u32 s13, s5, 0")
    make_srd(a, c.srdA, "s12", "s13", BM * c.lda)
    a("s_mul_i32 s%d, s%d, %d" % (c.st[0], s_tn, BN * 2))
    a("s_add_u32 s12, s%d, s%d" % (sW, c.st[0]))
    a("s_addc_u32 s13, s%d, 0" % (sW + 1))
    a("s_sub_u32 s%d, %d, s%d" % (c.st[1], c.K * c.ldb, c.st[0]))
    make_srd(a, c.srdB, "s12", "s13", "s%d" % c.st[1])
    Lcons = a.newlabel("Lconsumer"); Lfin = a.newlabel("Lfinal")
    ldc = {"wo": LD_H, "w1": LD_H1, "w2": 2048}[kind]
    ldr = {"wo": 2048, "w1": 0, "w2": LD_H}[kind]
    def other_srds():
        a("s_mul_i32 s%d, s%d, %d" % (c.st[0], s_tm, BM * ldc))
        a("s_mul_i32 s%d, s%d, %d" % (c.st[1], s_tn, BN * 2))
        a("s_add_u32 s%d, s%d, s%d" % (c.st[0], c.st[0], c.st[1]))
        if kind == "w2":
            a("s_add_u32 s12, s8, s%d" % c.st[0])
            a("s_addc_u32 s13, s9, 0")
        else:
            a("s_add_u32 s%d, s%d, %d" % (c.st[2], c.st[0], {"wo": WS_H, "w1": WS_H1}[kind]))
            a("s_add_u32 s12, s4, s%d" % c.st[2])
            a("s_addc_u32 s13, s5, 0")
        a("s_sub_u32 s%d, %d, s%d" % (c.st[1], S_ * ldc, c.st[0]))
        make_srd(a, srdC, "s12", "s13", "s%d" % c.st[1])
        if kind in ("wo", "w2"):
            a("s_mul_i32 s%d, s%d, %d" % (c.st[0], s_tm, BM * ldr))
            a("s_mul_i32 s%d, s%d, %d" % (c.st[1], s_tn, BN * 2))
            a("s_add_u32 s%d, s%d, s%d" % (c.st[0], c.st[0], c.st[1]))
            a("s_sub_u32 s%d, %d, s%d" % (c.st[1], S_ * ldr, c.st[0]))
            if kind == "wo":
                a("s_add_u32 s12, s10, s%d" % c.st[0])
                a("s_addc_u32 s13, s11, 0")
            else:
                a("s_add_u32 s%d, s%d, %d" % (c.st[2], c.st[0], WS_H))
                a("s_add_u32 s12, s4, s%d" % c.st[2])
                a("s_addc_u32 s13, s5, 0")
            make_srd(a, srdR, "s12", "s13", "s%d" % c.st[1])
        if kind == "wo":
            a("s_mul_i32 s%d, s%d, %d" % (c.st[0], s_tm, BM * np2 * 8))
            a("s_lshl_b32 s%d, s%d, 3" % (c.st[1], s_tn))
            a("s_add_u32 s%d, s%d, s%d" % (c.st[0], c.st[0], c.st[1]))
            a("s_add_u32 s%d, s%d, %d" % (c.st[0], c.st[0], WS_ST2))
            a("s_add_u32 s12, s4, s%d" % c.st[0])
            a("s_addc_u32 s13, s5, 0")
            make_srd(a, srdS, "s12", "s13", BM * np2 * 8)
        if kind == "w1":
            a("s_mul_i32 s%d, s%d, %d" % (c.st[0], s_tm, 128 * np2 * 8))
            a("s_add_u32 s%d, s%d, %d" % (c.st[0], c.st[0], WS_ST2))
            a("s_add_u32 s12, s4, s%d" % c.st[0])
            a("s_addc_u32 s13, s5, 0")
            make_srd(a, srdS, "s12", "s13", 128 * np2 * 8)
            a("s_mul_i32 s%d, s%d, %d" % (c.st[0], s_tn, 224 * 4))
            a("s_add_u32 s%d, s%d, %d" % (c.st[0], c.st[0], WS_CS1))
            a("s_add_u32 s12, s4, s%d" % c.st[0])
            a("s_addc_u32 s13, s5, 0")
            make_srd(a, srdT, "s12", "s13", 15 * 3584 * 4 + 224 * 4)
    stamp(a, 0, s_wave, kidx, tmp_v=vst)
    a("s_cmp_lt_u32 s%d, 4" % s_wave)
    a("s_cbranch_scc1 %s" % Lcons)
    a("s_sub_u32 s%d, s%d, 4" % (c.s_p, s_wave))
    a("s_mov_b32 s%d, 0" % c.s_ka)
    a("s_mov_b32 s%d, 0" % c.s_kb)
    emit_producer_setup(a, c, 32)
    stamp(a, 1, s_wave, kidx, tmp_v=vst)
    def poll():
        base = FH if kind == "w1" else FH1
        Lnp = a.newlabel("Lnopoll")
        a("s_cmp_lg_u32 s%d, 4" % s_wave)
        a("s_cbranch_scc1 %s" % Lnp)
        a("s_lshl_b32 s%d, s%d, 7" % (c.st[0], s_tm))
        a("s_add_u32 s%d, s%d, %d" % (c.st[0], c.st[0], base))
        a("v_and_b32 v%d, 15, v%d" % (t[0], vl))
        a("v_lshlrev_b32 v%d, 3, v%d" % (t[0], t[0]))
        a("v_add_u32 v%d, s%d, v%d" % (t[0], c.st[0], t[0]))
        a("v_mov_b32 v56, s72")
        a("v_mov_b32 v57, s73")
        Lp = a.newlabel("Lpoll"); Lpd = a.newlabel("Lpolld")
        a("s_mov_b32 s57, 0")
        a.label(Lp)
        a("global_load_dwordx2 v[58:59], v%d, s[4:5] sc1" % t[0])
        a("s_waitcnt vmcnt(0)")
        a("v_cmp_eq_u64 vcc, v[56:57], v[58:59]")
        a("s_nop 4")
        a("s_cmp_eq_u64 vcc, exec")
        a("s_cbranch_scc1 %s" % Lpd)
        a("s_add_u32 s57, s57, 1")
        a("s_cmp_gt_u32 s57, 0x40000")
        a("s_cbranch_scc1 %s" % Lpd)
        a("s_sleep %s" % os.environ.get("PSLEEP", "4"))
        a("s_branch %s" % Lp)
        a.label(Lpd)
        a.label(Lnp)
        a("s_barrier")
        stamp(a, 8, s_wave, kidx, tmp_v=vst)
    if first and not last:
        def mid():
            a("s_load_dwordx2 s[72:73], s[70:71], 0")
        c.prod_mid_hook = mid
    emit_producer_loop2(a, c, None if first else poll)
    if first and not last:
        Lt1 = a.newlabel("Ltok1"); Ltp = a.newlabel("Ltp"); Ltd = a.newlabel("Ltd")
        a("s_waitcnt lgkmcnt(0)")
        a("s_cmp_lg_u32 s%d, 4" % s_wave)
        a("s_cbranch_scc1 %s" % Lt1)
        a("v_mov_b32 v%d, s72" % vtok)
        a("v_mov_b32 v%d, s73" % (vtok + 1))
        a("s_mov_b32 s57, 0")
        a.label(Ltp)
        a("v_cmp_ne_u64 vcc, 0, %s" % vr(vtok, 2))
        a("s_nop 4")
        a("s_cmp_eq_u64 vcc, exec")
        a("s_cbranch_scc1 %s" % Ltd)
        a("s_add_u32 s57, s57, 1")
        a("s_cmp_gt_u32 s57, 0x40000")
        a("s_cbranch_scc1 %s" % Ltd)
        a("v_mov_b32 v%d, 0" % (vtok + 2))
        a("global_load_dwordx2 %s, v%d, s[70:71] sc1" % (vr(vtok, 2), vtok + 2))
        a("s_waitcnt vmcnt(0)")
        a("s_branch %s" % Ltp)
        a.label(Ltd)
        a("v_mov_b32 v%d, %d" % (t[0], L_TOK))
        a("ds_write_b64 v%d, %s" % (t[0], vr(vtok, 2)))
        a("s_waitcnt lgkmcnt(0)")
        a.label(Lt1)
    other_srds()
    a("s_barrier")
    stamp(a, 2, s_wave, kidx, tmp_v=vst)
    a("s_branch %s" % Lfin)
    a.label(Lcons)
    a("s_lshr_b32 s%d, s%d, 1" % (c.s_wm, s_wave))
    a("s_and_b32 s%d, s%d, 1" % (c.s_wn, s_wave))
    other_srds()
    if first and not last:
        Lt0 = a.newlabel("Ltok0")
        a("s_or_b32 s58, s2, s%d" % s_wave)
        a("s_cmp_lg_u32 s58, 0")
        a("s_cbranch_scc1 %s" % Lt0)
        a("s_memrealtime s[58:59]")
        a("s_waitcnt lgkmcnt(0)")
        a("s_or_b32 s58, s58, 1")
        a("v_mov_b32 v%d, s58" % vtok)
        a("v_mov_b32 v%d, s59" % (vtok + 1))
        a("v_mov_b32 v%d, 0" % t[0])
        a("s_mov_b64 s[58:59], exec")
        a("s_mov_b64 exec, 1")
        a("global_store_dwordx2 v%d, %s, s[70:71] sc1" % (t[0], vr(vtok, 2)))
        a("s_mov_b64 exec, s[58:59]")
        a.label(Lt0)
    def side_loads():
      if kind == "w1":
        a("v_and_b32 v%d, 31, v%d" % (t[0], vl))
        a("s_lshl_b32 s%d, s%d, 5" % (c.st[0], s_wave))
        a("v_add_u32 v%d, s%d, v%d" % (t[0], c.st[0], t[0]))
        a("v_mul_u32_u24 v%d, %d, v%d" % (t[1], np2 * 8, t[0]))
        a("v_lshrrev_b32 v%d, 5, v%d" % (t[2], vl))
        a("v_mul_u32_u24 v%d, %d, v%d" % (t[2], np2 * 4, t[2]))
        a("v_add_u32 v%d, v%d, v%d" % (t[1], t[1], t[2]))
        nq = np2 * 4 // 16
        assert nq <= 4
        for q in range(nq):
            a("buffer_load_dwordx4 %s, v%d, s[%d:%d], 0 offen offset:%d%s" % (vr(vside + 4 * q, 4), t[1], srdS, srdS + 3, q * 16, SC))
        assert np2 == 8
        a("s_mul_i32 s%d, s%d, 56" % (c.st[0], s_wave))
        a("v_add_u32 v%d, s%d, v%d" % (t[3], c.st[0], vl))
        a("v_lshlrev_b32 v%d, 2, v%d" % (t[4], t[3]))
        a("v_cmp_gt_u32 vcc, 56, v%d" % vl)
        a("v_mov_b32 v%d, 0x7fffffff" % t[5])
        a("s_nop 0")
        a("v_cndmask_b32 v%d, v%d, v%d, vcc" % (t[4], t[5], t[4]))
        for q in range(16):
            a("s_mov_b32 s%d, %d" % (c.st[1], q * 3584 * 4))
            a("buffer_load_dword v%d, v%d, s[%d:%d], s%d offen" % (vside + 8 + q, t[4], srdT, srdT + 3, c.st[1]))
    c.cons_hook0 = side_loads
    emit_consumer16_setup(a, c)
    if not first: a("s_barrier")
    stamp(a, 1, s_wave, kidx, tmp_v=vst)
    stamp(a, 6, s_wave, kidx, tmp_v=vst)
    emit_consumer16_loop(a, c)
    stamp(a, 7, s_wave, kidx, tmp_v=vst)
    stamp(a, 2, s_wave, kidx, tmp_v=vst)
    if kind == "w1":
        f = vside; g = vside + 8
        a("s_waitcnt vmcnt(0)")
        a("v_add_f32 v%d, v%d, v%d" % (t[5], f + 0, f + 2))
        a("v_add_f32 v%d, v%d, v%d" % (t[6], f + 1, f + 3))
        for q in range(2, 4):
            a("v_add_f32 v%d, v%d, v%d" % (t[5], t[5], f + 2 * q))
            a("v_add_f32 v%d, v%d, v%d" % (t[6], t[6], f + 2 * q + 1))
        a("v_mov_b32 v%d, v%d" % (f + 0, t[5]))
        a("v_mov_b32 v%d, v%d" % (f + 1, t[6]))
        for q in range(1, 16):
            a("v_add_f32 v%d, v%d, v%d" % (g, g, g + q))
        a("v_permlane32_swap_b32 v%d, v%d" % (f + 0, t[5]))
        a("v_permlane32_swap_b32 v%d, v%d" % (f + 1, t[6]))
        a("v_add_f32 v%d, v%d, v%d" % (t[5], t[5], f + 0))
        a("v_add_f32 v%d, v%d, v%d" % (t[6], t[6], f + 1))
        a("v_mul_f32 v%d, 0x3a800000, v%d" % (t[5], t[5]))
        a("v_mul_f32 v%d, 0x3a800000, v%d" % (t[6], t[6]))
        a("v_fma_f32 v%d, -v%d, v%d, v%d" % (t[6], t[5], t[5], t[6]))
        a("v_max_f32 v%d, 0, v%d" % (t[6], t[6]))
        a("v_add_f32 v%d, 0x3727c5ac, v%d" % (t[6], t[6]))
        a("v_rsq_f32 v%d, v%d" % (f + 1, t[6]))
        a("v_sub_f32 v%d, 0, v%d" % (f + 0, t[5]))
        a("v_and_b32 v%d, 31, v%d" % (t[0], vl))
        a("s_lshl_b32 s%d, s%d, 5" % (c.st[0], s_wave))
        a("v_add_u32 v%d, s%d, v%d" % (t[0], c.st[0], t[0]))
        a("v_lshlrev_b32 v%d, 3, v%d" % (t[0], t[0]))
        a("v_add_u32 v%d, %d, v%d" % (t[0], side, t[0]))
        a("ds_write_b64 v%d, %s" % (t[0], vr(f, 2)))
        a("s_mul_i32 s%d, s%d, 56" % (c.st[0], s_wave))
        a("v_add_u32 v%d, s%d, v%d" % (t[3], c.st[0], vl))
        a("v_lshlrev_b32 v%d, 2, v%d" % (t[3], t[3]))
        a("v_add_u32 v%d, %d, v%d" % (t[3], side + 1024, t[3]))
        a("v_cmp_gt_u32 vcc, 56, v%d" % vl)
        a("s_and_saveexec_b64 s[56:57], vcc")
        a("ds_write_b32 v%d, v%d" % (t[3], g))
        a("s_mov_b64 exec, s[56:57]")
        a("s_waitcnt lgkmcnt(0)")
    a("s_barrier")
    a("s_nop 3")
    a("v_and_b32 v%d, 15, v%d" % (t[0], vl))
    a("s_mul_i32 s%d, s%d, %d" % (c.st[0], c.s_wm, c.WM))
    a("v_add_u32 v%d, s%d, v%d" % (t[0], c.st[0], t[0]))
    a("v_mul_u32_u24 v%d, %d, v%d" % (t[1], pitch, t[0]))
    a("v_lshrrev_b32 v%d, 4, v%d" % (t[2], vl))
    a("v_lshl_add_u32 v%d, v%d, 3, v%d" % (t[1], t[2], t[1]))
    a("s_mul_i32 s%d, s%d, %d" % (c.st[0], c.s_wn, c.NT * 32))
    a("s_add_u32 s%d, s%d, %d" % (c.st[0], c.st[0], cbase))
    a("v_add_u32 v%d, s%d, v%d" % (t[1], c.st[0], t[1]))
    f0 = c.fX[0]
    if kind == "w1":
        a("v_lshlrev_b32 v%d, 3, v%d" % (t[3], t[0]))
        a("v_add_u32 v%d, %d, v%d" % (t[3], side, t[3]))
        for mt in range(4):
            a("ds_read_b64 %s, v%d offset:%d" % (vr(f0 + 2 * mt, 2), t[3], mt * 16 * 8))
        a("v_lshlrev_b32 v%d, 4, v%d" % (t[4], t[2]))
        a("s_mul_i32 s%d, s%d, %d" % (c.st[0], c.s_wn, c.NT * 64))
        a("v_add_u32 v%d, s%d, v%d" % (t[4], c.st[0], t[4]))
        a("v_add_u32 v%d, %d, v%d" % (t[4], side, t[4]))
        for tt in range(c.NT):
            a("ds_read_b128 %s, v%d offset:%d" % (vr(f0 + 8 + 4 * tt, 4), t[4], 1024 + tt * 64))
        a("s_waitcnt lgkmcnt(%d)" % c.NT)
        rs = f0 + 8 + 4 * c.NT
        for mt in range(4):
            a("v_mov_b32 v%d, v%d" % (rs + 2 * mt, f0 + 2 * mt + 1))
    tmp = c.fX[1] + 4 * c.MT
    ntmp = min(4, (4 * c.NT) // 2)
    for tt in range(c.NT):
        if kind == "w1": a("s_waitcnt lgkmcnt(%d)" % min(15, c.NT - 1 - tt + tt * c.MT))
        for mt in range(c.MT):
            acc = c.acc + 4 * (tt * c.MT + mt)
            if kind == "w1":
                cs = f0 + 8 + 4 * tt
                for h in range(2):
                    a("v_pk_fma_f32 %s, %s, %s, %s op_sel_hi:[1,0,1]" % (vr(acc + 2 * h, 2), vr(cs + 2 * h, 2), vr(f0 + 2 * mt, 2), vr(acc + 2 * h, 2)))
                    a("v_pk_mul_f32 %s, %s, %s op_sel_hi:[1,0]" % (vr(acc + 2 * h, 2), vr(acc + 2 * h, 2), vr(rs + 2 * mt, 2)))
            d = acc if kind != "w1" else acc
            a("v_cvt_pk_bf16_f32 v%d, v%d, v%d" % (d, acc, acc + 1))
            a("v_cvt_pk_bf16_f32 v%d, v%d, v%d" % (d + 1, acc + 2, acc + 3))
            if kind == "w1":
                a("v_pk_max_i16 v%d, v%d, 0" % (d, d))
                a("v_pk_max_i16 v%d, v%d, 0" % (d + 1, d + 1))
            a("ds_write_b64 v%d, %s offset:%d" % (t[1], vr(d, 2), mt * 16 * pitch + tt * 32))
    a("s_waitcnt lgkmcnt(0)")
    a.label(Lfin)
    G = BN // 8
    nf = BM * G // 64 // 8
    vL = [i for i in range(nf)]; vG = [nf + i for i in range(nf)]
    vGR = [2 * nf + i for i in range(nf)]
    vD = (3 * nf + 3) // 4 * 4
    vR = vD + 4 * nf
    mul, sh = magic_div(G, BM * G + 64)
    t = [vR + 4 * nf + i for i in range(10)]
    assert vR + 4 * nf + 10 <= misc
    a("s_mul_i32 s%d, s%d, %d" % (c.st[0], s_wave, nf * 64))
    for j in range(nf):
        a("v_add_u32 v%d, s%d, v%d" % (t[0], c.st[0], vl))
        if j: a("v_add_u32 v%d, %d, v%d" % (t[0], 64 * j, t[0]))
        a("v_mul_u32_u24 v%d, %d, v%d" % (t[1], mul, t[0]))
        a("v_lshrrev_b32 v%d, %d, v%d" % (t[1], sh, t[1]))
        a("v_mul_u32_u24 v%d, %d, v%d" % (t[2], G, t[1]))
        a("v_sub_u32 v%d, v%d, v%d" % (t[2], t[0], t[2]))
        a("v_lshlrev_b32 v%d, 4, v%d" % (t[2], t[2]))
        a("v_mul_u32_u24 v%d, %d, v%d" % (t[3], pitch, t[1]))
        a("v_add_u32 v%d, v%d, v%d" % (vL[j], t[3], t[2]))
        a("v_mul_u32_u24 v%d, %d, v%d" % (t[3], ldc, t[1]))
        a("v_add_u32 v%d, v%d, v%d" % (vG[j], t[3], t[2]))
        if kind in ("wo", "w2"):
            a("v_mul_u32_u24 v%d, %d, v%d" % (t[3], ldr, t[1]))
            a("v_add_u32 v%d, v%d, v%d" % (vGR[j], t[3], t[2]))
            a("buffer_load_dwordx4 %s, v%d, s[%d:%d], 0 offen%s" % (vr(vR + 4 * j, 4), vGR[j], srdR, srdR + 3, SC if kind == "w2" else ""))
    stamp(a, 3, s_wave, kidx, tmp_v=vst)
    a("s_barrier")
    stamp(a, 4, s_wave, kidx, tmp_v=vst)
    if first and not last:
        a("v_mov_b32 v%d, %d" % (t[8], L_TOK))
        a("ds_read_b64 %s, v%d" % (vr(vtok, 2), t[8]))
        a("s_waitcnt lgkmcnt(0)")
        a("v_readfirstlane_b32 s72, v%d" % vtok)
        a("v_readfirstlane_b32 s73, v%d" % (vtok + 1))
    for j in range(nf):
        a("ds_read_b128 %s, v%d offset:%d" % (vr(vD + 4 * j, 4), vL[j], cbase))
    if kind in ("wo", "w2"): a("s_waitcnt vmcnt(0)")
    lanes_per_row = G
    for j in range(nf):
        a("s_waitcnt lgkmcnt(%d)" % (nf - 1 - j))
        if kind in ("wo", "w2"):
            for q in range(4):
                d = vD + 4 * j + q; r = vR + 4 * j + q
                a("v_lshlrev_b32 v%d, 16, v%d" % (t[0], d))
                a("v_and_b32 v%d, 0xffff0000, v%d" % (t[1], d))
                a("v_lshlrev_b32 v%d, 16, v%d" % (t[2], r))
                a("v_and_b32 v%d, 0xffff0000, v%d" % (t[3], r))
                a("v_add_f32 v%d, v%d, v%d" % (t[0], t[0], t[2]))
                a("v_add_f32 v%d, v%d, v%d" % (t[1], t[1], t[3]))
                a("v_cvt_pk_bf16_f32 v%d, v%d, v%d" % (d, t[0], t[1]))
                if kind == "wo":
                    a("v_lshlrev_b32 v%d, 16, v%d" % (t[0], d))
                    a("v_and_b32 v%d, 0xffff0000, v%d" % (t[1], d))
                    if q == 0:
                        a("v_add_f32 v%d, v%d, v%d" % (t[4], t[0], t[1]))
                        a("v_mul_f32 v%d, v%d, v%d" % (t[5], t[0], t[0]))
                    else:
                        a("v_add_f32 v%d, v%d, v%d" % (t[4], t[4], t[0]))
                        a("v_add_f32 v%d, v%d, v%d" % (t[4], t[4], t[1]))
                        a("v_fmac_f32 v%d, v%d, v%d" % (t[5], t[0], t[0]))
                    a("v_fmac_f32 v%d, v%d, v%d" % (t[5], t[1], t[1]))
        a("buffer_store_dwordx4 %s, v%d, s[%d:%d], 0 offen%s" % (vr(vD + 4 * j, 4), vG[j], srdC, srdC + 3, "" if last else SC))
        if kind == "wo":
            steps = ["quad_perm:[1,0,3,2]", "quad_perm:[2,3,0,1]", "row_half_mirror"] + (["row_mirror"] if G == 16 else [])
            for dpp in steps:
                a("s_nop 1")
                a("v_add_f32_dpp v%d, v%d, v%d %s row_mask:0xf bank_mask:0xf" % (t[6], t[4], t[4], dpp))
                a("v_add_f32_dpp v%d, v%d, v%d %s row_mask:0xf bank_mask:0xf" % (t[7], t[5], t[5], dpp))
                a("v_mov_b32 v%d, v%d" % (t[4], t[6]))
                a("v_mov_b32 v%d, v%d" % (t[5], t[7]))
            lgG = G.bit_length() - 1
            a("v_add_u32 v%d, s%d, v%d" % (t[0], c.st[0], vl))
            if j: a("v_add_u32 v%d, %d, v%d" % (t[0], 64 * j, t[0]))
            a("v_lshrrev_b32 v%d, %d, v%d" % (t[1], lgG, t[0]))
            a("v_mul_u32_u24 v%d, %d, v%d" % (t[1], np2 * 8, t[1]))
            a("v_and_b32 v%d, %d, v%d" % (t[2], G - 1, vl))
            a("v_cmp_eq_u32 vcc, 0, v%d" % t[2])
            a("v_mov_b32 v%d, 0x7fffffff" % t[3])
            a("s_nop 1")
            a("v_cndmask_b32 v%d, v%d, v%d, vcc" % (t[1], t[3], t[1]))
            a("v_mov_b32 v%d, v%d" % (vR + 4 * j, t[4]))
            a("v_mov_b32 v%d, v%d" % (vR + 4 * j + 1, t[5]))
            a("buffer_store_dwordx2 %s, v%d, s[%d:%d], 0 offen%s" % (vr(vR + 4 * j, 2), t[1], srdS, srdS + 3, SC))
    if not last:
        a("s_waitcnt vmcnt(0)")
        a("s_barrier")
        Lf = a.newlabel("Lflag")
        a("s_cmp_lg_u32 s%d, 0" % s_wave)
        a("s_cbranch_scc1 %s" % Lf)
        if kind == "wo":
            a("s_lshl_b32 s%d, s%d, 3" % (c.st[0], s_tm))
            a("s_add_u32 s%d, s%d, s%d" % (c.st[0], c.st[0], s_tn))
            base = FH
        else:
            a("s_lshl_b32 s%d, s%d, 4" % (c.st[0], s_tm))
            a("s_add_u32 s%d, s%d, s%d" % (c.st[0], c.st[0], s_tn))
            base = FH1
        a("s_lshl_b32 s%d, s%d, 3" % (c.st[0], c.st[0]))
        a("s_add_u32 s%d, s%d, %d" % (c.st[0], c.st[0], base))
        a("v_mov_b32 v%d, s%d" % (t[0], c.st[0]))
        a("v_mov_b32 v%d, s72" % vtok)
        a("v_mov_b32 v%d, s73" % (vtok + 1))
        a("s_mov_b64 s[58:59], exec")
        a("s_mov_b64 exec, 1")
        a("global_store_dwordx2 v%d, %s, s[4:5] sc1" % (t[0], vr(vtok, 2)))
        a("s_mov_b64 exec, s[58:59]")
        a.label(Lf)
    else:
        a("s_waitcnt vmcnt(0)") if STAMPS else None
    stamp(a, 5, s_wave, kidx, tmp_v=vst)
    return vmax, lds

def fused_kernel(a, name, kinds):
    kernel_header(a, name)
    Lend = a.newlabel("Lend")
    a("s_cmp_ge_u32 s2, 256")
    a("s_cbranch_scc1 %s" % Lend)
    a("s_load_dwordx2 s[4:5], s[0:1], %d" % KA_WS)
    a("s_load_dwordx2 s[8:9], s[0:1], %d" % KA_OUT)
    a("s_load_dwordx2 s[10:11], s[0:1], %d" % KA_X)
    a("s_load_dwordx2 s[64:65], s[0:1], %d" % KA_WO)
    a("s_load_dwordx2 s[66:67], s[0:1], %d" % KA_W1)
    a("s_load_dwordx2 s[68:69], s[0:1], %d" % KA_W2)
    a("s_load_dwordx2 s[70:71], s[0:1], %d" % KA_DBG)
    a("v_lshrrev_b32 v1, 6, v0")
    a("s_nop 0")
    a("v_readfirstlane_b32 s40, v1")
    a("s_waitcnt lgkmcnt(0)")
    vm = 0; lds = 0
    for i, k in enumerate(kinds):
        v, l = gemm_phase(a, k, i == 0, i == len(kinds) - 1)
        vm = max(vm, v); lds = max(lds, l)
    a.label(Lend)
    a("s_endpgm")
    return kernel_desc(name, vm, 80), L_TOK + 64
```

```python
from common import *
from gemm import *

import os
RINGS = {"wo": (6, 6), "w1": (3, 3), "w2": (6, 6)}
for k_ in RINGS:
    if os.environ.get("RING_" + k_): RINGS[k_] = tuple(int(x) for x in os.environ["RING_" + k_].split(","))

def base_cfg(BM, BN, K, lda, ldb, S):
    c = Cfg()
    c.BM, c.BN, c.K, c.lda, c.ldb, c.S = BM, BN, K, lda, ldb, S
    c.NS = K // 64
    c.nA = BM // 8; c.nB = BN // 8
    c.a_ins = c.nA // 4; c.b_ins = c.nB // 4
    assert c.nA % 4 == 0 and c.nB % 4 == 0
    c.P = BN // 8
    c.stage_bytes = (c.nA + c.nB) * 1024
    c.rotate = False
    c.colmode = "lin"
    return c

def gemm_kernel(a, name, kind):
    if kind == "wo":
        c = base_cfg(128, 64, 1024, 2048, 2048, 6); set_rings(c, *RINGS["wo"])
        XM, XN = 4, 8
    elif kind == "w1":
        c = base_cfg(128, 224, 1024, 2048, 7168, 3); set_rings(c, *RINGS["w1"])
        XM, XN = 8, 4
    else:
        c = base_cfg(128, 64, 3584, 7168, 2048, 6); set_rings(c, *RINGS["w2"])
        XM, XN = 4, 8
    c.swz = swz_mask_bits(c.P)
    c.MT = 4; c.NT = c.BN // 32
    tilesM, tilesN = 16, 16
    c.srdA, c.srdB, srdC, srdR, srdS, srdT = 16, 20, 24, 28, 32, 36
    s_wave, s_tm, s_tn = 40, 41, 42
    c.s_p = c.s_wm = 43; c.s_wn = 44
    c.s_slotA = c.s_cslotA = 45; c.s_ka = c.s_deltaA = 46; c.s_kb = c.s_deltaB = 47; c.s_mA = 48; c.s_mB = 49; c.s_i = 50; c.s_slotB = c.s_cslotB = 51
    c.st = [52, 53, 54, 55]
    nacc = c.MT * c.NT * 4
    c.acc = 0
    fr = nacc
    c.fX = [fr, fr + 16 + 4 * c.NT]
    c.fW = [fr + 16, fr + 32 + 4 * c.NT]
    misc = fr + 2 * (16 + 4 * c.NT)
    c.v_lane = misc
    c.vX = [misc + 1, misc + 2]; c.vW = [misc + 3, misc + 4]
    c.vt = [misc + 5 + i for i in range(8)]
    vmax = misc + 13 + 8
    lds = c.ring_bytes
    side = lds
    if kind == "w1":
        lds += 128 * 8 + 224 * 4
    pitch = c.BN * 2 + 16
    ctile = 128 * pitch
    cbase = 0
    assert ctile <= c.ring_bytes

    kernel_header(a, name)
    Lend = a.newlabel("Lend")
    a("s_cmp_ge_u32 s2, 256")
    a("s_cbranch_scc1 %s" % Lend)
    ka_a = {"wo": KA_WS, "w1": KA_WS, "w2": KA_WS}[kind]
    a_off = {"wo": WS_O, "w1": WS_H, "w2": WS_H1}[kind]
    ka_b = {"wo": KA_WO, "w1": KA_W1, "w2": KA_W2}[kind]
    a("s_load_dwordx2 s[4:5], s[0:1], %d" % KA_WS)
    a("s_load_dwordx2 s[6:7], s[0:1], %d" % ka_b)
    a("s_load_dwordx2 s[8:9], s[0:1], %d" % KA_OUT)
    a("s_load_dwordx2 s[10:11], s[0:1], %d" % KA_X)
    a("v_and_b32 v%d, 63, v0" % c.v_lane)
    a("v_lshrrev_b32 v1, 6, v0")
    a("s_nop 0")
    a("v_readfirstlane_b32 s%d, v1" % s_wave)
    if "badmap" in os.environ.get("GDBG", ""):
        a("s_lshr_b32 s%d, s2, 5" % c.st[0])
        a("s_and_b32 s%d, s2, 31" % c.st[1])
    else:
        a("s_and_b32 s%d, s2, 7" % c.st[0])
        a("s_lshr_b32 s%d, s2, 3" % c.st[1])
    PM = tilesM // XM
    lgPM = PM.bit_length() - 1; lgXM = XM.bit_length() - 1; lgXN = XN.bit_length() - 1
    a("s_and_b32 s%d, s%d, %d" % (c.st[2], c.st[0], PM - 1))
    a("s_lshr_b32 s%d, s%d, %d" % (c.st[3], c.st[0], lgPM))
    a("s_lshl_b32 s%d, s%d, %d" % (s_tm, c.st[2], lgXM))
    a("s_and_b32 s%d, s%d, %d" % (c.st[2], c.st[1], XM - 1))
    a("s_add_u32 s%d, s%d, s%d" % (s_tm, s_tm, c.st[2]))
    a("s_lshl_b32 s%d, s%d, %d" % (s_tn, c.st[3], lgXN))
    a("s_lshr_b32 s%d, s%d, %d" % (c.st[2], c.st[1], lgXM))
    if "tnx" in os.environ.get("GDBG", ""): a("s_xor_b32 s%d, s%d, 1" % (c.st[2], c.st[2]))
    a("s_add_u32 s%d, s%d, s%d" % (s_tn, s_tn, c.st[2]))
    a("s_waitcnt lgkmcnt(0)")
    a("s_mul_i32 s%d, s%d, %d" % (c.st[0], s_tm, 128 * c.lda))
    a("s_add_u32 s%d, s%d, %d" % (c.st[0], c.st[0], a_off))
    a("s_add_u32 s12, s4, s%d" % c.st[0])
    a("s_addc_u32 s13, s5, 0")
    make_srd(a, c.srdA, "s12", "s13", 128 * c.lda)
    a("s_mul_i32 s%d, s%d, %d" % (c.st[0], s_tn, c.BN * 2))
    a("s_add_u32 s12, s6, s%d" % c.st[0])
    a("s_addc_u32 s13, s7, 0")
    a("s_sub_u32 s%d, %d, s%d" % (c.st[1], c.K * c.ldb, c.st[0]))
    make_srd(a, c.srdB, "s12", "s13", "s%d" % c.st[1])
    ldc = {"wo": 2048, "w1": 7168, "w2": 2048}[kind]
    a("s_mul_i32 s%d, s%d, %d" % (c.st[0], s_tm, 128 * ldc))
    a("s_mul_i32 s%d, s%d, %d" % (c.st[1], s_tn, c.BN * 2))
    a("s_add_u32 s%d, s%d, s%d" % (c.st[0], c.st[0], c.st[1]))
    if kind == "w2":
        a("s_add_u32 s12, s8, s%d" % c.st[0])
        a("s_addc_u32 s13, s9, 0")
    else:
        a("s_add_u32 s%d, s%d, %d" % (c.st[2], c.st[0], {"wo": WS_H, "w1": WS_H1}[kind]))
        a("s_add_u32 s12, s4, s%d" % c.st[2])
        a("s_addc_u32 s13, s5, 0")
    a("s_sub_u32 s%d, %d, s%d" % (c.st[1], S_ * ldc, c.st[0]))
    make_srd(a, srdC, "s12", "s13", "s%d" % c.st[1])
    if kind == "wo":
        a("s_add_u32 s12, s10, s%d" % c.st[0])
        a("s_addc_u32 s13, s11, 0")
        make_srd(a, srdR, "s12", "s13", "s%d" % c.st[1])
    if kind == "w2":
        a("s_add_u32 s%d, s%d, %d" % (c.st[2], c.st[0], WS_H))
        a("s_add_u32 s12, s4, s%d" % c.st[2])
        a("s_addc_u32 s13, s5, 0")
        make_srd(a, srdR, "s12", "s13", "s%d" % c.st[1])
    if kind == "wo":
        a("s_mul_i32 s%d, s%d, %d" % (c.st[0], s_tm, 128 * 128))
        a("s_lshl_b32 s%d, s%d, 3" % (c.st[1], s_tn))
        a("s_add_u32 s%d, s%d, s%d" % (c.st[0], c.st[0], c.st[1]))
        a("s_add_u32 s%d, s%d, %d" % (c.st[0], c.st[0], WS_ST2))
        a("s_add_u32 s12, s4, s%d" % c.st[0])
        a("s_addc_u32 s13, s5, 0")
        make_srd(a, srdS, "s12", "s13", 128 * 128)
    if kind == "w1":
        a("s_mul_i32 s%d, s%d, %d" % (c.st[0], s_tm, 128 * 128))
        a("s_add_u32 s%d, s%d, %d" % (c.st[0], c.st[0], WS_ST2))
        a("s_add_u32 s12, s4, s%d" % c.st[0])
        a("s_addc_u32 s13, s5, 0")
        make_srd(a, srdS, "s12", "s13", 128 * 128)
        a("s_mul_i32 s%d, s%d, %d" % (c.st[0], s_tn, 224 * 4))
        a("s_add_u32 s%d, s%d, %d" % (c.st[0], c.st[0], WS_CS1))
        a("s_add_u32 s12, s4, s%d" % c.st[0])
        a("s_addc_u32 s13, s5, 0")
        make_srd(a, srdT, "s12", "s13", 15 * 3584 * 4 + 224 * 4)
    kidx = {"wo": 1, "w1": 2, "w2": 3}[kind]
    vst = (vmax + 1) // 2 * 2
    vmax = vst + 4
    stamp(a, 0, s_wave, kidx, tmp_v=vst)
    Lcons = a.newlabel("Lconsumer")
    Lfin = a.newlabel("Lfinal")
    a("s_cmp_lt_u32 s%d, 4" % s_wave)
    a("s_cbranch_scc1 %s" % Lcons)

    a("s_sub_u32 s%d, s%d, 4" % (c.s_p, s_wave))
    a("s_mov_b32 s%d, 0" % c.s_ka)
    a("s_mov_b32 s%d, 0" % c.s_kb)
    emit_producer_setup(a, c, 32)
    PFD = int(os.environ.get("PF_" + kind, "0"))
    if PFD:
        nAr = 128 // XN // 4; nBr = 64 // XM // 4
        c.s_pfn = 70; c.v_pf = 60; c.v_pfi = 62; c.v_pfd = 56
        a("s_and_b32 s71, s%d, %d" % (s_tn, XN - 1))
        a("s_mul_i32 s71, s71, %d" % (128 // XN))
        a("s_mul_i32 s%d, s%d, %d" % (c.st[0], c.s_p, nAr))
        a("s_add_u32 s71, s71, s%d" % c.st[0])
        a("s_and_b32 s72, s%d, %d" % (s_tm, XM - 1))
        a("s_mul_i32 s72, s72, %d" % (64 // XM))
        a("s_mul_i32 s%d, s%d, %d" % (c.st[0], c.s_p, nBr))
        a("s_add_u32 s72, s72, s%d" % c.st[0])
        nlines = (c.BN * 2 + 127) // 128 + (1 if (c.BN * 2) % 128 else 0)
        half = os.environ.get("PFHALF", "0") == "1"
        seg = [x * (64 if half else 128) for x in range((c.BN * 2 + (63 if half else 127)) // (64 if half else 128))]
        if (c.BN * 2) % 128 and not half: seg.append(c.BN * 2 - 4)
        assert nAr + nBr * len(seg) <= 64
        c.pf = dict(D=PFD, rowA=71, rowB=72, nA=nAr, nB=nBr, half=half, segB=seg)
    stamp(a, 1, s_wave, kidx, tmp_v=vst)
    emit_producer_loop(a, c)
    a("s_barrier")
    stamp(a, 2, s_wave, kidx, tmp_v=vst)
    a("s_branch %s" % Lfin)

    a.label(Lcons)
    a("s_lshr_b32 s%d, s%d, 1" % (c.s_wm, s_wave))
    a("s_and_b32 s%d, s%d, 1" % (c.s_wn, s_wave))
    emit_consumer16_setup(a, c)
    if kind == "w1":
        emit_k3_side(a, c, s_wave, srdS, srdT, side)
    stamp(a, 1, s_wave, kidx, tmp_v=vst)
    stamp(a, 6, s_wave, kidx, tmp_v=vst)
    emit_consumer16_loop(a, c)
    stamp(a, 7, s_wave, kidx, tmp_v=vst)
    stamp(a, 2, s_wave, kidx, tmp_v=vst)
    a("s_barrier")
    a("s_nop 7"); a("s_nop 7")
    t = c.vt
    vl = c.v_lane
    a("v_and_b32 v%d, 15, v%d" % (t[0], vl))
    a("s_lshl_b32 s%d, s%d, 6" % (c.st[0], c.s_wm))
    a("v_add_u32 v%d, s%d, v%d" % (t[0], c.st[0], t[0]))
    a("v_mul_u32_u24 v%d, %d, v%d" % (t[1], pitch, t[0]))
    a("v_lshrrev_b32 v%d, 4, v%d" % (t[2], vl))
    a("v_lshl_add_u32 v%d, v%d, 3, v%d" % (t[1], t[2], t[1]))
    a("s_mul_i32 s%d, s%d, %d" % (c.st[0], c.s_wn, c.NT * 32))
    a("s_add_u32 s%d, s%d, %d" % (c.st[0], c.st[0], cbase))
    a("v_add_u32 v%d, s%d, v%d" % (t[1], c.st[0], t[1]))
    f0 = c.fX[0]
    if kind == "w1":
        a("v_lshlrev_b32 v%d, 3, v%d" % (t[3], t[0]))
        a("v_add_u32 v%d, %d, v%d" % (t[3], side, t[3]))
        for mt in range(4):
            a("ds_read_b64 %s, v%d offset:%d" % (vr(f0 + 2 * mt, 2), t[3], mt * 16 * 8))
        a("v_lshlrev_b32 v%d, 4, v%d" % (t[4], t[2]))
        a("s_mul_i32 s%d, s%d, %d" % (c.st[0], c.s_wn, c.NT * 64))
        a("v_add_u32 v%d, s%d, v%d" % (t[4], c.st[0], t[4]))
        a("v_add_u32 v%d, %d, v%d" % (t[4], side, t[4]))
        for tt in range(c.NT):
            a("ds_read_b128 %s, v%d offset:%d" % (vr(f0 + 8 + 4 * tt, 4), t[4], 1024 + tt * 64))
        a("s_waitcnt lgkmcnt(0)")
        rs = f0 + 8 + 4 * c.NT
        for mt in range(4):
            a("v_mov_b32 v%d, v%d" % (rs + 2 * mt, f0 + 2 * mt + 1))
    tmp = c.fX[1] + 16
    for tt in range(c.NT):
        for mt in range(4):
            acc = c.acc + 4 * (tt * 4 + mt)
            if kind == "w1":
                cs = f0 + 8 + 4 * tt
                for h in range(2):
                    a("v_pk_fma_f32 %s, %s, %s, %s op_sel_hi:[1,0,1]" % (vr(acc + 2 * h, 2), vr(cs + 2 * h, 2), vr(f0 + 2 * mt, 2), vr(acc + 2 * h, 2)))
                    a("v_pk_mul_f32 %s, %s, %s op_sel_hi:[1,0]" % (vr(acc + 2 * h, 2), vr(acc + 2 * h, 2), vr(rs + 2 * mt, 2)))
            d = tmp + 2 * ((tt * 4 + mt) % 4)
            a("v_cvt_pk_bf16_f32 v%d, v%d, v%d" % (d, acc, acc + 1))
            a("v_cvt_pk_bf16_f32 v%d, v%d, v%d" % (d + 1, acc + 2, acc + 3))
            if kind == "w1":
                a("v_pk_max_i16 v%d, v%d, 0" % (d, d))
                a("v_pk_max_i16 v%d, v%d, 0" % (d + 1, d + 1))
            a("ds_write_b64 v%d, %s offset:%d" % (t[1], vr(d, 2), mt * 16 * pitch + tt * 32))
    a("s_waitcnt lgkmcnt(0)")

    a.label(Lfin)
    G = c.BN // 8
    nf = 128 * G // 64 // 8
    vb = 0
    vL = [vb + i for i in range(nf)]
    vG = [vb + nf + i for i in range(nf)]
    vD = vb + 2 * nf + (2 * nf) % 2
    vD = (vD + 3) // 4 * 4
    vR = vD + 4 * nf
    mul, sh = magic_div(G, 128 * G + 64)
    t = [vR + 4 * nf + i for i in range(10)]
    vtop = vR + 4 * nf + 10
    assert vtop <= misc
    a("v_and_b32 v%d, 63, v%d" % (t[9], c.v_lane))
    a("s_mul_i32 s%d, s%d, %d" % (c.st[0], s_wave, nf * 64))
    for j in range(nf):
        a("v_add_u32 v%d, s%d, v%d" % (t[0], c.st[0], t[9]))
        if j: a("v_add_u32 v%d, %d, v%d" % (t[0], 64 * j, t[0]))
        a("v_mul_u32_u24 v%d, %d, v%d" % (t[1], mul, t[0]))
        a("v_lshrrev_b32 v%d, %d, v%d" % (t[1], sh, t[1]))
        a("v_mul_u32_u24 v%d, %d, v%d" % (t[2], G, t[1]))
        a("v_sub_u32 v%d, v%d, v%d" % (t[2], t[0], t[2]))
        a("v_lshlrev_b32 v%d, 4, v%d" % (t[2], t[2]))
        a("v_mul_u32_u24 v%d, %d, v%d" % (t[3], pitch, t[1]))
        a("v_add_u32 v%d, v%d, v%d" % (vL[j], t[3], t[2]))
        a("v_add_u32 v%d, %d, v%d" % (vL[j], cbase, vL[j]))
        a("v_mul_u32_u24 v%d, %d, v%d" % (t[3], ldc, t[1]))
        a("v_add_u32 v%d, v%d, v%d" % (vG[j], t[3], t[2]))
        if kind in ("wo", "w2"):
            a("buffer_load_dwordx4 %s, v%d, s[%d:%d], 0 offen" % (vr(vR + 4 * j, 4), vG[j], srdR, srdR + 3))
    stamp(a, 3, s_wave, kidx, tmp_v=vst)
    a("s_barrier")
    stamp(a, 4, s_wave, kidx, tmp_v=vst)
    for j in range(nf):
        a("ds_read_b128 %s, v%d" % (vr(vD + 4 * j, 4), vL[j]))
    a("s_waitcnt vmcnt(0) lgkmcnt(0)")
    for j in range(nf):
        if kind in ("wo", "w2"):
            for q in range(4):
                d = vD + 4 * j + q; r = vR + 4 * j + q
                a("v_lshlrev_b32 v%d, 16, v%d" % (t[0], d))
                a("v_and_b32 v%d, 0xffff0000, v%d" % (t[1], d))
                a("v_lshlrev_b32 v%d, 16, v%d" % (t[2], r))
                a("v_and_b32 v%d, 0xffff0000, v%d" % (t[3], r))
                a("v_add_f32 v%d, v%d, v%d" % (t[0], t[0], t[2]))
                a("v_add_f32 v%d, v%d, v%d" % (t[1], t[1], t[3]))
                a("v_cvt_pk_bf16_f32 v%d, v%d, v%d" % (d, t[0], t[1]))
                if kind == "wo":
                    a("v_lshlrev_b32 v%d, 16, v%d" % (t[0], d))
                    a("v_and_b32 v%d, 0xffff0000, v%d" % (t[1], d))
                    if q == 0:
                        a("v_add_f32 v%d, v%d, v%d" % (t[4], t[0], t[1]))
                        a("v_mul_f32 v%d, v%d, v%d" % (t[5], t[0], t[0]))
                    else:
                        a("v_add_f32 v%d, v%d, v%d" % (t[4], t[4], t[0]))
                        a("v_add_f32 v%d, v%d, v%d" % (t[4], t[4], t[1]))
                        a("v_fmac_f32 v%d, v%d, v%d" % (t[5], t[0], t[0]))
                    a("v_fmac_f32 v%d, v%d, v%d" % (t[5], t[1], t[1]))
        a("buffer_store_dwordx4 %s, v%d, s[%d:%d], 0 offen%s" % (vr(vD + 4 * j, 4), vG[j], srdC, srdC + 3, os.environ.get("STFLAG", "")))
        if kind == "wo":
            for dpp in ("quad_perm:[1,0,3,2]", "quad_perm:[2,3,0,1]", "row_half_mirror"):
                a("s_nop 1")
                a("v_add_f32_dpp v%d, v%d, v%d %s row_mask:0xf bank_mask:0xf" % (t[6], t[4], t[4], dpp))
                a("v_add_f32_dpp v%d, v%d, v%d %s row_mask:0xf bank_mask:0xf" % (t[7], t[5], t[5], dpp))
                a("v_mov_b32 v%d, v%d" % (t[4], t[6]))
                a("v_mov_b32 v%d, v%d" % (t[5], t[7]))
            a("v_add_u32 v%d, s%d, v%d" % (t[0], c.st[0], t[9]))
            if j: a("v_add_u32 v%d, %d, v%d" % (t[0], 64 * j, t[0]))
            a("v_lshrrev_b32 v%d, 3, v%d" % (t[1], t[0]))
            a("v_lshlrev_b32 v%d, 7, v%d" % (t[1], t[1]))
            a("v_and_b32 v%d, 7, v%d" % (t[2], t[9]))
            a("v_cmp_eq_u32 vcc, 0, v%d" % t[2])
            a("v_mov_b32 v%d, 0x7fffffff" % t[3])
            a("s_nop 1")
            a("v_cndmask_b32 v%d, v%d, v%d, vcc" % (t[1], t[3], t[1]))
            tt = (t[6] + 1) // 2 * 2
            a("v_mov_b32 v%d, v%d" % (vR, t[4]))
            a("v_mov_b32 v%d, v%d" % (vR + 1, t[5]))
            a("buffer_store_dwordx2 %s, v%d, s[%d:%d], 0 offen" % (vr(vR, 2), t[1], srdS, srdS + 3))
            a("s_nop 1")
    a("s_waitcnt vmcnt(0)") if STAMPS else None
    stamp(a, 5, s_wave, kidx, tmp_v=vst)
    a.label(Lend)
    a("s_endpgm")
    return kernel_desc(name, vmax, 80), lds

def emit_k3_side(a, c, s_wave, srdS, srdT, side):
    t = c.vt
    vl = c.v_lane
    f = c.fX[0]
    a("v_and_b32 v%d, 31, v%d" % (t[0], vl))
    a("s_lshl_b32 s%d, s%d, 5" % (c.st[0], s_wave))
    a("v_add_u32 v%d, s%d, v%d" % (t[0], c.st[0], t[0]))
    a("v_lshlrev_b32 v%d, 7, v%d" % (t[1], t[0]))
    a("v_lshrrev_b32 v%d, 5, v%d" % (t[2], vl))
    a("v_lshl_add_u32 v%d, v%d, 6, v%d" % (t[1], t[2], t[1]))
    for q in range(4):
        a("buffer_load_dwordx4 %s, v%d, s[%d:%d], 0 offen offset:%d" % (vr(f + 4 * q, 4), t[1], srdS, srdS + 3, q * 16))
    a("s_mul_i32 s%d, s%d, 56" % (c.st[0], s_wave))
    a("v_add_u32 v%d, s%d, v%d" % (t[3], c.st[0], vl))
    a("v_lshlrev_b32 v%d, 2, v%d" % (t[4], t[3]))
    a("v_cmp_gt_u32 vcc, 56, v%d" % vl)
    a("v_mov_b32 v%d, 0x7fffffff" % t[5])
    a("s_nop 0")
    a("v_cndmask_b32 v%d, v%d, v%d, vcc" % (t[4], t[5], t[4]))
    g = f + 16
    for q in range(16):
        a("s_mov_b32 s%d, %d" % (c.st[1], q * 3584 * 4))
        a("buffer_load_dword v%d, v%d, s[%d:%d], s%d offen" % (g + q, t[4], srdT, srdT + 3, c.st[1]))
    a("s_waitcnt vmcnt(16)")
    a("v_add_f32 v%d, v%d, v%d" % (t[5], f + 0, f + 2))
    a("v_add_f32 v%d, v%d, v%d" % (t[6], f + 1, f + 3))
    for q in range(2, 8):
        a("v_add_f32 v%d, v%d, v%d" % (t[5], t[5], f + 2 * q))
        a("v_add_f32 v%d, v%d, v%d" % (t[6], t[6], f + 2 * q + 1))
    a("v_mov_b32 v%d, v%d" % (f + 0, t[5]))
    a("v_mov_b32 v%d, v%d" % (f + 1, t[6]))
    a("s_nop 1")
    a("v_permlane32_swap_b32 v%d, v%d" % (f + 0, t[5]))
    a("v_permlane32_swap_b32 v%d, v%d" % (f + 1, t[6]))
    a("v_add_f32 v%d, v%d, v%d" % (t[5], t[5], f + 0))
    a("v_add_f32 v%d, v%d, v%d" % (t[6], t[6], f + 1))
    a("v_mul_f32 v%d, 0x3a800000, v%d" % (t[5], t[5]))
    a("v_mul_f32 v%d, 0x3a800000, v%d" % (t[6], t[6]))
    a("v_fma_f32 v%d, -v%d, v%d, v%d" % (t[6], t[5], t[5], t[6]))
    a("v_max_f32 v%d, 0, v%d" % (t[6], t[6]))
    a("v_add_f32 v%d, 0x3727c5ac, v%d" % (t[6], t[6]))
    a("v_rsq_f32 v%d, v%d" % (f + 1, t[6]))
    a("v_sub_f32 v%d, 0, v%d" % (f + 0, t[5]))
    a("v_lshlrev_b32 v%d, 3, v%d" % (t[0], t[0]))
    a("v_add_u32 v%d, %d, v%d" % (t[0], side, t[0]))
    a("ds_write_b64 v%d, %s" % (t[0], vr(f, 2)))
    a("s_waitcnt vmcnt(0)")
    for q in range(1, 16):
        a("v_add_f32 v%d, v%d, v%d" % (g, g, g + q))
    a("v_lshlrev_b32 v%d, 2, v%d" % (t[3], t[3]))
    a("v_add_u32 v%d, %d, v%d" % (t[3], side + 1024, t[3]))
    a("v_cmp_gt_u32 vcc, 56, v%d" % vl)
    a("s_and_saveexec_b64 s[56:57], vcc")
    a("ds_write_b32 v%d, v%d" % (t[3], g))
    a("s_mov_b64 exec, s[56:57]")
    a("s_waitcnt lgkmcnt(0)")
```

```python
from common import *
from gemm import *
import os

def env_tuple(name, default):
    v = os.environ.get(name)
    return tuple(int(x) for x in v.replace("x", ",").split(",")) if v else default

def base_cfg(BM, BN, K, lda, ldb):
    c = Cfg()
    c.BM, c.BN, c.K, c.lda, c.ldb = BM, BN, K, lda, ldb
    c.NS = K // 64
    c.nA = BM // 8; c.nB = BN // 8
    c.a_ins = c.nA // 4; c.b_ins = c.nB // 4
    assert c.nA % 4 == 0 and c.nB % 4 == 0
    c.P = BN // 8
    c.rotate = False
    c.colmode = "lin"
    return c

NP2 = None
def wo_tile():
    return env_tuple("TILE_wo", (64, 128))

def gemm_kernel(a, name, kind):
    DBG = os.environ.get("GDBG", "")
    if kind == "wo":
        BM, BN = wo_tile(); c = base_cfg(BM, BN, 1024, LD_O, 2048); set_rings(c, *env_tuple("RING_wo", (6, 6)))
    elif kind == "w1":
        BM, BN = 128, 224; c = base_cfg(BM, BN, 1024, LD_H, 7168); set_rings(c, *env_tuple("RING_w1", (3, 3)))
    else:
        BM, BN = env_tuple("TILE_w2", (64, 128)); c = base_cfg(BM, BN, 3584, LD_H1, 2048); set_rings(c, *env_tuple("RING_w2", (6, 6)))
    N = {"wo": 1024, "w1": 3584, "w2": 1024}[kind]
    tilesM, tilesN = 2048 // BM, N // BN
    assert tilesM * tilesN == 256
    XM = env_tuple("XROWS_" + kind, (1024 if kind == "w1" else 512,))[0] // BM; XN = 32 // XM
    np2 = 1024 // wo_tile()[1]
    c.swz = swz_mask_bits(c.P)
    c.MT = BM // 32; c.NT = BN // 32
    c.WM = BM // 2
    nW = 1
    for (kb, jb) in c.swz: nW = max(nW, 1 << jb)
    nW = min(nW, 1 << (c.NT - 1).bit_length()) if c.NT <= 4 else 2
    nW = max(nW, 2) if c.NT >= 2 else 1
    if c.NT <= 4: nW = c.NT
    c.srdA, c.srdB, srdC, srdR, srdS, srdT = 16, 20, 24, 28, 32, 36
    s_wave, s_tm, s_tn = 40, 41, 42
    c.s_p = c.s_wm = 43; c.s_wn = 44
    c.s_slotA = c.s_cslotA = 45; c.s_ka = c.s_deltaA = 46; c.s_kb = c.s_deltaB = 47; c.s_mA = 48; c.s_mB = 49; c.s_i = 50; c.s_slotB = c.s_cslotB = 51
    c.st = [52, 53, 54, 55]
    nacc = c.MT * c.NT * 4
    c.acc = 0
    fr = nacc
    fsz = 4 * c.MT + 4 * c.NT
    c.fX = [fr, fr + fsz]; c.fW = [fr + 4 * c.MT, fr + fsz + 4 * c.MT]
    misc = max(fr + 2 * fsz, 96)
    c.v_lane = misc
    c.vX = [misc + 1, misc + 2]; c.vW = [misc + 3 + i for i in range(nW)]
    c.vt = [misc + 3 + nW + i for i in range(8)]
    vside = (misc + 11 + nW + 3) // 4 * 4
    vst = vside + (24 if kind == "w1" else 0)
    vmax = vst + 4
    assert vmax <= 256
    lds = c.ring_bytes
    side = lds
    if kind == "w1": lds += 128 * 8 + 224 * 4
    pitch = BN * 2 + 16
    ctile = BM * pitch
    cbase = 0
    assert ctile <= c.ring_bytes
    kidx = {"wo": 1, "w1": 2, "w2": 3}[kind]
    vl = c.v_lane; t = c.vt

    kernel_header(a, name)
    Lend = a.newlabel("Lend")
    a("s_cmp_ge_u32 s2, 256")
    a("s_cbranch_scc1 %s" % Lend)
    a_off = {"wo": WS_O, "w1": WS_H, "w2": WS_H1}[kind]
    ka_b = {"wo": KA_WO, "w1": KA_W1, "w2": KA_W2}[kind]
    a("s_load_dwordx2 s[4:5], s[0:1], %d" % KA_WS)
    a("s_load_dwordx2 s[6:7], s[0:1], %d" % ka_b)
    a("s_load_dwordx2 s[8:9], s[0:1], %d" % KA_OUT)
    a("s_load_dwordx2 s[10:11], s[0:1], %d" % KA_X)
    a("v_and_b32 v%d, 63, v0" % vl)
    a("v_lshrrev_b32 v1, 6, v0")
    a("s_nop 0")
    a("v_readfirstlane_b32 s%d, v1" % s_wave)
    a("s_and_b32 s%d, s2, 7" % c.st[0])
    a("s_lshr_b32 s%d, s2, 3" % c.st[1])
    PM = tilesM // XM
    lgPM = PM.bit_length() - 1; lgXM = XM.bit_length() - 1; lgXN = XN.bit_length() - 1
    a("s_and_b32 s%d, s%d, %d" % (c.st[2], c.st[0], PM - 1))
    a("s_lshr_b32 s%d, s%d, %d" % (c.st[3], c.st[0], lgPM))
    a("s_lshl_b32 s%d, s%d, %d" % (s_tm, c.st[2], lgXM))
    a("s_and_b32 s%d, s%d, %d" % (c.st[2], c.st[1], XM - 1))
    a("s_add_u32 s%d, s%d, s%d" % (s_tm, s_tm, c.st[2]))
    a("s_lshl_b32 s%d, s%d, %d" % (s_tn, c.st[3], lgXN))
    a("s_lshr_b32 s%d, s%d, %d" % (c.st[2], c.st[1], lgXM))
    a("s_add_u32 s%d, s%d, s%d" % (s_tn, s_tn, c.st[2]))
    a("s_waitcnt lgkmcnt(0)")
    a("s_mul_i32 s%d, s%d, %d" % (c.st[0], s_tm, BM * c.lda))
    a("s_add_u32 s%d, s%d, %d" % (c.st[0], c.st[0], a_off))
    a("s_add_u32 s12, s4, s%d" % c.st[0])
    a("s_addc_u32 s13, s5, 0")
    make_srd(a, c.srdA, "s12", "s13", BM * c.lda)
    a("s_mul_i32 s%d, s%d, %d" % (c.st[0], s_tn, BN * 2))
    a("s_add_u32 s12, s6, s%d" % c.st[0])
    a("s_addc_u32 s13, s7, 0")
    a("s_sub_u32 s%d, %d, s%d" % (c.st[1], c.K * c.ldb, c.st[0]))
    make_srd(a, c.srdB, "s12", "s13", "s%d" % c.st[1])
    Lcons = a.newlabel("Lconsumer"); Lfin = a.newlabel("Lfinal")
    ldc = {"wo": LD_H, "w1": LD_H1, "w2": 2048}[kind]
    ldr = {"wo": 2048, "w1": 0, "w2": LD_H}[kind]
    def other_srds():
        a("s_mul_i32 s%d, s%d, %d" % (c.st[0], s_tm, BM * ldc))
        a("s_mul_i32 s%d, s%d, %d" % (c.st[1], s_tn, BN * 2))
        a("s_add_u32 s%d, s%d, s%d" % (c.st[0], c.st[0], c.st[1]))
        if kind == "w2":
            a("s_add_u32 s12, s8, s%d" % c.st[0])
            a("s_addc_u32 s13, s9, 0")
        else:
            a("s_add_u32 s%d, s%d, %d" % (c.st[2], c.st[0], {"wo": WS_H, "w1": WS_H1}[kind]))
            a("s_add_u32 s12, s4, s%d" % c.st[2])
            a("s_addc_u32 s13, s5, 0")
        a("s_sub_u32 s%d, %d, s%d" % (c.st[1], S_ * ldc, c.st[0]))
        make_srd(a, srdC, "s12", "s13", "s%d" % c.st[1])
        if kind in ("wo", "w2"):
            a("s_mul_i32 s%d, s%d, %d" % (c.st[0], s_tm, BM * ldr))
            a("s_mul_i32 s%d, s%d, %d" % (c.st[1], s_tn, BN * 2))
            a("s_add_u32 s%d, s%d, s%d" % (c.st[0], c.st[0], c.st[1]))
            a("s_sub_u32 s%d, %d, s%d" % (c.st[1], S_ * ldr, c.st[0]))
            if kind == "wo":
                a("s_add_u32 s12, s10, s%d" % c.st[0])
                a("s_addc_u32 s13, s11, 0")
            else:
                a("s_add_u32 s%d, s%d, %d" % (c.st[2], c.st[0], WS_H))
                a("s_add_u32 s12, s4, s%d" % c.st[2])
                a("s_addc_u32 s13, s5, 0")
            make_srd(a, srdR, "s12", "s13", "s%d" % c.st[1])
        if kind == "wo":
            a("s_mul_i32 s%d, s%d, %d" % (c.st[0], s_tm, BM * np2 * 8))
            a("s_lshl_b32 s%d, s%d, 3" % (c.st[1], s_tn))
            a("s_add_u32 s%d, s%d, s%d" % (c.st[0], c.st[0], c.st[1]))
            a("s_add_u32 s%d, s%d, %d" % (c.st[0], c.st[0], WS_ST2))
            a("s_add_u32 s12, s4, s%d" % c.st[0])
            a("s_addc_u32 s13, s5, 0")
            make_srd(a, srdS, "s12", "s13", BM * np2 * 8)
        if kind == "w1":
            a("s_mul_i32 s%d, s%d, %d" % (c.st[0], s_tm, 128 * np2 * 8))
            a("s_add_u32 s%d, s%d, %d" % (c.st[0], c.st[0], WS_ST2))
            a("s_add_u32 s12, s4, s%d" % c.st[0])
            a("s_addc_u32 s13, s5, 0")
            make_srd(a, srdS, "s12", "s13", 128 * np2 * 8)
            a("s_mul_i32 s%d, s%d, %d" % (c.st[0], s_tn, 224 * 4))
            a("s_add_u32 s%d, s%d, %d" % (c.st[0], c.st[0], WS_CS1))
            a("s_add_u32 s12, s4, s%d" % c.st[0])
            a("s_addc_u32 s13, s5, 0")
            make_srd(a, srdT, "s12", "s13", 15 * 3584 * 4 + 224 * 4)
    stamp(a, 0, s_wave, kidx, tmp_v=vst)
    a("s_cmp_lt_u32 s%d, 4" % s_wave)
    a("s_cbranch_scc1 %s" % Lcons)
    a("s_sub_u32 s%d, s%d, 4" % (c.s_p, s_wave))
    a("s_mov_b32 s%d, 0" % c.s_ka)
    a("s_mov_b32 s%d, 0" % c.s_kb)
    emit_producer_setup(a, c, 32)
    stamp(a, 1, s_wave, kidx, tmp_v=vst)
    emit_producer_loop(a, c)
    other_srds()
    a("s_barrier")
    stamp(a, 2, s_wave, kidx, tmp_v=vst)
    a("s_branch %s" % Lfin)
    a.label(Lcons)
    a("s_lshr_b32 s%d, s%d, 1" % (c.s_wm, s_wave))
    a("s_and_b32 s%d, s%d, 1" % (c.s_wn, s_wave))
    other_srds()
    if kind == "w1":
        a("v_and_b32 v%d, 31, v%d" % (t[0], vl))
        a("s_lshl_b32 s%d, s%d, 5" % (c.st[0], s_wave))
        a("v_add_u32 v%d, s%d, v%d" % (t[0], c.st[0], t[0]))
        a("v_mul_u32_u24 v%d, %d, v%d" % (t[1], np2 * 8, t[0]))
        a("v_lshrrev_b32 v%d, 5, v%d" % (t[2], vl))
        a("v_mul_u32_u24 v%d, %d, v%d" % (t[2], np2 * 4, t[2]))
        a("v_add_u32 v%d, v%d, v%d" % (t[1], t[1], t[2]))
        nq = np2 * 4 // 16
        assert nq <= 4
        for q in range(nq):
            a("buffer_load_dwordx4 %s, v%d, s[%d:%d], 0 offen offset:%d" % (vr(vside + 4 * q, 4), t[1], srdS, srdS + 3, q * 16))
    emit_consumer16_setup(a, c)
    stamp(a, 1, s_wave, kidx, tmp_v=vst)
    stamp(a, 6, s_wave, kidx, tmp_v=vst)
    if kind == "w1":
        assert np2 == 8
        a("s_mul_i32 s%d, s%d, 56" % (c.st[0], s_wave))
        a("v_add_u32 v%d, s%d, v%d" % (t[3], c.st[0], vl))
        a("v_lshlrev_b32 v%d, 2, v%d" % (t[4], t[3]))
        a("v_cmp_gt_u32 vcc, 56, v%d" % vl)
        a("v_mov_b32 v%d, 0x7fffffff" % t[5])
        a("s_nop 0")
        a("v_cndmask_b32 v%d, v%d, v%d, vcc" % (t[4], t[5], t[4]))
        for q in range(16):
            a("s_mov_b32 s%d, %d" % (c.st[1], q * 3584 * 4))
            a("buffer_load_dword v%d, v%d, s[%d:%d], s%d offen" % (vside + 8 + q, t[4], srdT, srdT + 3, c.st[1]))
    emit_consumer16_loop(a, c)
    stamp(a, 7, s_wave, kidx, tmp_v=vst)
    stamp(a, 2, s_wave, kidx, tmp_v=vst)
    if kind == "w1":
        f = vside; g = vside + 8
        a("s_waitcnt vmcnt(0)")
        a("v_add_f32 v%d, v%d, v%d" % (t[5], f + 0, f + 2))
        a("v_add_f32 v%d, v%d, v%d" % (t[6], f + 1, f + 3))
        for q in range(2, 4):
            a("v_add_f32 v%d, v%d, v%d" % (t[5], t[5], f + 2 * q))
            a("v_add_f32 v%d, v%d, v%d" % (t[6], t[6], f + 2 * q + 1))
        a("v_mov_b32 v%d, v%d" % (f + 0, t[5]))
        a("v_mov_b32 v%d, v%d" % (f + 1, t[6]))
        for q in range(1, 16):
            a("v_add_f32 v%d, v%d, v%d" % (g, g, g + q))
        a("v_permlane32_swap_b32 v%d, v%d" % (f + 0, t[5]))
        a("v_permlane32_swap_b32 v%d, v%d" % (f + 1, t[6]))
        a("v_add_f32 v%d, v%d, v%d" % (t[5], t[5], f + 0))
        a("v_add_f32 v%d, v%d, v%d" % (t[6], t[6], f + 1))
        a("v_mul_f32 v%d, 0x3a800000, v%d" % (t[5], t[5]))
        a("v_mul_f32 v%d, 0x3a800000, v%d" % (t[6], t[6]))
        a("v_fma_f32 v%d, -v%d, v%d, v%d" % (t[6], t[5], t[5], t[6]))
        a("v_max_f32 v%d, 0, v%d" % (t[6], t[6]))
        a("v_add_f32 v%d, 0x3727c5ac, v%d" % (t[6], t[6]))
        a("v_rsq_f32 v%d, v%d" % (f + 1, t[6]))
        a("v_sub_f32 v%d, 0, v%d" % (f + 0, t[5]))
        a("v_and_b32 v%d, 31, v%d" % (t[0], vl))
        a("s_lshl_b32 s%d, s%d, 5" % (c.st[0], s_wave))
        a("v_add_u32 v%d, s%d, v%d" % (t[0], c.st[0], t[0]))
        a("v_lshlrev_b32 v%d, 3, v%d" % (t[0], t[0]))
        a("v_add_u32 v%d, %d, v%d" % (t[0], side, t[0]))
        a("ds_write_b64 v%d, %s" % (t[0], vr(f, 2)))
        a("s_mul_i32 s%d, s%d, 56" % (c.st[0], s_wave))
        a("v_add_u32 v%d, s%d, v%d" % (t[3], c.st[0], vl))
        a("v_lshlrev_b32 v%d, 2, v%d" % (t[3], t[3]))
        a("v_add_u32 v%d, %d, v%d" % (t[3], side + 1024, t[3]))
        a("v_cmp_gt_u32 vcc, 56, v%d" % vl)
        a("s_and_saveexec_b64 s[56:57], vcc")
        a("ds_write_b32 v%d, v%d" % (t[3], g))
        a("s_mov_b64 exec, s[56:57]")
        a("s_waitcnt lgkmcnt(0)")
    a("s_barrier")
    a("s_nop 3")
    a("v_and_b32 v%d, 15, v%d" % (t[0], vl))
    a("s_mul_i32 s%d, s%d, %d" % (c.st[0], c.s_wm, c.WM))
    a("v_add_u32 v%d, s%d, v%d" % (t[0], c.st[0], t[0]))
    a("v_mul_u32_u24 v%d, %d, v%d" % (t[1], pitch, t[0]))
    a("v_lshrrev_b32 v%d, 4, v%d" % (t[2], vl))
    a("v_lshl_add_u32 v%d, v%d, 3, v%d" % (t[1], t[2], t[1]))
    a("s_mul_i32 s%d, s%d, %d" % (c.st[0], c.s_wn, c.NT * 32))
    a("s_add_u32 s%d, s%d, %d" % (c.st[0], c.st[0], cbase))
    a("v_add_u32 v%d, s%d, v%d" % (t[1], c.st[0], t[1]))
    f0 = c.fX[0]
    if kind == "w1":
        a("v_lshlrev_b32 v%d, 3, v%d" % (t[3], t[0]))
        a("v_add_u32 v%d, %d, v%d" % (t[3], side, t[3]))
        for mt in range(4):
            a("ds_read_b64 %s, v%d offset:%d" % (vr(f0 + 2 * mt, 2), t[3], mt * 16 * 8))
        a("v_lshlrev_b32 v%d, 4, v%d" % (t[4], t[2]))
        a("s_mul_i32 s%d, s%d, %d" % (c.st[0], c.s_wn, c.NT * 64))
        a("v_add_u32 v%d, s%d, v%d" % (t[4], c.st[0], t[4]))
        a("v_add_u32 v%d, %d, v%d" % (t[4], side, t[4]))
        for tt in range(c.NT):
            a("ds_read_b128 %s, v%d offset:%d" % (vr(f0 + 8 + 4 * tt, 4), t[4], 1024 + tt * 64))
        a("s_waitcnt lgkmcnt(%d)" % c.NT)
        rs = f0 + 8 + 4 * c.NT
        for mt in range(4):
            a("v_mov_b32 v%d, v%d" % (rs + 2 * mt, f0 + 2 * mt + 1))
    tmp = c.fX[1] + 4 * c.MT
    ntmp = min(4, (4 * c.NT) // 2)
    for tt in range(c.NT):
        if kind == "w1": a("s_waitcnt lgkmcnt(%d)" % min(15, c.NT - 1 - tt + tt * c.MT))
        for mt in range(c.MT):
            acc = c.acc + 4 * (tt * c.MT + mt)
            if kind == "w1":
                cs = f0 + 8 + 4 * tt
                for h in range(2):
                    a("v_pk_fma_f32 %s, %s, %s, %s op_sel_hi:[1,0,1]" % (vr(acc + 2 * h, 2), vr(cs + 2 * h, 2), vr(f0 + 2 * mt, 2), vr(acc + 2 * h, 2)))
                    a("v_pk_mul_f32 %s, %s, %s op_sel_hi:[1,0]" % (vr(acc + 2 * h, 2), vr(acc + 2 * h, 2), vr(rs + 2 * mt, 2)))
            d = acc if kind != "w1" else acc
            a("v_cvt_pk_bf16_f32 v%d, v%d, v%d" % (d, acc, acc + 1))
            a("v_cvt_pk_bf16_f32 v%d, v%d, v%d" % (d + 1, acc + 2, acc + 3))
            if kind == "w1":
                a("v_pk_max_i16 v%d, v%d, 0" % (d, d))
                a("v_pk_max_i16 v%d, v%d, 0" % (d + 1, d + 1))
            a("ds_write_b64 v%d, %s offset:%d" % (t[1], vr(d, 2), mt * 16 * pitch + tt * 32))
    a("s_waitcnt lgkmcnt(0)")
    a.label(Lfin)
    G = BN // 8
    nf = BM * G // 64 // 8
    vL = [i for i in range(nf)]; vG = [nf + i for i in range(nf)]
    vGR = [2 * nf + i for i in range(nf)]
    vD = (3 * nf + 3) // 4 * 4
    vR = vD + 4 * nf
    mul, sh = magic_div(G, BM * G + 64)
    t = [vR + 4 * nf + i for i in range(10)]
    assert vR + 4 * nf + 10 <= misc
    a("s_mul_i32 s%d, s%d, %d" % (c.st[0], s_wave, nf * 64))
    for j in range(nf):
        a("v_add_u32 v%d, s%d, v%d" % (t[0], c.st[0], vl))
        if j: a("v_add_u32 v%d, %d, v%d" % (t[0], 64 * j, t[0]))
        a("v_mul_u32_u24 v%d, %d, v%d" % (t[1], mul, t[0]))
        a("v_lshrrev_b32 v%d, %d, v%d" % (t[1], sh, t[1]))
        a("v_mul_u32_u24 v%d, %d, v%d" % (t[2], G, t[1]))
        a("v_sub_u32 v%d, v%d, v%d" % (t[2], t[0], t[2]))
        a("v_lshlrev_b32 v%d, 4, v%d" % (t[2], t[2]))
        a("v_mul_u32_u24 v%d, %d, v%d" % (t[3], pitch, t[1]))
        a("v_add_u32 v%d, v%d, v%d" % (vL[j], t[3], t[2]))
        a("v_mul_u32_u24 v%d, %d, v%d" % (t[3], ldc, t[1]))
        a("v_add_u32 v%d, v%d, v%d" % (vG[j], t[3], t[2]))
        if kind in ("wo", "w2"):
            a("v_mul_u32_u24 v%d, %d, v%d" % (t[3], ldr, t[1]))
            a("v_add_u32 v%d, v%d, v%d" % (vGR[j], t[3], t[2]))
            a("buffer_load_dwordx4 %s, v%d, s[%d:%d], 0 offen" % (vr(vR + 4 * j, 4), vGR[j], srdR, srdR + 3))
    stamp(a, 3, s_wave, kidx, tmp_v=vst)
    a("s_barrier")
    stamp(a, 4, s_wave, kidx, tmp_v=vst)
    for j in range(nf):
        a("ds_read_b128 %s, v%d offset:%d" % (vr(vD + 4 * j, 4), vL[j], cbase))
    if kind in ("wo", "w2"): a("s_waitcnt vmcnt(0)")
    lanes_per_row = G
    for j in range(nf):
        a("s_waitcnt lgkmcnt(%d)" % (nf - 1 - j))
        if kind in ("wo", "w2"):
            for q in range(4):
                d = vD + 4 * j + q; r = vR + 4 * j + q
                a("v_lshlrev_b32 v%d, 16, v%d" % (t[0], d))
                a("v_and_b32 v%d, 0xffff0000, v%d" % (t[1], d))
                a("v_lshlrev_b32 v%d, 16, v%d" % (t[2], r))
                a("v_and_b32 v%d, 0xffff0000, v%d" % (t[3], r))
                a("v_add_f32 v%d, v%d, v%d" % (t[0], t[0], t[2]))
                a("v_add_f32 v%d, v%d, v%d" % (t[1], t[1], t[3]))
                a("v_cvt_pk_bf16_f32 v%d, v%d, v%d" % (d, t[0], t[1]))
                if kind == "wo":
                    a("v_lshlrev_b32 v%d, 16, v%d" % (t[0], d))
                    a("v_and_b32 v%d, 0xffff0000, v%d" % (t[1], d))
                    if q == 0:
                        a("v_add_f32 v%d, v%d, v%d" % (t[4], t[0], t[1]))
                        a("v_mul_f32 v%d, v%d, v%d" % (t[5], t[0], t[0]))
                    else:
                        a("v_add_f32 v%d, v%d, v%d" % (t[4], t[4], t[0]))
                        a("v_add_f32 v%d, v%d, v%d" % (t[4], t[4], t[1]))
                        a("v_fmac_f32 v%d, v%d, v%d" % (t[5], t[0], t[0]))
                    a("v_fmac_f32 v%d, v%d, v%d" % (t[5], t[1], t[1]))
        a("buffer_store_dwordx4 %s, v%d, s[%d:%d], 0 offen" % (vr(vD + 4 * j, 4), vG[j], srdC, srdC + 3))
        if kind == "wo":
            steps = ["quad_perm:[1,0,3,2]", "quad_perm:[2,3,0,1]", "row_half_mirror"] + (["row_mirror"] if G == 16 else [])
            for dpp in steps:
                a("s_nop 1")
                a("v_add_f32_dpp v%d, v%d, v%d %s row_mask:0xf bank_mask:0xf" % (t[6], t[4], t[4], dpp))
                a("v_add_f32_dpp v%d, v%d, v%d %s row_mask:0xf bank_mask:0xf" % (t[7], t[5], t[5], dpp))
                a("v_mov_b32 v%d, v%d" % (t[4], t[6]))
                a("v_mov_b32 v%d, v%d" % (t[5], t[7]))
            lgG = G.bit_length() - 1
            a("v_add_u32 v%d, s%d, v%d" % (t[0], c.st[0], vl))
            if j: a("v_add_u32 v%d, %d, v%d" % (t[0], 64 * j, t[0]))
            a("v_lshrrev_b32 v%d, %d, v%d" % (t[1], lgG, t[0]))
            a("v_mul_u32_u24 v%d, %d, v%d" % (t[1], np2 * 8, t[1]))
            a("v_and_b32 v%d, %d, v%d" % (t[2], G - 1, vl))
            a("v_cmp_eq_u32 vcc, 0, v%d" % t[2])
            a("v_mov_b32 v%d, 0x7fffffff" % t[3])
            a("s_nop 1")
            a("v_cndmask_b32 v%d, v%d, v%d, vcc" % (t[1], t[3], t[1]))
            a("v_mov_b32 v%d, v%d" % (vR + 4 * j, t[4]))
            a("v_mov_b32 v%d, v%d" % (vR + 4 * j + 1, t[5]))
            a("buffer_store_dwordx2 %s, v%d, s[%d:%d], 0 offen" % (vr(vR + 4 * j, 2), t[1], srdS, srdS + 3))
    a("s_waitcnt vmcnt(0)") if STAMPS else None
    stamp(a, 5, s_wave, kidx, tmp_v=vst)
    a.label(Lend)
    a("s_endpgm")
    return kernel_desc(name, vmax, 64), lds
```

```python
from common import *
from gemm import *
import os

L2E = 0x3fb8aa3b

def mfma_wait(a):
    a("s_nop 7"); a("s_nop 4")

def mf32(d, A, B, C):
    return "v_mfma_f32_32x32x16_bf16 %s, %s, %s, %s" % (vr(d, 16), vr(A, 4), vr(B, 4), C if isinstance(C, str) else vr(C, 16))

def cross32(a, op, x, t):
    a("v_mov_b32 v%d, v%d" % (t, x))
    a("s_nop 1")
    a("v_permlane32_swap_b32 v%d, v%d" % (t, x))
    a("%s v%d, v%d, v%d" % (op, x, x, t))

def softmax2(a, p, pos, neg, e, t, s_l2e):
    mx, mn, t0, t1, sp, sn, rp, rn = t[0:8]
    a("v_max3_f32 v%d, v%d, v%d, v%d" % (mx, p, p + 1, p + 2))
    a("v_min3_f32 v%d, v%d, v%d, v%d" % (mn, p, p + 1, p + 2))
    for i in range(3, 15, 2):
        a("v_max3_f32 v%d, v%d, v%d, v%d" % (mx, mx, p + i, p + i + 1))
        a("v_min3_f32 v%d, v%d, v%d, v%d" % (mn, mn, p + i, p + i + 1))
    a("v_max_f32 v%d, v%d, v%d" % (mx, mx, p + 15))
    a("v_min_f32 v%d, v%d, v%d" % (mn, mn, p + 15))
    a("v_mov_b32 v%d, v%d" % (t0, mx))
    a("v_mov_b32 v%d, v%d" % (t1, mn))
    a("s_nop 1")
    a("v_permlane32_swap_b32 v%d, v%d" % (t0, mx))
    a("v_permlane32_swap_b32 v%d, v%d" % (t1, mn))
    a("v_max_f32 v%d, v%d, v%d" % (mx, mx, t0))
    a("v_min_f32 v%d, v%d, v%d" % (mn, mn, t1))
    a("v_mul_f32 v%d, s%d, v%d" % (mx, s_l2e, mx))
    a("v_mul_f32 v%d, s%d, v%d" % (mn, s_l2e, mn))
    for (sign, out, ssum, rr) in ((+1, pos, sp, rp), (-1, neg, sn, rn)):
        for i in range(16):
            if sign > 0: a("v_fma_f32 v%d, v%d, s%d, -v%d" % (e + i, p + i, s_l2e, mx))
            else: a("v_fma_f32 v%d, -v%d, s%d, v%d" % (e + i, p + i, s_l2e, mn))
        for i in range(16):
            a("v_exp_f32 v%d, v%d" % (e + i, e + i))
        a("s_nop 0")
        a("v_add_f32 v%d, v%d, v%d" % (ssum, e, e + 1))
        a("v_add_f32 v%d, v%d, v%d" % (t0, e + 2, e + 3))
        for i in range(4, 16, 2):
            a("v_add_f32 v%d, v%d, v%d" % (ssum, ssum, e + i))
            a("v_add_f32 v%d, v%d, v%d" % (t0, t0, e + i + 1))
        a("v_add_f32 v%d, v%d, v%d" % (ssum, ssum, t0))
        cross32(a, "v_add_f32", ssum, t0)
        a("v_rcp_f32 v%d, v%d" % (rr, ssum))
        a("s_nop 0")
        for i in range(0, 16, 2):
            a("v_mul_f32 v%d, v%d, v%d" % (e + i, e + i, rr))
            a("v_mul_f32 v%d, v%d, v%d" % (e + i + 1, e + i + 1, rr))
            a("v_cvt_pk_bf16_f32 v%d, v%d, v%d" % (out + i // 2, e + i, e + i + 1))

def wave_reduce_add(a, xs, ts):
    for dpp in ("quad_perm:[1,0,3,2]", "quad_perm:[2,3,0,1]", "row_half_mirror", "row_mirror"):
        a("s_nop 1")
        for x, t in zip(xs, ts):
            a("v_add_f32_dpp v%d, v%d, v%d %s row_mask:0xf bank_mask:0xf" % (t, x, x, dpp))
        for x, t in zip(xs, ts):
            a("v_mov_b32 v%d, v%d" % (x, t))
    for sw in ("v_permlane16_swap_b32", "v_permlane32_swap_b32"):
        a("s_nop 1")
        for x, t in zip(xs, ts):
            a("%s v%d, v%d" % (sw, t, x))
        for x, t in zip(xs, ts):
            a("v_add_f32 v%d, v%d, v%d" % (x, x, t))
        for x, t in zip(xs, ts):
            a("v_mov_b32 v%d, v%d" % (t, x))

def qkv_kernel(a, name):
    c = Cfg()
    c.BM, c.BN, c.K, c.lda, c.ldb, c.S = 256, 96, 1024, 2048, 6144, 3
    c.NS = 16; c.nA = 32; c.nB = 12; c.a_ins = 8; c.b_ins = 3; c.P = 12
    c.stage_bytes = 44 * 1024
    c.rotate = True
    c.colmode = "qkv"; c.swz = []
    set_rings(c, *[int(x) for x in os.environ.get("RING_qkv", "3,3").split(",")])
    c.srdA, c.srdB = 16, 20
    srdO, srdKV, srdW1 = 24, 28, 32
    s_wave, s_rb, s_h = 40, 41, 42
    c.s_p = 43
    c.s_slotA = c.s_cslotA = 45; c.s_ka = c.s_deltaA = 46; c.s_kb = c.s_deltaB = 47; c.s_mA = 48; c.s_mB = 49; c.s_i = 50; c.s_slotB = c.s_cslotB = 51
    c.st = [52, 53, 54, 55]
    s_l2e, s_ones = 56, 57
    ring = c.ring_bytes
    L_WPHI = ring
    L_CS = L_WPHI + 2048
    L_RS = L_CS + 3072
    L_NM = L_RS + 1024
    L_TOK = L_NM + 1024
    L_STAT = L_TOK + 64
    lds = L_STAT + 64
    assert lds <= 163840
    L_PK = 0
    PKP = 144
    L_RED = 36864
    L_KVF = L_RED + 4 * KVP_BYTES
    L_ZF = L_KVF + 4096
    accQ = [0, 16]; accK = [32, 48]; accV = [64, 80]
    F = [96, 116, 176, 196]
    vcs = [136, 137, 138]
    c.vX = [139, 140, 141, 142]; vW = 143
    c.v_lane = 144
    c.vt = [145 + i for i in range(8)]
    vtok = 154
    vst = 160
    vmax = 256

    kernel_header(a, name)
    Lend = a.newlabel("Lend")
    a("s_cmp_ge_u32 s2, 256")
    a("s_cbranch_scc1 %s" % Lend)
    a("s_load_dwordx2 s[4:5], s[0:1], %d" % KA_WS)
    a("s_load_dwordx2 s[6:7], s[0:1], %d" % KA_WQKV)
    a("s_load_dwordx2 s[8:9], s[0:1], %d" % KA_DBG)
    a("s_load_dwordx2 s[10:11], s[0:1], %d" % KA_X)
    a("s_load_dwordx2 s[14:15], s[0:1], %d" % KA_WPHI)
    a("s_load_dwordx2 s[64:65], s[0:1], %d" % KA_W1)
    a("s_load_dwordx2 s[66:67], s[0:1], %d" % KA_W2)
    a("s_load_dwordx2 s[68:69], s[0:1], %d" % KA_WO)
    a("v_and_b32 v%d, 63, v0" % c.v_lane)
    a("v_lshrrev_b32 v1, 6, v0")
    a("s_nop 0")
    a("v_readfirstlane_b32 s%d, v1" % s_wave)
    if "badmap" in os.environ.get("GDBG", ""):
        a("s_lshr_b32 s%d, s2, 5" % c.st[0])
        a("s_and_b32 s%d, s2, 31" % c.st[1])
    else:
        a("s_and_b32 s%d, s2, 7" % c.st[0])
        a("s_lshr_b32 s%d, s2, 3" % c.st[1])
    a("s_and_b32 s%d, s%d, 1" % (c.st[2], c.st[0]))
    a("s_lshl_b32 s%d, s%d, 2" % (s_rb, c.st[2]))
    a("s_and_b32 s%d, s%d, 3" % (c.st[2], c.st[1]))
    a("s_add_u32 s%d, s%d, s%d" % (s_rb, s_rb, c.st[2]))
    a("s_lshr_b32 s%d, s%d, 1" % (c.st[2], c.st[0]))
    a("s_lshl_b32 s%d, s%d, 3" % (s_h, c.st[2]))
    a("s_lshr_b32 s%d, s%d, 2" % (c.st[2], c.st[1]))
    a("s_add_u32 s%d, s%d, s%d" % (s_h, s_h, c.st[2]))
    rot = os.environ.get("K1ROT", "1")
    if rot == "1":
        a("s_lshl_b32 s%d, s%d, 1" % (c.st[2], c.st[0]))
        a("s_add_u32 s%d, s%d, s%d" % (c.st[2], c.st[2], c.st[1]))
        a("s_and_b32 s%d, s%d, 15" % (c.st[2], c.st[2]))
    elif rot == "2":
        a("s_lshr_b32 s%d, s%d, 2" % (c.st[2], c.st[1]))
        a("s_lshl_b32 s%d, s%d, 1" % (c.st[2], c.st[2]))
    elif rot == "3":
        a("s_and_b32 s%d, s%d, 3" % (c.st[2], c.st[1]))
        a("s_lshl_b32 s%d, s%d, 2" % (c.st[2], c.st[2]))
        a("s_bfe_u32 s%d, s%d, 0x20002" % (c.st[3], c.st[1]))
        a("s_add_u32 s%d, s%d, s%d" % (c.st[2], c.st[2], c.st[3]))
    elif rot == "4":
        a("s_lshl_b32 s%d, s%d, 1" % (c.st[2], c.st[0]))
    elif rot == "5":
        a("s_and_b32 s%d, s%d, 3" % (c.st[2], c.st[1]))
        a("s_lshl_b32 s%d, s%d, 1" % (c.st[2], c.st[2]))
        a("s_lshr_b32 s%d, s%d, 2" % (c.st[3], c.st[1]))
        a("s_add_u32 s%d, s%d, s%d" % (c.st[2], c.st[2], c.st[3]))
    else:
        a("s_mov_b32 s%d, 0" % c.st[2])
    a("s_lshl_b32 s%d, s%d, 7" % (c.s_ka, c.st[2]))
    a("s_mul_i32 s%d, s%d, %d" % (c.s_kb, c.st[2], 64 * c.ldb))
    a("s_mov_b32 s%d, 0x%x" % (s_l2e, L2E))
    a("s_mov_b32 s%d, 0x3f803f80" % s_ones)
    a("s_waitcnt lgkmcnt(0)")
    a("s_lshl_b32 s%d, s%d, 19" % (c.st[0], s_rb))
    a("s_add_u32 s12, s10, s%d" % c.st[0])
    a("s_addc_u32 s13, s11, 0")
    make_srd(a, c.srdA, "s12", "s13", 256 * 2048)
    a("s_lshl_b32 s%d, s%d, 6" % (c.st[0], s_h))
    a("s_add_u32 s12, s6, s%d" % c.st[0])
    a("s_addc_u32 s13, s7, 0")
    a("s_sub_u32 s%d, %d, s%d" % (c.st[1], 1024 * 6144, c.st[0]))
    make_srd(a, c.srdB, "s12", "s13", "s%d" % c.st[1])
    a("s_mul_i32 s%d, s%d, %d" % (c.st[1], s_rb, 256 * LD_O))
    a("s_add_u32 s%d, s%d, s%d" % (c.st[0], c.st[0], c.st[1]))
    a("s_add_u32 s12, s4, s%d" % c.st[0])
    a("s_addc_u32 s13, s5, 0")
    make_srd(a, srdO, "s12", "s13", 256 * LD_O - 0)
    a("s_mul_i32 s%d, s%d, %d" % (c.st[0], s_h, 8 * KVP_BYTES))
    a("s_add_u32 s%d, s%d, %d" % (c.st[0], c.st[0], WS_KVP))
    a("s_add_u32 s12, s4, s%d" % c.st[0])
    a("s_addc_u32 s13, s5, 0")
    make_srd(a, srdKV, "s12", "s13", 8 * KVP_BYTES)
    kidx = 0
    stamp(a, 0, s_wave, kidx, tmp_v=vst)
    Lcons = a.newlabel("Lconsumer")
    a("s_cmp_lt_u32 s%d, 4" % s_wave)
    a("s_cbranch_scc1 %s" % Lcons)

    a("s_sub_u32 s%d, s%d, 4" % (c.s_p, s_wave))
    vl = c.v_lane
    t = c.vt
    a("s_lshl_b32 s%d, s%d, 8" % (c.st[0], s_rb))
    a("s_lshl_b32 s%d, s%d, 3" % (c.st[1], s_h))
    a("s_add_u32 s%d, s%d, s%d" % (c.st[0], c.st[0], c.st[1]))
    a("s_lshl_b32 s%d, s%d, 1" % (c.st[1], c.s_p))
    a("s_add_u32 s74, s%d, s%d" % (c.st[0], c.st[1]))
    a("s_lshl_b32 s%d, s74, 11" % c.st[1])
    a("v_lshlrev_b32 v%d, 4, v%d" % (t[0], vl))
    a("v_add_u32 v%d, s%d, v%d" % (t[0], c.st[1], t[0]))
    a("global_load_dwordx4 v[64:67], v%d, s[10:11]" % t[0])
    a("global_load_dwordx4 v[68:71], v%d, s[10:11] offset:1024" % t[0])
    a("global_load_dwordx4 v[72:75], v%d, s[10:11] offset:2048" % t[0])
    a("global_load_dwordx4 v[76:79], v%d, s[10:11] offset:3072" % t[0])
    emit_producer_setup(a, c, 32)
    stamp(a, 1, s_wave, kidx, tmp_v=vst)
    def prod_hook():
        Lhk = a.newlabel("Lhook")
        a("s_cmp_lg_u32 s%d, 0" % c.s_i)
        a("s_cbranch_scc1 %s" % Lhk)
        raw = 64; fp = 80
        for r in range(2):
            for q in range(8):
                a("v_lshlrev_b32 v%d, 16, v%d" % (fp + 16 * r + 2 * q, raw + 8 * r + q))
                a("v_and_b32 v%d, 0xffff0000, v%d" % (fp + 16 * r + 2 * q + 1, raw + 8 * r + q))
        sm = [112, 113]; tm_ = [114, 115]
        for r in range(2):
            a("v_add_f32 v%d, v%d, v%d" % (sm[r], fp + 16 * r, fp + 16 * r + 1))
            a("v_add_f32 v%d, v%d, v%d" % (tm_[r], fp + 16 * r + 2, fp + 16 * r + 3))
        for q in range(4, 16, 2):
            for r in range(2):
                a("v_add_f32 v%d, v%d, v%d" % (sm[r], sm[r], fp + 16 * r + q))
                a("v_add_f32 v%d, v%d, v%d" % (tm_[r], tm_[r], fp + 16 * r + q + 1))
        for r in range(2):
            a("v_add_f32 v%d, v%d, v%d" % (sm[r], sm[r], tm_[r]))
        wave_reduce_add(a, sm, tm_)
        for r in range(2):
            a("v_mul_f32 v%d, 0x3a800000, v%d" % (sm[r], sm[r]))
        sq = [116, 117]
        for r in range(2):
            for q in range(16):
                a("v_sub_f32 v%d, v%d, v%d" % (fp + 16 * r + q, fp + 16 * r + q, sm[r]))
        for r in range(2):
            a("v_mul_f32 v%d, v%d, v%d" % (sq[r], fp + 16 * r, fp + 16 * r))
            a("v_mul_f32 v%d, v%d, v%d" % (tm_[r], fp + 16 * r + 1, fp + 16 * r + 1))
        for q in range(2, 16, 2):
            for r in range(2):
                a("v_fmac_f32 v%d, v%d, v%d" % (sq[r], fp + 16 * r + q, fp + 16 * r + q))
                a("v_fmac_f32 v%d, v%d, v%d" % (tm_[r], fp + 16 * r + q + 1, fp + 16 * r + q + 1))
        for r in range(2):
            a("v_add_f32 v%d, v%d, v%d" % (sq[r], sq[r], tm_[r]))
        wave_reduce_add(a, sq, tm_)
        for r in range(2):
            a("v_mul_f32 v%d, 0x3a800000, v%d" % (sq[r], sq[r]))
            a("v_add_f32 v%d, 0x3727c5ac, v%d" % (sq[r], sq[r]))
            a("v_rsq_f32 v%d, v%d" % (118 + r, sq[r]))
        a("s_nop 0")
        for r in range(2):
            a("v_mul_f32 v%d, v%d, v%d" % (120 + r, sm[r], 118 + r))
            a("v_sub_f32 v%d, 0, v%d" % (120 + r, 120 + r))
        a("s_lshl_b32 s%d, s%d, 3" % (c.st[0], c.s_p))
        a("s_add_u32 s%d, s%d, %d" % (c.st[0], c.st[0], L_STAT))
        a("v_mov_b32 v%d, s%d" % (t[0], c.st[0]))
        a("s_mov_b64 s[58:59], exec")
        a("s_mov_b64 exec, 1")
        a("ds_write_b64 v%d, v[118:119]" % t[0])
        a("ds_write_b64 v%d, v[120:121] offset:32" % t[0])
        a("s_mov_b64 exec, s[58:59]")
        Lt = a.newlabel("Ltok")
        a("s_cmp_lg_u32 s%d, 4" % s_wave)
        a("s_cbranch_scc1 %s" % Lt)
        a("v_lshlrev_b32 v%d, 4, v%d" % (t[1], vl))
        a("s_lshl_b32 s%d, s%d, 11" % (c.st[0], s_h))
        a("s_add_u32 s12, s14, s%d" % c.st[0])
        a("s_addc_u32 s13, s15, 0")
        make_srd(a, srdW1, "s12", "s13", 2048)
        a("s_mov_b32 m0, %d" % L_WPHI)
        a("s_nop 0")
        a("buffer_load_dwordx4 v%d, s[%d:%d], 0 offen lds" % (t[1], srdW1, srdW1 + 3))
        a("s_nop 0")
        a("buffer_load_dwordx4 v%d, s[%d:%d], 0 offen offset:1024 lds" % (t[1], srdW1, srdW1 + 3))
        a.label(Lt)
        a("s_waitcnt lgkmcnt(0)")
        a.label(Lhk)
        Lq = a.newlabel("Lq"); Lq2 = a.newlabel("Lq2")
        a("s_cmp_lg_u32 s%d, 4" % s_wave)
        a("s_cbranch_scc1 %s" % Lq2)
        a("s_cmp_lg_u32 s%d, 9" % c.s_i)
        a("s_cbranch_scc1 %s" % Lq)
        a("s_load_dwordx2 s[78:79], s[8:9], 0")
        a("s_lshl_b32 s%d, s%d, 2" % (c.st[0], s_rb))
        a("s_add_u32 s%d, s%d, 16" % (c.st[0], c.st[0]))
        a("s_load_dword s80, s[8:9], s%d" % c.st[0])
        a.label(Lq)
        a("s_cmp_lg_u32 s%d, 11" % c.s_i)
        a("s_cbranch_scc1 %s" % Lq2)
        a("s_waitcnt lgkmcnt(0)")
        a("s_cmp_lt_u32 s80, 32")
        a("s_cbranch_scc1 %s" % Lq2)
        emit_stats_loads()
        a("s_mov_b32 s73, 1")
        a.label(Lq2)
    vSt = 124
    def emit_stats_loads():
        a("s_lshl_b32 s%d, s%d, 10" % (c.st[0], s_rb))
        a("s_add_u32 s%d, s%d, %d" % (c.st[0], c.st[0], WS_ST1))
        a("v_lshlrev_b32 v%d, 4, v%d" % (t[6], vl))
        a("v_add_u32 v%d, s%d, v%d" % (t[6], c.st[0], t[6]))
        a("global_load_dwordx4 %s, v%d, s[4:5] sc1" % (vr(vSt, 4), t[6]))
        a("v_add_u32 v%d, 8192, v%d" % (t[6], t[6]))
        a("global_load_dwordx4 %s, v%d, s[4:5] sc1" % (vr(vSt + 4, 4), t[6]))
    a("s_mov_b32 s73, 0")
    a("s_mov_b32 s78, 0")
    a("s_mov_b32 s79, 0")
    c.prod_iter_hook = prod_hook
    emit_producer_loop(a, c)
    stamp(a, 2, s_wave, kidx, tmp_v=vst)
    vl = c.v_lane
    t = c.vt
    Le = a.newlabel("Lesync"); Lg = a.newlabel("Lgot"); Ltk = a.newlabel("Ltokok")
    a("s_cmp_lg_u32 s%d, 4" % s_wave)
    a("s_cbranch_scc1 %s" % Le)
    a("s_cmp_eq_u32 s73, 1")
    a("s_cbranch_scc1 %s" % Lg)
    a("s_lshl_b32 s%d, s%d, 2" % (c.st[0], s_rb))
    a("s_add_u32 s%d, s%d, 16" % (c.st[0], c.st[0]))
    a("v_mov_b32 v%d, s%d" % (t[4], c.st[0]))
    Lp = a.newlabel("Lpoll"); Lpd = a.newlabel("Lpolld")
    a("s_mov_b32 s75, 0")
    a.label(Lp)
    a("global_load_dword v%d, v%d, s[8:9] sc1" % (t[5], t[4]))
    a("s_waitcnt vmcnt(0)")
    a("v_readfirstlane_b32 s%d, v%d" % (c.st[1], t[5]))
    a("s_cmp_ge_u32 s%d, 32" % c.st[1])
    a("s_cbranch_scc1 %s" % Lpd)
    a("s_add_u32 s75, s75, 1")
    a("s_cmp_gt_u32 s75, 0x40000")
    a("s_cbranch_scc1 %s" % Lpd)
    a("s_sleep 2")
    a("s_branch %s" % Lp)
    a.label(Lpd)
    emit_stats_loads()
    a.label(Lg)
    a("s_waitcnt lgkmcnt(0)")
    a("v_mov_b32 v%d, s78" % vtok)
    a("v_mov_b32 v%d, s79" % (vtok + 1))
    Ltp = a.newlabel("Ltp")
    a("s_mov_b32 s75, 0")
    a.label(Ltp)
    a("v_cmp_ne_u64 vcc, 0, %s" % vr(vtok, 2))
    a("s_nop 4")
    a("s_cmp_eq_u64 vcc, exec")
    a("s_cbranch_scc1 %s" % Ltk)
    a("s_add_u32 s75, s75, 1")
    a("s_cmp_gt_u32 s75, 0x40000")
    a("s_cbranch_scc1 %s" % Ltk)
    a("v_mov_b32 v%d, 0" % t[4])
    a("global_load_dwordx2 %s, v%d, s[8:9] sc1" % (vr(vtok, 2), t[4]))
    a("s_waitcnt vmcnt(0)")
    a("s_branch %s" % Ltp)
    a.label(Ltk)
    a("v_mov_b32 v%d, %d" % (t[4], L_TOK))
    a("ds_write_b64 v%d, %s" % (t[4], vr(vtok, 2)))
    a("v_lshlrev_b32 v%d, 4, v%d" % (t[4], vl))
    a("v_add_u32 v%d, %d, v%d" % (t[4], L_RS, t[4]))
    a("s_waitcnt vmcnt(0)")
    a("ds_write_b128 v%d, %s" % (t[4], vr(vSt, 4)))
    a("ds_write_b128 v%d, %s offset:1024" % (t[4], vr(vSt + 4, 4)))
    a("s_waitcnt lgkmcnt(0)")
    a.label(Le)
    Lpfr = a.newlabel("Lpfrole")
    a("s_cmp_ge_u32 s%d, 6" % s_wave)
    a("s_cbranch_scc1 %s" % Lpfr)
    a("s_barrier")
    a("s_barrier")
    a("s_barrier")
    stamp(a, 3, s_wave, kidx, tmp_v=vst)
    a("v_mov_b32 v%d, %d" % (t[0], L_TOK))
    a("ds_read_b64 v[40:41], v%d" % t[0])
    a("s_lshl_b32 s%d, s%d, 7" % (c.st[0], s_h))
    a("s_add_u32 s%d, s%d, %d" % (c.st[0], c.st[0], WS_FLAG))
    a("v_and_b32 v%d, 7, v%d" % (t[0], vl))
    a("v_lshlrev_b32 v%d, 3, v%d" % (t[0], t[0]))
    a("v_add_u32 v%d, s%d, v%d" % (t[0], c.st[0], t[0]))
    a("s_waitcnt lgkmcnt(0)")
    Lp = a.newlabel("Lpoll2"); Lpd = a.newlabel("Lpoll2d")
    a("s_mov_b32 s75, 0")
    a.label(Lp)
    a("global_load_dwordx2 v[42:43], v%d, s[4:5] sc1" % t[0])
    a("s_waitcnt vmcnt(0)")
    a("v_cmp_eq_u64 vcc, v[40:41], v[42:43]")
    a("s_nop 4")
    a("s_cmp_eq_u64 vcc, exec")
    a("s_cbranch_scc1 %s" % Lpd)
    a("s_add_u32 s75, s75, 1")
    a("s_cmp_gt_u32 s75, 0x40000")
    a("s_cbranch_scc1 %s" % Lpd)
    a("s_branch %s" % Lp)
    a.label(Lpd)
    stamp(a, 4, s_wave, kidx, tmp_v=vst)
    a("s_lshl_b32 s%d, s%d, 12" % (c.st[0], c.s_p))
    a("v_lshlrev_b32 v%d, 4, v%d" % (t[0], vl))
    a("v_add_u32 v%d, s%d, v%d" % (t[0], c.st[0], t[0]))
    vZ = 40
    a("v_lshlrev_b32 v%d, 4, v%d" % (t[1], vl))
    a("v_add_u32 v%d, 8192, v%d" % (t[1], t[1]))
    a("v_cmp_gt_u32 vcc, 16, v%d" % vl)
    a("v_mov_b32 v%d, 0x7fffffff" % t[2])
    a("s_nop 0")
    a("v_cndmask_b32 v%d, v%d, v%d, vcc" % (t[1], t[2], t[1]))
    vKa = [72, 164]
    def kreg(rbi, bb): return vKa[rbi // 4] + 16 * (rbi % 4) + 4 * bb
    for rbi in range(8):
        a("s_mov_b32 s%d, %d" % (c.st[1], rbi * KVP_BYTES))
        for bb in range(4):
            a("buffer_load_dwordx4 %s, v%d, s[%d:%d], s%d offen offset:%d sc1" % (vr(kreg(rbi, bb), 4), t[0], srdKV, srdKV + 3, c.st[1], bb * 1024))
    for rbi in range(8):
        a("s_mov_b32 s%d, %d" % (c.st[1], rbi * KVP_BYTES))
        a("buffer_load_dwordx4 %s, v%d, s[%d:%d], s%d offen sc1" % (vr(vZ + 4 * rbi, 4), t[1], srdKV, srdKV + 3, c.st[1]))
    for rbi in range(1, 8):
        a("s_waitcnt vmcnt(%d)" % (8 + 4 * (7 - rbi)))
        for q in range(0, 16, 2):
            a("v_pk_add_f32 %s, %s, %s" % (vr(vKa[0] + q, 2), vr(vKa[0] + q, 2), vr(kreg(rbi, 0) + q, 2)))
    ko = 228
    for bb in range(4):
        a("v_cvt_pk_bf16_f32 v%d, v%d, v%d" % (ko + 2 * bb, vKa[0] + 4 * bb, vKa[0] + 4 * bb + 1))
        a("v_cvt_pk_bf16_f32 v%d, v%d, v%d" % (ko + 2 * bb + 1, vKa[0] + 4 * bb + 2, vKa[0] + 4 * bb + 3))
    a("s_lshl_b32 s%d, s%d, 11" % (c.st[0], c.s_p))
    a("s_add_u32 s%d, s%d, %d" % (c.st[0], c.st[0], L_KVF))
    a("v_lshlrev_b32 v%d, 4, v%d" % (t[0], vl))
    a("v_add_u32 v%d, s%d, v%d" % (t[0], c.st[0], t[0]))
    a("ds_write_b128 v%d, %s" % (t[0], vr(ko, 4)))
    a("ds_write_b128 v%d, %s offset:1024" % (t[0], vr(ko + 4, 4)))
    a("s_waitcnt vmcnt(0)")
    for rbi in range(1, 8):
        for q in range(0, 4, 2):
            a("v_pk_add_f32 %s, %s, %s" % (vr(vZ + q, 2), vr(vZ + q, 2), vr(vZ + 4 * rbi + q, 2)))
    a("v_cvt_pk_bf16_f32 v%d, v%d, v%d" % (vZ + 4, vZ, vZ + 1))
    a("v_cvt_pk_bf16_f32 v%d, v%d, v%d" % (vZ + 5, vZ + 2, vZ + 3))
    a("v_lshrrev_b32 v%d, 2, v%d" % (t[0], vl))
    a("v_lshlrev_b32 v%d, 5, v%d" % (t[0], t[0]))
    a("v_and_b32 v%d, 1, v%d" % (t[1], vl))
    a("v_lshl_add_u32 v%d, v%d, 4, v%d" % (t[0], t[1], t[0]))
    a("v_bfe_u32 v%d, v%d, 1, 1" % (t[1], vl))
    a("v_lshl_add_u32 v%d, v%d, 3, v%d" % (t[0], t[1], t[0]))
    a("v_add_u32 v%d, %d, v%d" % (t[0], L_ZF, t[0]))
    a("v_cmp_gt_u32 vcc, 16, v%d" % vl)
    a("s_and_saveexec_b64 s[58:59], vcc")
    a("ds_write_b64 v%d, %s" % (t[0], vr(vZ + 4, 2)))
    a("s_mov_b64 exec, s[58:59]")
    a("s_waitcnt lgkmcnt(0)")
    a("s_barrier")
    stamp(a, 5, s_wave, kidx, tmp_v=vst)
    a("s_branch %s" % Lend)

    a.label(Lpfr)
    a("s_lshl_b32 s72, s2, 1")
    a("s_add_u32 s72, s72, s%d" % s_wave)
    a("s_sub_u32 s72, s72, 6")
    make_srd(a, srdW1, "s64", "s65", 1024 * 7168)
    a("s_barrier")
    vP = 64
    mul, sh = magic_div(56, 1024)
    for un in range(2):
        a("s_lshl_b32 s%d, s72, 1" % c.st[0])
        if un: a("s_add_u32 s%d, s%d, 1" % (c.st[0], c.st[0]))
        a("s_mul_i32 s%d, s%d, %d" % (c.st[1], c.st[0], mul))
        a("s_lshr_b32 s%d, s%d, %d" % (76 + 2 * un, c.st[1], sh))
        a("s_mul_i32 s%d, s%d, 56" % (c.st[2], 76 + 2 * un))
        a("s_sub_u32 s%d, s%d, s%d" % (77 + 2 * un, c.st[0], c.st[2]))
        a("s_lshl_b32 s%d, s%d, 6" % (c.st[3], 76 + 2 * un))
        a("v_lshrrev_b32 v%d, 3, v%d" % (t[0], vl))
        a("v_add_u32 v%d, s%d, v%d" % (t[0], c.st[3], t[0]))
        a("s_mov_b32 s%d, 7168" % c.st[3])
        a("v_mul_lo_u32 v%d, v%d, s%d" % (t[0], t[0], c.st[3]))
        a("v_and_b32 v%d, 7, v%d" % (t[1], vl))
        a("v_lshlrev_b32 v%d, 4, v%d" % (t[1], t[1]))
        a("s_lshl_b32 s%d, s%d, 7" % (c.st[3], 77 + 2 * un))
        a("v_add3_u32 v%d, v%d, v%d, s%d" % (60 + un, t[0], t[1], c.st[3]))
        for j in range(8):
            a("s_mov_b32 s%d, %d" % (c.st[3], j * 8 * 7168))
            a("buffer_load_dwordx4 %s, v%d, s[%d:%d], s%d offen" % (vr(vP + 32 * un + 4 * j, 4), 60 + un, srdW1, srdW1 + 3, c.st[3]))
    a("s_barrier")
    a("s_barrier")
    if "nopf" not in os.environ.get("GDBG", ""):
        a("v_lshlrev_b32 v62, 4, v%d" % vl)
        a("s_lshl_b32 s%d, s72, 12" % c.st[3])
        a("v_add_u32 v63, s%d, v62" % c.st[3])
        for j in range(4):
            a("global_load_dwordx4 v[%d:%d], v63, s[68:69] offset:%d" % (228 + 4 * (j % 4), 231 + 4 * (j % 4), j * 1024))
        a("s_mul_i32 s%d, s72, 14336" % c.st[3])
        a("v_add_u32 v63, s%d, v62" % c.st[3])
        for j in range(14):
            if j and j % 4 == 0: a("v_add_u32 v63, 4096, v63")
            a("global_load_dwordx4 v[%d:%d], v63, s[66:67] offset:%d" % (236 + 4 * (j % 4), 239 + 4 * (j % 4), (j % 4) * 1024))
    a("s_barrier")
    a("s_waitcnt vmcnt(%d)" % (0 if "nopf" in os.environ.get("GDBG", "") else 18))
    for un in range(2):
        Lskip = a.newlabel("Lskipcs")
        a("s_cmp_ge_u32 s%d, 16" % (76 + 2 * un))
        a("s_cbranch_scc1 %s" % Lskip)
        vS = 132
        for j in range(8):
            for q in range(4):
                src = vP + 32 * un + 4 * j + q
                a("v_lshlrev_b32 v%d, 16, v%d" % (t[0], src))
                a("v_and_b32 v%d, 0xffff0000, v%d" % (t[1], src))
                if j == 0:
                    a("v_mov_b32 v%d, v%d" % (vS + 2 * q, t[0]))
                    a("v_mov_b32 v%d, v%d" % (vS + 2 * q + 1, t[1]))
                else:
                    a("v_add_f32 v%d, v%d, v%d" % (vS + 2 * q, vS + 2 * q, t[0]))
                    a("v_add_f32 v%d, v%d, v%d" % (vS + 2 * q + 1, vS + 2 * q + 1, t[1]))
        xs = [vS + i for i in range(8)]; ts_ = [164 + i for i in range(8)]
        a("s_nop 1")
        for x, tt in zip(xs, ts_):
            a("v_add_f32_dpp v%d, v%d, v%d row_ror:8 row_mask:0xf bank_mask:0xf" % (tt, x, x))
        for x, tt in zip(xs, ts_):
            a("v_mov_b32 v%d, v%d" % (x, tt))
        for sw in ("v_permlane16_swap_b32", "v_permlane32_swap_b32"):
            a("s_nop 1")
            for x, tt in zip(xs, ts_):
                a("%s v%d, v%d" % (sw, tt, x))
            for x, tt in zip(xs, ts_):
                a("v_add_f32 v%d, v%d, v%d" % (x, x, tt))
            for x, tt in zip(xs, ts_):
                a("v_mov_b32 v%d, v%d" % (tt, x))
        a("s_mul_i32 s%d, s%d, %d" % (c.st[0], 76 + 2 * un, 3584 * 4))
        a("s_lshl_b32 s%d, s%d, 8" % (c.st[1], 77 + 2 * un))
        a("s_add_u32 s%d, s%d, s%d" % (c.st[0], c.st[0], c.st[1]))
        a("s_add_u32 s%d, s%d, %d" % (c.st[0], c.st[0], WS_CS1))
        a("v_lshlrev_b32 v%d, 5, v%d" % (t[0], vl))
        a("v_add_u32 v%d, s%d, v%d" % (t[0], c.st[0], t[0]))
        a("v_cmp_gt_u32 vcc, 8, v%d" % vl)
        a("s_and_saveexec_b64 s[58:59], vcc")
        a("global_store_dwordx4 v%d, %s, s[4:5]" % (t[0], vr(vS, 4)))
        a("global_store_dwordx4 v%d, %s, s[4:5] offset:16" % (t[0], vr(vS + 4, 4)))
        a("s_mov_b64 exec, s[58:59]")
        a.label(Lskip)
    a("s_branch %s" % Lend)

    a.label(Lcons)
    vl = c.v_lane
    t = c.vt
    Lt0 = a.newlabel("Ltok0")
    a("s_or_b32 s58, s2, s%d" % s_wave)
    a("s_cmp_lg_u32 s58, 0")
    a("s_cbranch_scc1 %s" % Lt0)
    a("s_memrealtime s[58:59]")
    a("s_waitcnt lgkmcnt(0)")
    a("s_or_b32 s58, s58, 1")
    a("v_mov_b32 v%d, s58" % vtok)
    a("v_mov_b32 v%d, s59" % (vtok + 1))
    a("v_mov_b32 v%d, 0" % t[0])
    a("s_mov_b64 s[58:59], exec")
    a("s_mov_b64 exec, 1")
    a("global_store_dwordx2 v%d, %s, s[8:9] sc1" % (t[0], vr(vtok, 2)))
    a("s_mov_b64 exec, s[58:59]")
    a.label(Lt0)
    a("v_and_b32 v%d, 31, v%d" % (t[0], vl))
    a("v_lshrrev_b32 v%d, 5, v%d" % (t[1], vl))
    a("v_bfe_u32 v%d, v%d, 1, 3" % (t[2], t[0]))
    a("s_lshl_b32 s%d, s%d, 6" % (c.st[2], s_wave))
    a("v_add_u32 v%d, s%d, v%d" % (t[3], c.st[2], t[0]))
    a("v_lshlrev_b32 v%d, 7, v%d" % (t[3], t[3]))
    for stp in range(4):
        a("v_add_u32 v%d, %d, v%d" % (t[4], 2 * stp, t[1]))
        a("v_xor_b32 v%d, v%d, v%d" % (t[4], t[4], t[2]))
        a("v_lshl_add_u32 v%d, v%d, 4, v%d" % (c.vX[stp], t[4], t[3]))
    a("v_lshrrev_b32 v%d, 4, v%d" % (t[0], vl))
    a("v_and_b32 v%d, 15, v%d" % (t[1], vl))
    a("v_lshrrev_b32 v%d, 2, v%d" % (t[2], t[1]))
    a("v_lshrrev_b32 v%d, 1, v%d" % (t[3], t[0]))
    a("v_lshl_add_u32 v%d, v%d, 3, v%d" % (t[2], t[3], t[2]))
    a("v_mul_u32_u24 v%d, 192, v%d" % (t[2], t[2]))
    a("v_and_b32 v%d, 1, v%d" % (t[0], t[0]))
    a("v_lshl_add_u32 v%d, v%d, 5, v%d" % (t[2], t[0], t[2]))
    a("v_and_b32 v%d, 3, v%d" % (t[1], t[1]))
    a("v_lshl_add_u32 v%d, v%d, 3, v%d" % (t[2], t[1], t[2]))
    a("v_add_u32 v%d, %d, v%d" % (vW, c.Bbase, t[2]))
    stamp(a, 1, s_wave, kidx, tmp_v=vst)
    stamp(a, 6, s_wave, kidx, tmp_v=vst)
    for i in range(96): a("v_mov_b32 v%d, 0" % i)
    for u in range(3): a("v_mov_b32 v%d, 0" % vcs[u])
    a("s_mov_b32 s%d, 0" % c.s_cslotA)
    a("s_mov_b32 s%d, 0" % c.s_cslotB)
    a("s_mov_b32 s%d, 0" % c.s_i)
    a("s_waitcnt lgkmcnt(0)")
    def reads(buf, stp):
        r = []
        fb = F[buf]
        W = lambda u, hf: "ds_read_b64_tr_b16 %s, v%d offset:%d" % (vr(fb + 8 + 4 * u + 2 * hf, 2), vW, (16 * stp + 4 * hf) * 192 + u * 64)
        X = lambda st: "ds_read_b128 %s, v%d offset:%d" % (vr(fb + 4 * st, 4), c.vX[stp], st * 4096)
        if "noread" in DBG: return []
        return [W(0, 0), W(0, 1), X(0), W(1, 0), W(1, 1), X(1), W(2, 0), W(2, 1)]
    def mfmas(buf):
        fb = F[buf]
        X = lambda st: fb + 4 * st
        W = lambda u: fb + 8 + 4 * u
        if "nomfma" in DBG: return ["s_nop 0"] * 6
        return [mf32(accQ[0], W(0), X(0), accQ[0]), mf32(accK[0], W(1), X(0), accK[0]), mf32(accQ[1], W(0), X(1), accQ[1]),
                mf32(accK[1], W(1), X(1), accK[1]), mf32(accV[0], X(0), W(2), accV[0]), mf32(accV[1], X(1), W(2), accV[1])]
    def csops(buf, w):
        fb = F[buf]
        o = []
        if "nocs" in DBG: return []
        for u in range(3):
            src = fb + 8 + 4 * u + w
            tt = t[2 * (u % 2)]
            o.append("v_lshlrev_b32 v%d, 16, v%d" % (tt, src))
            o.append("v_and_b32 v%d, 0xffff0000, v%d" % (tt + 1, src))
            o.append("v_add_f32 v%d, v%d, v%d" % (vcs[u], vcs[u], tt))
            o.append("v_add_f32 v%d, v%d, v%d" % (vcs[u], vcs[u], tt + 1))
        return o
    def step(mf, rd, cs):
        ri = ci = 0
        for i, m in enumerate(mf):
            a(m)
            for _ in range(3):
                if ri < len(rd): a(rd[ri]); ri += 1
            for _ in range(2 if i < 3 else 3):
                if ci < len(cs): a(cs[ci]); ci += 1
        while ri < len(rd): a(rd[ri]); ri += 1
        while ci < len(cs): a(cs[ci]); ci += 1
    Lafter = a.newlabel("Lafter")
    Lw = [a.newlabel("Lw") for _ in range(4)]
    for w in range(1, 4):
        a("s_cmp_eq_u32 s%d, %d" % (s_wave, w))
        a("s_cbranch_scc1 %s" % Lw[w])
    for w in range(4):
        a.label(Lw[w])
        a("s_barrier")
        for r in reads(0, 0): a(r)
        for r in reads(1, 1): a(r)
        L = a.newlabel("Lk1")
        a.label(L)
        for stp in range(2):
            a("s_waitcnt lgkmcnt(8)")
            step(mfmas(stp), reads(stp + 2, stp + 2), csops(stp, w))
        a("s_waitcnt lgkmcnt(0)")
        a("s_barrier")
        emit_addr_advance(a, c, [c.vX[0], c.vX[1], c.vX[2], c.vX[3]], [vW])
        if w == 0:
            La = a.newlabel("Lh1"); Lb = a.newlabel("Lh2")
            a("s_cmp_lg_u32 s%d, 1" % c.s_i)
            a("s_cbranch_scc1 %s" % La)
            a("v_lshlrev_b32 v%d, 2, v%d" % (vst + 4, vl))
            a("v_add_u32 v%d, %d, v%d" % (vst + 5, L_STAT, vst + 4))
            a("ds_read_b32 v%d, v%d" % (vst + 6, vst + 5))
            a("ds_read_b32 v%d, v%d offset:32" % (vst + 7, vst + 5))
            a("s_lshl_b32 s%d, s%d, 8" % (c.st[0], s_rb))
            a("s_lshl_b32 s%d, s%d, 3" % (c.st[1], s_h))
            a("s_add_u32 s%d, s%d, s%d" % (c.st[0], c.st[0], c.st[1]))
            a("s_lshl_b32 s%d, s%d, 2" % (c.st[0], c.st[0]))
            a("s_add_u32 s%d, s%d, %d" % (c.st[0], c.st[0], WS_ST1))
            a("v_add_u32 v%d, s%d, v%d" % (vst + 4, c.st[0], vst + 4))
            a("v_add_u32 v%d, 8192, v%d" % (vst + 5, vst + 4))
            a("s_waitcnt lgkmcnt(0)")
            a("s_mov_b64 s[58:59], exec")
            a("s_mov_b64 exec, 0xff")
            a("global_store_dword v%d, v%d, s[4:5] sc1" % (vst + 4, vst + 6))
            a("global_store_dword v%d, v%d, s[4:5] sc1" % (vst + 5, vst + 7))
            a("s_mov_b64 exec, s[58:59]")
            a.label(La)
            a("s_cmp_lg_u32 s%d, 5" % c.s_i)
            a("s_cbranch_scc1 %s" % Lb)
            a("s_waitcnt vmcnt(0)")
            a("s_lshl_b32 s%d, s%d, 2" % (c.st[0], s_rb))
            a("s_add_u32 s%d, s%d, 16" % (c.st[0], c.st[0]))
            a("v_mov_b32 v%d, s%d" % (vst + 4, c.st[0]))
            a("v_mov_b32 v%d, 1" % (vst + 5))
            a("s_mov_b64 s[58:59], exec")
            a("s_mov_b64 exec, 1")
            a("global_atomic_add v%d, v%d, s[8:9]" % (vst + 4, vst + 5))
            a("s_mov_b64 exec, s[58:59]")
            a.label(Lb)
        step(mfmas(2), reads(0, 0), csops(2, w))
        a("s_nop 0")
        step(mfmas(3), reads(1, 1), csops(3, w))
        a("s_add_u32 s%d, s%d, 1" % (c.s_i, c.s_i))
        a("s_cmp_lt_u32 s%d, %d" % (c.s_i, c.NS - 1))
        a("s_cbranch_scc1 %s" % L)
        for stp in range(2):
            a("s_waitcnt lgkmcnt(8)")
            step(mfmas(stp), reads(stp + 2, stp + 2), csops(stp, w))
        a("s_waitcnt lgkmcnt(8)")
        step(mfmas(2), [], csops(2, w))
        a("s_waitcnt lgkmcnt(0)")
        step(mfmas(3), [], csops(3, w))
        if w < 3: a("s_branch %s" % Lafter)
    a.label(Lafter)
    stamp(a, 7, s_wave, kidx, tmp_v=vst)
    stamp(a, 2, s_wave, kidx, tmp_v=vst)
    for u in range(3):
        a("v_mov_b32 v%d, v%d" % (t[1 + u], vcs[u]))
    a("s_nop 1")
    for u in range(3):
        a("v_permlane32_swap_b32 v%d, v%d" % (t[1 + u], vcs[u]))
    for u in range(3):
        a("v_add_f32 v%d, v%d, v%d" % (vcs[u], vcs[u], t[1 + u]))
    a("v_and_b32 v%d, 31, v%d" % (t[0], vl))
    a("v_lshlrev_b32 v%d, 2, v%d" % (t[0], t[0]))
    a("v_add_u32 v%d, %d, v%d" % (t[0], L_CS, t[0]))
    a("s_mul_i32 s%d, s%d, 384" % (c.st[0], s_wave))
    a("v_add_u32 v%d, s%d, v%d" % (t[1], c.st[0], t[0]))
    for u in range(3):
        a("ds_write_b32 v%d, v%d offset:%d" % (t[1], vcs[u], u * 128))
    a("s_waitcnt lgkmcnt(0)")
    a("s_barrier")
    stamp(a, 8, s_wave, kidx, tmp_v=156)
    csQ, csK = 96, 112
    rsL, nmL = [128, 130], [132, 134]
    csV = 136
    wph = 164
    kb = 172
    pD = 180
    eT = 196
    pos, neg = 212, 220
    sT = [228 + i for i in range(8)]
    rsV, nmV = 236, 240
    aF = 196
    vb = 244
    kvA = [32, 48]
    hi_ = t[7]
    a("v_lshrrev_b32 v%d, 5, v%d" % (hi_, vl))
    cp = 180
    for ww in range(4):
        for u in range(3):
            a("ds_read_b32 v%d, v%d offset:%d" % (cp + 3 * ww + u, t[0], ww * 384 + u * 128))
    a("s_waitcnt lgkmcnt(0)")
    for u in range(3):
        a("v_add_f32 v%d, v%d, v%d" % (cp + u, cp + u, cp + 3 + u))
        a("v_add_f32 v%d, v%d, v%d" % (cp + 6 + u, cp + 6 + u, cp + 9 + u))
        a("v_add_f32 v%d, v%d, v%d" % (cp + u, cp + u, cp + 6 + u))
    a("v_mov_b32 v%d, v%d" % (csV, cp + 2))
    a("v_add_u32 v%d, 1536, v%d" % (t[1], t[1]))
    a("ds_write_b32 v%d, v%d" % (t[1], cp))
    a("ds_write_b32 v%d, v%d offset:128" % (t[1], cp + 1))
    a("v_lshlrev_b32 v%d, 4, v%d" % (t[1], hi_))
    a("s_add_u32 s%d, s%d, %d" % (c.st[0], c.st[0], L_CS + 1536))
    a("v_add_u32 v%d, s%d, v%d" % (t[1], c.st[0], t[1]))
    a("s_waitcnt lgkmcnt(0)")
    for aa in range(4):
        a("ds_read_b128 %s, v%d offset:%d" % (vr(csQ + 4 * aa, 4), t[1], aa * 32))
        a("ds_read_b128 %s, v%d offset:%d" % (vr(csK + 4 * aa, 4), t[1], 128 + aa * 32))
    a("v_mov_b32 v%d, %d" % (vtok + 2, L_TOK))
    a("ds_read_b64 %s, v%d" % (vr(vtok, 2), vtok + 2))
    a("v_and_b32 v%d, 31, v%d" % (t[2], vl))
    a("s_lshl_b32 s%d, s%d, 6" % (c.st[0], s_wave))
    a("v_add_u32 v%d, s%d, v%d" % (t[2], c.st[0], t[2]))
    a("v_lshlrev_b32 v%d, 2, v%d" % (t[2], t[2]))
    a("v_add_u32 v%d, %d, v%d" % (t[2], L_RS, t[2]))
    for st in range(2):
        a("ds_read_b32 v%d, v%d offset:%d" % (rsL[st], t[2], st * 128))
        a("ds_read_b32 v%d, v%d offset:%d" % (nmL[st], t[2], 1024 + st * 128))
    a("v_lshrrev_b32 v%d, 4, v%d" % (t[3], vl))
    a("v_and_b32 v%d, 15, v%d" % (t[4], vl))
    a("v_lshrrev_b32 v%d, 2, v%d" % (t[5], t[4]))
    a("v_lshrrev_b32 v%d, 1, v%d" % (t[6], t[3]))
    a("v_lshl_add_u32 v%d, v%d, 2, v%d" % (t[5], t[6], t[5]))
    a("v_mov_b32 v%d, v%d" % (sT[7], t[5]))
    a("v_lshlrev_b32 v%d, 6, v%d" % (t[5], t[5]))
    a("v_and_b32 v%d, 1, v%d" % (t[3], t[3]))
    a("v_lshlrev_b32 v%d, 5, v%d" % (t[3], t[3]))
    a("v_and_b32 v%d, 3, v%d" % (t[4], t[4]))
    a("v_lshl_add_u32 v%d, v%d, 3, v%d" % (t[3], t[4], t[3]))
    a("v_add_u32 v%d, v%d, v%d" % (t[5], t[5], t[3]))
    a("v_add_u32 v%d, %d, v%d" % (t[5], L_WPHI, t[5]))
    for tt in range(2):
        for hf in range(2):
            a("ds_read_b64_tr_b16 %s, v%d offset:%d" % (vr(wph + 4 * tt + 2 * hf, 2), t[5], (16 * tt + 8 * hf) * 64))
    vPKw, vPKr, vRSV = 160, 161, 162
    a("s_mul_i32 s%d, s%d, %d" % (c.st[0], s_wave, 64 * PKP))
    a("s_add_u32 s%d, s%d, %d" % (c.st[0], c.st[0], L_PK))
    a("v_and_b32 v%d, 31, v%d" % (t[2], vl))
    a("v_mul_u32_u24 v%d, %d, v%d" % (t[2], PKP, t[2]))
    a("v_lshl_add_u32 v%d, v%d, 3, v%d" % (t[2], hi_, t[2]))
    a("v_add_u32 v%d, s%d, v%d" % (vPKw, c.st[0], t[2]))
    a("v_mul_u32_u24 v%d, %d, v%d" % (t[2], PKP, sT[7]))
    a("v_add_u32 v%d, v%d, v%d" % (t[2], t[2], t[3]))
    a("v_add_u32 v%d, s%d, v%d" % (vPKr, c.st[0], t[2]))
    a("s_lshl_b32 s%d, s%d, 8" % (c.st[0], s_wave))
    a("v_lshlrev_b32 v%d, 4, v%d" % (t[2], hi_))
    a("v_add_u32 v%d, s%d, v%d" % (t[2], c.st[0], t[2]))
    a("v_add_u32 v%d, %d, v%d" % (vRSV, L_RS, t[2]))
    a("s_waitcnt lgkmcnt(0)")

    def ln_qk(acc, cs, st, dst):
        for i in range(0, 16, 2):
            a("v_pk_mul_f32 %s, %s, %s op_sel_hi:[1,0]" % (vr(acc + i, 2), vr(acc + i, 2), vr(rsL[st], 2)))
            a("v_pk_fma_f32 %s, %s, %s, %s op_sel_hi:[1,0,1]" % (vr(acc + i, 2), vr(cs + i, 2), vr(nmL[st], 2), vr(acc + i, 2)))
            a("v_cvt_pk_bf16_f32 v%d, v%d, v%d" % (dst + i // 2, acc + i, acc + i + 1))
    def phi(acc, cs, st):
        ln_qk(acc, cs, st, kb)
        a("s_nop 1")
        a(mf32(pD, wph, kb, "0"))
        a(mf32(pD, wph + 4, kb + 4, pD))
        mfma_wait(a)
        softmax2(a, pD, pos, neg, eT, sT, s_l2e)

    for st in range(2):
        phi(accK[st], csK, st)
        for aa in range(4):
            a("ds_write_b64 v%d, %s offset:%d" % (vPKw, vr(pos + 2 * aa, 2), st * 32 * PKP + aa * 16))
            a("ds_write_b64 v%d, %s offset:%d" % (vPKw, vr(neg + 2 * aa, 2), st * 32 * PKP + aa * 16 + 64))
    stamp(a, 9, s_wave, kidx, tmp_v=156)
    kvT = [32, 48]; zT = [180, 196]
    aF = 212
    ones = 252
    for q in range(4): a("v_mov_b32 v%d, s%d" % (ones + q, s_ones))
    a("s_waitcnt lgkmcnt(0)")
    first = True
    for st in range(2):
        for aa in range(4):
            a("ds_read_b128 %s, v%d offset:%d" % (vr(228 + 4 * aa, 4), vRSV, (32 * st + 8 * aa) * 4))
            a("ds_read_b128 %s, v%d offset:%d" % (vr(112 + 4 * aa, 4), vRSV, 1024 + (32 * st + 8 * aa) * 4))
        for ft in range(2):
            for u in range(2):
                for hf in range(2):
                    a("ds_read_b64_tr_b16 %s, v%d offset:%d" % (vr(aF + 8 * ft + 4 * u + 2 * hf, 2), vPKr, (st * 32 + 16 * u + 8 * hf) * PKP + ft * 64))
        a("s_waitcnt lgkmcnt(8)")
        for aa in range(4):
            for h2 in range(2):
                r = accV[st] + 4 * aa + 2 * h2
                a("v_pk_mul_f32 %s, %s, %s" % (vr(r, 2), vr(r, 2), vr(228 + 4 * aa + 2 * h2, 2)))
                a("v_pk_fma_f32 %s, %s, %s, %s op_sel_hi:[1,0,1]" % (vr(r, 2), vr(112 + 4 * aa + 2 * h2, 2), vr(csV, 2), vr(r, 2)))
                a("v_cvt_pk_bf16_f32 v%d, v%d, v%d" % (vb + 2 * aa + h2, r, r + 1))
        a("s_waitcnt lgkmcnt(0)")
        for u in range(2):
            for ft in range(2):
                a(mf32(kvT[ft], aF + 8 * ft + 4 * u, vb + 4 * u, "0" if (st == 0 and u == 0) else kvT[ft]))
                a(mf32(zT[ft], aF + 8 * ft + 4 * u, ones, "0" if (st == 0 and u == 0) else zT[ft]))
        a("s_nop 7")
    mfma_wait(a)
    stamp(a, 10, s_wave, kidx, tmp_v=156)
    a("s_mul_i32 s%d, s%d, %d" % (c.st[0], s_wave, KVP_BYTES))
    a("s_add_u32 s%d, s%d, %d" % (c.st[0], c.st[0], L_RED))
    a("v_lshlrev_b32 v%d, 4, v%d" % (t[0], vl))
    a("v_add_u32 v%d, s%d, v%d" % (t[1], c.st[0], t[0]))
    for ft in range(2):
        for rq in range(4):
            a("ds_write_b128 v%d, %s offset:%d" % (t[1], vr(kvT[ft] + 4 * rq, 4), (ft * 4 + rq) * 1024))
    a("v_lshlrev_b32 v%d, 4, v%d" % (t[2], hi_))
    a("v_add_u32 v%d, s%d, v%d" % (t[2], c.st[0], t[2]))
    a("v_and_b32 v%d, 31, v%d" % (t[3], vl))
    a("v_cmp_eq_u32 vcc, 0, v%d" % t[3])
    a("s_and_saveexec_b64 s[58:59], vcc")
    for ft in range(2):
        for rq in range(4):
            a("ds_write_b128 v%d, %s offset:%d" % (t[2], vr(zT[ft] + 4 * rq, 4), 8192 + (ft * 8 + rq * 2) * 16))
    a("s_mov_b64 exec, s[58:59]")
    a("s_waitcnt lgkmcnt(0)")
    a("s_barrier")
    stamp(a, 11, s_wave, kidx, tmp_v=156)
    a("s_lshl_b32 s%d, s%d, 11" % (c.st[0], s_wave))
    a("s_add_u32 s%d, s%d, %d" % (c.st[0], c.st[0], L_RED))
    a("v_add_u32 v%d, s%d, v%d" % (t[1], c.st[0], t[0]))
    rr = 32
    for ww in range(4):
        for bb in range(2):
            a("ds_read_b128 %s, v%d offset:%d" % (vr(rr + 8 * ww + 4 * bb, 4), t[1], ww * KVP_BYTES + bb * 1024))
    a("v_add_u32 v%d, %d, v%d" % (t[2], L_RED + 8192, t[0]))
    a("v_and_b32 v%d, 0xff, v%d" % (t[3], t[0]))
    a("v_add_u32 v%d, %d, v%d" % (t[2], L_RED + 8192, t[3]))
    zr = 180
    for ww in range(4):
        a("ds_read_b128 %s, v%d offset:%d" % (vr(zr + 4 * ww, 4), t[2], ww * KVP_BYTES))
    a("s_waitcnt lgkmcnt(0)")
    for ww in range(1, 4):
        for q in range(0, 8, 2):
            a("v_pk_add_f32 %s, %s, %s" % (vr(rr + q, 2), vr(rr + q, 2), vr(rr + 8 * ww + q, 2)))
        for q in range(0, 4, 2):
            a("v_pk_add_f32 %s, %s, %s" % (vr(zr + q, 2), vr(zr + q, 2), vr(zr + 4 * ww + q, 2)))
    a("s_mul_i32 s%d, s%d, %d" % (c.st[0], s_rb, KVP_BYTES))
    a("s_lshl_b32 s%d, s%d, 11" % (c.st[1], s_wave))
    a("s_add_u32 s%d, s%d, s%d" % (c.st[1], c.st[1], c.st[0]))
    for bb in range(2):
        a("buffer_store_dwordx4 %s, v%d, s[%d:%d], s%d offen offset:%d sc1" % (vr(rr + 4 * bb, 4), t[0], srdKV, srdKV + 3, c.st[1], bb * 1024))
    Lz = a.newlabel("Lz")
    a("s_cmp_lg_u32 s%d, 0" % s_wave)
    a("s_cbranch_scc1 %s" % Lz)
    a("v_add_u32 v%d, 8192, v%d" % (t[2], t[0]))
    a("v_cmp_gt_u32 vcc, 16, v%d" % vl)
    a("v_mov_b32 v%d, 0x7fffffff" % t[3])
    a("s_nop 0")
    a("v_cndmask_b32 v%d, v%d, v%d, vcc" % (t[2], t[3], t[2]))
    a("buffer_store_dwordx4 %s, v%d, s[%d:%d], s%d offen sc1" % (vr(zr, 4), t[2], srdKV, srdKV + 3, c.st[0]))
    a.label(Lz)
    stamp(a, 12, s_wave, kidx, tmp_v=156)
    a("s_waitcnt vmcnt(0)")
    a("s_barrier")
    stamp(a, 3, s_wave, kidx, tmp_v=vst)
    Lf = a.newlabel("Lflag")
    a("s_cmp_lg_u32 s%d, 0" % s_wave)
    a("s_cbranch_scc1 %s" % Lf)
    a("s_lshl_b32 s%d, s%d, 7" % (c.st[0], s_h))
    a("s_lshl_b32 s%d, s%d, 3" % (c.st[1], s_rb))
    a("s_add_u32 s%d, s%d, s%d" % (c.st[0], c.st[0], c.st[1]))
    a("s_add_u32 s%d, s%d, %d" % (c.st[0], c.st[0], WS_FLAG))
    a("v_mov_b32 v%d, s%d" % (t[0], c.st[0]))
    a("s_mov_b64 s[58:59], exec")
    a("s_mov_b64 exec, 1")
    a("global_store_dwordx2 v%d, %s, s[4:5] sc1" % (t[0], vr(vtok, 2)))
    a("s_mov_b64 exec, s[58:59]")
    a.label(Lf)
    phq = [32, 48]
    for st in range(2):
        phi(accQ[st], csQ, st)
        for i in range(8):
            a("v_mov_b32 v%d, v%d" % (phq[st] + i, pos + i))
            a("v_mov_b32 v%d, v%d" % (phq[st] + 8 + i, neg + i))
    stamp(a, 4, s_wave, kidx, tmp_v=vst)
    a("s_barrier")
    kvf, zf = 64, 80
    a("v_lshlrev_b32 v%d, 4, v%d" % (t[0], vl))
    a("v_add_u32 v%d, %d, v%d" % (t[0], L_KVF, t[0]))
    a("v_lshlrev_b32 v%d, 4, v%d" % (t[1], hi_))
    a("v_add_u32 v%d, %d, v%d" % (t[1], L_ZF, t[1]))
    for tp in range(4):
        a("ds_read_b128 %s, v%d offset:%d" % (vr(kvf + 4 * tp, 4), t[0], tp * 1024))
        a("ds_read_b128 %s, v%d offset:%d" % (vr(zf + 4 * tp, 4), t[1], tp * 32))
    a("s_waitcnt lgkmcnt(0)")
    num = [96, 112]; den = [180, 196]
    for st in range(2):
        for tp in range(4):
            a(mf32(num[st], kvf + 4 * tp, phq[st] + 4 * tp, "0" if tp == 0 else num[st]))
            a(mf32(den[st], zf + 4 * tp, phq[st] + 4 * tp, "0" if tp == 0 else den[st]))
    mfma_wait(a)
    a("v_and_b32 v%d, 31, v%d" % (t[0], vl))
    a("s_lshl_b32 s%d, s%d, 6" % (c.st[0], s_wave))
    a("v_add_u32 v%d, s%d, v%d" % (t[0], c.st[0], t[0]))
    a("v_mul_u32_u24 v%d, %d, v%d" % (t[0], LD_O, t[0]))
    a("v_lshl_add_u32 v%d, v%d, 4, v%d" % (t[0], hi_, t[0]))
    for st in range(2):
        a("v_add_f32 v%d, 0x358637bd, v%d" % (t[1], den[st]))
        a("v_rcp_f32 v%d, v%d" % (t[1], t[1]))
        a("s_nop 0")
        for i in range(16):
            a("v_mul_f32 v%d, v%d, v%d" % (num[st] + i, num[st] + i, t[1]))
        ob = 212 + 8 * st
        for i in range(8):
            a("v_cvt_pk_bf16_f32 v%d, v%d, v%d" % (ob + i, num[st] + 2 * i, num[st] + 2 * i + 1))
        a("s_nop 1")
        for pr in range(2):
            a("v_permlane32_swap_b32 v%d, v%d" % (ob + 4 * pr, ob + 4 * pr + 2))
            a("v_permlane32_swap_b32 v%d, v%d" % (ob + 4 * pr + 1, ob + 4 * pr + 3))
        for pr in range(2):
            a("s_mov_b32 s%d, %d" % (c.st[1], st * 32 * LD_O))
            a("buffer_store_dwordx4 %s, v%d, s[%d:%d], s%d offen offset:%d%s" % (vr(ob + 4 * pr, 4), t[0], srdO, srdO + 3, c.st[1], pr * 32, os.environ.get("STFLAG", "")))
    a("s_waitcnt vmcnt(0)") if STAMPS else None
    stamp(a, 5, s_wave, kidx, tmp_v=vst)
    a.label(Lend)
    a("s_endpgm")
    return kernel_desc(name, vmax, 90), lds
```

```python
import sys
from common import *
import os
if os.environ.get('OLDG'):
    from kgemm import gemm_kernel
else:
    from kgemm2 import gemm_kernel

NAME = "sequential_preLN__linear_kernel_hedgehog__dense_activation_relu__prompt"
HDR = open("cdna_kernels/%s.s.ref" % NAME).read().split("; Override launch geometry")[0]

def build(kinds):
    a = Asm()
    descs = []; launches = []
    for k in kinds:
        if k == "nop":
            if "nop_kernel" not in [l[0] for l in launches]:
                kernel_header(a, "nop_kernel"); a("s_endpgm")
                descs.append(kernel_desc("nop_kernel", 8, 16))
            launches.append(("nop_kernel", 256, 64, 0))
            continue
        if k in ("fwo", "fw1", "fw2"):
            from kfused import fused_kernel
            d, lds = fused_kernel(a, k[1:] + "_kernel", [k[1:]])
            launches.append((k[1:] + "_kernel", 256, 512, lds))
        elif k == "mlp":
            from kfused import fused_kernel
            d, lds = fused_kernel(a, "mlp_kernel", ["wo", "w1", "w2"])
            launches.append(("mlp_kernel", 256, 512, lds))
        elif k == "w2s":
            from kw2s import w2s_kernel
            d, lds = w2s_kernel(a, "w2_kernel")
            launches.append(("w2_kernel", 256, 512, lds))
        elif k == "qkv":
            from kqkv import qkv_kernel
            d, lds = qkv_kernel(a, "qkv_kernel")
            launches.append(("qkv_kernel", 256, 512, lds))
        else:
            d, lds = gemm_kernel(a, k + "_kernel", k)
            launches.append((k + "_kernel", 256, 512, lds))
        descs.append(d)
    out = HDR
    for (n, g, b, lds) in launches:
        out += "; @launch kernel=%s grid=(%d,1,1) block=(%d,1,1) lds=%d\n" % (n, g, b, lds)
    out += '.amdgcn_target "amdgcn-amd-amdhsa--gfx950"\n.text\n'
    out += a.text()
    out += '.section .rodata,"a"\n' + "".join(descs)
    return out

if __name__ == "__main__":
    kinds = sys.argv[2].split(",")
    open(sys.argv[1], "w").write(build(kinds))
```

```python
from common import *
from gemm import *
import os

def env_tuple(name, default):
    v = os.environ.get(name)
    return tuple(int(x) for x in v.replace("x", ",").split(",")) if v else default

def base_cfg(BM, BN, K, lda, ldb):
    c = Cfg()
    c.BM, c.BN, c.K, c.lda, c.ldb = BM, BN, K, lda, ldb
    c.NS = K // 64
    c.nA = BM // 8; c.nB = BN // 8
    c.a_ins = c.nA // 4; c.b_ins = c.nB // 4
    assert c.nA % 4 == 0 and c.nB % 4 == 0
    c.P = BN // 8
    c.rotate = False
    c.colmode = "lin"
    return c

L_TOK = 147456
MEGA = False
FO = WS_FLAG + 196608
CFU = WS_FLAG + 262144
FH = WS_FLAG + 65536
FH1 = WS_FLAG + 131072
NP2 = None
def wo_tile():
    return env_tuple("TILE_wo", (64, 128))

def gemm_phase(a, kind, first, last):
    DBG = os.environ.get("GDBG", "")
    if kind == "wo":
        BM, BN = wo_tile(); c = base_cfg(BM, BN, 1024, LD_O, 2048); set_rings(c, *env_tuple("RING_wo", (6, 6)))
    elif kind == "w1":
        BM, BN = 128, 224; c = base_cfg(BM, BN, 1024, LD_H, 7168); set_rings(c, *env_tuple("RING_w1", (3, 3)))
    else:
        BM, BN = env_tuple("TILE_w2", (64, 128)); c = base_cfg(BM, BN, 3584, LD_H1, 2048); set_rings(c, *env_tuple("RING_w2", (6, 6)))
    N = {"wo": 1024, "w1": 3584, "w2": 1024}[kind]
    tilesM, tilesN = 2048 // BM, N // BN
    assert tilesM * tilesN == 256
    XM = env_tuple("XROWS_" + kind, (1024 if kind == "w1" else 512,))[0] // BM; XN = 32 // XM
    np2 = 1024 // wo_tile()[1]
    c.swz = swz_mask_bits(c.P)
    c.MT = BM // 32; c.NT = BN // 32
    c.WM = BM // 2
    nW = 1
    for (kb, jb) in c.swz: nW = max(nW, 1 << jb)
    nW = min(nW, 1 << (c.NT - 1).bit_length()) if c.NT <= 4 else 2
    nW = max(nW, 2) if c.NT >= 2 else 1
    if c.NT <= 4: nW = c.NT
    c.srdA, c.srdB, srdC, srdR, srdS, srdT = 16, 20, 24, 28, 32, 36
    s_wave, s_tm, s_tn = 40, 41, 42
    c.s_p = c.s_wm = 43; c.s_wn = 44
    c.s_slotA = c.s_cslotA = 45; c.s_ka = c.s_deltaA = 46; c.s_kb = c.s_deltaB = 47; c.s_mA = 48; c.s_mB = 49; c.s_i = 50; c.s_slotB = c.s_cslotB = 51
    c.st = [52, 53, 54, 55]
    nacc = c.MT * c.NT * 4
    c.acc = 0
    fr = nacc
    fsz = 4 * c.MT + 4 * c.NT
    c.fX = [fr, fr + fsz]; c.fW = [fr + 4 * c.MT, fr + fsz + 4 * c.MT]
    misc = max(fr + 2 * fsz, 96)
    c.v_lane = misc
    c.vX = [misc + 1, misc + 2]; c.vW = [misc + 3 + i for i in range(nW)]
    c.vt = [misc + 3 + nW + i for i in range(8)]
    vside = (misc + 11 + nW + 3) // 4 * 4
    vst = vside + (24 if kind == "w1" else 0)
    vtok = (vst + 4 + 1) // 2 * 2
    vmax = vtok + 6
    assert vmax <= 256
    lds = c.ring_bytes
    side = lds
    if kind == "w1": lds += 128 * 8 + 224 * 4
    pitch = BN * 2 + 16
    ctile = BM * pitch
    cbase = 0
    assert ctile <= c.ring_bytes
    kidx = {"wo": 1, "w1": 2, "w2": 3}[kind]
    vl = c.v_lane; t = c.vt

    a_off = {"wo": WS_O, "w1": WS_H, "w2": WS_H1}[kind]
    sW = {"wo": 64, "w1": 66, "w2": 68}[kind]
    a("v_mbcnt_lo_u32_b32 v%d, -1, 0" % vl)
    a("v_mbcnt_hi_u32_b32 v%d, -1, v%d" % (vl, vl))
    c.a_sc1 = not first
    SC = " sc1"
    a("s_and_b32 s%d, s2, 7" % c.st[0])
    a("s_lshr_b32 s%d, s2, 3" % c.st[1])
    PM = tilesM // XM
    lgPM = PM.bit_length() - 1; lgXM = XM.bit_length() - 1; lgXN = XN.bit_length() - 1
    a("s_and_b32 s%d, s%d, %d" % (c.st[2], c.st[0], PM - 1))
    a("s_lshr_b32 s%d, s%d, %d" % (c.st[3], c.st[0], lgPM))
    a("s_lshl_b32 s%d, s%d, %d" % (s_tm, c.st[2], lgXM))
    a("s_and_b32 s%d, s%d, %d" % (c.st[2], c.st[1], XM - 1))
    a("s_add_u32 s%d, s%d, s%d" % (s_tm, s_tm, c.st[2]))
    a("s_lshl_b32 s%d, s%d, %d" % (s_tn, c.st[3], lgXN))
    a("s_lshr_b32 s%d, s%d, %d" % (c.st[2], c.st[1], lgXM))
    a("s_add_u32 s%d, s%d, s%d" % (s_tn, s_tn, c.st[2]))
    a("s_mul_i32 s%d, s%d, %d" % (c.st[0], s_tm, BM * c.lda))
    a("s_add_u32 s%d, s%d, %d" % (c.st[0], c.st[0], a_off))
    a("s_add_u32 s12, s4, s%d" % c.st[0])
    a("s_addc_u32 s13, s5, 0")
    make_srd(a, c.srdA, "s12", "s13", BM * c.lda)
    a("s_mul_i32 s%d, s%d, %d" % (c.st[0], s_tn, BN * 2))
    a("s_add_u32 s12, s%d, s%d" % (sW, c.st[0]))
    a("s_addc_u32 s13, s%d, 0" % (sW + 1))
    a("s_sub_u32 s%d, %d, s%d" % (c.st[1], c.K * c.ldb, c.st[0]))
    make_srd(a, c.srdB, "s12", "s13", "s%d" % c.st[1])
    Lcons = a.newlabel("Lconsumer"); Lfin = a.newlabel("Lfinal")
    ldc = {"wo": LD_H, "w1": LD_H1, "w2": 2048}[kind]
    ldr = {"wo": 2048, "w1": 0, "w2": LD_H}[kind]
    def other_srds():
        a("s_mul_i32 s%d, s%d, %d" % (c.st[0], s_tm, BM * ldc))
        a("s_mul_i32 s%d, s%d, %d" % (c.st[1], s_tn, BN * 2))
        a("s_add_u32 s%d, s%d, s%d" % (c.st[0], c.st[0], c.st[1]))
        if kind == "w2":
            a("s_add_u32 s12, s8, s%d" % c.st[0])
            a("s_addc_u32 s13, s9, 0")
        else:
            a("s_add_u32 s%d, s%d, %d" % (c.st[2], c.st[0], {"wo": WS_H, "w1": WS_H1}[kind]))
            a("s_add_u32 s12, s4, s%d" % c.st[2])
            a("s_addc_u32 s13, s5, 0")
        a("s_sub_u32 s%d, %d, s%d" % (c.st[1], S_ * ldc, c.st[0]))
        make_srd(a, srdC, "s12", "s13", "s%d" % c.st[1])
        if kind in ("wo", "w2"):
            a("s_mul_i32 s%d, s%d, %d" % (c.st[0], s_tm, BM * ldr))
            a("s_mul_i32 s%d, s%d, %d" % (c.st[1], s_tn, BN * 2))
            a("s_add_u32 s%d, s%d, s%d" % (c.st[0], c.st[0], c.st[1]))
            a("s_sub_u32 s%d, %d, s%d" % (c.st[1], S_ * ldr, c.st[0]))
            if kind == "wo":
                a("s_add_u32 s12, s10, s%d" % c.st[0])
                a("s_addc_u32 s13, s11, 0")
            else:
                a("s_add_u32 s%d, s%d, %d" % (c.st[2], c.st[0], WS_H))
                a("s_add_u32 s12, s4, s%d" % c.st[2])
                a("s_addc_u32 s13, s5, 0")
            make_srd(a, srdR, "s12", "s13", "s%d" % c.st[1])
        if kind == "wo":
            a("s_mul_i32 s%d, s%d, %d" % (c.st[0], s_tm, BM * np2 * 8))
            a("s_lshl_b32 s%d, s%d, 3" % (c.st[1], s_tn))
            a("s_add_u32 s%d, s%d, s%d" % (c.st[0], c.st[0], c.st[1]))
            a("s_add_u32 s%d, s%d, %d" % (c.st[0], c.st[0], WS_ST2))
            a("s_add_u32 s12, s4, s%d" % c.st[0])
            a("s_addc_u32 s13, s5, 0")
            make_srd(a, srdS, "s12", "s13", BM * np2 * 8)
        if kind == "w1":
            a("s_mul_i32 s%d, s%d, %d" % (c.st[0], s_tm, 128 * np2 * 8))
            a("s_add_u32 s%d, s%d, %d" % (c.st[0], c.st[0], WS_ST2))
            a("s_add_u32 s12, s4, s%d" % c.st[0])
            a("s_addc_u32 s13, s5, 0")
            make_srd(a, srdS, "s12", "s13", 128 * np2 * 8)
            a("s_mul_i32 s%d, s%d, %d" % (c.st[0], s_tn, 224 * 4))
            a("s_add_u32 s%d, s%d, %d" % (c.st[0], c.st[0], WS_CS1))
            a("s_add_u32 s12, s4, s%d" % c.st[0])
            a("s_addc_u32 s13, s5, 0")
            make_srd(a, srdT, "s12", "s13", 15 * 3584 * 4 + 224 * 4)
    stamp(a, 0, s_wave, kidx, tmp_v=vst)
    a("s_cmp_lt_u32 s%d, 4" % s_wave)
    a("s_cbranch_scc1 %s" % Lcons)
    a("s_sub_u32 s%d, s%d, 4" % (c.s_p, s_wave))
    a("s_mov_b32 s%d, 0" % c.s_ka)
    a("s_mov_b32 s%d, 0" % c.s_kb)
    emit_producer_setup(a, c, 32)
    stamp(a, 1, s_wave, kidx, tmp_v=vst)
    def poll():
        Lnp = a.newlabel("Lnopoll")
        if kind == "wo" and MEGA:
            import kqkv
            Lnc = a.newlabel("Lnocs")
            a("s_cmp_lt_u32 s%d, 6" % s_wave)
            a("s_cbranch_scc1 %s" % Lnc)
            nB = (c.SB - 1) * c.b_ins
            a("s_waitcnt vmcnt(%d)" % (4 + nB))
            kqkv.COLSUM_FN(t, vl, c.st)
            a.label(Lnc)
        a("s_cmp_lg_u32 s%d, 4" % s_wave)
        a("s_cbranch_scc1 %s" % Lnp)
        if kind == "wo":
            a("s_lshr_b32 s%d, s%d, 2" % (c.st[0], s_tm))
            a("s_lshl_b32 s%d, s%d, 8" % (c.st[0], c.st[0]))
            a("s_add_u32 s%d, s%d, %d" % (c.st[0], c.st[0], FO))
            a("v_and_b32 v%d, 31, v%d" % (t[0], vl))
        else:
            base = FH if kind == "w1" else FH1
            a("s_lshl_b32 s%d, s%d, 7" % (c.st[0], s_tm))
            a("s_add_u32 s%d, s%d, %d" % (c.st[0], c.st[0], base))
            a("v_and_b32 v%d, 15, v%d" % (t[0], vl))
        a("v_lshlrev_b32 v%d, 3, v%d" % (t[0], t[0]))
        a("v_add_u32 v%d, s%d, v%d" % (t[0], c.st[0], t[0]))
        a("v_mov_b32 v56, s72")
        a("v_mov_b32 v57, s73")
        Lp = a.newlabel("Lpoll"); Lpd = a.newlabel("Lpolld")
        a("s_mov_b32 s57, 0")
        a.label(Lp)
        a("global_load_dwordx2 v[58:59], v%d, s[4:5] sc1" % t[0])
        a("s_waitcnt vmcnt(0)")
        a("v_cmp_eq_u64 vcc, v[56:57], v[58:59]")
        a("s_nop 4")
        a("s_cmp_eq_u64 vcc, exec")
        a("s_cbranch_scc1 %s" % Lpd)
        a("s_add_u32 s57, s57, 1")
        a("s_cmp_gt_u32 s57, 0x40000")
        a("s_cbranch_scc1 %s" % Lpd)
        a("s_sleep %s" % os.environ.get("PSLEEP", "4"))
        a("s_branch %s" % Lp)
        a.label(Lpd)
        if kind == "w1" and MEGA:
            Lc1 = a.newlabel("Lcs"); Lc2 = a.newlabel("Lcsd")
            a("s_mul_i32 s%d, s%d, 224" % (c.st[0], s_tn))
            a("s_lshr_b32 s%d, s%d, 6" % (c.st[0], c.st[0]))
            a("v_lshrrev_b32 v%d, 2, v%d" % (t[0], vl))
            a("v_mul_u32_u24 v%d, 56, v%d" % (t[0], t[0]))
            a("v_and_b32 v%d, 3, v%d" % (t[1], vl))
            a("v_add3_u32 v%d, v%d, v%d, s%d" % (t[0], t[0], t[1], c.st[0]))
            a("v_lshlrev_b32 v%d, 3, v%d" % (t[0], t[0]))
            a("v_add_u32 v%d, %d, v%d" % (t[0], CFU, t[0]))
            a("s_mov_b32 s57, 0")
            a.label(Lc1)
            a("global_load_dwordx2 v[58:59], v%d, s[4:5] sc1" % t[0])
            a("s_waitcnt vmcnt(0)")
            a("v_cmp_eq_u64 vcc, v[56:57], v[58:59]")
            a("s_nop 4")
            a("s_cmp_eq_u64 vcc, exec")
            a("s_cbranch_scc1 %s" % Lc2)
            a("s_add_u32 s57, s57, 1")
            a("s_cmp_gt_u32 s57, 0x40000")
            a("s_cbranch_scc1 %s" % Lc2)
            a("s_sleep 4")
            a("s_branch %s" % Lc1)
            a.label(Lc2)
        a.label(Lnp)
        a("s_barrier")
        stamp(a, 8, s_wave, kidx, tmp_v=vst)
    if first and not last:
        def mid():
            a("s_load_dwordx2 s[72:73], s[70:71], 0")
        c.prod_mid_hook = mid
    emit_producer_loop2(a, c, None if first else poll)
    if kind == "wo" and MEGA:
        Lna = a.newlabel("Lnoat")
        a("s_cmp_lt_u32 s%d, 6" % s_wave)
        a("s_cbranch_scc1 %s" % Lna)
        a("s_waitcnt vmcnt(0)")
        a("s_lshl_b32 s%d, s2, 1" % c.st[0])
        a("s_add_u32 s%d, s%d, s%d" % (c.st[0], c.st[0], s_wave))
        a("s_sub_u32 s%d, s%d, 6" % (c.st[0], c.st[0]))
        a("s_lshl_b32 s%d, s%d, 4" % (c.st[0], c.st[0]))
        a("s_add_u32 s%d, s%d, %d" % (c.st[0], c.st[0], CFU))
        a("v_lshlrev_b32 v%d, 3, v%d" % (t[0], vl))
        a("v_add_u32 v%d, s%d, v%d" % (t[0], c.st[0], t[0]))
        a("v_mov_b32 v56, s72")
        a("v_mov_b32 v57, s73")
        a("s_mov_b64 s[58:59], exec")
        a("s_mov_b64 exec, 3")
        a("global_store_dwordx2 v%d, v[56:57], s[4:5] sc1" % t[0])
        a("s_mov_b64 exec, s[58:59]")
        a.label(Lna)
    if first and not last:
        Lt1 = a.newlabel("Ltok1"); Ltp = a.newlabel("Ltp"); Ltd = a.newlabel("Ltd")
        a("s_waitcnt lgkmcnt(0)")
        a("s_cmp_lg_u32 s%d, 4" % s_wave)
        a("s_cbranch_scc1 %s" % Lt1)
        a("v_mov_b32 v%d, s72" % vtok)
        a("v_mov_b32 v%d, s73" % (vtok + 1))
        a("s_mov_b32 s57, 0")
        a.label(Ltp)
        a("v_cmp_ne_u64 vcc, 0, %s" % vr(vtok, 2))
        a("s_nop 4")
        a("s_cmp_eq_u64 vcc, exec")
        a("s_cbranch_scc1 %s" % Ltd)
        a("s_add_u32 s57, s57, 1")
        a("s_cmp_gt_u32 s57, 0x40000")
        a("s_cbranch_scc1 %s" % Ltd)
        a("v_mov_b32 v%d, 0" % (vtok + 2))
        a("global_load_dwordx2 %s, v%d, s[70:71] sc1" % (vr(vtok, 2), vtok + 2))
        a("s_waitcnt vmcnt(0)")
        a("s_branch %s" % Ltp)
        a.label(Ltd)
        a("v_mov_b32 v%d, %d" % (t[0], L_TOK))
        a("ds_write_b64 v%d, %s" % (t[0], vr(vtok, 2)))
        a("s_waitcnt lgkmcnt(0)")
        a.label(Lt1)
    other_srds()
    a("s_barrier")
    stamp(a, 2, s_wave, kidx, tmp_v=vst)
    a("s_branch %s" % Lfin)
    a.label(Lcons)
    a("s_lshr_b32 s%d, s%d, 1" % (c.s_wm, s_wave))
    a("s_and_b32 s%d, s%d, 1" % (c.s_wn, s_wave))
    other_srds()
    if first and not last:
        Lt0 = a.newlabel("Ltok0")
        a("s_or_b32 s58, s2, s%d" % s_wave)
        a("s_cmp_lg_u32 s58, 0")
        a("s_cbranch_scc1 %s" % Lt0)
        a("s_memrealtime s[58:59]")
        a("s_waitcnt lgkmcnt(0)")
        a("s_or_b32 s58, s58, 1")
        a("v_mov_b32 v%d, s58" % vtok)
        a("v_mov_b32 v%d, s59" % (vtok + 1))
        a("v_mov_b32 v%d, 0" % t[0])
        a("s_mov_b64 s[58:59], exec")
        a("s_mov_b64 exec, 1")
        a("global_store_dwordx2 v%d, %s, s[70:71] sc1" % (t[0], vr(vtok, 2)))
        a("s_mov_b64 exec, s[58:59]")
        a.label(Lt0)
    def side_loads():
      if kind == "w1":
        a("v_and_b32 v%d, 31, v%d" % (t[0], vl))
        a("s_lshl_b32 s%d, s%d, 5" % (c.st[0], s_wave))
        a("v_add_u32 v%d, s%d, v%d" % (t[0], c.st[0], t[0]))
        a("v_mul_u32_u24 v%d, %d, v%d" % (t[1], np2 * 8, t[0]))
        a("v_lshrrev_b32 v%d, 5, v%d" % (t[2], vl))
        a("v_mul_u32_u24 v%d, %d, v%d" % (t[2], np2 * 4, t[2]))
        a("v_add_u32 v%d, v%d, v%d" % (t[1], t[1], t[2]))
        nq = np2 * 4 // 16
        assert nq <= 4
        for q in range(nq):
            a("buffer_load_dwordx4 %s, v%d, s[%d:%d], 0 offen offset:%d%s" % (vr(vside + 4 * q, 4), t[1], srdS, srdS + 3, q * 16, SC))
        assert np2 == 8
        a("s_mul_i32 s%d, s%d, 56" % (c.st[0], s_wave))
        a("v_add_u32 v%d, s%d, v%d" % (t[3], c.st[0], vl))
        a("v_lshlrev_b32 v%d, 2, v%d" % (t[4], t[3]))
        a("v_cmp_gt_u32 vcc, 56, v%d" % vl)
        a("v_mov_b32 v%d, 0x7fffffff" % t[5])
        a("s_nop 0")
        a("v_cndmask_b32 v%d, v%d, v%d, vcc" % (t[4], t[5], t[4]))
        for q in range(16):
            a("s_mov_b32 s%d, %d" % (c.st[1], q * 3584 * 4))
            a("buffer_load_dword v%d, v%d, s[%d:%d], s%d offen%s" % (vside + 8 + q, t[4], srdT, srdT + 3, c.st[1], SC))
    c.cons_hook0 = side_loads
    if MEGA and kind == "wo":
        a("s_lshl_b32 s%d, s2, 2" % c.st[0])
        a("s_add_u32 s%d, s%d, s%d" % (c.st[0], c.st[0], s_wave))
        a("s_mul_i32 s%d, s%d, 7168" % (c.st[0], c.st[0]))
        a("v_lshlrev_b32 v%d, 4, v%d" % (t[0], vl))
        a("v_add_u32 v%d, s%d, v%d" % (t[0], c.st[0], t[0]))
        for j in range(7):
            if j == 4: a("v_add_u32 v%d, 4096, v%d" % (t[0], t[0]))
            a("global_load_dwordx4 v[124:127], v%d, s[68:69] offset:%d" % (t[0], (j % 4) * 1024))
    emit_consumer16_setup(a, c)
    if not first: a("s_barrier")
    stamp(a, 1, s_wave, kidx, tmp_v=vst)
    stamp(a, 6, s_wave, kidx, tmp_v=vst)
    emit_consumer16_loop(a, c)
    stamp(a, 7, s_wave, kidx, tmp_v=vst)
    stamp(a, 2, s_wave, kidx, tmp_v=vst)
    if kind == "w1":
        f = vside; g = vside + 8
        a("s_waitcnt vmcnt(0)")
        a("v_add_f32 v%d, v%d, v%d" % (t[5], f + 0, f + 2))
        a("v_add_f32 v%d, v%d, v%d" % (t[6], f + 1, f + 3))
        for q in range(2, 4):
            a("v_add_f32 v%d, v%d, v%d" % (t[5], t[5], f + 2 * q))
            a("v_add_f32 v%d, v%d, v%d" % (t[6], t[6], f + 2 * q + 1))
        a("v_mov_b32 v%d, v%d" % (f + 0, t[5]))
        a("v_mov_b32 v%d, v%d" % (f + 1, t[6]))
        for q in range(1, 16):
            a("v_add_f32 v%d, v%d, v%d" % (g, g, g + q))
        a("v_permlane32_swap_b32 v%d, v%d" % (f + 0, t[5]))
        a("v_permlane32_swap_b32 v%d, v%d" % (f + 1, t[6]))
        a("v_add_f32 v%d, v%d, v%d" % (t[5], t[5], f + 0))
        a("v_add_f32 v%d, v%d, v%d" % (t[6], t[6], f + 1))
        a("v_mul_f32 v%d, 0x3a800000, v%d" % (t[5], t[5]))
        a("v_mul_f32 v%d, 0x3a800000, v%d" % (t[6], t[6]))
        a("v_fma_f32 v%d, -v%d, v%d, v%d" % (t[6], t[5], t[5], t[6]))
        a("v_max_f32 v%d, 0, v%d" % (t[6], t[6]))
        a("v_add_f32 v%d, 0x3727c5ac, v%d" % (t[6], t[6]))
        a("v_rsq_f32 v%d, v%d" % (f + 1, t[6]))
        a("v_sub_f32 v%d, 0, v%d" % (f + 0, t[5]))
        a("v_and_b32 v%d, 31, v%d" % (t[0], vl))
        a("s_lshl_b32 s%d, s%d, 5" % (c.st[0], s_wave))
        a("v_add_u32 v%d, s%d, v%d" % (t[0], c.st[0], t[0]))
        a("v_lshlrev_b32 v%d, 3, v%d" % (t[0], t[0]))
        a("v_add_u32 v%d, %d, v%d" % (t[0], side, t[0]))
        a("ds_write_b64 v%d, %s" % (t[0], vr(f, 2)))
        a("s_mul_i32 s%d, s%d, 56" % (c.st[0], s_wave))
        a("v_add_u32 v%d, s%d, v%d" % (t[3], c.st[0], vl))
        a("v_lshlrev_b32 v%d, 2, v%d" % (t[3], t[3]))
        a("v_add_u32 v%d, %d, v%d" % (t[3], side + 1024, t[3]))
        a("v_cmp_gt_u32 vcc, 56, v%d" % vl)
        a("s_and_saveexec_b64 s[56:57], vcc")
        a("ds_write_b32 v%d, v%d" % (t[3], g))
        a("s_mov_b64 exec, s[56:57]")
        a("s_waitcnt lgkmcnt(0)")
    a("s_barrier")
    a("s_nop 3")
    a("v_and_b32 v%d, 15, v%d" % (t[0], vl))
    a("s_mul_i32 s%d, s%d, %d" % (c.st[0], c.s_wm, c.WM))
    a("v_add_u32 v%d, s%d, v%d" % (t[0], c.st[0], t[0]))
    a("v_mul_u32_u24 v%d, %d, v%d" % (t[1], pitch, t[0]))
    a("v_lshrrev_b32 v%d, 4, v%d" % (t[2], vl))
    a("v_lshl_add_u32 v%d, v%d, 3, v%d" % (t[1], t[2], t[1]))
    a("s_mul_i32 s%d, s%d, %d" % (c.st[0], c.s_wn, c.NT * 32))
    a("s_add_u32 s%d, s%d, %d" % (c.st[0], c.st[0], cbase))
    a("v_add_u32 v%d, s%d, v%d" % (t[1], c.st[0], t[1]))
    f0 = c.fX[0]
    if kind == "w1":
        a("v_lshlrev_b32 v%d, 3, v%d" % (t[3], t[0]))
        a("v_add_u32 v%d, %d, v%d" % (t[3], side, t[3]))
        for mt in range(4):
            a("ds_read_b64 %s, v%d offset:%d" % (vr(f0 + 2 * mt, 2), t[3], mt * 16 * 8))
        a("v_lshlrev_b32 v%d, 4, v%d" % (t[4], t[2]))
        a("s_mul_i32 s%d, s%d, %d" % (c.st[0], c.s_wn, c.NT * 64))
        a("v_add_u32 v%d, s%d, v%d" % (t[4], c.st[0], t[4]))
        a("v_add_u32 v%d, %d, v%d" % (t[4], side, t[4]))
        for tt in range(c.NT):
            a("ds_read_b128 %s, v%d offset:%d" % (vr(f0 + 8 + 4 * tt, 4), t[4], 1024 + tt * 64))
        a("s_waitcnt lgkmcnt(%d)" % c.NT)
        rs = f0 + 8 + 4 * c.NT
        for mt in range(4):
            a("v_mov_b32 v%d, v%d" % (rs + 2 * mt, f0 + 2 * mt + 1))
    tmp = c.fX[1] + 4 * c.MT
    ntmp = min(4, (4 * c.NT) // 2)
    for tt in range(c.NT):
        if kind == "w1": a("s_waitcnt lgkmcnt(%d)" % min(15, c.NT - 1 - tt + tt * c.MT))
        for mt in range(c.MT):
            acc = c.acc + 4 * (tt * c.MT + mt)
            if kind == "w1":
                cs = f0 + 8 + 4 * tt
                for h in range(2):
                    a("v_pk_fma_f32 %s, %s, %s, %s op_sel_hi:[1,0,1]" % (vr(acc + 2 * h, 2), vr(cs + 2 * h, 2), vr(f0 + 2 * mt, 2), vr(acc + 2 * h, 2)))
                    a("v_pk_mul_f32 %s, %s, %s op_sel_hi:[1,0]" % (vr(acc + 2 * h, 2), vr(acc + 2 * h, 2), vr(rs + 2 * mt, 2)))
            d = acc if kind != "w1" else acc
            a("v_cvt_pk_bf16_f32 v%d, v%d, v%d" % (d, acc, acc + 1))
            a("v_cvt_pk_bf16_f32 v%d, v%d, v%d" % (d + 1, acc + 2, acc + 3))
            if kind == "w1":
                a("v_pk_max_i16 v%d, v%d, 0" % (d, d))
                a("v_pk_max_i16 v%d, v%d, 0" % (d + 1, d + 1))
            a("ds_write_b64 v%d, %s offset:%d" % (t[1], vr(d, 2), mt * 16 * pitch + tt * 32))
    a("s_waitcnt lgkmcnt(0)")
    a.label(Lfin)
    G = BN // 8
    nf = BM * G // 64 // 8
    vL = [i for i in range(nf)]; vG = [nf + i for i in range(nf)]
    vGR = [2 * nf + i for i in range(nf)]
    vD = (3 * nf + 3) // 4 * 4
    vR = vD + 4 * nf
    mul, sh = magic_div(G, BM * G + 64)
    t = [vR + 4 * nf + i for i in range(10)]
    assert vR + 4 * nf + 10 <= misc
    a("s_mul_i32 s%d, s%d, %d" % (c.st[0], s_wave, nf * 64))
    for j in range(nf):
        a("v_add_u32 v%d, s%d, v%d" % (t[0], c.st[0], vl))
        if j: a("v_add_u32 v%d, %d, v%d" % (t[0], 64 * j, t[0]))
        a("v_mul_u32_u24 v%d, %d, v%d" % (t[1], mul, t[0]))
        a("v_lshrrev_b32 v%d, %d, v%d" % (t[1], sh, t[1]))
        a("v_mul_u32_u24 v%d, %d, v%d" % (t[2], G, t[1]))
        a("v_sub_u32 v%d, v%d, v%d" % (t[2], t[0], t[2]))
        a("v_lshlrev_b32 v%d, 4, v%d" % (t[2], t[2]))
        a("v_mul_u32_u24 v%d, %d, v%d" % (t[3], pitch, t[1]))
        a("v_add_u32 v%d, v%d, v%d" % (vL[j], t[3], t[2]))
        a("v_mul_u32_u24 v%d, %d, v%d" % (t[3], ldc, t[1]))
        a("v_add_u32 v%d, v%d, v%d" % (vG[j], t[3], t[2]))
        if kind in ("wo", "w2"):
            a("v_mul_u32_u24 v%d, %d, v%d" % (t[3], ldr, t[1]))
            a("v_add_u32 v%d, v%d, v%d" % (vGR[j], t[3], t[2]))
            a("buffer_load_dwordx4 %s, v%d, s[%d:%d], 0 offen%s" % (vr(vR + 4 * j, 4), vGR[j], srdR, srdR + 3, SC if kind == "w2" else ""))
    stamp(a, 3, s_wave, kidx, tmp_v=vst)
    a("s_barrier")
    stamp(a, 4, s_wave, kidx, tmp_v=vst)
    if first and not last:
        a("v_mov_b32 v%d, %d" % (t[8], L_TOK))
        a("ds_read_b64 %s, v%d" % (vr(vtok, 2), t[8]))
        a("s_waitcnt lgkmcnt(0)")
        a("v_readfirstlane_b32 s72, v%d" % vtok)
        a("v_readfirstlane_b32 s73, v%d" % (vtok + 1))
    for j in range(nf):
        a("ds_read_b128 %s, v%d offset:%d" % (vr(vD + 4 * j, 4), vL[j], cbase))
    if kind in ("wo", "w2"): a("s_waitcnt vmcnt(0)")
    lanes_per_row = G
    for j in range(nf):
        a("s_waitcnt lgkmcnt(%d)" % (nf - 1 - j))
        if kind in ("wo", "w2"):
            for q in range(4):
                d = vD + 4 * j + q; r = vR + 4 * j + q
                a("v_lshlrev_b32 v%d, 16, v%d" % (t[0], d))
                a("v_and_b32 v%d, 0xffff0000, v%d" % (t[1], d))
                a("v_lshlrev_b32 v%d, 16, v%d" % (t[2], r))
                a("v_and_b32 v%d, 0xffff0000, v%d" % (t[3], r))
                a("v_add_f32 v%d, v%d, v%d" % (t[0], t[0], t[2]))
                a("v_add_f32 v%d, v%d, v%d" % (t[1], t[1], t[3]))
                a("v_cvt_pk_bf16_f32 v%d, v%d, v%d" % (d, t[0], t[1]))
                if kind == "wo":
                    a("v_lshlrev_b32 v%d, 16, v%d" % (t[0], d))
                    a("v_and_b32 v%d, 0xffff0000, v%d" % (t[1], d))
                    if q == 0:
                        a("v_add_f32 v%d, v%d, v%d" % (t[4], t[0], t[1]))
                        a("v_mul_f32 v%d, v%d, v%d" % (t[5], t[0], t[0]))
                    else:
                        a("v_add_f32 v%d, v%d, v%d" % (t[4], t[4], t[0]))
                        a("v_add_f32 v%d, v%d, v%d" % (t[4], t[4], t[1]))
                        a("v_fmac_f32 v%d, v%d, v%d" % (t[5], t[0], t[0]))
                    a("v_fmac_f32 v%d, v%d, v%d" % (t[5], t[1], t[1]))
        a("buffer_store_dwordx4 %s, v%d, s[%d:%d], 0 offen%s" % (vr(vD + 4 * j, 4), vG[j], srdC, srdC + 3, "" if last else SC))
        if kind == "wo":
            steps = ["quad_perm:[1,0,3,2]", "quad_perm:[2,3,0,1]", "row_half_mirror"] + (["row_mirror"] if G == 16 else [])
            for dpp in steps:
                a("s_nop 1")
                a("v_add_f32_dpp v%d, v%d, v%d %s row_mask:0xf bank_mask:0xf" % (t[6], t[4], t[4], dpp))
                a("v_add_f32_dpp v%d, v%d, v%d %s row_mask:0xf bank_mask:0xf" % (t[7], t[5], t[5], dpp))
                a("v_mov_b32 v%d, v%d" % (t[4], t[6]))
                a("v_mov_b32 v%d, v%d" % (t[5], t[7]))
            lgG = G.bit_length() - 1
            a("v_add_u32 v%d, s%d, v%d" % (t[0], c.st[0], vl))
            if j: a("v_add_u32 v%d, %d, v%d" % (t[0], 64 * j, t[0]))
            a("v_lshrrev_b32 v%d, %d, v%d" % (t[1], lgG, t[0]))
            a("v_mul_u32_u24 v%d, %d, v%d" % (t[1], np2 * 8, t[1]))
            a("v_and_b32 v%d, %d, v%d" % (t[2], G - 1, vl))
            a("v_cmp_eq_u32 vcc, 0, v%d" % t[2])
            a("v_mov_b32 v%d, 0x7fffffff" % t[3])
            a("s_nop 1")
            a("v_cndmask_b32 v%d, v%d, v%d, vcc" % (t[1], t[3], t[1]))
            a("v_mov_b32 v%d, v%d" % (vR + 4 * j, t[4]))
            a("v_mov_b32 v%d, v%d" % (vR + 4 * j + 1, t[5]))
            a("buffer_store_dwordx2 %s, v%d, s[%d:%d], 0 offen%s" % (vr(vR + 4 * j, 2), t[1], srdS, srdS + 3, SC))
    if not last:
        a("s_waitcnt vmcnt(0)")
        a("s_barrier")
        Lf = a.newlabel("Lflag")
        a("s_cmp_lg_u32 s%d, 0" % s_wave)
        a("s_cbranch_scc1 %s" % Lf)
        if kind == "wo":
            a("s_lshl_b32 s%d, s%d, 3" % (c.st[0], s_tm))
            a("s_add_u32 s%d, s%d, s%d" % (c.st[0], c.st[0], s_tn))
            base = FH
        else:
            a("s_lshl_b32 s%d, s%d, 4" % (c.st[0], s_tm))
            a("s_add_u32 s%d, s%d, s%d" % (c.st[0], c.st[0], s_tn))
            base = FH1
        a("s_lshl_b32 s%d, s%d, 3" % (c.st[0], c.st[0]))
        a("s_add_u32 s%d, s%d, %d" % (c.st[0], c.st[0], base))
        a("v_mov_b32 v%d, s%d" % (t[0], c.st[0]))
        a("v_mov_b32 v%d, s72" % vtok)
        a("v_mov_b32 v%d, s73" % (vtok + 1))
        a("s_mov_b64 s[58:59], exec")
        a("s_mov_b64 exec, 1")
        a("global_store_dwordx2 v%d, %s, s[4:5] sc1" % (t[0], vr(vtok, 2)))
        a("s_mov_b64 exec, s[58:59]")
        a.label(Lf)
    else:
        a("s_waitcnt vmcnt(0)") if STAMPS else None
    stamp(a, 5, s_wave, kidx, tmp_v=vst)
    return vmax, lds

def fused_kernel(a, name, kinds):
    kernel_header(a, name)
    Lend = a.newlabel("Lend")
    a("s_cmp_ge_u32 s2, 256")
    a("s_cbranch_scc1 %s" % Lend)
    a("s_load_dwordx2 s[4:5], s[0:1], %d" % KA_WS)
    a("s_load_dwordx2 s[8:9], s[0:1], %d" % KA_OUT)
    a("s_load_dwordx2 s[10:11], s[0:1], %d" % KA_X)
    a("s_load_dwordx2 s[64:65], s[0:1], %d" % KA_WO)
    a("s_load_dwordx2 s[66:67], s[0:1], %d" % KA_W1)
    a("s_load_dwordx2 s[68:69], s[0:1], %d" % KA_W2)
    a("s_load_dwordx2 s[70:71], s[0:1], %d" % KA_DBG)
    a("v_lshrrev_b32 v1, 6, v0")
    a("s_nop 0")
    a("v_readfirstlane_b32 s40, v1")
    a("s_waitcnt lgkmcnt(0)")
    vm = 0; lds = 0
    for i, k in enumerate(kinds):
        v, l = gemm_phase(a, k, i == 0, i == len(kinds) - 1)
        vm = max(vm, v); lds = max(lds, l)
    a.label(Lend)
    a("s_endpgm")
    return kernel_desc(name, vm, 80), L_TOK + 64


def mega_kernel(a, name):
    global MEGA
    MEGA = True
    from kqkv import qkv_kernel
    Lend = a.newlabel("Lend")
    vm, lds = qkv_kernel(a, name, mega=True, Lend_ext=Lend)
    a("s_load_dwordx2 s[8:9], s[0:1], %d" % KA_OUT)
    a("s_load_dwordx2 s[64:65], s[0:1], %d" % KA_WO)
    a("s_load_dwordx2 s[66:67], s[0:1], %d" % KA_W1)
    a("s_load_dwordx2 s[68:69], s[0:1], %d" % KA_W2)
    a("s_load_dwordx2 s[70:71], s[0:1], %d" % KA_DBG)
    a("s_waitcnt lgkmcnt(0)")
    kinds = ["wo", "w1", "w2"]
    for i, k in enumerate(kinds):
        v, l = gemm_phase(a, k, False, i == len(kinds) - 1)
        vm = max(vm, v); lds = max(lds, l)
    a.label(Lend)
    a("s_endpgm")
    return kernel_desc(name, 256, 90), max(lds, 147456)
```

```python
from common import *
from gemm import *
import os

L2E = 0x3fb8aa3b

def mfma_wait(a):
    a("s_nop 7"); a("s_nop 4")

def mf32(d, A, B, C):
    return "v_mfma_f32_32x32x16_bf16 %s, %s, %s, %s" % (vr(d, 16), vr(A, 4), vr(B, 4), C if isinstance(C, str) else vr(C, 16))

def cross32(a, op, x, t):
    a("v_mov_b32 v%d, v%d" % (t, x))
    a("s_nop 1")
    a("v_permlane32_swap_b32 v%d, v%d" % (t, x))
    a("%s v%d, v%d, v%d" % (op, x, x, t))

def softmax2(a, p, pos, neg, e, t, s_l2e):
    mx, mn, t0, t1, sp, sn, rp, rn = t[0:8]
    a("v_max3_f32 v%d, v%d, v%d, v%d" % (mx, p, p + 1, p + 2))
    a("v_min3_f32 v%d, v%d, v%d, v%d" % (mn, p, p + 1, p + 2))
    for i in range(3, 15, 2):
        a("v_max3_f32 v%d, v%d, v%d, v%d" % (mx, mx, p + i, p + i + 1))
        a("v_min3_f32 v%d, v%d, v%d, v%d" % (mn, mn, p + i, p + i + 1))
    a("v_max_f32 v%d, v%d, v%d" % (mx, mx, p + 15))
    a("v_min_f32 v%d, v%d, v%d" % (mn, mn, p + 15))
    a("v_mov_b32 v%d, v%d" % (t0, mx))
    a("v_mov_b32 v%d, v%d" % (t1, mn))
    a("s_nop 1")
    a("v_permlane32_swap_b32 v%d, v%d" % (t0, mx))
    a("v_permlane32_swap_b32 v%d, v%d" % (t1, mn))
    a("v_max_f32 v%d, v%d, v%d" % (mx, mx, t0))
    a("v_min_f32 v%d, v%d, v%d" % (mn, mn, t1))
    a("v_mul_f32 v%d, s%d, v%d" % (mx, s_l2e, mx))
    a("v_mul_f32 v%d, s%d, v%d" % (mn, s_l2e, mn))
    for (sign, out, ssum, rr) in ((+1, pos, sp, rp), (-1, neg, sn, rn)):
        for i in range(16):
            if sign > 0: a("v_fma_f32 v%d, v%d, s%d, -v%d" % (e + i, p + i, s_l2e, mx))
            else: a("v_fma_f32 v%d, -v%d, s%d, v%d" % (e + i, p + i, s_l2e, mn))
        for i in range(16):
            a("v_exp_f32 v%d, v%d" % (e + i, e + i))
        a("s_nop 0")
        a("v_add_f32 v%d, v%d, v%d" % (ssum, e, e + 1))
        a("v_add_f32 v%d, v%d, v%d" % (t0, e + 2, e + 3))
        for i in range(4, 16, 2):
            a("v_add_f32 v%d, v%d, v%d" % (ssum, ssum, e + i))
            a("v_add_f32 v%d, v%d, v%d" % (t0, t0, e + i + 1))
        a("v_add_f32 v%d, v%d, v%d" % (ssum, ssum, t0))
        cross32(a, "v_add_f32", ssum, t0)
        a("v_rcp_f32 v%d, v%d" % (rr, ssum))
        a("s_nop 0")
        for i in range(0, 16, 2):
            a("v_mul_f32 v%d, v%d, v%d" % (e + i, e + i, rr))
            a("v_mul_f32 v%d, v%d, v%d" % (e + i + 1, e + i + 1, rr))
            a("v_cvt_pk_bf16_f32 v%d, v%d, v%d" % (out + i // 2, e + i, e + i + 1))

def wave_reduce_add(a, xs, ts):
    for dpp in ("quad_perm:[1,0,3,2]", "quad_perm:[2,3,0,1]", "row_half_mirror", "row_mirror"):
        a("s_nop 1")
        for x, t in zip(xs, ts):
            a("v_add_f32_dpp v%d, v%d, v%d %s row_mask:0xf bank_mask:0xf" % (t, x, x, dpp))
        for x, t in zip(xs, ts):
            a("v_mov_b32 v%d, v%d" % (x, t))
    for sw in ("v_permlane16_swap_b32", "v_permlane32_swap_b32"):
        a("s_nop 1")
        for x, t in zip(xs, ts):
            a("%s v%d, v%d" % (sw, t, x))
        for x, t in zip(xs, ts):
            a("v_add_f32 v%d, v%d, v%d" % (x, x, t))
        for x, t in zip(xs, ts):
            a("v_mov_b32 v%d, v%d" % (t, x))

COLSUM_FN = None
FO = WS_FLAG + 196608
CSCNT_OFF = 128
def qkv_kernel(a, name, mega=False, Lend_ext=None):
    c = Cfg()
    c.BM, c.BN, c.K, c.lda, c.ldb, c.S = 256, 96, 1024, 2048, 6144, 3
    c.NS = 16; c.nA = 32; c.nB = 12; c.a_ins = 8; c.b_ins = 3; c.P = 12
    c.stage_bytes = 44 * 1024
    c.rotate = True
    c.colmode = "qkv"; c.swz = []
    set_rings(c, *[int(x) for x in os.environ.get("RING_qkv", "3,3").split(",")])
    c.srdA, c.srdB = 16, 20
    srdO, srdKV, srdW1 = 24, 28, 32
    s_wave, s_rb, s_h = 40, 41, 42
    c.s_p = 43
    c.s_slotA = c.s_cslotA = 45; c.s_ka = c.s_deltaA = 46; c.s_kb = c.s_deltaB = 47; c.s_mA = 48; c.s_mB = 49; c.s_i = 50; c.s_slotB = c.s_cslotB = 51
    c.st = [52, 53, 54, 55]
    s_l2e, s_ones = 56, 57
    ring = c.ring_bytes
    L_WPHI = ring
    L_CS = L_WPHI + 2048
    L_RS = L_CS + 3072
    L_NM = L_RS + 1024
    L_TOK = L_NM + 1024
    L_STAT = L_TOK + 64
    lds = L_STAT + 64
    assert lds <= 163840
    L_PK = 0
    PKP = 144
    L_RED = 36864
    L_KVF = L_RED + 4 * KVP_BYTES
    L_ZF = L_KVF + 4096
    accQ = [0, 16]; accK = [32, 48]; accV = [64, 80]
    F = [96, 116, 176, 196]
    vcs = [136, 137, 138]
    c.vX = [139, 140, 141, 142]; vW = 143
    c.v_lane = 144
    c.vt = [145 + i for i in range(8)]
    vtok = 154
    vst = 160
    vmax = 256

    kernel_header(a, name)
    Lend = Lend_ext if mega else a.newlabel("Lend")
    Ljoin = a.newlabel("Ljoin")
    SCM = " sc1" if mega else ""
    a("s_cmp_ge_u32 s2, 256")
    a("s_cbranch_scc1 %s" % Lend)
    a("s_load_dwordx2 s[4:5], s[0:1], %d" % KA_WS)
    a("s_load_dwordx2 s[6:7], s[0:1], %d" % KA_WQKV)
    a("s_load_dwordx2 s[8:9], s[0:1], %d" % KA_DBG)
    a("s_load_dwordx2 s[10:11], s[0:1], %d" % KA_X)
    a("s_load_dwordx2 s[14:15], s[0:1], %d" % KA_WPHI)
    a("s_load_dwordx2 s[64:65], s[0:1], %d" % KA_W1)
    a("s_load_dwordx2 s[66:67], s[0:1], %d" % KA_W2)
    a("s_load_dwordx2 s[68:69], s[0:1], %d" % KA_WO)
    a("v_and_b32 v%d, 63, v0" % c.v_lane)
    a("v_lshrrev_b32 v1, 6, v0")
    a("s_nop 0")
    a("v_readfirstlane_b32 s%d, v1" % s_wave)
    if "badmap" in os.environ.get("GDBG", ""):
        a("s_lshr_b32 s%d, s2, 5" % c.st[0])
        a("s_and_b32 s%d, s2, 31" % c.st[1])
    else:
        a("s_and_b32 s%d, s2, 7" % c.st[0])
        a("s_lshr_b32 s%d, s2, 3" % c.st[1])
    a("s_and_b32 s%d, s%d, 1" % (c.st[2], c.st[0]))
    a("s_lshl_b32 s%d, s%d, 2" % (s_rb, c.st[2]))
    a("s_and_b32 s%d, s%d, 3" % (c.st[2], c.st[1]))
    a("s_add_u32 s%d, s%d, s%d" % (s_rb, s_rb, c.st[2]))
    a("s_lshr_b32 s%d, s%d, 1" % (c.st[2], c.st[0]))
    a("s_lshl_b32 s%d, s%d, 3" % (s_h, c.st[2]))
    a("s_lshr_b32 s%d, s%d, 2" % (c.st[2], c.st[1]))
    a("s_add_u32 s%d, s%d, s%d" % (s_h, s_h, c.st[2]))
    rot = os.environ.get("K1ROT", "1")
    if rot == "1":
        a("s_lshl_b32 s%d, s%d, 1" % (c.st[2], c.st[0]))
        a("s_add_u32 s%d, s%d, s%d" % (c.st[2], c.st[2], c.st[1]))
        a("s_and_b32 s%d, s%d, 15" % (c.st[2], c.st[2]))
    elif rot == "2":
        a("s_lshr_b32 s%d, s%d, 2" % (c.st[2], c.st[1]))
        a("s_lshl_b32 s%d, s%d, 1" % (c.st[2], c.st[2]))
    elif rot == "3":
        a("s_and_b32 s%d, s%d, 3" % (c.st[2], c.st[1]))
        a("s_lshl_b32 s%d, s%d, 2" % (c.st[2], c.st[2]))
        a("s_bfe_u32 s%d, s%d, 0x20002" % (c.st[3], c.st[1]))
        a("s_add_u32 s%d, s%d, s%d" % (c.st[2], c.st[2], c.st[3]))
    elif rot == "4":
        a("s_lshl_b32 s%d, s%d, 1" % (c.st[2], c.st[0]))
    elif rot == "5":
        a("s_and_b32 s%d, s%d, 3" % (c.st[2], c.st[1]))
        a("s_lshl_b32 s%d, s%d, 1" % (c.st[2], c.st[2]))
        a("s_lshr_b32 s%d, s%d, 2" % (c.st[3], c.st[1]))
        a("s_add_u32 s%d, s%d, s%d" % (c.st[2], c.st[2], c.st[3]))
    else:
        a("s_mov_b32 s%d, 0" % c.st[2])
    a("s_lshl_b32 s%d, s%d, 7" % (c.s_ka, c.st[2]))
    a("s_mul_i32 s%d, s%d, %d" % (c.s_kb, c.st[2], 64 * c.ldb))
    a("s_mov_b32 s%d, 0x%x" % (s_l2e, L2E))
    a("s_mov_b32 s%d, 0x3f803f80" % s_ones)
    a("s_waitcnt lgkmcnt(0)")
    a("s_lshl_b32 s%d, s%d, 19" % (c.st[0], s_rb))
    a("s_add_u32 s12, s10, s%d" % c.st[0])
    a("s_addc_u32 s13, s11, 0")
    make_srd(a, c.srdA, "s12", "s13", 256 * 2048)
    a("s_lshl_b32 s%d, s%d, 6" % (c.st[0], s_h))
    a("s_add_u32 s12, s6, s%d" % c.st[0])
    a("s_addc_u32 s13, s7, 0")
    a("s_sub_u32 s%d, %d, s%d" % (c.st[1], 1024 * 6144, c.st[0]))
    make_srd(a, c.srdB, "s12", "s13", "s%d" % c.st[1])
    a("s_mul_i32 s%d, s%d, %d" % (c.st[1], s_rb, 256 * LD_O))
    a("s_add_u32 s%d, s%d, s%d" % (c.st[0], c.st[0], c.st[1]))
    a("s_add_u32 s12, s4, s%d" % c.st[0])
    a("s_addc_u32 s13, s5, 0")
    make_srd(a, srdO, "s12", "s13", 256 * LD_O - 0)
    a("s_mul_i32 s%d, s%d, %d" % (c.st[0], s_h, 8 * KVP_BYTES))
    a("s_add_u32 s%d, s%d, %d" % (c.st[0], c.st[0], WS_KVP))
    a("s_add_u32 s12, s4, s%d" % c.st[0])
    a("s_addc_u32 s13, s5, 0")
    make_srd(a, srdKV, "s12", "s13", 8 * KVP_BYTES)
    kidx = 0
    stamp(a, 0, s_wave, kidx, tmp_v=vst)
    Lcons = a.newlabel("Lconsumer")
    a("s_cmp_lt_u32 s%d, 4" % s_wave)
    a("s_cbranch_scc1 %s" % Lcons)

    if os.environ.get("PRIO_P"): a("s_setprio %s" % os.environ["PRIO_P"])
    a("s_sub_u32 s%d, s%d, 4" % (c.s_p, s_wave))
    vl = c.v_lane
    t = c.vt
    a("s_lshl_b32 s%d, s%d, 8" % (c.st[0], s_rb))
    a("s_lshl_b32 s%d, s%d, 3" % (c.st[1], s_h))
    a("s_add_u32 s%d, s%d, s%d" % (c.st[0], c.st[0], c.st[1]))
    a("s_lshl_b32 s%d, s%d, 1" % (c.st[1], c.s_p))
    a("s_add_u32 s74, s%d, s%d" % (c.st[0], c.st[1]))
    a("s_lshl_b32 s%d, s74, 11" % c.st[1])
    a("v_lshlrev_b32 v%d, 4, v%d" % (t[0], vl))
    a("v_add_u32 v%d, s%d, v%d" % (t[0], c.st[1], t[0]))
    a("global_load_dwordx4 v[64:67], v%d, s[10:11]" % t[0])
    a("global_load_dwordx4 v[68:71], v%d, s[10:11] offset:1024" % t[0])
    a("global_load_dwordx4 v[72:75], v%d, s[10:11] offset:2048" % t[0])
    a("global_load_dwordx4 v[76:79], v%d, s[10:11] offset:3072" % t[0])
    emit_producer_setup(a, c, 32)
    stamp(a, 1, s_wave, kidx, tmp_v=vst)
    def prod_hook():
        Lhk = a.newlabel("Lhook")
        a("s_cmp_lg_u32 s%d, 0" % c.s_i)
        a("s_cbranch_scc1 %s" % Lhk)
        raw = 64; fp = 80
        for r in range(2):
            for q in range(8):
                a("v_lshlrev_b32 v%d, 16, v%d" % (fp + 16 * r + 2 * q, raw + 8 * r + q))
                a("v_and_b32 v%d, 0xffff0000, v%d" % (fp + 16 * r + 2 * q + 1, raw + 8 * r + q))
        sm = [112, 113]; tm_ = [114, 115]
        for r in range(2):
            a("v_add_f32 v%d, v%d, v%d" % (sm[r], fp + 16 * r, fp + 16 * r + 1))
            a("v_add_f32 v%d, v%d, v%d" % (tm_[r], fp + 16 * r + 2, fp + 16 * r + 3))
        for q in range(4, 16, 2):
            for r in range(2):
                a("v_add_f32 v%d, v%d, v%d" % (sm[r], sm[r], fp + 16 * r + q))
                a("v_add_f32 v%d, v%d, v%d" % (tm_[r], tm_[r], fp + 16 * r + q + 1))
        for r in range(2):
            a("v_add_f32 v%d, v%d, v%d" % (sm[r], sm[r], tm_[r]))
        wave_reduce_add(a, sm, tm_)
        for r in range(2):
            a("v_mul_f32 v%d, 0x3a800000, v%d" % (sm[r], sm[r]))
        sq = [116, 117]
        for r in range(2):
            for q in range(16):
                a("v_sub_f32 v%d, v%d, v%d" % (fp + 16 * r + q, fp + 16 * r + q, sm[r]))
        for r in range(2):
            a("v_mul_f32 v%d, v%d, v%d" % (sq[r], fp + 16 * r, fp + 16 * r))
            a("v_mul_f32 v%d, v%d, v%d" % (tm_[r], fp + 16 * r + 1, fp + 16 * r + 1))
        for q in range(2, 16, 2):
            for r in range(2):
                a("v_fmac_f32 v%d, v%d, v%d" % (sq[r], fp + 16 * r + q, fp + 16 * r + q))
                a("v_fmac_f32 v%d, v%d, v%d" % (tm_[r], fp + 16 * r + q + 1, fp + 16 * r + q + 1))
        for r in range(2):
            a("v_add_f32 v%d, v%d, v%d" % (sq[r], sq[r], tm_[r]))
        wave_reduce_add(a, sq, tm_)
        for r in range(2):
            a("v_mul_f32 v%d, 0x3a800000, v%d" % (sq[r], sq[r]))
            a("v_add_f32 v%d, 0x3727c5ac, v%d" % (sq[r], sq[r]))
            a("v_rsq_f32 v%d, v%d" % (118 + r, sq[r]))
        a("s_nop 0")
        for r in range(2):
            a("v_mul_f32 v%d, v%d, v%d" % (120 + r, sm[r], 118 + r))
            a("v_sub_f32 v%d, 0, v%d" % (120 + r, 120 + r))
        a("s_lshl_b32 s%d, s%d, 3" % (c.st[0], c.s_p))
        a("s_add_u32 s%d, s%d, %d" % (c.st[0], c.st[0], L_STAT))
        a("v_mov_b32 v%d, s%d" % (t[0], c.st[0]))
        a("s_mov_b64 s[58:59], exec")
        a("s_mov_b64 exec, 1")
        a("ds_write_b64 v%d, v[118:119]" % t[0])
        a("ds_write_b64 v%d, v[120:121] offset:32" % t[0])
        a("s_mov_b64 exec, s[58:59]")
        Lt = a.newlabel("Ltok")
        a("s_cmp_lg_u32 s%d, 4" % s_wave)
        a("s_cbranch_scc1 %s" % Lt)
        a("v_lshlrev_b32 v%d, 4, v%d" % (t[1], vl))
        a("s_lshl_b32 s%d, s%d, 11" % (c.st[0], s_h))
        a("s_add_u32 s12, s14, s%d" % c.st[0])
        a("s_addc_u32 s13, s15, 0")
        make_srd(a, srdW1, "s12", "s13", 2048)
        a("s_mov_b32 m0, %d" % L_WPHI)
        a("s_nop 0")
        a("buffer_load_dwordx4 v%d, s[%d:%d], 0 offen lds" % (t[1], srdW1, srdW1 + 3))
        a("s_nop 0")
        a("buffer_load_dwordx4 v%d, s[%d:%d], 0 offen offset:1024 lds" % (t[1], srdW1, srdW1 + 3))
        a.label(Lt)
        a("s_waitcnt lgkmcnt(0)")
        a.label(Lhk)
        Lq = a.newlabel("Lq"); Lq2 = a.newlabel("Lq2")
        a("s_cmp_lg_u32 s%d, 4" % s_wave)
        a("s_cbranch_scc1 %s" % Lq2)
        a("s_cmp_lg_u32 s%d, 9" % c.s_i)
        a("s_cbranch_scc1 %s" % Lq)
        a("s_load_dwordx2 s[78:79], s[8:9], 0")
        a("s_lshl_b32 s%d, s%d, 2" % (c.st[0], s_rb))
        a("s_add_u32 s%d, s%d, 16" % (c.st[0], c.st[0]))
        a("s_load_dword s80, s[8:9], s%d" % c.st[0])
        a.label(Lq)
        a("s_cmp_lg_u32 s%d, 11" % c.s_i)
        a("s_cbranch_scc1 %s" % Lq2)
        a("s_waitcnt lgkmcnt(0)")
        a("s_cmp_lt_u32 s80, 32")
        a("s_cbranch_scc1 %s" % Lq2)
        emit_stats_loads()
        a("s_mov_b32 s73, 1")
        a.label(Lq2)
    vSt = 124
    def emit_stats_loads():
        a("s_lshl_b32 s%d, s%d, 10" % (c.st[0], s_rb))
        a("s_add_u32 s%d, s%d, %d" % (c.st[0], c.st[0], WS_ST1))
        a("v_lshlrev_b32 v%d, 4, v%d" % (t[6], vl))
        a("v_add_u32 v%d, s%d, v%d" % (t[6], c.st[0], t[6]))
        a("global_load_dwordx4 %s, v%d, s[4:5] sc1" % (vr(vSt, 4), t[6]))
        a("v_add_u32 v%d, 8192, v%d" % (t[6], t[6]))
        a("global_load_dwordx4 %s, v%d, s[4:5] sc1" % (vr(vSt + 4, 4), t[6]))
    a("s_mov_b32 s73, 0")
    a("s_mov_b32 s78, 0")
    a("s_mov_b32 s79, 0")
    c.prod_iter_hook = prod_hook
    emit_producer_loop(a, c)
    stamp(a, 2, s_wave, kidx, tmp_v=vst)
    vl = c.v_lane
    t = c.vt
    Le = a.newlabel("Lesync"); Lg = a.newlabel("Lgot"); Ltk = a.newlabel("Ltokok")
    a("s_cmp_lg_u32 s%d, 4" % s_wave)
    a("s_cbranch_scc1 %s" % Le)
    a("s_cmp_eq_u32 s73, 1")
    a("s_cbranch_scc1 %s" % Lg)
    a("s_lshl_b32 s%d, s%d, 2" % (c.st[0], s_rb))
    a("s_add_u32 s%d, s%d, 16" % (c.st[0], c.st[0]))
    a("v_mov_b32 v%d, s%d" % (t[4], c.st[0]))
    Lp = a.newlabel("Lpoll"); Lpd = a.newlabel("Lpolld")
    a("s_mov_b32 s75, 0")
    a.label(Lp)
    a("global_load_dword v%d, v%d, s[8:9] sc1" % (t[5], t[4]))
    a("s_waitcnt vmcnt(0)")
    a("v_readfirstlane_b32 s%d, v%d" % (c.st[1], t[5]))
    a("s_cmp_ge_u32 s%d, 32" % c.st[1])
    a("s_cbranch_scc1 %s" % Lpd)
    a("s_add_u32 s75, s75, 1")
    a("s_cmp_gt_u32 s75, 0x40000")
    a("s_cbranch_scc1 %s" % Lpd)
    a("s_sleep 2")
    a("s_branch %s" % Lp)
    a.label(Lpd)
    emit_stats_loads()
    a.label(Lg)
    a("s_waitcnt lgkmcnt(0)")
    a("v_mov_b32 v%d, s78" % vtok)
    a("v_mov_b32 v%d, s79" % (vtok + 1))
    Ltp = a.newlabel("Ltp")
    a("s_mov_b32 s75, 0")
    a.label(Ltp)
    a("v_cmp_ne_u64 vcc, 0, %s" % vr(vtok, 2))
    a("s_nop 4")
    a("s_cmp_eq_u64 vcc, exec")
    a("s_cbranch_scc1 %s" % Ltk)
    a("s_add_u32 s75, s75, 1")
    a("s_cmp_gt_u32 s75, 0x40000")
    a("s_cbranch_scc1 %s" % Ltk)
    a("v_mov_b32 v%d, 0" % t[4])
    a("global_load_dwordx2 %s, v%d, s[8:9] sc1" % (vr(vtok, 2), t[4]))
    a("s_waitcnt vmcnt(0)")
    a("s_branch %s" % Ltp)
    a.label(Ltk)
    a("v_mov_b32 v%d, %d" % (t[4], L_TOK))
    a("ds_write_b64 v%d, %s" % (t[4], vr(vtok, 2)))
    a("v_lshlrev_b32 v%d, 4, v%d" % (t[4], vl))
    a("v_add_u32 v%d, %d, v%d" % (t[4], L_RS, t[4]))
    a("s_waitcnt vmcnt(0)")
    a("ds_write_b128 v%d, %s" % (t[4], vr(vSt, 4)))
    a("ds_write_b128 v%d, %s offset:1024" % (t[4], vr(vSt + 4, 4)))
    a("s_waitcnt lgkmcnt(0)")
    a.label(Le)
    Lpfr = a.newlabel("Lpfrole")
    a("s_cmp_ge_u32 s%d, 6" % s_wave)
    a("s_cbranch_scc1 %s" % Lpfr)
    a("s_barrier")
    a("s_barrier")
    a("s_barrier")
    stamp(a, 3, s_wave, kidx, tmp_v=vst)
    a("v_mov_b32 v%d, %d" % (t[0], L_TOK))
    a("ds_read_b64 v[40:41], v%d" % t[0])
    a("s_lshl_b32 s%d, s%d, 7" % (c.st[0], s_h))
    a("s_add_u32 s%d, s%d, %d" % (c.st[0], c.st[0], WS_FLAG))
    a("v_and_b32 v%d, 7, v%d" % (t[0], vl))
    a("v_lshlrev_b32 v%d, 3, v%d" % (t[0], t[0]))
    a("v_add_u32 v%d, s%d, v%d" % (t[0], c.st[0], t[0]))
    a("s_waitcnt lgkmcnt(0)")
    Lp = a.newlabel("Lpoll2"); Lpd = a.newlabel("Lpoll2d")
    a("s_mov_b32 s75, 0")
    a.label(Lp)
    a("global_load_dwordx2 v[42:43], v%d, s[4:5] sc1" % t[0])
    a("s_waitcnt vmcnt(0)")
    a("v_cmp_eq_u64 vcc, v[40:41], v[42:43]")
    a("s_nop 4")
    a("s_cmp_eq_u64 vcc, exec")
    a("s_cbranch_scc1 %s" % Lpd)
    a("s_add_u32 s75, s75, 1")
    a("s_cmp_gt_u32 s75, 0x40000")
    a("s_cbranch_scc1 %s" % Lpd)
    a("s_branch %s" % Lp)
    a.label(Lpd)
    stamp(a, 4, s_wave, kidx, tmp_v=vst)
    a("s_lshl_b32 s%d, s%d, 12" % (c.st[0], c.s_p))
    a("v_lshlrev_b32 v%d, 4, v%d" % (t[0], vl))
    a("v_add_u32 v%d, s%d, v%d" % (t[0], c.st[0], t[0]))
    vZ = 40
    a("v_lshlrev_b32 v%d, 4, v%d" % (t[1], vl))
    a("v_add_u32 v%d, 8192, v%d" % (t[1], t[1]))
    a("v_cmp_gt_u32 vcc, 16, v%d" % vl)
    a("v_mov_b32 v%d, 0x7fffffff" % t[2])
    a("s_nop 0")
    a("v_cndmask_b32 v%d, v%d, v%d, vcc" % (t[1], t[2], t[1]))
    vKa = [72, 164]
    def kreg(rbi, bb): return vKa[rbi // 4] + 16 * (rbi % 4) + 4 * bb
    for rbi in range(8):
        a("s_mov_b32 s%d, %d" % (c.st[1], rbi * KVP_BYTES))
        for bb in range(4):
            a("buffer_load_dwordx4 %s, v%d, s[%d:%d], s%d offen offset:%d sc1" % (vr(kreg(rbi, bb), 4), t[0], srdKV, srdKV + 3, c.st[1], bb * 1024))
    for rbi in range(8):
        a("s_mov_b32 s%d, %d" % (c.st[1], rbi * KVP_BYTES))
        a("buffer_load_dwordx4 %s, v%d, s[%d:%d], s%d offen sc1" % (vr(vZ + 4 * rbi, 4), t[1], srdKV, srdKV + 3, c.st[1]))
    for rbi in range(1, 8):
        a("s_waitcnt vmcnt(%d)" % (8 + 4 * (7 - rbi)))
        for q in range(0, 16, 2):
            a("v_pk_add_f32 %s, %s, %s" % (vr(vKa[0] + q, 2), vr(vKa[0] + q, 2), vr(kreg(rbi, 0) + q, 2)))
    ko = 228
    for bb in range(4):
        a("v_cvt_pk_bf16_f32 v%d, v%d, v%d" % (ko + 2 * bb, vKa[0] + 4 * bb, vKa[0] + 4 * bb + 1))
        a("v_cvt_pk_bf16_f32 v%d, v%d, v%d" % (ko + 2 * bb + 1, vKa[0] + 4 * bb + 2, vKa[0] + 4 * bb + 3))
    a("s_lshl_b32 s%d, s%d, 11" % (c.st[0], c.s_p))
    a("s_add_u32 s%d, s%d, %d" % (c.st[0], c.st[0], L_KVF))
    a("v_lshlrev_b32 v%d, 4, v%d" % (t[0], vl))
    a("v_add_u32 v%d, s%d, v%d" % (t[0], c.st[0], t[0]))
    a("ds_write_b128 v%d, %s" % (t[0], vr(ko, 4)))
    a("ds_write_b128 v%d, %s offset:1024" % (t[0], vr(ko + 4, 4)))
    a("s_waitcnt vmcnt(0)")
    for rbi in range(1, 8):
        for q in range(0, 4, 2):
            a("v_pk_add_f32 %s, %s, %s" % (vr(vZ + q, 2), vr(vZ + q, 2), vr(vZ + 4 * rbi + q, 2)))
    a("v_cvt_pk_bf16_f32 v%d, v%d, v%d" % (vZ + 4, vZ, vZ + 1))
    a("v_cvt_pk_bf16_f32 v%d, v%d, v%d" % (vZ + 5, vZ + 2, vZ + 3))
    a("v_lshrrev_b32 v%d, 2, v%d" % (t[0], vl))
    a("v_lshlrev_b32 v%d, 5, v%d" % (t[0], t[0]))
    a("v_and_b32 v%d, 1, v%d" % (t[1], vl))
    a("v_lshl_add_u32 v%d, v%d, 4, v%d" % (t[0], t[1], t[0]))
    a("v_bfe_u32 v%d, v%d, 1, 1" % (t[1], vl))
    a("v_lshl_add_u32 v%d, v%d, 3, v%d" % (t[0], t[1], t[0]))
    a("v_add_u32 v%d, %d, v%d" % (t[0], L_ZF, t[0]))
    a("v_cmp_gt_u32 vcc, 16, v%d" % vl)
    a("s_and_saveexec_b64 s[58:59], vcc")
    a("ds_write_b64 v%d, %s" % (t[0], vr(vZ + 4, 2)))
    a("s_mov_b64 exec, s[58:59]")
    a("s_waitcnt lgkmcnt(0)")
    a("s_barrier")
    stamp(a, 5, s_wave, kidx, tmp_v=vst)
    a("s_branch %s" % (Ljoin if mega else Lend))

    a.label(Lpfr)
    a("s_lshl_b32 s72, s2, 1")
    a("s_add_u32 s72, s72, s%d" % s_wave)
    a("s_sub_u32 s72, s72, 6")
    make_srd(a, srdW1, "s64", "s65", 1024 * 7168)
    a("s_barrier")
    vP = 164
    mul, sh = magic_div(56, 1024)
    for un in range(2):
        a("s_lshl_b32 s%d, s72, 1" % c.st[0])
        if un: a("s_add_u32 s%d, s%d, 1" % (c.st[0], c.st[0]))
        a("s_mul_i32 s%d, s%d, %d" % (c.st[1], c.st[0], mul))
        a("s_lshr_b32 s%d, s%d, %d" % (76 + 2 * un, c.st[1], sh))
        a("s_mul_i32 s%d, s%d, 56" % (c.st[2], 76 + 2 * un))
        a("s_sub_u32 s%d, s%d, s%d" % (77 + 2 * un, c.st[0], c.st[2]))
        a("s_lshl_b32 s%d, s%d, 6" % (c.st[3], 76 + 2 * un))
        a("v_lshrrev_b32 v%d, 3, v%d" % (t[0], vl))
        a("v_add_u32 v%d, s%d, v%d" % (t[0], c.st[3], t[0]))
        a("s_mov_b32 s%d, 7168" % c.st[3])
        a("v_mul_lo_u32 v%d, v%d, s%d" % (t[0], t[0], c.st[3]))
        a("v_and_b32 v%d, 7, v%d" % (t[1], vl))
        a("v_lshlrev_b32 v%d, 4, v%d" % (t[1], t[1]))
        a("s_lshl_b32 s%d, s%d, 7" % (c.st[3], 77 + 2 * un))
        a("v_add3_u32 v%d, v%d, v%d, s%d" % (60 + un, t[0], t[1], c.st[3]))
        for j in range(8):
            a("s_mov_b32 s%d, %d" % (c.st[3], j * 8 * 7168))
            a("buffer_load_dwordx4 %s, v%d, s[%d:%d], s%d offen" % (vr(vP + 32 * un + 4 * j, 4), 60 + un, srdW1, srdW1 + 3, c.st[3]))
    a("s_barrier")
    a("s_barrier")
    if "nopf" not in os.environ.get("GDBG", ""):
        a("v_lshlrev_b32 v62, 4, v%d" % vl)
        a("s_lshl_b32 s%d, s72, 12" % c.st[3])
        a("v_add_u32 v63, s%d, v62" % c.st[3])
        for j in range(4):
            a("global_load_dwordx4 v[%d:%d], v63, s[68:69] offset:%d" % (228 + 4 * (j % 4), 231 + 4 * (j % 4), j * 1024))
        a("s_mul_i32 s%d, s72, 14336" % c.st[3])
        a("v_add_u32 v63, s%d, v62" % c.st[3])
        for j in range(0 if mega else 14):
            if j and j % 4 == 0: a("v_add_u32 v63, 4096, v63")
            a("global_load_dwordx4 v[%d:%d], v63, s[66:67] offset:%d" % (236 + 4 * (j % 4), 239 + 4 * (j % 4), (j % 4) * 1024))
    a("s_barrier")
    def emit_colsum(t, vl, st):
        for un in range(2):
            Lskip = a.newlabel("Lskipcs")
            a("s_cmp_ge_u32 s%d, 16" % (76 + 2 * un))
            a("s_cbranch_scc1 %s" % Lskip)
            vS = 124
            for j in range(8):
                for q in range(4):
                    src = vP + 32 * un + 4 * j + q
                    a("v_lshlrev_b32 v%d, 16, v%d" % (t[0], src))
                    a("v_and_b32 v%d, 0xffff0000, v%d" % (t[1], src))
                    if j == 0:
                        a("v_mov_b32 v%d, v%d" % (vS + 2 * q, t[0]))
                        a("v_mov_b32 v%d, v%d" % (vS + 2 * q + 1, t[1]))
                    else:
                        a("v_add_f32 v%d, v%d, v%d" % (vS + 2 * q, vS + 2 * q, t[0]))
                        a("v_add_f32 v%d, v%d, v%d" % (vS + 2 * q + 1, vS + 2 * q + 1, t[1]))
            xs = [vS + i for i in range(8)]; ts_ = [132 + i for i in range(8)]
            a("s_nop 1")
            for x, tt in zip(xs, ts_):
                a("v_add_f32_dpp v%d, v%d, v%d row_ror:8 row_mask:0xf bank_mask:0xf" % (tt, x, x))
            for x, tt in zip(xs, ts_):
                a("v_mov_b32 v%d, v%d" % (x, tt))
            for sw in ("v_permlane16_swap_b32", "v_permlane32_swap_b32"):
                a("s_nop 1")
                for x, tt in zip(xs, ts_):
                    a("%s v%d, v%d" % (sw, tt, x))
                for x, tt in zip(xs, ts_):
                    a("v_add_f32 v%d, v%d, v%d" % (x, x, tt))
                for x, tt in zip(xs, ts_):
                    a("v_mov_b32 v%d, v%d" % (tt, x))
            a("s_mul_i32 s%d, s%d, %d" % (st[0], 76 + 2 * un, 3584 * 4))
            a("s_lshl_b32 s%d, s%d, 8" % (st[1], 77 + 2 * un))
            a("s_add_u32 s%d, s%d, s%d" % (st[0], st[0], st[1]))
            a("s_add_u32 s%d, s%d, %d" % (st[0], st[0], WS_CS1))
            a("v_lshlrev_b32 v%d, 5, v%d" % (t[0], vl))
            a("v_add_u32 v%d, s%d, v%d" % (t[0], st[0], t[0]))
            a("v_cmp_gt_u32 vcc, 8, v%d" % vl)
            a("s_and_saveexec_b64 s[58:59], vcc")
            a("global_store_dwordx4 v%d, %s, s[4:5]%s" % (t[0], vr(vS, 4), SCM))
            a("global_store_dwordx4 v%d, %s, s[4:5] offset:16%s" % (t[0], vr(vS + 4, 4), SCM))
            a("s_mov_b64 exec, s[58:59]")
            a.label(Lskip)

    if mega:
        global COLSUM_FN
        COLSUM_FN = emit_colsum
    else:
        a("s_waitcnt vmcnt(%d)" % (0 if "nopf" in os.environ.get("GDBG", "") else 18))
        emit_colsum(t, vl, c.st)
    a("s_branch %s" % (Ljoin if mega else Lend))

    a.label(Lcons)
    if os.environ.get("PRIO_C"): a("s_setprio %s" % os.environ["PRIO_C"])
    vl = c.v_lane
    t = c.vt
    Lt0 = a.newlabel("Ltok0")
    a("s_or_b32 s58, s2, s%d" % s_wave)
    a("s_cmp_lg_u32 s58, 0")
    a("s_cbranch_scc1 %s" % Lt0)
    a("s_memrealtime s[58:59]")
    a("s_waitcnt lgkmcnt(0)")
    a("s_or_b32 s58, s58, 1")
    a("v_mov_b32 v%d, s58" % vtok)
    a("v_mov_b32 v%d, s59" % (vtok + 1))
    a("v_mov_b32 v%d, 0" % t[0])
    a("s_mov_b64 s[58:59], exec")
    a("s_mov_b64 exec, 1")
    a("global_store_dwordx2 v%d, %s, s[8:9] sc1" % (t[0], vr(vtok, 2)))
    a("s_mov_b64 exec, s[58:59]")
    a.label(Lt0)
    a("v_and_b32 v%d, 31, v%d" % (t[0], vl))
    a("v_lshrrev_b32 v%d, 5, v%d" % (t[1], vl))
    a("v_bfe_u32 v%d, v%d, 1, 3" % (t[2], t[0]))
    a("s_lshl_b32 s%d, s%d, 6" % (c.st[2], s_wave))
    a("v_add_u32 v%d, s%d, v%d" % (t[3], c.st[2], t[0]))
    a("v_lshlrev_b32 v%d, 7, v%d" % (t[3], t[3]))
    for stp in range(4):
        a("v_add_u32 v%d, %d, v%d" % (t[4], 2 * stp, t[1]))
        a("v_xor_b32 v%d, v%d, v%d" % (t[4], t[4], t[2]))
        a("v_lshl_add_u32 v%d, v%d, 4, v%d" % (c.vX[stp], t[4], t[3]))
    a("v_lshrrev_b32 v%d, 4, v%d" % (t[0], vl))
    a("v_and_b32 v%d, 15, v%d" % (t[1], vl))
    a("v_lshrrev_b32 v%d, 2, v%d" % (t[2], t[1]))
    a("v_lshrrev_b32 v%d, 1, v%d" % (t[3], t[0]))
    a("v_lshl_add_u32 v%d, v%d, 3, v%d" % (t[2], t[3], t[2]))
    a("v_mul_u32_u24 v%d, 192, v%d" % (t[2], t[2]))
    a("v_and_b32 v%d, 1, v%d" % (t[0], t[0]))
    a("v_lshl_add_u32 v%d, v%d, 5, v%d" % (t[2], t[0], t[2]))
    a("v_and_b32 v%d, 3, v%d" % (t[1], t[1]))
    a("v_lshl_add_u32 v%d, v%d, 3, v%d" % (t[2], t[1], t[2]))
    a("v_add_u32 v%d, %d, v%d" % (vW, c.Bbase, t[2]))
    stamp(a, 1, s_wave, kidx, tmp_v=vst)
    stamp(a, 6, s_wave, kidx, tmp_v=vst)
    for i in range(96): a("v_mov_b32 v%d, 0" % i)
    for u in range(3): a("v_mov_b32 v%d, 0" % vcs[u])
    a("s_mov_b32 s%d, 0" % c.s_cslotA)
    a("s_mov_b32 s%d, 0" % c.s_cslotB)
    a("s_mov_b32 s%d, 0" % c.s_i)
    a("s_waitcnt lgkmcnt(0)")
    def reads(buf, stp):
        r = []
        fb = F[buf]
        W = lambda u, hf: "ds_read_b64_tr_b16 %s, v%d offset:%d" % (vr(fb + 8 + 4 * u + 2 * hf, 2), vW, (16 * stp + 4 * hf) * 192 + u * 64)
        X = lambda st: "ds_read_b128 %s, v%d offset:%d" % (vr(fb + 4 * st, 4), c.vX[stp], st * 4096)
        if "noread" in DBG: return []
        return [W(0, 0), W(0, 1), X(0), W(1, 0), W(1, 1), X(1), W(2, 0), W(2, 1)]
    def mfmas(buf):
        fb = F[buf]
        X = lambda st: fb + 4 * st
        W = lambda u: fb + 8 + 4 * u
        if "nomfma" in DBG: return ["s_nop 0"] * 6
        return [mf32(accQ[0], W(0), X(0), accQ[0]), mf32(accK[0], W(1), X(0), accK[0]), mf32(accQ[1], W(0), X(1), accQ[1]),
                mf32(accK[1], W(1), X(1), accK[1]), mf32(accV[0], X(0), W(2), accV[0]), mf32(accV[1], X(1), W(2), accV[1])]
    def csops(buf, w):
        fb = F[buf]
        o = []
        if "nocs" in DBG: return []
        for u in range(3):
            src = fb + 8 + 4 * u + w
            tt = t[2 * (u % 2)]
            o.append("v_lshlrev_b32 v%d, 16, v%d" % (tt, src))
            o.append("v_and_b32 v%d, 0xffff0000, v%d" % (tt + 1, src))
            o.append("v_add_f32 v%d, v%d, v%d" % (vcs[u], vcs[u], tt))
            o.append("v_add_f32 v%d, v%d, v%d" % (vcs[u], vcs[u], tt + 1))
        return o
    def step(mf, rd, cs):
        ri = ci = 0
        for i, m in enumerate(mf):
            a(m)
            for _ in range(3):
                if ri < len(rd): a(rd[ri]); ri += 1
            for _ in range(2 if i < 3 else 3):
                if ci < len(cs): a(cs[ci]); ci += 1
        while ri < len(rd): a(rd[ri]); ri += 1
        while ci < len(cs): a(cs[ci]); ci += 1
    Lafter = a.newlabel("Lafter")
    Lw = [a.newlabel("Lw") for _ in range(4)]
    for w in range(1, 4):
        a("s_cmp_eq_u32 s%d, %d" % (s_wave, w))
        a("s_cbranch_scc1 %s" % Lw[w])
    for w in range(4):
        a.label(Lw[w])
        a("s_barrier")
        for r in reads(0, 0): a(r)
        for r in reads(1, 1): a(r)
        L = a.newlabel("Lk1")
        a.label(L)
        for stp in range(2):
            a("s_waitcnt lgkmcnt(8)")
            step(mfmas(stp), reads(stp + 2, stp + 2), csops(stp, w))
        a("s_waitcnt lgkmcnt(0)")
        a("s_barrier")
        emit_addr_advance(a, c, [c.vX[0], c.vX[1], c.vX[2], c.vX[3]], [vW])
        if w == 0:
            La = a.newlabel("Lh1"); Lb = a.newlabel("Lh2")
            a("s_cmp_lg_u32 s%d, 1" % c.s_i)
            a("s_cbranch_scc1 %s" % La)
            a("v_lshlrev_b32 v%d, 2, v%d" % (vst + 4, vl))
            a("v_add_u32 v%d, %d, v%d" % (vst + 5, L_STAT, vst + 4))
            a("ds_read_b32 v%d, v%d" % (vst + 6, vst + 5))
            a("ds_read_b32 v%d, v%d offset:32" % (vst + 7, vst + 5))
            a("s_lshl_b32 s%d, s%d, 8" % (c.st[0], s_rb))
            a("s_lshl_b32 s%d, s%d, 3" % (c.st[1], s_h))
            a("s_add_u32 s%d, s%d, s%d" % (c.st[0], c.st[0], c.st[1]))
            a("s_lshl_b32 s%d, s%d, 2" % (c.st[0], c.st[0]))
            a("s_add_u32 s%d, s%d, %d" % (c.st[0], c.st[0], WS_ST1))
            a("v_add_u32 v%d, s%d, v%d" % (vst + 4, c.st[0], vst + 4))
            a("v_add_u32 v%d, 8192, v%d" % (vst + 5, vst + 4))
            a("s_waitcnt lgkmcnt(0)")
            a("s_mov_b64 s[58:59], exec")
            a("s_mov_b64 exec, 0xff")
            a("global_store_dword v%d, v%d, s[4:5] sc1" % (vst + 4, vst + 6))
            a("global_store_dword v%d, v%d, s[4:5] sc1" % (vst + 5, vst + 7))
            a("s_mov_b64 exec, s[58:59]")
            a.label(La)
            a("s_cmp_lg_u32 s%d, 5" % c.s_i)
            a("s_cbranch_scc1 %s" % Lb)
            a("s_waitcnt vmcnt(0)")
            a("s_lshl_b32 s%d, s%d, 2" % (c.st[0], s_rb))
            a("s_add_u32 s%d, s%d, 16" % (c.st[0], c.st[0]))
            a("v_mov_b32 v%d, s%d" % (vst + 4, c.st[0]))
            a("v_mov_b32 v%d, 1" % (vst + 5))
            a("s_mov_b64 s[58:59], exec")
            a("s_mov_b64 exec, 1")
            a("global_atomic_add v%d, v%d, s[8:9]" % (vst + 4, vst + 5))
            a("s_mov_b64 exec, s[58:59]")
            a.label(Lb)
        step(mfmas(2), reads(0, 0), csops(2, w))
        a("s_nop 0")
        step(mfmas(3), reads(1, 1), csops(3, w))
        a("s_add_u32 s%d, s%d, 1" % (c.s_i, c.s_i))
        a("s_cmp_lt_u32 s%d, %d" % (c.s_i, c.NS - 1))
        a("s_cbranch_scc1 %s" % L)
        for stp in range(2):
            a("s_waitcnt lgkmcnt(8)")
            step(mfmas(stp), reads(stp + 2, stp + 2), csops(stp, w))
        a("s_waitcnt lgkmcnt(8)")
        step(mfmas(2), [], csops(2, w))
        a("s_waitcnt lgkmcnt(0)")
        step(mfmas(3), [], csops(3, w))
        if w < 3: a("s_branch %s" % Lafter)
    a.label(Lafter)
    stamp(a, 7, s_wave, kidx, tmp_v=vst)
    stamp(a, 2, s_wave, kidx, tmp_v=vst)
    for u in range(3):
        a("v_mov_b32 v%d, v%d" % (t[1 + u], vcs[u]))
    a("s_nop 1")
    for u in range(3):
        a("v_permlane32_swap_b32 v%d, v%d" % (t[1 + u], vcs[u]))
    for u in range(3):
        a("v_add_f32 v%d, v%d, v%d" % (vcs[u], vcs[u], t[1 + u]))
    a("v_and_b32 v%d, 31, v%d" % (t[0], vl))
    a("v_lshlrev_b32 v%d, 2, v%d" % (t[0], t[0]))
    a("v_add_u32 v%d, %d, v%d" % (t[0], L_CS, t[0]))
    a("s_mul_i32 s%d, s%d, 384" % (c.st[0], s_wave))
    a("v_add_u32 v%d, s%d, v%d" % (t[1], c.st[0], t[0]))
    for u in range(3):
        a("ds_write_b32 v%d, v%d offset:%d" % (t[1], vcs[u], u * 128))
    a("s_waitcnt lgkmcnt(0)")
    a("s_barrier")
    stamp(a, 8, s_wave, kidx, tmp_v=156)
    csQ, csK = 96, 112
    rsL, nmL = [128, 130], [132, 134]
    csV = 136
    wph = 164
    kb = 172
    pD = 180
    eT = 196
    pos, neg = 212, 220
    sT = [228 + i for i in range(8)]
    rsV, nmV = 236, 240
    aF = 196
    vb = 244
    kvA = [32, 48]
    hi_ = t[7]
    a("v_lshrrev_b32 v%d, 5, v%d" % (hi_, vl))
    cp = 180
    for ww in range(4):
        for u in range(3):
            a("ds_read_b32 v%d, v%d offset:%d" % (cp + 3 * ww + u, t[0], ww * 384 + u * 128))
    a("s_waitcnt lgkmcnt(0)")
    for u in range(3):
        a("v_add_f32 v%d, v%d, v%d" % (cp + u, cp + u, cp + 3 + u))
        a("v_add_f32 v%d, v%d, v%d" % (cp + 6 + u, cp + 6 + u, cp + 9 + u))
        a("v_add_f32 v%d, v%d, v%d" % (cp + u, cp + u, cp + 6 + u))
    a("v_mov_b32 v%d, v%d" % (csV, cp + 2))
    a("v_add_u32 v%d, 1536, v%d" % (t[1], t[1]))
    a("ds_write_b32 v%d, v%d" % (t[1], cp))
    a("ds_write_b32 v%d, v%d offset:128" % (t[1], cp + 1))
    a("v_lshlrev_b32 v%d, 4, v%d" % (t[1], hi_))
    a("s_add_u32 s%d, s%d, %d" % (c.st[0], c.st[0], L_CS + 1536))
    a("v_add_u32 v%d, s%d, v%d" % (t[1], c.st[0], t[1]))
    a("s_waitcnt lgkmcnt(0)")
    for aa in range(4):
        a("ds_read_b128 %s, v%d offset:%d" % (vr(csQ + 4 * aa, 4), t[1], aa * 32))
        a("ds_read_b128 %s, v%d offset:%d" % (vr(csK + 4 * aa, 4), t[1], 128 + aa * 32))
    a("v_mov_b32 v%d, %d" % (vtok + 2, L_TOK))
    a("ds_read_b64 %s, v%d" % (vr(vtok, 2), vtok + 2))
    a("v_and_b32 v%d, 31, v%d" % (t[2], vl))
    a("s_lshl_b32 s%d, s%d, 6" % (c.st[0], s_wave))
    a("v_add_u32 v%d, s%d, v%d" % (t[2], c.st[0], t[2]))
    a("v_lshlrev_b32 v%d, 2, v%d" % (t[2], t[2]))
    a("v_add_u32 v%d, %d, v%d" % (t[2], L_RS, t[2]))
    for st in range(2):
        a("ds_read_b32 v%d, v%d offset:%d" % (rsL[st], t[2], st * 128))
        a("ds_read_b32 v%d, v%d offset:%d" % (nmL[st], t[2], 1024 + st * 128))
    a("v_lshrrev_b32 v%d, 4, v%d" % (t[3], vl))
    a("v_and_b32 v%d, 15, v%d" % (t[4], vl))
    a("v_lshrrev_b32 v%d, 2, v%d" % (t[5], t[4]))
    a("v_lshrrev_b32 v%d, 1, v%d" % (t[6], t[3]))
    a("v_lshl_add_u32 v%d, v%d, 2, v%d" % (t[5], t[6], t[5]))
    a("v_mov_b32 v%d, v%d" % (sT[7], t[5]))
    a("v_lshlrev_b32 v%d, 6, v%d" % (t[5], t[5]))
    a("v_and_b32 v%d, 1, v%d" % (t[3], t[3]))
    a("v_lshlrev_b32 v%d, 5, v%d" % (t[3], t[3]))
    a("v_and_b32 v%d, 3, v%d" % (t[4], t[4]))
    a("v_lshl_add_u32 v%d, v%d, 3, v%d" % (t[3], t[4], t[3]))
    a("v_add_u32 v%d, v%d, v%d" % (t[5], t[5], t[3]))
    a("v_add_u32 v%d, %d, v%d" % (t[5], L_WPHI, t[5]))
    for tt in range(2):
        for hf in range(2):
            a("ds_read_b64_tr_b16 %s, v%d offset:%d" % (vr(wph + 4 * tt + 2 * hf, 2), t[5], (16 * tt + 8 * hf) * 64))
    vPKw, vPKr, vRSV = 160, 161, 162
    a("s_mul_i32 s%d, s%d, %d" % (c.st[0], s_wave, 64 * PKP))
    a("s_add_u32 s%d, s%d, %d" % (c.st[0], c.st[0], L_PK))
    a("v_and_b32 v%d, 31, v%d" % (t[2], vl))
    a("v_mul_u32_u24 v%d, %d, v%d" % (t[2], PKP, t[2]))
    a("v_lshl_add_u32 v%d, v%d, 3, v%d" % (t[2], hi_, t[2]))
    a("v_add_u32 v%d, s%d, v%d" % (vPKw, c.st[0], t[2]))
    a("v_mul_u32_u24 v%d, %d, v%d" % (t[2], PKP, sT[7]))
    a("v_add_u32 v%d, v%d, v%d" % (t[2], t[2], t[3]))
    a("v_add_u32 v%d, s%d, v%d" % (vPKr, c.st[0], t[2]))
    a("s_lshl_b32 s%d, s%d, 8" % (c.st[0], s_wave))
    a("v_lshlrev_b32 v%d, 4, v%d" % (t[2], hi_))
    a("v_add_u32 v%d, s%d, v%d" % (t[2], c.st[0], t[2]))
    a("v_add_u32 v%d, %d, v%d" % (vRSV, L_RS, t[2]))
    a("s_waitcnt lgkmcnt(0)")

    def ln_qk(acc, cs, st, dst):
        for i in range(0, 16, 2):
            a("v_pk_mul_f32 %s, %s, %s op_sel_hi:[1,0]" % (vr(acc + i, 2), vr(acc + i, 2), vr(rsL[st], 2)))
            a("v_pk_fma_f32 %s, %s, %s, %s op_sel_hi:[1,0,1]" % (vr(acc + i, 2), vr(cs + i, 2), vr(nmL[st], 2), vr(acc + i, 2)))
            a("v_cvt_pk_bf16_f32 v%d, v%d, v%d" % (dst + i // 2, acc + i, acc + i + 1))
    def phi(acc, cs, st):
        ln_qk(acc, cs, st, kb)
        a("s_nop 1")
        a(mf32(pD, wph, kb, "0"))
        a(mf32(pD, wph + 4, kb + 4, pD))
        mfma_wait(a)
        softmax2(a, pD, pos, neg, eT, sT, s_l2e)

    for st in range(2):
        phi(accK[st], csK, st)
        for aa in range(4):
            a("ds_write_b64 v%d, %s offset:%d" % (vPKw, vr(pos + 2 * aa, 2), st * 32 * PKP + aa * 16))
            a("ds_write_b64 v%d, %s offset:%d" % (vPKw, vr(neg + 2 * aa, 2), st * 32 * PKP + aa * 16 + 64))
    stamp(a, 9, s_wave, kidx, tmp_v=156)
    kvT = [32, 48]; zT = [180, 196]
    aF = 212
    ones = 252
    for q in range(4): a("v_mov_b32 v%d, s%d" % (ones + q, s_ones))
    a("s_waitcnt lgkmcnt(0)")
    first = True
    for st in range(2):
        for aa in range(4):
            a("ds_read_b128 %s, v%d offset:%d" % (vr(228 + 4 * aa, 4), vRSV, (32 * st + 8 * aa) * 4))
            a("ds_read_b128 %s, v%d offset:%d" % (vr(112 + 4 * aa, 4), vRSV, 1024 + (32 * st + 8 * aa) * 4))
        for ft in range(2):
            for u in range(2):
                for hf in range(2):
                    a("ds_read_b64_tr_b16 %s, v%d offset:%d" % (vr(aF + 8 * ft + 4 * u + 2 * hf, 2), vPKr, (st * 32 + 16 * u + 8 * hf) * PKP + ft * 64))
        a("s_waitcnt lgkmcnt(8)")
        for aa in range(4):
            for h2 in range(2):
                r = accV[st] + 4 * aa + 2 * h2
                a("v_pk_mul_f32 %s, %s, %s" % (vr(r, 2), vr(r, 2), vr(228 + 4 * aa + 2 * h2, 2)))
                a("v_pk_fma_f32 %s, %s, %s, %s op_sel_hi:[1,0,1]" % (vr(r, 2), vr(112 + 4 * aa + 2 * h2, 2), vr(csV, 2), vr(r, 2)))
                a("v_cvt_pk_bf16_f32 v%d, v%d, v%d" % (vb + 2 * aa + h2, r, r + 1))
        a("s_waitcnt lgkmcnt(0)")
        for u in range(2):
            for ft in range(2):
                a(mf32(kvT[ft], aF + 8 * ft + 4 * u, vb + 4 * u, "0" if (st == 0 and u == 0) else kvT[ft]))
                a(mf32(zT[ft], aF + 8 * ft + 4 * u, ones, "0" if (st == 0 and u == 0) else zT[ft]))
        a("s_nop 7")
    mfma_wait(a)
    stamp(a, 10, s_wave, kidx, tmp_v=156)
    a("s_mul_i32 s%d, s%d, %d" % (c.st[0], s_wave, KVP_BYTES))
    a("s_add_u32 s%d, s%d, %d" % (c.st[0], c.st[0], L_RED))
    a("v_lshlrev_b32 v%d, 4, v%d" % (t[0], vl))
    a("v_add_u32 v%d, s%d, v%d" % (t[1], c.st[0], t[0]))
    for ft in range(2):
        for rq in range(4):
            a("ds_write_b128 v%d, %s offset:%d" % (t[1], vr(kvT[ft] + 4 * rq, 4), (ft * 4 + rq) * 1024))
    a("v_lshlrev_b32 v%d, 4, v%d" % (t[2], hi_))
    a("v_add_u32 v%d, s%d, v%d" % (t[2], c.st[0], t[2]))
    a("v_and_b32 v%d, 31, v%d" % (t[3], vl))
    a("v_cmp_eq_u32 vcc, 0, v%d" % t[3])
    a("s_and_saveexec_b64 s[58:59], vcc")
    for ft in range(2):
        for rq in range(4):
            a("ds_write_b128 v%d, %s offset:%d" % (t[2], vr(zT[ft] + 4 * rq, 4), 8192 + (ft * 8 + rq * 2) * 16))
    a("s_mov_b64 exec, s[58:59]")
    a("s_waitcnt lgkmcnt(0)")
    a("s_barrier")
    stamp(a, 11, s_wave, kidx, tmp_v=156)
    a("s_lshl_b32 s%d, s%d, 11" % (c.st[0], s_wave))
    a("s_add_u32 s%d, s%d, %d" % (c.st[0], c.st[0], L_RED))
    a("v_add_u32 v%d, s%d, v%d" % (t[1], c.st[0], t[0]))
    rr = 32
    for ww in range(4):
        for bb in range(2):
            a("ds_read_b128 %s, v%d offset:%d" % (vr(rr + 8 * ww + 4 * bb, 4), t[1], ww * KVP_BYTES + bb * 1024))
    a("v_add_u32 v%d, %d, v%d" % (t[2], L_RED + 8192, t[0]))
    a("v_and_b32 v%d, 0xff, v%d" % (t[3], t[0]))
    a("v_add_u32 v%d, %d, v%d" % (t[2], L_RED + 8192, t[3]))
    zr = 180
    for ww in range(4):
        a("ds_read_b128 %s, v%d offset:%d" % (vr(zr + 4 * ww, 4), t[2], ww * KVP_BYTES))
    a("s_waitcnt lgkmcnt(0)")
    for ww in range(1, 4):
        for q in range(0, 8, 2):
            a("v_pk_add_f32 %s, %s, %s" % (vr(rr + q, 2), vr(rr + q, 2), vr(rr + 8 * ww + q, 2)))
        for q in range(0, 4, 2):
            a("v_pk_add_f32 %s, %s, %s" % (vr(zr + q, 2), vr(zr + q, 2), vr(zr + 4 * ww + q, 2)))
    a("s_mul_i32 s%d, s%d, %d" % (c.st[0], s_rb, KVP_BYTES))
    a("s_lshl_b32 s%d, s%d, 11" % (c.st[1], s_wave))
    a("s_add_u32 s%d, s%d, s%d" % (c.st[1], c.st[1], c.st[0]))
    for bb in range(2):
        a("buffer_store_dwordx4 %s, v%d, s[%d:%d], s%d offen offset:%d sc1" % (vr(rr + 4 * bb, 4), t[0], srdKV, srdKV + 3, c.st[1], bb * 1024))
    Lz = a.newlabel("Lz")
    a("s_cmp_lg_u32 s%d, 0" % s_wave)
    a("s_cbranch_scc1 %s" % Lz)
    a("v_add_u32 v%d, 8192, v%d" % (t[2], t[0]))
    a("v_cmp_gt_u32 vcc, 16, v%d" % vl)
    a("v_mov_b32 v%d, 0x7fffffff" % t[3])
    a("s_nop 0")
    a("v_cndmask_b32 v%d, v%d, v%d, vcc" % (t[2], t[3], t[2]))
    a("buffer_store_dwordx4 %s, v%d, s[%d:%d], s%d offen sc1" % (vr(zr, 4), t[2], srdKV, srdKV + 3, c.st[0]))
    a.label(Lz)
    stamp(a, 12, s_wave, kidx, tmp_v=156)
    a("s_waitcnt vmcnt(0)")
    a("s_barrier")
    stamp(a, 3, s_wave, kidx, tmp_v=vst)
    Lf = a.newlabel("Lflag")
    a("s_cmp_lg_u32 s%d, 0" % s_wave)
    a("s_cbranch_scc1 %s" % Lf)
    a("s_lshl_b32 s%d, s%d, 7" % (c.st[0], s_h))
    a("s_lshl_b32 s%d, s%d, 3" % (c.st[1], s_rb))
    a("s_add_u32 s%d, s%d, s%d" % (c.st[0], c.st[0], c.st[1]))
    a("s_add_u32 s%d, s%d, %d" % (c.st[0], c.st[0], WS_FLAG))
    a("v_mov_b32 v%d, s%d" % (t[0], c.st[0]))
    a("s_mov_b64 s[58:59], exec")
    a("s_mov_b64 exec, 1")
    a("global_store_dwordx2 v%d, %s, s[4:5] sc1" % (t[0], vr(vtok, 2)))
    a("s_mov_b64 exec, s[58:59]")
    a.label(Lf)
    phq = [32, 48]
    for st in range(2):
        phi(accQ[st], csQ, st)
        for i in range(8):
            a("v_mov_b32 v%d, v%d" % (phq[st] + i, pos + i))
            a("v_mov_b32 v%d, v%d" % (phq[st] + 8 + i, neg + i))
    stamp(a, 4, s_wave, kidx, tmp_v=vst)
    a("s_barrier")
    kvf, zf = 64, 80
    a("v_lshlrev_b32 v%d, 4, v%d" % (t[0], vl))
    a("v_add_u32 v%d, %d, v%d" % (t[0], L_KVF, t[0]))
    a("v_lshlrev_b32 v%d, 4, v%d" % (t[1], hi_))
    a("v_add_u32 v%d, %d, v%d" % (t[1], L_ZF, t[1]))
    for tp in range(4):
        a("ds_read_b128 %s, v%d offset:%d" % (vr(kvf + 4 * tp, 4), t[0], tp * 1024))
        a("ds_read_b128 %s, v%d offset:%d" % (vr(zf + 4 * tp, 4), t[1], tp * 32))
    a("s_waitcnt lgkmcnt(0)")
    num = [96, 112]; den = [180, 196]
    for st in range(2):
        for tp in range(4):
            a(mf32(num[st], kvf + 4 * tp, phq[st] + 4 * tp, "0" if tp == 0 else num[st]))
            a(mf32(den[st], zf + 4 * tp, phq[st] + 4 * tp, "0" if tp == 0 else den[st]))
    mfma_wait(a)
    a("v_and_b32 v%d, 31, v%d" % (t[0], vl))
    a("s_lshl_b32 s%d, s%d, 6" % (c.st[0], s_wave))
    a("v_add_u32 v%d, s%d, v%d" % (t[0], c.st[0], t[0]))
    a("v_mul_u32_u24 v%d, %d, v%d" % (t[0], LD_O, t[0]))
    a("v_lshl_add_u32 v%d, v%d, 4, v%d" % (t[0], hi_, t[0]))
    for st in range(2):
        a("v_add_f32 v%d, 0x358637bd, v%d" % (t[1], den[st]))
        a("v_rcp_f32 v%d, v%d" % (t[1], t[1]))
        a("s_nop 0")
        for i in range(16):
            a("v_mul_f32 v%d, v%d, v%d" % (num[st] + i, num[st] + i, t[1]))
        ob = 212 + 8 * st
        for i in range(8):
            a("v_cvt_pk_bf16_f32 v%d, v%d, v%d" % (ob + i, num[st] + 2 * i, num[st] + 2 * i + 1))
        a("s_nop 1")
        for pr in range(2):
            a("v_permlane32_swap_b32 v%d, v%d" % (ob + 4 * pr, ob + 4 * pr + 2))
            a("v_permlane32_swap_b32 v%d, v%d" % (ob + 4 * pr + 1, ob + 4 * pr + 3))
        for pr in range(2):
            a("s_mov_b32 s%d, %d" % (c.st[1], st * 32 * LD_O))
            a("buffer_store_dwordx4 %s, v%d, s[%d:%d], s%d offen offset:%d%s" % (vr(ob + 4 * pr, 4), t[0], srdO, srdO + 3, c.st[1], pr * 32, SCM))
    if mega or STAMPS: a("s_waitcnt vmcnt(0)")
    stamp(a, 5, s_wave, kidx, tmp_v=vst)
    if mega:
        a.label(Ljoin)
        a("v_mov_b32 v%d, %d" % (t[0], L_TOK))
        a("ds_read_b64 %s, v%d" % (vr(vtok, 2), t[0]))
        a("s_waitcnt lgkmcnt(0)")
        a("v_readfirstlane_b32 s72, v%d" % vtok)
        a("v_readfirstlane_b32 s73, v%d" % (vtok + 1))
        a("s_barrier")
        Lf2 = a.newlabel("Lfo")
        a("s_cmp_lg_u32 s%d, 0" % s_wave)
        a("s_cbranch_scc1 %s" % Lf2)
        a("s_lshl_b32 s%d, s%d, 5" % (c.st[0], s_rb))
        a("s_add_u32 s%d, s%d, s%d" % (c.st[0], c.st[0], s_h))
        a("s_lshl_b32 s%d, s%d, 3" % (c.st[0], c.st[0]))
        a("s_add_u32 s%d, s%d, %d" % (c.st[0], c.st[0], FO))
        a("v_mov_b32 v%d, s%d" % (t[0], c.st[0]))
        a("s_mov_b64 s[58:59], exec")
        a("s_mov_b64 exec, 1")
        a("global_store_dwordx2 v%d, %s, s[4:5] sc1" % (t[0], vr(vtok, 2)))
        a("s_mov_b64 exec, s[58:59]")
        a.label(Lf2)
        return vmax, lds
    a.label(Lend)
    a("s_endpgm")
    return kernel_desc(name, vmax, 90), lds
```

```python
import sys
from common import *
import os
if os.environ.get('OLDG'):
    from kgemm import gemm_kernel
else:
    from kgemm2 import gemm_kernel

NAME = "sequential_preLN__linear_kernel_hedgehog__dense_activation_relu__prompt"
HDR = open("cdna_kernels/%s.s.ref" % NAME).read().split("; Override launch geometry")[0]

def build(kinds):
    a = Asm()
    descs = []; launches = []
    for k in kinds:
        if k == "nop":
            if "nop_kernel" not in [l[0] for l in launches]:
                kernel_header(a, "nop_kernel"); a("s_endpgm")
                descs.append(kernel_desc("nop_kernel", 8, 16))
            launches.append(("nop_kernel", 256, 64, 0))
            continue
        if k == "mega":
            from kfused import mega_kernel
            d, lds = mega_kernel(a, "mega_kernel")
            launches.append(("mega_kernel", 256, 512, lds))
        elif k in ("fwo", "fw1", "fw2"):
            from kfused import fused_kernel
            d, lds = fused_kernel(a, k[1:] + "_kernel", [k[1:]])
            launches.append((k[1:] + "_kernel", 256, 512, lds))
        elif k == "mlp":
            from kfused import fused_kernel
            d, lds = fused_kernel(a, "mlp_kernel", ["wo", "w1", "w2"])
            launches.append(("mlp_kernel", 256, 512, lds))
        elif k == "w2s":
            from kw2s import w2s_kernel
            d, lds = w2s_kernel(a, "w2_kernel")
            launches.append(("w2_kernel", 256, 512, lds))
        elif k == "qkv":
            from kqkv import qkv_kernel
            d, lds = qkv_kernel(a, "qkv_kernel")
            launches.append(("qkv_kernel", 256, 512, lds))
        else:
            d, lds = gemm_kernel(a, k + "_kernel", k)
            launches.append((k + "_kernel", 256, 512, lds))
        descs.append(d)
    out = HDR
    for (n, g, b, lds) in launches:
        out += "; @launch kernel=%s grid=(%d,1,1) block=(%d,1,1) lds=%d\n" % (n, g, b, lds)
    out += '.amdgcn_target "amdgcn-amd-amdhsa--gfx950"\n.text\n'
    out += a.text()
    out += '.section .rodata,"a"\n' + "".join(descs)
    return out

if __name__ == "__main__":
    kinds = sys.argv[2].split(",")
    open(sys.argv[1], "w").write(build(kinds))
```

```python
from common import *
import os
DBG = os.environ.get("GDBG", "")

def magic_div(P, maxs):
    for sh in range(8, 24):
        mul = -(-(1 << sh) // P)
        if mul >= (1 << 24): continue
        if all(((s * mul) >> sh) == s // P for s in range(maxs)) and (maxs * mul) < (1 << 32):
            return mul, sh
    raise Exception("no magic")

def swz_mask_bits(P):
    if P % 16 in (4, 12):
        return [(3, 1)]
    if P % 16 == 8:
        return [(1, 1), (3, 2)]
    if P % 16 == 0:
        return [(0, 1), (1, 2), (3, 3)]
    raise Exception("P")

class Cfg:
    pass

def emit_producer_setup(a, c, vbase):
    vl = c.v_lane
    t0, t1, t2, t3 = c.vt[0:4]
    st = c.st[0]
    c.vA = [vbase + i for i in range(c.a_ins)]
    c.vB = [vbase + c.a_ins + i for i in range(c.b_ins)]
    a("v_lshrrev_b32 v%d, 3, v%d" % (t0, vl))
    a("v_and_b32 v%d, 7, v%d" % (t1, vl))
    a("s_mul_i32 s%d, s%d, %d" % (st, c.s_p, c.a_ins * 8))
    for j in range(c.a_ins):
        a("v_add_u32 v%d, s%d, v%d" % (t2, st, t0))
        if j: a("v_add_u32 v%d, %d, v%d" % (t2, 8 * j, t2))
        a("v_bfe_u32 v%d, v%d, 1, 3" % (t3, t2))
        if "noswzA" in DBG: a("v_mov_b32 v%d, v%d" % (t3, t1))
        else: a("v_xor_b32 v%d, v%d, v%d" % (t3, t3, t1))
        a("v_lshlrev_b32 v%d, 4, v%d" % (t3, t3))
        a("s_mov_b32 s%d, %d" % (c.st[1], c.lda))
        a("v_mul_lo_u32 v%d, v%d, s%d" % (t2, t2, c.st[1]))
        a("v_add_u32 v%d, v%d, v%d" % (c.vA[j], t2, t3))
    P = c.P
    mul, sh = magic_div(P, 64 * P + 64)
    a("s_mul_i32 s%d, s%d, %d" % (st, c.s_p, c.b_ins * 64))
    for j in range(c.b_ins):
        a("v_add_u32 v%d, s%d, v%d" % (t0, st, vl))
        if j: a("v_add_u32 v%d, %d, v%d" % (t0, 64 * j, t0))
        a("v_mul_u32_u24 v%d, %d, v%d" % (t1, mul, t0))
        a("v_lshrrev_b32 v%d, %d, v%d" % (t1, sh, t1))
        a("v_mul_u32_u24 v%d, %d, v%d" % (t2, P, t1))
        a("v_sub_u32 v%d, v%d, v%d" % (t2, t0, t2))
        for (kb, jb) in (c.swz if "noswzB" not in DBG else []):
            a("v_bfe_u32 v%d, v%d, %d, 1" % (t3, t1, kb))
            a("v_lshlrev_b32 v%d, %d, v%d" % (t3, jb, t3))
            a("v_xor_b32 v%d, v%d, v%d" % (t2, t2, t3))
        if c.colmode == "lin":
            a("v_lshlrev_b32 v%d, 4, v%d" % (t2, t2))
        elif c.colmode == "qkv2":
            a("v_lshrrev_b32 v%d, 3, v%d" % (t3, t2))
            a("v_lshlrev_b32 v%d, 11, v%d" % (t3, t3))
            a("v_and_b32 v%d, 7, v%d" % (t2, t2))
            a("v_lshlrev_b32 v%d, 4, v%d" % (t2, t2))
            a("v_add_u32 v%d, v%d, v%d" % (t2, t2, t3))
        else:
            a("v_lshrrev_b32 v%d, 2, v%d" % (t3, t2))
            a("v_lshlrev_b32 v%d, 11, v%d" % (t3, t3))
            a("v_and_b32 v%d, 3, v%d" % (t2, t2))
            a("v_lshlrev_b32 v%d, 4, v%d" % (t2, t2))
            a("v_add_u32 v%d, v%d, v%d" % (t2, t2, t3))
        a("s_mov_b32 s%d, %d" % (c.st[1], c.ldb))
        a("v_mul_lo_u32 v%d, v%d, s%d" % (t1, t1, c.st[1]))
        a("v_add_u32 v%d, v%d, v%d" % (c.vB[j], t1, t2))

def emit_dbg_hot(a, c):
    if "hotA" in DBG:
        for r in c.vA: a("v_lshlrev_b32 v%d, 4, v%d" % (r, c.v_lane))
        c.hotA = True
    if "hotB" in DBG:
        for r in c.vB: a("v_lshlrev_b32 v%d, 4, v%d" % (r, c.v_lane))
        c.hotB = True

def emit_issue_A(a, c):
    a("s_add_u32 m0, s%d, s%d" % (c.s_slotA, c.s_mA))
    for j in range(c.a_ins):
        if j: a("s_add_u32 m0, m0, 0x400")
        a("s_nop 0")
        a("buffer_load_dwordx4 v%d, s[%d:%d], %s offen%s lds" % (c.vA[j], c.srdA, c.srdA + 3, "0" if "hotA" in DBG else "s%d" % c.s_ka, " sc1" if getattr(c, "a_sc1", False) else ""))
    a("s_add_u32 s%d, s%d, %d" % (c.s_slotA, c.s_slotA, c.Abytes))
    a("s_cmp_eq_u32 s%d, %d" % (c.s_slotA, c.SA * c.Abytes))
    a("s_cselect_b32 s%d, 0, s%d" % (c.s_slotA, c.s_slotA))
    a("s_add_u32 s%d, s%d, 128" % (c.s_ka, c.s_ka))
    if c.rotate:
        a("s_cmp_eq_u32 s%d, %d" % (c.s_ka, c.NS * 128))
        a("s_cselect_b32 s%d, 0, s%d" % (c.s_ka, c.s_ka))

def emit_issue_B(a, c):
    a("s_add_u32 m0, s%d, s%d" % (c.s_slotB, c.s_mB))
    for j in range(c.b_ins):
        if j: a("s_add_u32 m0, m0, 0x400")
        a("s_nop 0")
        a("buffer_load_dwordx4 v%d, s[%d:%d], %s offen lds" % (c.vB[j], c.srdB, c.srdB + 3, "0" if "hotB" in DBG else "s%d" % c.s_kb))
    a("s_add_u32 s%d, s%d, %d" % (c.s_slotB, c.s_slotB, c.Bbytes))
    a("s_cmp_eq_u32 s%d, %d" % (c.s_slotB, c.SB * c.Bbytes))
    a("s_cselect_b32 s%d, 0, s%d" % (c.s_slotB, c.s_slotB))
    a("s_add_u32 s%d, s%d, %d" % (c.s_kb, c.s_kb, 64 * c.ldb))
    if c.rotate:
        a("s_cmp_eq_u32 s%d, %d" % (c.s_kb, c.NS * 64 * c.ldb))
        a("s_cselect_b32 s%d, 0, s%d" % (c.s_kb, c.s_kb))

def emit_pf_setup(a, c):
    pf = c.pf
    vl = c.v_lane; t = c.vt
    nA, nB, seg = pf["nA"], pf["nB"], pf["segB"]
    ns = len(seg)
    Smax = max(c.SA, c.SB)
    a("v_add_u32 v%d, s%d, v%d" % (t[0], pf["rowA"], vl))
    a("s_mov_b32 s%d, %d" % (c.st[0], c.lda))
    a("v_mul_lo_u32 v%d, v%d, s%d" % (t[0], t[0], c.st[0]))
    a("s_add_u32 s%d, s%d, %d" % (c.st[0], c.s_ka, (Smax - 1) * 128))
    a("v_add_u32 v%d, s%d, v%d" % (t[0], c.st[0], t[0]))
    a("v_subrev_u32 v%d, %d, v%d" % (t[1], nA, vl))
    a("v_and_b32 v%d, 63, v%d" % (t[1], t[1]))
    mul, sh = magic_div(ns, 64) if ns > 1 else (1, 0)
    a("v_mul_u32_u24 v%d, %d, v%d" % (t[2], mul, t[1]))
    a("v_lshrrev_b32 v%d, %d, v%d" % (t[2], sh, t[2]))
    a("v_mul_u32_u24 v%d, %d, v%d" % (t[3], ns, t[2]))
    a("v_sub_u32 v%d, v%d, v%d" % (t[3], t[1], t[3]))
    a("v_lshlrev_b32 v%d, 7, v%d" % (t[3], t[3]))
    a("v_min_u32 v%d, %d, v%d" % (t[3], seg[-1], t[3]))
    a("v_add_u32 v%d, s%d, v%d" % (t[2], pf["rowB"], t[2]))
    a("s_mov_b32 s%d, %d" % (c.st[0], c.ldb))
    a("v_mul_lo_u32 v%d, v%d, s%d" % (t[2], t[2], c.st[0]))
    a("v_add_u32 v%d, v%d, v%d" % (t[2], t[2], t[3]))
    a("s_add_u32 s%d, s%d, %d" % (c.st[0], c.s_kb, (Smax - 1) * 64 * c.ldb))
    a("v_add_u32 v%d, s%d, v%d" % (t[2], c.st[0], t[2]))
    a("v_cmp_le_u32 vcc, %d, v%d" % (nA, vl))
    a("v_cmp_gt_u32 s[74:75], %d, v%d" % (nA + nB * ns, vl))
    a("s_nop 1")
    a("s_and_b64 vcc, vcc, s[74:75]")
    a("v_cmp_gt_u32 s[74:75], %d, v%d" % (nA, vl))
    a("v_mov_b32 v%d, s%d" % (t[4], pf["rowA"]))
    a("s_mov_b32 s%d, %d" % (c.st[0], c.lda))
    a("v_mul_lo_u32 v%d, v%d, s%d" % (t[4], t[4], c.st[0]))
    a("s_add_u32 s%d, s%d, %d" % (c.st[0], c.s_ka, (Smax - 1) * 128))
    a("v_add_u32 v%d, s%d, v%d" % (t[4], c.st[0], t[4]))
    a("v_cndmask_b32 v%d, v%d, v%d, s[74:75]" % (t[0], t[4], t[0]))
    a("v_cndmask_b32 v%d, v%d, v%d, vcc" % (t[0], t[0], t[2]))
    a("v_mov_b32 v%d, 128" % c.v_pfi)
    a("v_mov_b32 v%d, %d" % (t[1], 64 * c.ldb))
    a("v_cndmask_b32 v%d, v%d, v%d, vcc" % (c.v_pfi, c.v_pfi, t[1]))
    a("v_mov_b32 v%d, s%d" % (t[1], c.srdA))
    a("v_mov_b32 v%d, s%d" % (t[2], c.srdB))
    a("v_cndmask_b32 v%d, v%d, v%d, vcc" % (t[1], t[1], t[2]))
    a("v_mov_b32 v%d, s%d" % (t[2], c.srdA + 1))
    a("v_mov_b32 v%d, s%d" % (t[3], c.srdB + 1))
    a("v_cndmask_b32 v%d, v%d, v%d, vcc" % (t[2], t[2], t[3]))
    a("v_add_co_u32 v%d, vcc, v%d, v%d" % (c.v_pf, t[1], t[0]))
    a("s_nop 1")
    a("v_addc_co_u32 v%d, vcc, 0, v%d, vcc" % (c.v_pf + 1, t[2]))
    a("s_mov_b32 s%d, %d" % (c.s_pfn, Smax - 1))

def emit_pf_issue(a, c):
    a("global_load_dword v%d, v[%d:%d], off" % (c.v_pfd, c.v_pf, c.v_pf + 1))
    a("s_add_u32 s%d, s%d, 1" % (c.s_pfn, c.s_pfn))
    a("s_cmp_lt_u32 s%d, %d" % (c.s_pfn, c.NS))
    a("s_cselect_b32 s%d, -1, 0" % c.st[2])
    a("v_and_b32 v%d, s%d, v%d" % (c.v_pfd + 1, c.st[2], c.v_pfi))
    a("v_add_co_u32 v%d, vcc, v%d, v%d" % (c.v_pf, c.v_pf, c.v_pfd + 1))
    a("s_nop 1")
    a("v_addc_co_u32 v%d, vcc, 0, v%d, vcc" % (c.v_pf + 1, c.v_pf + 1))

def emit_producer_loop(a, c):
    emit_dbg_hot(a, c)
    pf = getattr(c, "pf", None)
    SA, SB, NS = c.SA, c.SB, c.NS
    na, nb = c.a_ins, c.b_ins
    a("s_mul_i32 s%d, s%d, %d" % (c.s_mA, c.s_p, c.a_ins * 1024))
    a("s_mul_i32 s%d, s%d, %d" % (c.s_mB, c.s_p, c.b_ins * 1024))
    a("s_add_u32 s%d, s%d, %d" % (c.s_mB, c.s_mB, c.Bbase))
    a("s_mov_b32 s%d, 0" % c.s_slotA)
    a("s_mov_b32 s%d, 0" % c.s_slotB)
    Smax = max(SA, SB)
    log = []
    def virt(j, emit=True):
        ops = []
        if 0 <= j + SB - 1 < NS: ops.append(("B", j + SB - 1, nb))
        if 0 <= j + SA - 1 < NS: ops.append(("A", j + SA - 1, na))
        if SA > SB: ops.reverse()
        for o in ops:
            log.append(o)
            if emit: (emit_issue_A if o[0] == "A" else emit_issue_B)(a, c)
    def need(stage):
        last = max(i for i, o in enumerate(log) if o[1] == stage and o[0] in "AB" and ((o[0], stage) in (("A", stage), ("B", stage))))
        return sum(o[2] for o in log[last + 1:])
    if pf:
        assert not c.rotate
        emit_pf_setup(a, c)
    for j in range(-(Smax - 1), 0): virt(j)
    if pf:
        for d in range(pf["D"]):
            emit_pf_issue(a, c); log.append(("P", -1, 1))
    nmain = NS - Smax + 1
    cnt0 = need(0)
    if pf:
        cnt0 = min(cnt0, (min(SA, SB) - 2) * (na + nb + 1) + 1)
    a("s_mov_b32 s%d, 0" % c.s_i)
    L = a.newlabel("Lprod")
    a.label(L)
    a("s_waitcnt vmcnt(%d)" % cnt0)
    a("s_barrier")
    virt(0)
    if pf:
        emit_pf_issue(a, c); log.append(("P", -1, 1))
    PFLOOP = True
    if getattr(c, "prod_iter_hook", None): c.prod_iter_hook()
    a("s_add_u32 s%d, s%d, 1" % (c.s_i, c.s_i))
    a("s_cmp_lt_u32 s%d, %d" % (c.s_i, nmain))
    a("s_cbranch_scc1 %s" % L)
    if not pf: assert need(1) == cnt0, (need(1), cnt0)
    for j in range(1, nmain):
        if pf: assert need(j) >= cnt0, (j, need(j), cnt0)
        virt(j, emit=False)
        if pf: log.append(("P", -1, 1))
    for i in range(nmain, NS):
        a("s_waitcnt vmcnt(%d)" % need(i))
        a("s_barrier")
        virt(i)

def emit_consumer16_setup(a, c):
    vl = c.v_lane
    t0, t1, t2, t3 = c.vt[0:4]
    st0, st1 = c.st[0:2]
    a("v_and_b32 v%d, 15, v%d" % (t0, vl))
    a("v_lshrrev_b32 v%d, 4, v%d" % (t1, vl))
    a("v_lshrrev_b32 v%d, 1, v%d" % (t2, t0))
    a("s_mul_i32 s%d, s%d, %d" % (st0, c.s_wm, getattr(c, "WM", 64)))
    a("v_add_u32 v%d, s%d, v%d" % (t3, st0, t0))
    a("v_lshlrev_b32 v%d, 7, v%d" % (t3, t3))
    a("v_xor_b32 v%d, v%d, v%d" % (t2, t2, t1))
    for stp in range(2):
        if stp: a("v_xor_b32 v%d, 4, v%d" % (t2, t2))
        a("v_lshl_add_u32 v%d, v%d, 4, v%d" % (c.vX[stp], t2, t3))
    a("v_lshrrev_b32 v%d, 2, v%d" % (t2, t0))
    a("v_lshl_add_u32 v%d, v%d, 3, v%d" % (t3, t1, t2))
    a("v_mov_b32 v%d, 0" % c.vt[4])
    for (kb, jb) in c.swz:
        a("v_bfe_u32 v%d, v%d, %d, 1" % (c.vt[5], t3, kb))
        a("v_lshlrev_b32 v%d, %d, v%d" % (c.vt[5], jb - 1, c.vt[5]))
        a("v_or_b32 v%d, v%d, v%d" % (c.vt[4], c.vt[4], c.vt[5]))
    a("v_mul_u32_u24 v%d, %d, v%d" % (t3, c.P * 16, t3))
    a("v_and_b32 v%d, 3, v%d" % (t2, t0))
    a("v_lshl_add_u32 v%d, v%d, 3, v%d" % (t3, t2, t3))
    a("v_add_u32 v%d, %d, v%d" % (t3, c.Bbase, t3))
    a("s_mul_i32 s%d, s%d, %d" % (st0, c.s_wn, c.NT))
    for q in range(len(c.vW)):
        a("s_add_u32 s%d, s%d, %d" % (st1, st0, q))
        a("v_xor_b32 v%d, s%d, v%d" % (t2, st1, c.vt[4]))
        a("v_lshl_add_u32 v%d, v%d, 5, v%d" % (c.vW[q], t2, t3))
        if q: a("v_subrev_u32 v%d, %d, v%d" % (c.vW[q], 32 * q, c.vW[q]))

def reads16(c, buf, stp):
    r = []
    if "noread" in DBG: return []
    for mt in range(c.MT):
        r.append("ds_read_b128 %s, v%d offset:%d" % (vr(c.fX[buf] + 4 * mt, 4), c.vX[stp], mt * 2048))
    xs = r; ws = []
    for t in range(c.NT):
        for hf in range(2):
            off = (32 * stp + 4 * hf) * c.P * 16 + t * 32
            ws.append("ds_read_b64_tr_b16 %s, v%d offset:%d" % (vr(c.fW[buf] + 4 * t + 2 * hf, 2), c.vW[t % len(c.vW)], off))
    out = ws[0:2] + xs + ws[2:]
    if "notr" in DBG: out = xs
    if "nox" in DBG: out = ws
    return out

def mfmas16(c, buf):
    m = []
    if "nomfma" in DBG: return []
    for t in range(c.NT):
        for mt in range(c.MT):
            acc = c.acc + 4 * (t * c.MT + mt)
            m.append("v_mfma_f32_16x16x32_bf16 %s, %s, %s, %s" % (vr(acc, 4), vr(c.fW[buf] + 4 * t, 4), vr(c.fX[buf] + 4 * mt, 4), vr(acc, 4)))
    return m

def interleave(a, mf, rd, first=1, per=1):
    ri = 0
    for i, m in enumerate(mf):
        a(m)
        if i + 1 >= first:
            for _ in range(per):
                if ri < len(rd):
                    a(rd[ri]); ri += 1
    while ri < len(rd):
        a(rd[ri]); ri += 1

def emit_addr_advance(a, c, regsA, regsB):
    for (sl, dl, nb, S, regs) in ((c.s_cslotA, c.s_deltaA, c.Abytes, c.SA, regsA), (c.s_cslotB, c.s_deltaB, c.Bbytes, c.SB, regsB)):
        a("s_add_u32 s%d, s%d, %d" % (sl, sl, nb))
        a("s_mov_b32 s%d, %d" % (dl, nb))
        a("s_cmp_eq_u32 s%d, %d" % (sl, S * nb))
        a("s_cselect_b32 s%d, 0, s%d" % (sl, sl))
        a("s_cselect_b32 s%d, %d, s%d" % (dl, -(S - 1) * nb, dl))
    for r in regsA: a("v_add_u32 v%d, s%d, v%d" % (r, c.s_deltaA, r))
    for r in regsB: a("v_add_u32 v%d, s%d, v%d" % (r, c.s_deltaB, r))

def set_rings(c, SA, SB):
    c.SA, c.SB = SA, SB
    c.Abytes = c.nA * 1024; c.Bbytes = c.nB * 1024
    if "fakering" in DBG: c.Abytes //= 2; c.Bbytes //= 2
    c.Bbase = SA * c.Abytes
    c.ring_bytes = SA * c.Abytes + SB * c.Bbytes

def emit_consumer16_loop(a, c):
    per = 1 if c.NT * c.MT >= 16 else 2
    if os.environ.get("PER"): per = int(os.environ["PER"])
    for i in range(c.NT * c.MT * 4):
        a("v_mov_b32 v%d, 0" % (c.acc + i))
    a("s_mov_b32 s%d, 0" % c.s_cslotA)
    a("s_mov_b32 s%d, 0" % c.s_cslotB)
    a("s_barrier")
    for r in reads16(c, 0, 0): a(r)
    if getattr(c, "cons_hook0", None): c.cons_hook0()
    a("s_mov_b32 s%d, 0" % c.s_i)
    L = a.newlabel("Lcons")
    a.label(L)
    a("s_waitcnt lgkmcnt(0)")
    interleave(a, mfmas16(c, 0), reads16(c, 1, 1), 1, per)
    a("s_waitcnt lgkmcnt(0)")
    a("s_barrier")
    emit_addr_advance(a, c, [c.vX[0], c.vX[1]], c.vW)
    if getattr(c, "cons_iter_hook", None): c.cons_iter_hook()
    interleave(a, mfmas16(c, 1), reads16(c, 0, 0), 1, per)
    a("s_add_u32 s%d, s%d, 1" % (c.s_i, c.s_i))
    a("s_cmp_lt_u32 s%d, %d" % (c.s_i, c.NS - 1))
    a("s_cbranch_scc1 %s" % L)
    a("s_waitcnt lgkmcnt(0)")
    interleave(a, mfmas16(c, 0), reads16(c, 1, 1), 1, per)
    a("s_waitcnt lgkmcnt(0)")
    for m in mfmas16(c, 1): a(m)

def emit_producer_loop2(a, c, pre_poll=None):
    SA, SB, NS = c.SA, c.SB, c.NS
    na, nb = c.a_ins, c.b_ins
    a("s_mul_i32 s%d, s%d, %d" % (c.s_mA, c.s_p, c.a_ins * 1024))
    a("s_mul_i32 s%d, s%d, %d" % (c.s_mB, c.s_p, c.b_ins * 1024))
    a("s_add_u32 s%d, s%d, %d" % (c.s_mB, c.s_mB, c.Bbase))
    a("s_mov_b32 s%d, 0" % c.s_slotA)
    a("s_mov_b32 s%d, 0" % c.s_slotB)
    log = []
    def ops_of(j):
        ops = []
        if 0 <= j + SB - 1 < NS: ops.append(("B", j + SB - 1, nb))
        if 0 <= j + SA - 1 < NS: ops.append(("A", j + SA - 1, na))
        if SA > SB: ops.reverse()
        return ops
    def emit_ops(ops):
        for o in ops: (emit_issue_A if o[0] == "A" else emit_issue_B)(a, c)
    def need(stage):
        idx = [i for i, o in enumerate(log) if o[1] == stage]
        if not idx: return None
        return sum(o[2] for o in log[max(idx) + 1:])
    if pre_poll:
        for s in range(SB - 1):
            emit_issue_B(a, c); log.append(("B", s, nb))
        pre_poll()
        for s in range(SA - 1):
            emit_issue_A(a, c); log.append(("A", s, na))
    else:
        for j in range(-(max(SA, SB) - 1), 0):
            o = ops_of(j); emit_ops(o); log.extend(o)
    sched = []
    for i in range(NS):
        n = need(i)
        o = ops_of(i)
        sched.append((n, tuple(x[0] for x in o), o))
        log.extend(o)
    best = (0, 0)
    i = 0
    while i < NS:
        j = i
        while j < NS and sched[j][0] == sched[i][0] and sched[j][1] == sched[i][1]: j += 1
        if j - i > best[1] - best[0]: best = (i, j)
        i = j
    i = 0
    while i < NS:
        if i == best[0] and best[1] - best[0] >= 3:
            a("s_mov_b32 s%d, 0" % c.s_i)
            L = a.newlabel("Lprod")
            a.label(L)
            a("s_waitcnt vmcnt(%d)" % sched[i][0])
            a("s_barrier")
            emit_ops(sched[i][2])
            a("s_add_u32 s%d, s%d, 1" % (c.s_i, c.s_i))
            a("s_cmp_lt_u32 s%d, %d" % (c.s_i, best[1] - best[0]))
            a("s_cbranch_scc1 %s" % L)
            if getattr(c, "prod_mid_hook", None): c.prod_mid_hook()
            i = best[1]
        else:
            a("s_waitcnt vmcnt(%d)" % sched[i][0])
            a("s_barrier")
            emit_ops(sched[i][2])
            i += 1
```

```python
from common import *
from gemm import *
import os

def env_tuple(name, default):
    v = os.environ.get(name)
    return tuple(int(x) for x in v.replace("x", ",").split(",")) if v else default

def base_cfg(BM, BN, K, lda, ldb):
    c = Cfg()
    c.BM, c.BN, c.K, c.lda, c.ldb = BM, BN, K, lda, ldb
    c.NS = K // 64
    c.nA = BM // 8; c.nB = BN // 8
    c.a_ins = c.nA // 4; c.b_ins = c.nB // 4
    assert c.nA % 4 == 0 and c.nB % 4 == 0
    c.P = BN // 8
    c.rotate = False
    c.colmode = "lin"
    return c

L_TOK = 147456
MEGA = False
VB = os.environ.get('VB', '0') == '1'
FO = WS_FLAG + 196608
CFU = WS_FLAG + 262144
FH = WS_FLAG + 65536
FH1 = WS_FLAG + 131072
NP2 = None
def wo_tile():
    return env_tuple("TILE_wo", (64, 128))

def gemm_phase(a, kind, first, last):
    DBG = os.environ.get("GDBG", "")
    if kind == "wo":
        BM, BN = wo_tile(); c = base_cfg(BM, BN, 1024, LD_O, 2048); set_rings(c, *env_tuple("RING_wo", (6, 6)))
    elif kind == "w1":
        BM, BN = 128, 224; c = base_cfg(BM, BN, 1024, LD_H, 7168); set_rings(c, *env_tuple("RING_w1", (3, 3)))
    else:
        BM, BN = env_tuple("TILE_w2", (64, 128)); c = base_cfg(BM, BN, 3584, LD_H1, 2048); set_rings(c, *env_tuple("RING_w2", (6, 6)))
    N = {"wo": 1024, "w1": 3584, "w2": 1024}[kind]
    tilesM, tilesN = 2048 // BM, N // BN
    assert tilesM * tilesN == 256
    XM = env_tuple("XROWS_" + kind, (1024 if kind == "w1" else 512,))[0] // BM; XN = 32 // XM
    np2 = 1024 // wo_tile()[1]
    c.swz = swz_mask_bits(c.P)
    c.MT = BM // 32; c.NT = BN // 32
    c.WM = BM // 2
    nW = 1
    for (kb, jb) in c.swz: nW = max(nW, 1 << jb)
    nW = min(nW, 1 << (c.NT - 1).bit_length()) if c.NT <= 4 else 2
    nW = max(nW, 2) if c.NT >= 2 else 1
    if c.NT <= 4: nW = c.NT
    c.srdA, c.srdB, srdC, srdR, srdS, srdT = 16, 20, 24, 28, 32, 36
    s_wave, s_tm, s_tn = 40, 41, 42
    c.s_p = c.s_wm = 43; c.s_wn = 44
    c.s_slotA = c.s_cslotA = 45; c.s_ka = c.s_deltaA = 46; c.s_kb = c.s_deltaB = 47; c.s_mA = 48; c.s_mB = 49; c.s_i = 50; c.s_slotB = c.s_cslotB = 51
    c.st = [52, 53, 54, 55]
    nacc = c.MT * c.NT * 4
    c.acc = 0
    fr = nacc
    fsz = 4 * c.MT + 4 * c.NT
    c.fX = [fr, fr + fsz]; c.fW = [fr + 4 * c.MT, fr + fsz + 4 * c.MT]
    misc = max(fr + 2 * fsz, 96)
    c.v_lane = misc
    c.vX = [misc + 1, misc + 2]; c.vW = [misc + 3 + i for i in range(nW)]
    c.vt = [misc + 3 + nW + i for i in range(8)]
    vside = (misc + 11 + nW + 3) // 4 * 4
    vst = vside + (24 if kind == "w1" else 0)
    vtok = (vst + 4 + 1) // 2 * 2
    vmax = vtok + 6
    assert vmax <= 256
    lds = c.ring_bytes
    side = lds
    if kind == "w1": lds += 128 * 8 + 224 * 4
    pitch = BN * 2 + 16
    ctile = BM * pitch
    cbase = 0
    assert ctile <= c.ring_bytes
    kidx = {"wo": 1, "w1": 2, "w2": 3}[kind]
    vl = c.v_lane; t = c.vt

    a_off = {"wo": WS_O, "w1": WS_H, "w2": WS_H1}[kind]
    sW = {"wo": 64, "w1": 66, "w2": 68}[kind]
    a("v_mbcnt_lo_u32_b32 v%d, -1, 0" % vl)
    a("v_mbcnt_hi_u32_b32 v%d, -1, v%d" % (vl, vl))
    c.a_sc1 = not first
    SC = " sc1"
    a("s_and_b32 s%d, s2, 7" % c.st[0])
    a("s_lshr_b32 s%d, s2, 3" % c.st[1])
    PM = tilesM // XM
    lgPM = PM.bit_length() - 1; lgXM = XM.bit_length() - 1; lgXN = XN.bit_length() - 1
    a("s_and_b32 s%d, s%d, %d" % (c.st[2], c.st[0], PM - 1))
    a("s_lshr_b32 s%d, s%d, %d" % (c.st[3], c.st[0], lgPM))
    a("s_lshl_b32 s%d, s%d, %d" % (s_tm, c.st[2], lgXM))
    a("s_and_b32 s%d, s%d, %d" % (c.st[2], c.st[1], XM - 1))
    a("s_add_u32 s%d, s%d, s%d" % (s_tm, s_tm, c.st[2]))
    a("s_lshl_b32 s%d, s%d, %d" % (s_tn, c.st[3], lgXN))
    a("s_lshr_b32 s%d, s%d, %d" % (c.st[2], c.st[1], lgXM))
    a("s_add_u32 s%d, s%d, s%d" % (s_tn, s_tn, c.st[2]))
    a("s_mul_i32 s%d, s%d, %d" % (c.st[0], s_tm, BM * c.lda))
    a("s_add_u32 s%d, s%d, %d" % (c.st[0], c.st[0], a_off))
    a("s_add_u32 s12, s4, s%d" % c.st[0])
    a("s_addc_u32 s13, s5, 0")
    make_srd(a, c.srdA, "s12", "s13", BM * c.lda)
    a("s_mul_i32 s%d, s%d, %d" % (c.st[0], s_tn, BN * 2))
    a("s_add_u32 s12, s%d, s%d" % (sW, c.st[0]))
    a("s_addc_u32 s13, s%d, 0" % (sW + 1))
    a("s_sub_u32 s%d, %d, s%d" % (c.st[1], c.K * c.ldb, c.st[0]))
    make_srd(a, c.srdB, "s12", "s13", "s%d" % c.st[1])
    Lcons = a.newlabel("Lconsumer"); Lfin = a.newlabel("Lfinal")
    ldc = {"wo": LD_H, "w1": LD_H1, "w2": 2048}[kind]
    ldr = {"wo": 2048, "w1": 0, "w2": LD_H}[kind]
    def other_srds():
        a("s_mul_i32 s%d, s%d, %d" % (c.st[0], s_tm, BM * ldc))
        a("s_mul_i32 s%d, s%d, %d" % (c.st[1], s_tn, BN * 2))
        a("s_add_u32 s%d, s%d, s%d" % (c.st[0], c.st[0], c.st[1]))
        if kind == "w2":
            a("s_add_u32 s12, s8, s%d" % c.st[0])
            a("s_addc_u32 s13, s9, 0")
        else:
            a("s_add_u32 s%d, s%d, %d" % (c.st[2], c.st[0], {"wo": WS_H, "w1": WS_H1}[kind]))
            a("s_add_u32 s12, s4, s%d" % c.st[2])
            a("s_addc_u32 s13, s5, 0")
        a("s_sub_u32 s%d, %d, s%d" % (c.st[1], S_ * ldc, c.st[0]))
        make_srd(a, srdC, "s12", "s13", "s%d" % c.st[1])
        if kind in ("wo", "w2"):
            a("s_mul_i32 s%d, s%d, %d" % (c.st[0], s_tm, BM * ldr))
            a("s_mul_i32 s%d, s%d, %d" % (c.st[1], s_tn, BN * 2))
            a("s_add_u32 s%d, s%d, s%d" % (c.st[0], c.st[0], c.st[1]))
            a("s_sub_u32 s%d, %d, s%d" % (c.st[1], S_ * ldr, c.st[0]))
            if kind == "wo":
                a("s_add_u32 s12, s10, s%d" % c.st[0])
                a("s_addc_u32 s13, s11, 0")
            else:
                a("s_add_u32 s%d, s%d, %d" % (c.st[2], c.st[0], WS_H))
                a("s_add_u32 s12, s4, s%d" % c.st[2])
                a("s_addc_u32 s13, s5, 0")
            make_srd(a, srdR, "s12", "s13", "s%d" % c.st[1])
        if kind == "wo":
            a("s_mul_i32 s%d, s%d, %d" % (c.st[0], s_tm, BM * np2 * 8))
            a("s_lshl_b32 s%d, s%d, 3" % (c.st[1], s_tn))
            a("s_add_u32 s%d, s%d, s%d" % (c.st[0], c.st[0], c.st[1]))
            a("s_add_u32 s%d, s%d, %d" % (c.st[0], c.st[0], WS_ST2))
            a("s_add_u32 s12, s4, s%d" % c.st[0])
            a("s_addc_u32 s13, s5, 0")
            make_srd(a, srdS, "s12", "s13", BM * np2 * 8)
        if kind == "w1":
            a("s_mul_i32 s%d, s%d, %d" % (c.st[0], s_tm, 128 * np2 * 8))
            a("s_add_u32 s%d, s%d, %d" % (c.st[0], c.st[0], WS_ST2))
            a("s_add_u32 s12, s4, s%d" % c.st[0])
            a("s_addc_u32 s13, s5, 0")
            make_srd(a, srdS, "s12", "s13", 128 * np2 * 8)
            a("s_mul_i32 s%d, s%d, %d" % (c.st[0], s_tn, 224 * 4))
            a("s_add_u32 s%d, s%d, %d" % (c.st[0], c.st[0], WS_CS1))
            a("s_add_u32 s12, s4, s%d" % c.st[0])
            a("s_addc_u32 s13, s5, 0")
            make_srd(a, srdT, "s12", "s13", 15 * 3584 * 4 + 224 * 4)
    stamp(a, 0, s_wave, kidx, tmp_v=vst)
    a("s_cmp_lt_u32 s%d, 4" % s_wave)
    a("s_cbranch_scc1 %s" % Lcons)
    if os.environ.get("PRIO_P"): a("s_setprio %s" % os.environ["PRIO_P"])
    a("s_sub_u32 s%d, s%d, 4" % (c.s_p, s_wave))
    a("s_mov_b32 s%d, 0" % c.s_ka)
    a("s_mov_b32 s%d, 0" % c.s_kb)
    emit_producer_setup(a, c, 32)
    stamp(a, 1, s_wave, kidx, tmp_v=vst)
    def poll():
        Lnp = a.newlabel("Lnopoll")
        if kind == "wo" and MEGA:
            if VB: import kqkvb as kqkv
            else: import kqkv
            Lnc = a.newlabel("Lnocs")
            a("s_cmp_lt_u32 s%d, 6" % s_wave)
            a("s_cbranch_scc1 %s" % Lnc)
            nB = (c.SB - 1) * c.b_ins
            a("s_waitcnt vmcnt(%d)" % (4 + nB))
            kqkv.COLSUM_FN(t, vl, c.st)
            a.label(Lnc)
        a("s_cmp_lg_u32 s%d, 4" % s_wave)
        a("s_cbranch_scc1 %s" % Lnp)
        if kind == "wo":
            if VB:
                a("s_lshr_b32 s%d, s%d, 1" % (c.st[0], s_tm))
                a("s_lshl_b32 s%d, s%d, 7" % (c.st[0], c.st[0]))
                a("s_add_u32 s%d, s%d, %d" % (c.st[0], c.st[0], FO))
                a("v_and_b32 v%d, 15, v%d" % (t[0], vl))
            else:
                a("s_lshr_b32 s%d, s%d, 2" % (c.st[0], s_tm))
                a("s_lshl_b32 s%d, s%d, 8" % (c.st[0], c.st[0]))
                a("s_add_u32 s%d, s%d, %d" % (c.st[0], c.st[0], FO))
                a("v_and_b32 v%d, 31, v%d" % (t[0], vl))
        else:
            base = FH if kind == "w1" else FH1
            a("s_lshl_b32 s%d, s%d, 7" % (c.st[0], s_tm))
            a("s_add_u32 s%d, s%d, %d" % (c.st[0], c.st[0], base))
            a("v_and_b32 v%d, 15, v%d" % (t[0], vl))
        a("v_lshlrev_b32 v%d, 3, v%d" % (t[0], t[0]))
        a("v_add_u32 v%d, s%d, v%d" % (t[0], c.st[0], t[0]))
        a("v_mov_b32 v56, s72")
        a("v_mov_b32 v57, s73")
        Lp = a.newlabel("Lpoll"); Lpd = a.newlabel("Lpolld")
        a("s_mov_b32 s57, 0")
        a.label(Lp)
        a("global_load_dwordx2 v[58:59], v%d, s[4:5] sc1" % t[0])
        a("s_waitcnt vmcnt(0)")
        a("v_cmp_eq_u64 vcc, v[56:57], v[58:59]")
        a("s_nop 4")
        a("s_cmp_eq_u64 vcc, exec")
        a("s_cbranch_scc1 %s" % Lpd)
        a("s_add_u32 s57, s57, 1")
        a("s_cmp_gt_u32 s57, 0x40000")
        a("s_cbranch_scc1 %s" % Lpd)
        a("s_sleep %s" % os.environ.get("PSLEEP", "4"))
        a("s_branch %s" % Lp)
        a.label(Lpd)
        if kind == "w1" and MEGA:
            Lc1 = a.newlabel("Lcs"); Lc2 = a.newlabel("Lcsd")
            a("s_mul_i32 s%d, s%d, 224" % (c.st[0], s_tn))
            a("s_lshr_b32 s%d, s%d, 6" % (c.st[0], c.st[0]))
            a("v_lshrrev_b32 v%d, 2, v%d" % (t[0], vl))
            a("v_mul_u32_u24 v%d, 56, v%d" % (t[0], t[0]))
            a("v_and_b32 v%d, 3, v%d" % (t[1], vl))
            a("v_add3_u32 v%d, v%d, v%d, s%d" % (t[0], t[0], t[1], c.st[0]))
            a("v_lshlrev_b32 v%d, 3, v%d" % (t[0], t[0]))
            a("v_add_u32 v%d, %d, v%d" % (t[0], CFU, t[0]))
            a("s_mov_b32 s57, 0")
            a.label(Lc1)
            a("global_load_dwordx2 v[58:59], v%d, s[4:5] sc1" % t[0])
            a("s_waitcnt vmcnt(0)")
            a("v_cmp_eq_u64 vcc, v[56:57], v[58:59]")
            a("s_nop 4")
            a("s_cmp_eq_u64 vcc, exec")
            a("s_cbranch_scc1 %s" % Lc2)
            a("s_add_u32 s57, s57, 1")
            a("s_cmp_gt_u32 s57, 0x40000")
            a("s_cbranch_scc1 %s" % Lc2)
            a("s_sleep 4")
            a("s_branch %s" % Lc1)
            a.label(Lc2)
        a.label(Lnp)
        a("s_barrier")
        stamp(a, 8, s_wave, kidx, tmp_v=vst)
    if first and not last:
        def mid():
            a("s_load_dwordx2 s[72:73], s[70:71], 0")
        c.prod_mid_hook = mid
    emit_producer_loop2(a, c, None if first else poll)
    if kind == "wo" and MEGA:
        Lna = a.newlabel("Lnoat")
        a("s_cmp_lt_u32 s%d, 6" % s_wave)
        a("s_cbranch_scc1 %s" % Lna)
        a("s_waitcnt vmcnt(0)")
        a("s_lshl_b32 s%d, s2, 1" % c.st[0])
        a("s_add_u32 s%d, s%d, s%d" % (c.st[0], c.st[0], s_wave))
        a("s_sub_u32 s%d, s%d, 6" % (c.st[0], c.st[0]))
        a("s_lshl_b32 s%d, s%d, 4" % (c.st[0], c.st[0]))
        a("s_add_u32 s%d, s%d, %d" % (c.st[0], c.st[0], CFU))
        a("v_lshlrev_b32 v%d, 3, v%d" % (t[0], vl))
        a("v_add_u32 v%d, s%d, v%d" % (t[0], c.st[0], t[0]))
        a("v_mov_b32 v56, s72")
        a("v_mov_b32 v57, s73")
        a("s_mov_b64 s[58:59], exec")
        a("s_mov_b64 exec, 3")
        a("global_store_dwordx2 v%d, v[56:57], s[4:5] sc1" % t[0])
        a("s_mov_b64 exec, s[58:59]")
        a.label(Lna)
    if first and not last:
        Lt1 = a.newlabel("Ltok1"); Ltp = a.newlabel("Ltp"); Ltd = a.newlabel("Ltd")
        a("s_waitcnt lgkmcnt(0)")
        a("s_cmp_lg_u32 s%d, 4" % s_wave)
        a("s_cbranch_scc1 %s" % Lt1)
        a("v_mov_b32 v%d, s72" % vtok)
        a("v_mov_b32 v%d, s73" % (vtok + 1))
        a("s_mov_b32 s57, 0")
        a.label(Ltp)
        a("v_cmp_ne_u64 vcc, 0, %s" % vr(vtok, 2))
        a("s_nop 4")
        a("s_cmp_eq_u64 vcc, exec")
        a("s_cbranch_scc1 %s" % Ltd)
        a("s_add_u32 s57, s57, 1")
        a("s_cmp_gt_u32 s57, 0x40000")
        a("s_cbranch_scc1 %s" % Ltd)
        a("v_mov_b32 v%d, 0" % (vtok + 2))
        a("global_load_dwordx2 %s, v%d, s[70:71] sc1" % (vr(vtok, 2), vtok + 2))
        a("s_waitcnt vmcnt(0)")
        a("s_branch %s" % Ltp)
        a.label(Ltd)
        a("v_mov_b32 v%d, %d" % (t[0], L_TOK))
        a("ds_write_b64 v%d, %s" % (t[0], vr(vtok, 2)))
        a("s_waitcnt lgkmcnt(0)")
        a.label(Lt1)
    other_srds()
    a("s_barrier")
    stamp(a, 2, s_wave, kidx, tmp_v=vst)
    a("s_branch %s" % Lfin)
    a.label(Lcons)
    if os.environ.get("PRIO_C"): a("s_setprio %s" % os.environ["PRIO_C"])
    a("s_lshr_b32 s%d, s%d, 1" % (c.s_wm, s_wave))
    a("s_and_b32 s%d, s%d, 1" % (c.s_wn, s_wave))
    other_srds()
    if first and not last:
        Lt0 = a.newlabel("Ltok0")
        a("s_or_b32 s58, s2, s%d" % s_wave)
        a("s_cmp_lg_u32 s58, 0")
        a("s_cbranch_scc1 %s" % Lt0)
        a("s_memrealtime s[58:59]")
        a("s_waitcnt lgkmcnt(0)")
        a("s_or_b32 s58, s58, 1")
        a("v_mov_b32 v%d, s58" % vtok)
        a("v_mov_b32 v%d, s59" % (vtok + 1))
        a("v_mov_b32 v%d, 0" % t[0])
        a("s_mov_b64 s[58:59], exec")
        a("s_mov_b64 exec, 1")
        a("global_store_dwordx2 v%d, %s, s[70:71] sc1" % (t[0], vr(vtok, 2)))
        a("s_mov_b64 exec, s[58:59]")
        a.label(Lt0)
    def side_loads():
      if kind == "w1":
        a("v_and_b32 v%d, 31, v%d" % (t[0], vl))
        a("s_lshl_b32 s%d, s%d, 5" % (c.st[0], s_wave))
        a("v_add_u32 v%d, s%d, v%d" % (t[0], c.st[0], t[0]))
        a("v_mul_u32_u24 v%d, %d, v%d" % (t[1], np2 * 8, t[0]))
        a("v_lshrrev_b32 v%d, 5, v%d" % (t[2], vl))
        a("v_mul_u32_u24 v%d, %d, v%d" % (t[2], np2 * 4, t[2]))
        a("v_add_u32 v%d, v%d, v%d" % (t[1], t[1], t[2]))
        nq = np2 * 4 // 16
        assert nq <= 4
        for q in range(nq):
            a("buffer_load_dwordx4 %s, v%d, s[%d:%d], 0 offen offset:%d%s" % (vr(vside + 4 * q, 4), t[1], srdS, srdS + 3, q * 16, SC))
        assert np2 == 8
        a("s_mul_i32 s%d, s%d, 56" % (c.st[0], s_wave))
        a("v_add_u32 v%d, s%d, v%d" % (t[3], c.st[0], vl))
        a("v_lshlrev_b32 v%d, 2, v%d" % (t[4], t[3]))
        a("v_cmp_gt_u32 vcc, 56, v%d" % vl)
        a("v_mov_b32 v%d, 0x7fffffff" % t[5])
        a("s_nop 0")
        a("v_cndmask_b32 v%d, v%d, v%d, vcc" % (t[4], t[5], t[4]))
        for q in range(16):
            a("s_mov_b32 s%d, %d" % (c.st[1], q * 3584 * 4))
            a("buffer_load_dword v%d, v%d, s[%d:%d], s%d offen%s" % (vside + 8 + q, t[4], srdT, srdT + 3, c.st[1], SC))
    c.cons_hook0 = side_loads
    if MEGA and kind == "wo":
        a("s_lshl_b32 s%d, s2, 2" % c.st[0])
        a("s_add_u32 s%d, s%d, s%d" % (c.st[0], c.st[0], s_wave))
        a("s_mul_i32 s%d, s%d, 7168" % (c.st[0], c.st[0]))
        a("v_lshlrev_b32 v%d, 4, v%d" % (t[0], vl))
        a("v_add_u32 v%d, s%d, v%d" % (t[0], c.st[0], t[0]))
        for j in range(7):
            if j == 4: a("v_add_u32 v%d, 4096, v%d" % (t[0], t[0]))
            a("global_load_dwordx4 v[124:127], v%d, s[68:69] offset:%d" % (t[0], (j % 4) * 1024))
    emit_consumer16_setup(a, c)
    if not first: a("s_barrier")
    stamp(a, 1, s_wave, kidx, tmp_v=vst)
    stamp(a, 6, s_wave, kidx, tmp_v=vst)
    emit_consumer16_loop(a, c)
    stamp(a, 7, s_wave, kidx, tmp_v=vst)
    stamp(a, 2, s_wave, kidx, tmp_v=vst)
    if kind == "w1":
        f = vside; g = vside + 8
        a("s_waitcnt vmcnt(0)")
        a("v_add_f32 v%d, v%d, v%d" % (t[5], f + 0, f + 2))
        a("v_add_f32 v%d, v%d, v%d" % (t[6], f + 1, f + 3))
        for q in range(2, 4):
            a("v_add_f32 v%d, v%d, v%d" % (t[5], t[5], f + 2 * q))
            a("v_add_f32 v%d, v%d, v%d" % (t[6], t[6], f + 2 * q + 1))
        a("v_mov_b32 v%d, v%d" % (f + 0, t[5]))
        a("v_mov_b32 v%d, v%d" % (f + 1, t[6]))
        for q in range(1, 16):
            a("v_add_f32 v%d, v%d, v%d" % (g, g, g + q))
        a("v_permlane32_swap_b32 v%d, v%d" % (f + 0, t[5]))
        a("v_permlane32_swap_b32 v%d, v%d" % (f + 1, t[6]))
        a("v_add_f32 v%d, v%d, v%d" % (t[5], t[5], f + 0))
        a("v_add_f32 v%d, v%d, v%d" % (t[6], t[6], f + 1))
        a("v_mul_f32 v%d, 0x3a800000, v%d" % (t[5], t[5]))
        a("v_mul_f32 v%d, 0x3a800000, v%d" % (t[6], t[6]))
        a("v_fma_f32 v%d, -v%d, v%d, v%d" % (t[6], t[5], t[5], t[6]))
        a("v_max_f32 v%d, 0, v%d" % (t[6], t[6]))
        a("v_add_f32 v%d, 0x3727c5ac, v%d" % (t[6], t[6]))
        a("v_rsq_f32 v%d, v%d" % (f + 1, t[6]))
        a("v_sub_f32 v%d, 0, v%d" % (f + 0, t[5]))
        a("v_and_b32 v%d, 31, v%d" % (t[0], vl))
        a("s_lshl_b32 s%d, s%d, 5" % (c.st[0], s_wave))
        a("v_add_u32 v%d, s%d, v%d" % (t[0], c.st[0], t[0]))
        a("v_lshlrev_b32 v%d, 3, v%d" % (t[0], t[0]))
        a("v_add_u32 v%d, %d, v%d" % (t[0], side, t[0]))
        a("ds_write_b64 v%d, %s" % (t[0], vr(f, 2)))
        a("s_mul_i32 s%d, s%d, 56" % (c.st[0], s_wave))
        a("v_add_u32 v%d, s%d, v%d" % (t[3], c.st[0], vl))
        a("v_lshlrev_b32 v%d, 2, v%d" % (t[3], t[3]))
        a("v_add_u32 v%d, %d, v%d" % (t[3], side + 1024, t[3]))
        a("v_cmp_gt_u32 vcc, 56, v%d" % vl)
        a("s_and_saveexec_b64 s[56:57], vcc")
        a("ds_write_b32 v%d, v%d" % (t[3], g))
        a("s_mov_b64 exec, s[56:57]")
        a("s_waitcnt lgkmcnt(0)")
    a("s_barrier")
    a("s_nop 3")
    a("v_and_b32 v%d, 15, v%d" % (t[0], vl))
    a("s_mul_i32 s%d, s%d, %d" % (c.st[0], c.s_wm, c.WM))
    a("v_add_u32 v%d, s%d, v%d" % (t[0], c.st[0], t[0]))
    a("v_mul_u32_u24 v%d, %d, v%d" % (t[1], pitch, t[0]))
    a("v_lshrrev_b32 v%d, 4, v%d" % (t[2], vl))
    a("v_lshl_add_u32 v%d, v%d, 3, v%d" % (t[1], t[2], t[1]))
    a("s_mul_i32 s%d, s%d, %d" % (c.st[0], c.s_wn, c.NT * 32))
    a("s_add_u32 s%d, s%d, %d" % (c.st[0], c.st[0], cbase))
    a("v_add_u32 v%d, s%d, v%d" % (t[1], c.st[0], t[1]))
    f0 = c.fX[0]
    if kind == "w1":
        a("v_lshlrev_b32 v%d, 3, v%d" % (t[3], t[0]))
        a("v_add_u32 v%d, %d, v%d" % (t[3], side, t[3]))
        for mt in range(4):
            a("ds_read_b64 %s, v%d offset:%d" % (vr(f0 + 2 * mt, 2), t[3], mt * 16 * 8))
        a("v_lshlrev_b32 v%d, 4, v%d" % (t[4], t[2]))
        a("s_mul_i32 s%d, s%d, %d" % (c.st[0], c.s_wn, c.NT * 64))
        a("v_add_u32 v%d, s%d, v%d" % (t[4], c.st[0], t[4]))
        a("v_add_u32 v%d, %d, v%d" % (t[4], side, t[4]))
        for tt in range(c.NT):
            a("ds_read_b128 %s, v%d offset:%d" % (vr(f0 + 8 + 4 * tt, 4), t[4], 1024 + tt * 64))
        a("s_waitcnt lgkmcnt(%d)" % c.NT)
        rs = f0 + 8 + 4 * c.NT
        for mt in range(4):
            a("v_mov_b32 v%d, v%d" % (rs + 2 * mt, f0 + 2 * mt + 1))
    tmp = c.fX[1] + 4 * c.MT
    ntmp = min(4, (4 * c.NT) // 2)
    for tt in range(c.NT):
        if kind == "w1": a("s_waitcnt lgkmcnt(%d)" % min(15, c.NT - 1 - tt + tt * c.MT))
        for mt in range(c.MT):
            acc = c.acc + 4 * (tt * c.MT + mt)
            if kind == "w1":
                cs = f0 + 8 + 4 * tt
                for h in range(2):
                    a("v_pk_fma_f32 %s, %s, %s, %s op_sel_hi:[1,0,1]" % (vr(acc + 2 * h, 2), vr(cs + 2 * h, 2), vr(f0 + 2 * mt, 2), vr(acc + 2 * h, 2)))
                    a("v_pk_mul_f32 %s, %s, %s op_sel_hi:[1,0]" % (vr(acc + 2 * h, 2), vr(acc + 2 * h, 2), vr(rs + 2 * mt, 2)))
            d = acc if kind != "w1" else acc
            a("v_cvt_pk_bf16_f32 v%d, v%d, v%d" % (d, acc, acc + 1))
            a("v_cvt_pk_bf16_f32 v%d, v%d, v%d" % (d + 1, acc + 2, acc + 3))
            if kind == "w1":
                a("v_pk_max_i16 v%d, v%d, 0" % (d, d))
                a("v_pk_max_i16 v%d, v%d, 0" % (d + 1, d + 1))
            a("ds_write_b64 v%d, %s offset:%d" % (t[1], vr(d, 2), mt * 16 * pitch + tt * 32))
    a("s_waitcnt lgkmcnt(0)")
    a.label(Lfin)
    G = BN // 8
    nf = BM * G // 64 // 8
    vL = [i for i in range(nf)]; vG = [nf + i for i in range(nf)]
    vGR = [2 * nf + i for i in range(nf)]
    vD = (3 * nf + 3) // 4 * 4
    vR = vD + 4 * nf
    mul, sh = magic_div(G, BM * G + 64)
    t = [vR + 4 * nf + i for i in range(10)]
    assert vR + 4 * nf + 10 <= misc
    a("s_mul_i32 s%d, s%d, %d" % (c.st[0], s_wave, nf * 64))
    for j in range(nf):
        a("v_add_u32 v%d, s%d, v%d" % (t[0], c.st[0], vl))
        if j: a("v_add_u32 v%d, %d, v%d" % (t[0], 64 * j, t[0]))
        a("v_mul_u32_u24 v%d, %d, v%d" % (t[1], mul, t[0]))
        a("v_lshrrev_b32 v%d, %d, v%d" % (t[1], sh, t[1]))
        a("v_mul_u32_u24 v%d, %d, v%d" % (t[2], G, t[1]))
        a("v_sub_u32 v%d, v%d, v%d" % (t[2], t[0], t[2]))
        a("v_lshlrev_b32 v%d, 4, v%d" % (t[2], t[2]))
        a("v_mul_u32_u24 v%d, %d, v%d" % (t[3], pitch, t[1]))
        a("v_add_u32 v%d, v%d, v%d" % (vL[j], t[3], t[2]))
        a("v_mul_u32_u24 v%d, %d, v%d" % (t[3], ldc, t[1]))
        a("v_add_u32 v%d, v%d, v%d" % (vG[j], t[3], t[2]))
        if kind in ("wo", "w2"):
            a("v_mul_u32_u24 v%d, %d, v%d" % (t[3], ldr, t[1]))
            a("v_add_u32 v%d, v%d, v%d" % (vGR[j], t[3], t[2]))
            a("buffer_load_dwordx4 %s, v%d, s[%d:%d], 0 offen%s" % (vr(vR + 4 * j, 4), vGR[j], srdR, srdR + 3, SC if kind == "w2" else ""))
    stamp(a, 3, s_wave, kidx, tmp_v=vst)
    a("s_barrier")
    stamp(a, 4, s_wave, kidx, tmp_v=vst)
    if first and not last:
        a("v_mov_b32 v%d, %d" % (t[8], L_TOK))
        a("ds_read_b64 %s, v%d" % (vr(vtok, 2), t[8]))
        a("s_waitcnt lgkmcnt(0)")
        a("v_readfirstlane_b32 s72, v%d" % vtok)
        a("v_readfirstlane_b32 s73, v%d" % (vtok + 1))
    for j in range(nf):
        a("ds_read_b128 %s, v%d offset:%d" % (vr(vD + 4 * j, 4), vL[j], cbase))
    if kind in ("wo", "w2"): a("s_waitcnt vmcnt(0)")
    lanes_per_row = G
    for j in range(nf):
        a("s_waitcnt lgkmcnt(%d)" % (nf - 1 - j))
        if kind in ("wo", "w2"):
            for q in range(4):
                d = vD + 4 * j + q; r = vR + 4 * j + q
                a("v_lshlrev_b32 v%d, 16, v%d" % (t[0], d))
                a("v_and_b32 v%d, 0xffff0000, v%d" % (t[1], d))
                a("v_lshlrev_b32 v%d, 16, v%d" % (t[2], r))
                a("v_and_b32 v%d, 0xffff0000, v%d" % (t[3], r))
                a("v_add_f32 v%d, v%d, v%d" % (t[0], t[0], t[2]))
                a("v_add_f32 v%d, v%d, v%d" % (t[1], t[1], t[3]))
                a("v_cvt_pk_bf16_f32 v%d, v%d, v%d" % (d, t[0], t[1]))
                if kind == "wo":
                    a("v_lshlrev_b32 v%d, 16, v%d" % (t[0], d))
                    a("v_and_b32 v%d, 0xffff0000, v%d" % (t[1], d))
                    if q == 0:
                        a("v_add_f32 v%d, v%d, v%d" % (t[4], t[0], t[1]))
                        a("v_mul_f32 v%d, v%d, v%d" % (t[5], t[0], t[0]))
                    else:
                        a("v_add_f32 v%d, v%d, v%d" % (t[4], t[4], t[0]))
                        a("v_add_f32 v%d, v%d, v%d" % (t[4], t[4], t[1]))
                        a("v_fmac_f32 v%d, v%d, v%d" % (t[5], t[0], t[0]))
                    a("v_fmac_f32 v%d, v%d, v%d" % (t[5], t[1], t[1]))
        a("buffer_store_dwordx4 %s, v%d, s[%d:%d], 0 offen%s" % (vr(vD + 4 * j, 4), vG[j], srdC, srdC + 3, "" if last else SC))
        if kind == "wo":
            steps = ["quad_perm:[1,0,3,2]", "quad_perm:[2,3,0,1]", "row_half_mirror"] + (["row_mirror"] if G == 16 else [])
            for dpp in steps:
                a("s_nop 1")
                a("v_add_f32_dpp v%d, v%d, v%d %s row_mask:0xf bank_mask:0xf" % (t[6], t[4], t[4], dpp))
                a("v_add_f32_dpp v%d, v%d, v%d %s row_mask:0xf bank_mask:0xf" % (t[7], t[5], t[5], dpp))
                a("v_mov_b32 v%d, v%d" % (t[4], t[6]))
                a("v_mov_b32 v%d, v%d" % (t[5], t[7]))
            lgG = G.bit_length() - 1
            a("v_add_u32 v%d, s%d, v%d" % (t[0], c.st[0], vl))
            if j: a("v_add_u32 v%d, %d, v%d" % (t[0], 64 * j, t[0]))
            a("v_lshrrev_b32 v%d, %d, v%d" % (t[1], lgG, t[0]))
            a("v_mul_u32_u24 v%d, %d, v%d" % (t[1], np2 * 8, t[1]))
            a("v_and_b32 v%d, %d, v%d" % (t[2], G - 1, vl))
            a("v_cmp_eq_u32 vcc, 0, v%d" % t[2])
            a("v_mov_b32 v%d, 0x7fffffff" % t[3])
            a("s_nop 1")
            a("v_cndmask_b32 v%d, v%d, v%d, vcc" % (t[1], t[3], t[1]))
            a("v_mov_b32 v%d, v%d" % (vR + 4 * j, t[4]))
            a("v_mov_b32 v%d, v%d" % (vR + 4 * j + 1, t[5]))
            a("buffer_store_dwordx2 %s, v%d, s[%d:%d], 0 offen%s" % (vr(vR + 4 * j, 2), t[1], srdS, srdS + 3, SC))
    if not last:
        a("s_waitcnt vmcnt(0)")
        a("s_barrier")
        Lf = a.newlabel("Lflag")
        a("s_cmp_lg_u32 s%d, 0" % s_wave)
        a("s_cbranch_scc1 %s" % Lf)
        if kind == "wo":
            a("s_lshl_b32 s%d, s%d, 3" % (c.st[0], s_tm))
            a("s_add_u32 s%d, s%d, s%d" % (c.st[0], c.st[0], s_tn))
            base = FH
        else:
            a("s_lshl_b32 s%d, s%d, 4" % (c.st[0], s_tm))
            a("s_add_u32 s%d, s%d, s%d" % (c.st[0], c.st[0], s_tn))
            base = FH1
        a("s_lshl_b32 s%d, s%d, 3" % (c.st[0], c.st[0]))
        a("s_add_u32 s%d, s%d, %d" % (c.st[0], c.st[0], base))
        a("v_mov_b32 v%d, s%d" % (t[0], c.st[0]))
        a("v_mov_b32 v%d, s72" % vtok)
        a("v_mov_b32 v%d, s73" % (vtok + 1))
        a("s_mov_b64 s[58:59], exec")
        a("s_mov_b64 exec, 1")
        a("global_store_dwordx2 v%d, %s, s[4:5] sc1" % (t[0], vr(vtok, 2)))
        a("s_mov_b64 exec, s[58:59]")
        a.label(Lf)
    else:
        a("s_waitcnt vmcnt(0)") if (STAMPS or SPAN) else None
    stamp(a, 5, s_wave, kidx, tmp_v=vst)
    return vmax, lds

def fused_kernel(a, name, kinds):
    kernel_header(a, name)
    Lend = a.newlabel("Lend")
    a("s_cmp_ge_u32 s2, 256")
    a("s_cbranch_scc1 %s" % Lend)
    a("s_load_dwordx2 s[4:5], s[0:1], %d" % KA_WS)
    a("s_load_dwordx2 s[8:9], s[0:1], %d" % KA_OUT)
    a("s_load_dwordx2 s[10:11], s[0:1], %d" % KA_X)
    a("s_load_dwordx2 s[64:65], s[0:1], %d" % KA_WO)
    a("s_load_dwordx2 s[66:67], s[0:1], %d" % KA_W1)
    a("s_load_dwordx2 s[68:69], s[0:1], %d" % KA_W2)
    a("s_load_dwordx2 s[70:71], s[0:1], %d" % KA_DBG)
    a("v_lshrrev_b32 v1, 6, v0")
    a("s_nop 0")
    a("v_readfirstlane_b32 s40, v1")
    a("s_waitcnt lgkmcnt(0)")
    vm = 0; lds = 0
    for i, k in enumerate(kinds):
        v, l = gemm_phase(a, k, i == 0, i == len(kinds) - 1)
        vm = max(vm, v); lds = max(lds, l)
    a.label(Lend)
    a("s_endpgm")
    return kernel_desc(name, vm, 80), L_TOK + 64


def mega_kernel(a, name):
    global MEGA
    MEGA = True
    if VB: from kqkvb import qkv_kernel
    else: from kqkv import qkv_kernel
    Lend = a.newlabel("Lend")
    vm, lds = qkv_kernel(a, name, mega=True, Lend_ext=Lend)
    a("s_load_dwordx2 s[8:9], s[0:1], %d" % KA_OUT)
    a("s_load_dwordx2 s[64:65], s[0:1], %d" % KA_WO)
    a("s_load_dwordx2 s[66:67], s[0:1], %d" % KA_W1)
    a("s_load_dwordx2 s[68:69], s[0:1], %d" % KA_W2)
    a("s_load_dwordx2 s[70:71], s[0:1], %d" % KA_DBG)
    a("s_waitcnt lgkmcnt(0)")
    kinds = ["wo", "w1", "w2"]
    for i, k in enumerate(kinds):
        v, l = gemm_phase(a, k, False, i == len(kinds) - 1)
        vm = max(vm, v); lds = max(lds, l)
    a.label(Lend)
    a("s_endpgm")
    return kernel_desc(name, 256, 90), max(lds, 147456)
```

```python
from common import *
from gemm import *
import os

def env_tuple(name, default):
    v = os.environ.get(name)
    return tuple(int(x) for x in v.replace("x", ",").split(",")) if v else default

def base_cfg(BM, BN, K, lda, ldb):
    c = Cfg()
    c.BM, c.BN, c.K, c.lda, c.ldb = BM, BN, K, lda, ldb
    c.NS = K // 64
    c.nA = BM // 8; c.nB = BN // 8
    c.a_ins = c.nA // 4; c.b_ins = c.nB // 4
    assert c.nA % 4 == 0 and c.nB % 4 == 0
    c.P = BN // 8
    c.rotate = False
    c.colmode = "lin"
    return c

L_TOK = 147456
MEGA = False
VB = os.environ.get('VB', '0') == '1'
FO = WS_FLAG + 196608
CFU = WS_FLAG + 262144
FH = WS_FLAG + 65536
FH1 = WS_FLAG + 131072
NP2 = None
def wo_tile():
    return env_tuple("TILE_wo", (64, 128))

def gemm_phase(a, kind, first, last):
    DBG = os.environ.get("GDBG", "")
    if kind == "wo":
        BM, BN = wo_tile(); c = base_cfg(BM, BN, 1024, LD_O, 2048); set_rings(c, *env_tuple("RING_wo", (6, 6)))
    elif kind == "w1":
        BM, BN = 128, 224; c = base_cfg(BM, BN, 1024, LD_H, 7168); set_rings(c, *env_tuple("RING_w1", (3, 3)))
    else:
        BM, BN = env_tuple("TILE_w2", (64, 128)); c = base_cfg(BM, BN, 3584, LD_H1, 2048); set_rings(c, *env_tuple("RING_w2", (6, 6)))
    N = {"wo": 1024, "w1": 3584, "w2": 1024}[kind]
    tilesM, tilesN = 2048 // BM, N // BN
    assert tilesM * tilesN == 256
    XM = env_tuple("XROWS_" + kind, (1024 if kind == "w1" else 512,))[0] // BM; XN = 32 // XM
    np2 = 1024 // wo_tile()[1]
    c.swz = swz_mask_bits(c.P)
    c.MT = BM // 32; c.NT = BN // 32
    c.WM = BM // 2
    nW = 1
    for (kb, jb) in c.swz: nW = max(nW, 1 << jb)
    nW = min(nW, 1 << (c.NT - 1).bit_length()) if c.NT <= 4 else 2
    nW = max(nW, 2) if c.NT >= 2 else 1
    if c.NT <= 4: nW = c.NT
    c.srdA, c.srdB, srdC, srdR, srdS, srdT = 16, 20, 24, 28, 32, 36
    s_wave, s_tm, s_tn = 40, 41, 42
    c.s_p = c.s_wm = 43; c.s_wn = 44
    c.s_slotA = c.s_cslotA = 45; c.s_ka = c.s_deltaA = 46; c.s_kb = c.s_deltaB = 47; c.s_mA = 48; c.s_mB = 49; c.s_i = 50; c.s_slotB = c.s_cslotB = 51
    c.st = [52, 53, 54, 55]
    nacc = c.MT * c.NT * 4
    c.acc = 0
    fr = nacc
    fsz = 4 * c.MT + 4 * c.NT
    c.fX = [fr, fr + fsz]; c.fW = [fr + 4 * c.MT, fr + fsz + 4 * c.MT]
    misc = max(fr + 2 * fsz, 96)
    c.v_lane = misc
    c.vX = [misc + 1, misc + 2]; c.vW = [misc + 3 + i for i in range(nW)]
    c.vt = [misc + 3 + nW + i for i in range(8)]
    vside = (misc + 11 + nW + 3) // 4 * 4
    vst = vside + (24 if kind == "w1" else 0)
    vtok = (vst + 4 + 1) // 2 * 2
    vmax = vtok + 6
    assert vmax <= 256
    lds = c.ring_bytes
    side = lds
    if kind == "w1": lds += 128 * 8 + 224 * 4
    pitch = BN * 2 + 16
    ctile = BM * pitch
    cbase = 0
    assert ctile <= c.ring_bytes
    kidx = {"wo": 1, "w1": 2, "w2": 3}[kind]
    vl = c.v_lane; t = c.vt

    a_off = {"wo": WS_O, "w1": WS_H, "w2": WS_H1}[kind]
    sW = {"wo": 64, "w1": 66, "w2": 68}[kind]
    a("v_mbcnt_lo_u32_b32 v%d, -1, 0" % vl)
    a("v_mbcnt_hi_u32_b32 v%d, -1, v%d" % (vl, vl))
    c.a_sc1 = not first
    SC = " sc1"
    a("s_and_b32 s%d, s2, 7" % c.st[0])
    a("s_lshr_b32 s%d, s2, 3" % c.st[1])
    PM = tilesM // XM
    lgPM = PM.bit_length() - 1; lgXM = XM.bit_length() - 1; lgXN = XN.bit_length() - 1
    a("s_and_b32 s%d, s%d, %d" % (c.st[2], c.st[0], PM - 1))
    a("s_lshr_b32 s%d, s%d, %d" % (c.st[3], c.st[0], lgPM))
    a("s_lshl_b32 s%d, s%d, %d" % (s_tm, c.st[2], lgXM))
    a("s_and_b32 s%d, s%d, %d" % (c.st[2], c.st[1], XM - 1))
    a("s_add_u32 s%d, s%d, s%d" % (s_tm, s_tm, c.st[2]))
    a("s_lshl_b32 s%d, s%d, %d" % (s_tn, c.st[3], lgXN))
    a("s_lshr_b32 s%d, s%d, %d" % (c.st[2], c.st[1], lgXM))
    a("s_add_u32 s%d, s%d, s%d" % (s_tn, s_tn, c.st[2]))
    a("s_mul_i32 s%d, s%d, %d" % (c.st[0], s_tm, BM * c.lda))
    a("s_add_u32 s%d, s%d, %d" % (c.st[0], c.st[0], a_off))
    a("s_add_u32 s12, s4, s%d" % c.st[0])
    a("s_addc_u32 s13, s5, 0")
    make_srd(a, c.srdA, "s12", "s13", BM * c.lda)
    a("s_mul_i32 s%d, s%d, %d" % (c.st[0], s_tn, BN * 2))
    a("s_add_u32 s12, s%d, s%d" % (sW, c.st[0]))
    a("s_addc_u32 s13, s%d, 0" % (sW + 1))
    a("s_sub_u32 s%d, %d, s%d" % (c.st[1], c.K * c.ldb, c.st[0]))
    make_srd(a, c.srdB, "s12", "s13", "s%d" % c.st[1])
    Lcons = a.newlabel("Lconsumer"); Lfin = a.newlabel("Lfinal")
    ldc = {"wo": LD_H, "w1": LD_H1, "w2": 2048}[kind]
    ldr = {"wo": 2048, "w1": 0, "w2": LD_H}[kind]
    def other_srds():
        a("s_mul_i32 s%d, s%d, %d" % (c.st[0], s_tm, BM * ldc))
        a("s_mul_i32 s%d, s%d, %d" % (c.st[1], s_tn, BN * 2))
        a("s_add_u32 s%d, s%d, s%d" % (c.st[0], c.st[0], c.st[1]))
        if kind == "w2":
            a("s_add_u32 s12, s8, s%d" % c.st[0])
            a("s_addc_u32 s13, s9, 0")
        else:
            a("s_add_u32 s%d, s%d, %d" % (c.st[2], c.st[0], {"wo": WS_H, "w1": WS_H1}[kind]))
            a("s_add_u32 s12, s4, s%d" % c.st[2])
            a("s_addc_u32 s13, s5, 0")
        a("s_sub_u32 s%d, %d, s%d" % (c.st[1], S_ * ldc, c.st[0]))
        make_srd(a, srdC, "s12", "s13", "s%d" % c.st[1])
        if kind in ("wo", "w2"):
            a("s_mul_i32 s%d, s%d, %d" % (c.st[0], s_tm, BM * ldr))
            a("s_mul_i32 s%d, s%d, %d" % (c.st[1], s_tn, BN * 2))
            a("s_add_u32 s%d, s%d, s%d" % (c.st[0], c.st[0], c.st[1]))
            a("s_sub_u32 s%d, %d, s%d" % (c.st[1], S_ * ldr, c.st[0]))
            if kind == "wo":
                a("s_add_u32 s12, s10, s%d" % c.st[0])
                a("s_addc_u32 s13, s11, 0")
            else:
                a("s_add_u32 s%d, s%d, %d" % (c.st[2], c.st[0], WS_H))
                a("s_add_u32 s12, s4, s%d" % c.st[2])
                a("s_addc_u32 s13, s5, 0")
            make_srd(a, srdR, "s12", "s13", "s%d" % c.st[1])
        if kind == "wo":
            a("s_mul_i32 s%d, s%d, %d" % (c.st[0], s_tm, BM * np2 * 8))
            a("s_lshl_b32 s%d, s%d, 3" % (c.st[1], s_tn))
            a("s_add_u32 s%d, s%d, s%d" % (c.st[0], c.st[0], c.st[1]))
            a("s_add_u32 s%d, s%d, %d" % (c.st[0], c.st[0], WS_ST2))
            a("s_add_u32 s12, s4, s%d" % c.st[0])
            a("s_addc_u32 s13, s5, 0")
            make_srd(a, srdS, "s12", "s13", BM * np2 * 8)
        if kind == "w1":
            a("s_mul_i32 s%d, s%d, %d" % (c.st[0], s_tm, 128 * np2 * 8))
            a("s_add_u32 s%d, s%d, %d" % (c.st[0], c.st[0], WS_ST2))
            a("s_add_u32 s12, s4, s%d" % c.st[0])
            a("s_addc_u32 s13, s5, 0")
            make_srd(a, srdS, "s12", "s13", 128 * np2 * 8)
            a("s_mul_i32 s%d, s%d, %d" % (c.st[0], s_tn, 224 * 4))
            a("s_add_u32 s%d, s%d, %d" % (c.st[0], c.st[0], WS_CS1))
            a("s_add_u32 s12, s4, s%d" % c.st[0])
            a("s_addc_u32 s13, s5, 0")
            make_srd(a, srdT, "s12", "s13", 15 * 3584 * 4 + 224 * 4)
    stamp(a, 0, s_wave, kidx, tmp_v=vst)
    a("s_cmp_lt_u32 s%d, 4" % s_wave)
    a("s_cbranch_scc1 %s" % Lcons)
    if os.environ.get("PRIO_P"): a("s_setprio %s" % os.environ["PRIO_P"])
    a("s_sub_u32 s%d, s%d, 4" % (c.s_p, s_wave))
    a("s_mov_b32 s%d, 0" % c.s_ka)
    a("s_mov_b32 s%d, 0" % c.s_kb)
    emit_producer_setup(a, c, 32)
    stamp(a, 1, s_wave, kidx, tmp_v=vst)
    def poll():
        Lnp = a.newlabel("Lnopoll")
        if kind == "wo" and MEGA:
            if VB: import kqkvb as kqkv
            else: import kqkv
            Lnc = a.newlabel("Lnocs")
            a("s_cmp_lt_u32 s%d, 6" % s_wave)
            a("s_cbranch_scc1 %s" % Lnc)
            nB = (c.SB - 1) * c.b_ins
            a("s_waitcnt vmcnt(%d)" % (4 + nB))
            kqkv.COLSUM_FN(t, vl, c.st)
            a.label(Lnc)
        a("s_cmp_lg_u32 s%d, 4" % s_wave)
        a("s_cbranch_scc1 %s" % Lnp)
        if kind == "wo":
            if VB:
                a("s_lshr_b32 s%d, s%d, 1" % (c.st[0], s_tm))
                a("s_lshl_b32 s%d, s%d, 7" % (c.st[0], c.st[0]))
                a("s_add_u32 s%d, s%d, %d" % (c.st[0], c.st[0], FO))
                a("v_and_b32 v%d, 15, v%d" % (t[0], vl))
            else:
                a("s_lshr_b32 s%d, s%d, 2" % (c.st[0], s_tm))
                a("s_lshl_b32 s%d, s%d, 8" % (c.st[0], c.st[0]))
                a("s_add_u32 s%d, s%d, %d" % (c.st[0], c.st[0], FO))
                a("v_and_b32 v%d, 31, v%d" % (t[0], vl))
        else:
            base = FH if kind == "w1" else FH1
            a("s_lshl_b32 s%d, s%d, 7" % (c.st[0], s_tm))
            a("s_add_u32 s%d, s%d, %d" % (c.st[0], c.st[0], base))
            a("v_and_b32 v%d, 15, v%d" % (t[0], vl))
        a("v_lshlrev_b32 v%d, 3, v%d" % (t[0], t[0]))
        a("v_add_u32 v%d, s%d, v%d" % (t[0], c.st[0], t[0]))
        a("v_mov_b32 v56, s72")
        a("v_mov_b32 v57, s73")
        Lp = a.newlabel("Lpoll"); Lpd = a.newlabel("Lpolld")
        a("s_mov_b32 s57, 0")
        a.label(Lp)
        a("global_load_dwordx2 v[58:59], v%d, s[4:5] sc1" % t[0])
        a("s_waitcnt vmcnt(0)")
        a("v_cmp_eq_u64 vcc, v[56:57], v[58:59]")
        a("s_nop 4")
        a("s_cmp_eq_u64 vcc, exec")
        a("s_cbranch_scc1 %s" % Lpd)
        a("s_add_u32 s57, s57, 1")
        a("s_cmp_gt_u32 s57, 0x40000")
        a("s_cbranch_scc1 %s" % Lpd)
        a("s_sleep %s" % os.environ.get("PSLEEP", "4"))
        a("s_branch %s" % Lp)
        a.label(Lpd)
        if kind == "w1" and MEGA:
            Lc1 = a.newlabel("Lcs"); Lc2 = a.newlabel("Lcsd")
            a("s_mul_i32 s%d, s%d, 224" % (c.st[0], s_tn))
            a("s_lshr_b32 s%d, s%d, 6" % (c.st[0], c.st[0]))
            a("v_lshrrev_b32 v%d, 2, v%d" % (t[0], vl))
            a("v_mul_u32_u24 v%d, 56, v%d" % (t[0], t[0]))
            a("v_and_b32 v%d, 3, v%d" % (t[1], vl))
            a("v_add3_u32 v%d, v%d, v%d, s%d" % (t[0], t[0], t[1], c.st[0]))
            a("v_lshlrev_b32 v%d, 3, v%d" % (t[0], t[0]))
            a("v_add_u32 v%d, %d, v%d" % (t[0], CFU, t[0]))
            a("s_mov_b32 s57, 0")
            a.label(Lc1)
            a("global_load_dwordx2 v[58:59], v%d, s[4:5] sc1" % t[0])
            a("s_waitcnt vmcnt(0)")
            a("v_cmp_eq_u64 vcc, v[56:57], v[58:59]")
            a("s_nop 4")
            a("s_cmp_eq_u64 vcc, exec")
            a("s_cbranch_scc1 %s" % Lc2)
            a("s_add_u32 s57, s57, 1")
            a("s_cmp_gt_u32 s57, 0x40000")
            a("s_cbranch_scc1 %s" % Lc2)
            a("s_sleep 4")
            a("s_branch %s" % Lc1)
            a.label(Lc2)
        a.label(Lnp)
        a("s_barrier")
        stamp(a, 8, s_wave, kidx, tmp_v=vst)
    if first and not last:
        def mid():
            a("s_load_dwordx2 s[72:73], s[70:71], 0")
        c.prod_mid_hook = mid
    emit_producer_loop2(a, c, None if first else poll)
    if kind == "wo" and MEGA:
        Lna = a.newlabel("Lnoat")
        a("s_cmp_lt_u32 s%d, 6" % s_wave)
        a("s_cbranch_scc1 %s" % Lna)
        a("s_waitcnt vmcnt(0)")
        a("s_lshl_b32 s%d, s2, 1" % c.st[0])
        a("s_add_u32 s%d, s%d, s%d" % (c.st[0], c.st[0], s_wave))
        a("s_sub_u32 s%d, s%d, 6" % (c.st[0], c.st[0]))
        a("s_lshl_b32 s%d, s%d, 4" % (c.st[0], c.st[0]))
        a("s_add_u32 s%d, s%d, %d" % (c.st[0], c.st[0], CFU))
        a("v_lshlrev_b32 v%d, 3, v%d" % (t[0], vl))
        a("v_add_u32 v%d, s%d, v%d" % (t[0], c.st[0], t[0]))
        a("v_mov_b32 v56, s72")
        a("v_mov_b32 v57, s73")
        a("s_mov_b64 s[58:59], exec")
        a("s_mov_b64 exec, 3")
        a("global_store_dwordx2 v%d, v[56:57], s[4:5] sc1" % t[0])
        a("s_mov_b64 exec, s[58:59]")
        a.label(Lna)
    if first and not last:
        Lt1 = a.newlabel("Ltok1"); Ltp = a.newlabel("Ltp"); Ltd = a.newlabel("Ltd")
        a("s_waitcnt lgkmcnt(0)")
        a("s_cmp_lg_u32 s%d, 4" % s_wave)
        a("s_cbranch_scc1 %s" % Lt1)
        a("v_mov_b32 v%d, s72" % vtok)
        a("v_mov_b32 v%d, s73" % (vtok + 1))
        a("s_mov_b32 s57, 0")
        a.label(Ltp)
        a("v_cmp_ne_u64 vcc, 0, %s" % vr(vtok, 2))
        a("s_nop 4")
        a("s_cmp_eq_u64 vcc, exec")
        a("s_cbranch_scc1 %s" % Ltd)
        a("s_add_u32 s57, s57, 1")
        a("s_cmp_gt_u32 s57, 0x40000")
        a("s_cbranch_scc1 %s" % Ltd)
        a("v_mov_b32 v%d, 0" % (vtok + 2))
        a("global_load_dwordx2 %s, v%d, s[70:71] sc1" % (vr(vtok, 2), vtok + 2))
        a("s_waitcnt vmcnt(0)")
        a("s_branch %s" % Ltp)
        a.label(Ltd)
        a("v_mov_b32 v%d, %d" % (t[0], L_TOK))
        a("ds_write_b64 v%d, %s" % (t[0], vr(vtok, 2)))
        a("s_waitcnt lgkmcnt(0)")
        a.label(Lt1)
    other_srds()
    a("s_barrier")
    stamp(a, 2, s_wave, kidx, tmp_v=vst)
    a("s_branch %s" % Lfin)
    a.label(Lcons)
    if os.environ.get("PRIO_C"): a("s_setprio %s" % os.environ["PRIO_C"])
    a("s_lshr_b32 s%d, s%d, 1" % (c.s_wm, s_wave))
    a("s_and_b32 s%d, s%d, 1" % (c.s_wn, s_wave))
    other_srds()
    if first and not last:
        Lt0 = a.newlabel("Ltok0")
        a("s_or_b32 s58, s2, s%d" % s_wave)
        a("s_cmp_lg_u32 s58, 0")
        a("s_cbranch_scc1 %s" % Lt0)
        a("s_memrealtime s[58:59]")
        a("s_waitcnt lgkmcnt(0)")
        a("s_or_b32 s58, s58, 1")
        a("v_mov_b32 v%d, s58" % vtok)
        a("v_mov_b32 v%d, s59" % (vtok + 1))
        a("v_mov_b32 v%d, 0" % t[0])
        a("s_mov_b64 s[58:59], exec")
        a("s_mov_b64 exec, 1")
        a("global_store_dwordx2 v%d, %s, s[70:71] sc1" % (t[0], vr(vtok, 2)))
        a("s_mov_b64 exec, s[58:59]")
        a.label(Lt0)
    def side_loads():
      if kind == "w1":
        a("v_and_b32 v%d, 31, v%d" % (t[0], vl))
        a("s_lshl_b32 s%d, s%d, 5" % (c.st[0], s_wave))
        a("v_add_u32 v%d, s%d, v%d" % (t[0], c.st[0], t[0]))
        a("v_mul_u32_u24 v%d, %d, v%d" % (t[1], np2 * 8, t[0]))
        a("v_lshrrev_b32 v%d, 5, v%d" % (t[2], vl))
        a("v_mul_u32_u24 v%d, %d, v%d" % (t[2], np2 * 4, t[2]))
        a("v_add_u32 v%d, v%d, v%d" % (t[1], t[1], t[2]))
        nq = np2 * 4 // 16
        assert nq <= 4
        for q in range(nq):
            a("buffer_load_dwordx4 %s, v%d, s[%d:%d], 0 offen offset:%d%s" % (vr(vside + 4 * q, 4), t[1], srdS, srdS + 3, q * 16, SC))
        assert np2 == 8
        a("s_mul_i32 s%d, s%d, 56" % (c.st[0], s_wave))
        a("v_add_u32 v%d, s%d, v%d" % (t[3], c.st[0], vl))
        a("v_lshlrev_b32 v%d, 2, v%d" % (t[4], t[3]))
        a("v_cmp_gt_u32 vcc, 56, v%d" % vl)
        a("v_mov_b32 v%d, 0x7fffffff" % t[5])
        a("s_nop 0")
        a("v_cndmask_b32 v%d, v%d, v%d, vcc" % (t[4], t[5], t[4]))
        for q in range(16):
            a("s_mov_b32 s%d, %d" % (c.st[1], q * 3584 * 4))
            a("buffer_load_dword v%d, v%d, s[%d:%d], s%d offen%s" % (vside + 8 + q, t[4], srdT, srdT + 3, c.st[1], SC))
    c.cons_hook0 = side_loads
    if MEGA and kind == "wo":
        a("s_lshl_b32 s%d, s2, 2" % c.st[0])
        a("s_add_u32 s%d, s%d, s%d" % (c.st[0], c.st[0], s_wave))
        a("s_mul_i32 s%d, s%d, 7168" % (c.st[0], c.st[0]))
        a("v_lshlrev_b32 v%d, 4, v%d" % (t[0], vl))
        a("v_add_u32 v%d, s%d, v%d" % (t[0], c.st[0], t[0]))
        for j in range(7):
            if j == 4: a("v_add_u32 v%d, 4096, v%d" % (t[0], t[0]))
            a("global_load_dwordx4 v[124:127], v%d, s[68:69] offset:%d" % (t[0], (j % 4) * 1024))
    emit_consumer16_setup(a, c)
    if not first: a("s_barrier")
    stamp(a, 1, s_wave, kidx, tmp_v=vst)
    stamp(a, 6, s_wave, kidx, tmp_v=vst)
    def side_compute():
        Lsc = a.newlabel("Lsc")
        a("s_cmp_lg_u32 s%d, 6" % c.s_i)
        a("s_cbranch_scc1 %s" % Lsc)
        f = vside; g = vside + 8
        a("s_waitcnt vmcnt(0)")
        a("v_add_f32 v%d, v%d, v%d" % (t[5], f + 0, f + 2))
        a("v_add_f32 v%d, v%d, v%d" % (t[6], f + 1, f + 3))
        for q in range(2, 4):
            a("v_add_f32 v%d, v%d, v%d" % (t[5], t[5], f + 2 * q))
            a("v_add_f32 v%d, v%d, v%d" % (t[6], t[6], f + 2 * q + 1))
        a("v_mov_b32 v%d, v%d" % (f + 0, t[5]))
        a("v_mov_b32 v%d, v%d" % (f + 1, t[6]))
        for q in range(1, 16):
            a("v_add_f32 v%d, v%d, v%d" % (g, g, g + q))
        a("v_permlane32_swap_b32 v%d, v%d" % (f + 0, t[5]))
        a("v_permlane32_swap_b32 v%d, v%d" % (f + 1, t[6]))
        a("v_add_f32 v%d, v%d, v%d" % (t[5], t[5], f + 0))
        a("v_add_f32 v%d, v%d, v%d" % (t[6], t[6], f + 1))
        a("v_mul_f32 v%d, 0x3a800000, v%d" % (t[5], t[5]))
        a("v_mul_f32 v%d, 0x3a800000, v%d" % (t[6], t[6]))
        a("v_fma_f32 v%d, -v%d, v%d, v%d" % (t[6], t[5], t[5], t[6]))
        a("v_max_f32 v%d, 0, v%d" % (t[6], t[6]))
        def rb(x):
            a("v_cvt_pk_bf16_f32 v%d, v%d, v%d" % (x, x, x))
            a("v_lshlrev_b32 v%d, 16, v%d" % (x, x))
        rb(t[6])
        a("v_add_f32 v%d, 0x3727c5ac, v%d" % (t[6], t[6]))
        rb(t[6])
        a("v_sqrt_f32 v%d, v%d" % (t[6], t[6]))
        a("s_nop 0")
        rb(t[6])
        a("v_rcp_f32 v%d, v%d" % (f + 1, t[6]))
        rb(t[5])
        a("v_sub_f32 v%d, 0, v%d" % (f + 0, t[5]))
        a("v_and_b32 v%d, 31, v%d" % (t[0], vl))
        a("s_lshl_b32 s%d, s%d, 5" % (c.st[0], s_wave))
        a("v_add_u32 v%d, s%d, v%d" % (t[0], c.st[0], t[0]))
        a("v_lshlrev_b32 v%d, 3, v%d" % (t[0], t[0]))
        a("v_add_u32 v%d, %d, v%d" % (t[0], side, t[0]))
        a("ds_write_b64 v%d, %s" % (t[0], vr(f, 2)))
        a("s_mul_i32 s%d, s%d, 56" % (c.st[0], s_wave))
        a("v_add_u32 v%d, s%d, v%d" % (t[3], c.st[0], vl))
        a("v_lshlrev_b32 v%d, 2, v%d" % (t[3], t[3]))
        a("v_add_u32 v%d, %d, v%d" % (t[3], side + 1024, t[3]))
        a("v_cmp_gt_u32 vcc, 56, v%d" % vl)
        a("s_and_saveexec_b64 s[56:57], vcc")
        a("ds_write_b32 v%d, v%d" % (t[3], g))
        a("s_mov_b64 exec, s[56:57]")
        a.label(Lsc)
    if kind == "w1": c.cons_iter_hook = side_compute
    emit_consumer16_loop(a, c)
    stamp(a, 7, s_wave, kidx, tmp_v=vst)
    stamp(a, 2, s_wave, kidx, tmp_v=vst)
    a("s_barrier")
    a("s_nop 3")
    a("v_and_b32 v%d, 15, v%d" % (t[0], vl))
    a("s_mul_i32 s%d, s%d, %d" % (c.st[0], c.s_wm, c.WM))
    a("v_add_u32 v%d, s%d, v%d" % (t[0], c.st[0], t[0]))
    a("v_mul_u32_u24 v%d, %d, v%d" % (t[1], pitch, t[0]))
    a("v_lshrrev_b32 v%d, 4, v%d" % (t[2], vl))
    a("v_lshl_add_u32 v%d, v%d, 3, v%d" % (t[1], t[2], t[1]))
    a("s_mul_i32 s%d, s%d, %d" % (c.st[0], c.s_wn, c.NT * 32))
    a("s_add_u32 s%d, s%d, %d" % (c.st[0], c.st[0], cbase))
    a("v_add_u32 v%d, s%d, v%d" % (t[1], c.st[0], t[1]))
    f0 = c.fX[0]
    if kind == "w1":
        a("v_lshlrev_b32 v%d, 3, v%d" % (t[3], t[0]))
        a("v_add_u32 v%d, %d, v%d" % (t[3], side, t[3]))
        for mt in range(4):
            a("ds_read_b64 %s, v%d offset:%d" % (vr(f0 + 2 * mt, 2), t[3], mt * 16 * 8))
        a("v_lshlrev_b32 v%d, 4, v%d" % (t[4], t[2]))
        a("s_mul_i32 s%d, s%d, %d" % (c.st[0], c.s_wn, c.NT * 64))
        a("v_add_u32 v%d, s%d, v%d" % (t[4], c.st[0], t[4]))
        a("v_add_u32 v%d, %d, v%d" % (t[4], side, t[4]))
        for tt in range(c.NT):
            a("ds_read_b128 %s, v%d offset:%d" % (vr(f0 + 8 + 4 * tt, 4), t[4], 1024 + tt * 64))
        a("s_waitcnt lgkmcnt(%d)" % c.NT)
        rs = f0 + 8 + 4 * c.NT
        for mt in range(4):
            a("v_mov_b32 v%d, v%d" % (rs + 2 * mt, f0 + 2 * mt + 1))
    tmp = c.fX[1] + 4 * c.MT
    ntmp = min(4, (4 * c.NT) // 2)
    for tt in range(c.NT):
        if kind == "w1": a("s_waitcnt lgkmcnt(%d)" % min(15, c.NT - 1 - tt + tt * c.MT))
        for mt in range(c.MT):
            acc = c.acc + 4 * (tt * c.MT + mt)
            if kind == "w1":
                cs = f0 + 8 + 4 * tt
                for h in range(2):
                    a("v_pk_fma_f32 %s, %s, %s, %s op_sel_hi:[1,0,1]" % (vr(acc + 2 * h, 2), vr(cs + 2 * h, 2), vr(f0 + 2 * mt, 2), vr(acc + 2 * h, 2)))
                    a("v_pk_mul_f32 %s, %s, %s op_sel_hi:[1,0]" % (vr(acc + 2 * h, 2), vr(acc + 2 * h, 2), vr(rs + 2 * mt, 2)))
            d = acc if kind != "w1" else acc
            a("v_cvt_pk_bf16_f32 v%d, v%d, v%d" % (d, acc, acc + 1))
            a("v_cvt_pk_bf16_f32 v%d, v%d, v%d" % (d + 1, acc + 2, acc + 3))
            if kind == "w1":
                a("v_pk_max_i16 v%d, v%d, 0" % (d, d))
                a("v_pk_max_i16 v%d, v%d, 0" % (d + 1, d + 1))
            a("ds_write_b64 v%d, %s offset:%d" % (t[1], vr(d, 2), mt * 16 * pitch + tt * 32))
    a("s_waitcnt lgkmcnt(0)")
    a.label(Lfin)
    G = BN // 8
    nf = BM * G // 64 // 8
    vL = [i for i in range(nf)]; vG = [nf + i for i in range(nf)]
    vGR = [2 * nf + i for i in range(nf)]
    vD = (3 * nf + 3) // 4 * 4
    vR = vD + 4 * nf
    mul, sh = magic_div(G, BM * G + 64)
    t = [vR + 4 * nf + i for i in range(10)]
    assert vR + 4 * nf + 10 <= misc
    a("s_mul_i32 s%d, s%d, %d" % (c.st[0], s_wave, nf * 64))
    for j in range(nf):
        a("v_add_u32 v%d, s%d, v%d" % (t[0], c.st[0], vl))
        if j: a("v_add_u32 v%d, %d, v%d" % (t[0], 64 * j, t[0]))
        a("v_mul_u32_u24 v%d, %d, v%d" % (t[1], mul, t[0]))
        a("v_lshrrev_b32 v%d, %d, v%d" % (t[1], sh, t[1]))
        a("v_mul_u32_u24 v%d, %d, v%d" % (t[2], G, t[1]))
        a("v_sub_u32 v%d, v%d, v%d" % (t[2], t[0], t[2]))
        a("v_lshlrev_b32 v%d, 4, v%d" % (t[2], t[2]))
        a("v_mul_u32_u24 v%d, %d, v%d" % (t[3], pitch, t[1]))
        a("v_add_u32 v%d, v%d, v%d" % (vL[j], t[3], t[2]))
        a("v_mul_u32_u24 v%d, %d, v%d" % (t[3], ldc, t[1]))
        a("v_add_u32 v%d, v%d, v%d" % (vG[j], t[3], t[2]))
        if kind in ("wo", "w2"):
            a("v_mul_u32_u24 v%d, %d, v%d" % (t[3], ldr, t[1]))
            a("v_add_u32 v%d, v%d, v%d" % (vGR[j], t[3], t[2]))
            a("buffer_load_dwordx4 %s, v%d, s[%d:%d], 0 offen%s" % (vr(vR + 4 * j, 4), vGR[j], srdR, srdR + 3, SC if kind == "w2" else ""))
    stamp(a, 3, s_wave, kidx, tmp_v=vst)
    a("s_barrier")
    stamp(a, 4, s_wave, kidx, tmp_v=vst)
    if first and not last:
        a("v_mov_b32 v%d, %d" % (t[8], L_TOK))
        a("ds_read_b64 %s, v%d" % (vr(vtok, 2), t[8]))
        a("s_waitcnt lgkmcnt(0)")
        a("v_readfirstlane_b32 s72, v%d" % vtok)
        a("v_readfirstlane_b32 s73, v%d" % (vtok + 1))
    for j in range(nf):
        a("ds_read_b128 %s, v%d offset:%d" % (vr(vD + 4 * j, 4), vL[j], cbase))
    if kind in ("wo", "w2"): a("s_waitcnt vmcnt(0)")
    lanes_per_row = G
    for j in range(nf):
        a("s_waitcnt lgkmcnt(%d)" % (nf - 1 - j))
        if kind in ("wo", "w2"):
            for q in range(4):
                d = vD + 4 * j + q; r = vR + 4 * j + q
                a("v_lshlrev_b32 v%d, 16, v%d" % (t[0], d))
                a("v_and_b32 v%d, 0xffff0000, v%d" % (t[1], d))
                a("v_lshlrev_b32 v%d, 16, v%d" % (t[2], r))
                a("v_and_b32 v%d, 0xffff0000, v%d" % (t[3], r))
                a("v_add_f32 v%d, v%d, v%d" % (t[0], t[0], t[2]))
                a("v_add_f32 v%d, v%d, v%d" % (t[1], t[1], t[3]))
                a("v_cvt_pk_bf16_f32 v%d, v%d, v%d" % (d, t[0], t[1]))
                if kind == "wo":
                    a("v_lshlrev_b32 v%d, 16, v%d" % (t[0], d))
                    a("v_and_b32 v%d, 0xffff0000, v%d" % (t[1], d))
                    if q == 0:
                        a("v_add_f32 v%d, v%d, v%d" % (t[4], t[0], t[1]))
                        a("v_mul_f32 v%d, v%d, v%d" % (t[5], t[0], t[0]))
                    else:
                        a("v_add_f32 v%d, v%d, v%d" % (t[4], t[4], t[0]))
                        a("v_add_f32 v%d, v%d, v%d" % (t[4], t[4], t[1]))
                        a("v_fmac_f32 v%d, v%d, v%d" % (t[5], t[0], t[0]))
                    a("v_fmac_f32 v%d, v%d, v%d" % (t[5], t[1], t[1]))
        a("buffer_store_dwordx4 %s, v%d, s[%d:%d], 0 offen%s" % (vr(vD + 4 * j, 4), vG[j], srdC, srdC + 3, "" if last else SC))
        if kind == "wo":
            steps = ["quad_perm:[1,0,3,2]", "quad_perm:[2,3,0,1]", "row_half_mirror"] + (["row_mirror"] if G == 16 else [])
            for dpp in steps:
                a("s_nop 1")
                a("v_add_f32_dpp v%d, v%d, v%d %s row_mask:0xf bank_mask:0xf" % (t[6], t[4], t[4], dpp))
                a("v_add_f32_dpp v%d, v%d, v%d %s row_mask:0xf bank_mask:0xf" % (t[7], t[5], t[5], dpp))
                a("v_mov_b32 v%d, v%d" % (t[4], t[6]))
                a("v_mov_b32 v%d, v%d" % (t[5], t[7]))
            lgG = G.bit_length() - 1
            a("v_add_u32 v%d, s%d, v%d" % (t[0], c.st[0], vl))
            if j: a("v_add_u32 v%d, %d, v%d" % (t[0], 64 * j, t[0]))
            a("v_lshrrev_b32 v%d, %d, v%d" % (t[1], lgG, t[0]))
            a("v_mul_u32_u24 v%d, %d, v%d" % (t[1], np2 * 8, t[1]))
            a("v_and_b32 v%d, %d, v%d" % (t[2], G - 1, vl))
            a("v_cmp_eq_u32 vcc, 0, v%d" % t[2])
            a("v_mov_b32 v%d, 0x7fffffff" % t[3])
            a("s_nop 1")
            a("v_cndmask_b32 v%d, v%d, v%d, vcc" % (t[1], t[3], t[1]))
            a("v_mov_b32 v%d, v%d" % (vR + 4 * j, t[4]))
            a("v_mov_b32 v%d, v%d" % (vR + 4 * j + 1, t[5]))
            a("buffer_store_dwordx2 %s, v%d, s[%d:%d], 0 offen%s" % (vr(vR + 4 * j, 2), t[1], srdS, srdS + 3, SC))
    if not last:
        a("s_waitcnt vmcnt(0)")
        a("s_barrier")
        Lf = a.newlabel("Lflag")
        a("s_cmp_lg_u32 s%d, 0" % s_wave)
        a("s_cbranch_scc1 %s" % Lf)
        if kind == "wo":
            a("s_lshl_b32 s%d, s%d, 3" % (c.st[0], s_tm))
            a("s_add_u32 s%d, s%d, s%d" % (c.st[0], c.st[0], s_tn))
            base = FH
        else:
            a("s_lshl_b32 s%d, s%d, 4" % (c.st[0], s_tm))
            a("s_add_u32 s%d, s%d, s%d" % (c.st[0], c.st[0], s_tn))
            base = FH1
        a("s_lshl_b32 s%d, s%d, 3" % (c.st[0], c.st[0]))
        a("s_add_u32 s%d, s%d, %d" % (c.st[0], c.st[0], base))
        a("v_mov_b32 v%d, s%d" % (t[0], c.st[0]))
        a("v_mov_b32 v%d, s72" % vtok)
        a("v_mov_b32 v%d, s73" % (vtok + 1))
        a("s_mov_b64 s[58:59], exec")
        a("s_mov_b64 exec, 1")
        a("global_store_dwordx2 v%d, %s, s[4:5] sc1" % (t[0], vr(vtok, 2)))
        a("s_mov_b64 exec, s[58:59]")
        a.label(Lf)
    else:
        a("s_waitcnt vmcnt(0)") if (STAMPS or SPAN) else None
    stamp(a, 5, s_wave, kidx, tmp_v=vst)
    return vmax, lds

def fused_kernel(a, name, kinds):
    kernel_header(a, name)
    Lend = a.newlabel("Lend")
    a("s_cmp_ge_u32 s2, 256")
    a("s_cbranch_scc1 %s" % Lend)
    a("s_load_dwordx2 s[4:5], s[0:1], %d" % KA_WS)
    a("s_load_dwordx2 s[8:9], s[0:1], %d" % KA_OUT)
    a("s_load_dwordx2 s[10:11], s[0:1], %d" % KA_X)
    a("s_load_dwordx2 s[64:65], s[0:1], %d" % KA_WO)
    a("s_load_dwordx2 s[66:67], s[0:1], %d" % KA_W1)
    a("s_load_dwordx2 s[68:69], s[0:1], %d" % KA_W2)
    a("s_load_dwordx2 s[70:71], s[0:1], %d" % KA_DBG)
    a("v_lshrrev_b32 v1, 6, v0")
    a("s_nop 0")
    a("v_readfirstlane_b32 s40, v1")
    a("s_waitcnt lgkmcnt(0)")
    vm = 0; lds = 0
    for i, k in enumerate(kinds):
        v, l = gemm_phase(a, k, i == 0, i == len(kinds) - 1)
        vm = max(vm, v); lds = max(lds, l)
    a.label(Lend)
    a("s_endpgm")
    return kernel_desc(name, vm, 80), L_TOK + 64


def mega_kernel(a, name):
    global MEGA
    MEGA = True
    if VB: from kqkvb import qkv_kernel
    else: from kqkv import qkv_kernel
    Lend = a.newlabel("Lend")
    vm, lds = qkv_kernel(a, name, mega=True, Lend_ext=Lend)
    a("s_load_dwordx2 s[8:9], s[0:1], %d" % KA_OUT)
    a("s_load_dwordx2 s[64:65], s[0:1], %d" % KA_WO)
    a("s_load_dwordx2 s[66:67], s[0:1], %d" % KA_W1)
    a("s_load_dwordx2 s[68:69], s[0:1], %d" % KA_W2)
    a("s_load_dwordx2 s[70:71], s[0:1], %d" % KA_DBG)
    a("s_waitcnt lgkmcnt(0)")
    kinds = ["wo", "w1", "w2"]
    for i, k in enumerate(kinds):
        v, l = gemm_phase(a, k, False, i == len(kinds) - 1)
        vm = max(vm, v); lds = max(lds, l)
    a.label(Lend)
    a("s_endpgm")
    return kernel_desc(name, 256, 90), max(lds, 147456)
```

```python
from common import *
from gemm import *
import os

L2E = 0x3fb8aa3b

def mfma_wait(a):
    a("s_nop 7"); a("s_nop 4")

def mf32(d, A, B, C):
    return "v_mfma_f32_32x32x16_bf16 %s, %s, %s, %s" % (vr(d, 16), vr(A, 4), vr(B, 4), C if isinstance(C, str) else vr(C, 16))

def cross32(a, op, x, t):
    a("v_mov_b32 v%d, v%d" % (t, x))
    a("s_nop 1")
    a("v_permlane32_swap_b32 v%d, v%d" % (t, x))
    a("%s v%d, v%d, v%d" % (op, x, x, t))

def softmax2(a, p, pos, neg, e, t, s_l2e):
    mx, mn, t0, t1, sp, sn, rp, rn = t[0:8]
    a("v_max3_f32 v%d, v%d, v%d, v%d" % (mx, p, p + 1, p + 2))
    a("v_min3_f32 v%d, v%d, v%d, v%d" % (mn, p, p + 1, p + 2))
    for i in range(3, 15, 2):
        a("v_max3_f32 v%d, v%d, v%d, v%d" % (mx, mx, p + i, p + i + 1))
        a("v_min3_f32 v%d, v%d, v%d, v%d" % (mn, mn, p + i, p + i + 1))
    a("v_max_f32 v%d, v%d, v%d" % (mx, mx, p + 15))
    a("v_min_f32 v%d, v%d, v%d" % (mn, mn, p + 15))
    a("v_mov_b32 v%d, v%d" % (t0, mx))
    a("v_mov_b32 v%d, v%d" % (t1, mn))
    a("s_nop 1")
    a("v_permlane32_swap_b32 v%d, v%d" % (t0, mx))
    a("v_permlane32_swap_b32 v%d, v%d" % (t1, mn))
    a("v_max_f32 v%d, v%d, v%d" % (mx, mx, t0))
    a("v_min_f32 v%d, v%d, v%d" % (mn, mn, t1))
    a("v_mul_f32 v%d, s%d, v%d" % (mx, s_l2e, mx))
    a("v_mul_f32 v%d, s%d, v%d" % (mn, s_l2e, mn))
    for (sign, out, ssum, rr) in ((+1, pos, sp, rp), (-1, neg, sn, rn)):
        for i in range(16):
            if sign > 0: a("v_fma_f32 v%d, v%d, s%d, -v%d" % (e + i, p + i, s_l2e, mx))
            else: a("v_fma_f32 v%d, -v%d, s%d, v%d" % (e + i, p + i, s_l2e, mn))
        for i in range(16):
            a("v_exp_f32 v%d, v%d" % (e + i, e + i))
        a("s_nop 0")
        a("v_add_f32 v%d, v%d, v%d" % (ssum, e, e + 1))
        a("v_add_f32 v%d, v%d, v%d" % (t0, e + 2, e + 3))
        for i in range(4, 16, 2):
            a("v_add_f32 v%d, v%d, v%d" % (ssum, ssum, e + i))
            a("v_add_f32 v%d, v%d, v%d" % (t0, t0, e + i + 1))
        a("v_add_f32 v%d, v%d, v%d" % (ssum, ssum, t0))
        cross32(a, "v_add_f32", ssum, t0)
        a("v_rcp_f32 v%d, v%d" % (rr, ssum))
        a("s_nop 0")
        for i in range(0, 16, 2):
            a("v_mul_f32 v%d, v%d, v%d" % (e + i, e + i, rr))
            a("v_mul_f32 v%d, v%d, v%d" % (e + i + 1, e + i + 1, rr))
            a("v_cvt_pk_bf16_f32 v%d, v%d, v%d" % (out + i // 2, e + i, e + i + 1))

def wave_reduce_add(a, xs, ts):
    for dpp in ("quad_perm:[1,0,3,2]", "quad_perm:[2,3,0,1]", "row_half_mirror", "row_mirror"):
        a("s_nop 1")
        for x, t in zip(xs, ts):
            a("v_add_f32_dpp v%d, v%d, v%d %s row_mask:0xf bank_mask:0xf" % (t, x, x, dpp))
        for x, t in zip(xs, ts):
            a("v_mov_b32 v%d, v%d" % (x, t))
    for sw in ("v_permlane16_swap_b32", "v_permlane32_swap_b32"):
        a("s_nop 1")
        for x, t in zip(xs, ts):
            a("%s v%d, v%d" % (sw, t, x))
        for x, t in zip(xs, ts):
            a("v_add_f32 v%d, v%d, v%d" % (x, x, t))
        for x, t in zip(xs, ts):
            a("v_mov_b32 v%d, v%d" % (t, x))

COLSUM_FN = None
FO = WS_FLAG + 196608
CSCNT_OFF = 128
def qkv_kernel(a, name, mega=False, Lend_ext=None):
    c = Cfg()
    c.BM, c.BN, c.K, c.lda, c.ldb, c.S = 256, 96, 1024, 2048, 6144, 3
    c.NS = 16; c.nA = 32; c.nB = 12; c.a_ins = 8; c.b_ins = 3; c.P = 12
    c.stage_bytes = 44 * 1024
    c.rotate = True
    c.colmode = "qkv"; c.swz = []
    set_rings(c, *[int(x) for x in os.environ.get("RING_qkv", "3,3").split(",")])
    c.srdA, c.srdB = 16, 20
    srdO, srdKV, srdW1 = 24, 28, 32
    s_wave, s_rb, s_h = 40, 41, 42
    c.s_p = 43
    c.s_slotA = c.s_cslotA = 45; c.s_ka = c.s_deltaA = 46; c.s_kb = c.s_deltaB = 47; c.s_mA = 48; c.s_mB = 49; c.s_i = 50; c.s_slotB = c.s_cslotB = 51
    c.st = [52, 53, 54, 55]
    s_l2e, s_ones = 56, 57
    ring = c.ring_bytes
    L_WPHI = ring
    L_CS = L_WPHI + 2048
    L_RS = L_CS + 3072
    L_NM = L_RS + 1024
    L_TOK = L_NM + 1024
    L_STAT = L_TOK + 64
    lds = L_STAT + 64
    assert lds <= 163840
    L_PK = 0
    PKP = 144
    L_RED = 36864
    L_KVF = L_RED + 4 * KVP_BYTES
    L_ZF = L_KVF + 4096
    accQ = [0, 16]; accK = [32, 48]; accV = [64, 80]
    F = [96, 116, 176, 196]
    vcs = [136, 137, 138]
    c.vX = [139, 140, 141, 142]; vW = 143
    c.v_lane = 144
    c.vt = [145 + i for i in range(8)]
    vtok = 154
    vst = 160
    vmax = 256

    kernel_header(a, name)
    Lend = Lend_ext if mega else a.newlabel("Lend")
    Ljoin = a.newlabel("Ljoin")
    SCM = " sc1" if mega else ""
    a("s_cmp_ge_u32 s2, 256")
    a("s_cbranch_scc1 %s" % Lend)
    a("s_load_dwordx2 s[4:5], s[0:1], %d" % KA_WS)
    a("s_load_dwordx2 s[6:7], s[0:1], %d" % KA_WQKV)
    a("s_load_dwordx2 s[8:9], s[0:1], %d" % KA_DBG)
    a("s_load_dwordx2 s[10:11], s[0:1], %d" % KA_X)
    a("s_load_dwordx2 s[14:15], s[0:1], %d" % KA_WPHI)
    a("s_load_dwordx2 s[64:65], s[0:1], %d" % KA_W1)
    a("s_load_dwordx2 s[66:67], s[0:1], %d" % KA_W2)
    a("s_load_dwordx2 s[68:69], s[0:1], %d" % KA_WO)
    a("v_and_b32 v%d, 63, v0" % c.v_lane)
    a("v_lshrrev_b32 v1, 6, v0")
    a("s_nop 0")
    a("v_readfirstlane_b32 s%d, v1" % s_wave)
    if "badmap" in os.environ.get("GDBG", ""):
        a("s_lshr_b32 s%d, s2, 5" % c.st[0])
        a("s_and_b32 s%d, s2, 31" % c.st[1])
    else:
        a("s_and_b32 s%d, s2, 7" % c.st[0])
        a("s_lshr_b32 s%d, s2, 3" % c.st[1])
    a("s_and_b32 s%d, s%d, 1" % (c.st[2], c.st[0]))
    a("s_lshl_b32 s%d, s%d, 2" % (s_rb, c.st[2]))
    a("s_and_b32 s%d, s%d, 3" % (c.st[2], c.st[1]))
    a("s_add_u32 s%d, s%d, s%d" % (s_rb, s_rb, c.st[2]))
    a("s_lshr_b32 s%d, s%d, 1" % (c.st[2], c.st[0]))
    a("s_lshl_b32 s%d, s%d, 3" % (s_h, c.st[2]))
    a("s_lshr_b32 s%d, s%d, 2" % (c.st[2], c.st[1]))
    a("s_add_u32 s%d, s%d, s%d" % (s_h, s_h, c.st[2]))
    rot = os.environ.get("K1ROT", "1")
    if rot == "1":
        a("s_lshl_b32 s%d, s%d, 1" % (c.st[2], c.st[0]))
        a("s_add_u32 s%d, s%d, s%d" % (c.st[2], c.st[2], c.st[1]))
        a("s_and_b32 s%d, s%d, 15" % (c.st[2], c.st[2]))
    elif rot == "2":
        a("s_lshr_b32 s%d, s%d, 2" % (c.st[2], c.st[1]))
        a("s_lshl_b32 s%d, s%d, 1" % (c.st[2], c.st[2]))
    elif rot == "3":
        a("s_and_b32 s%d, s%d, 3" % (c.st[2], c.st[1]))
        a("s_lshl_b32 s%d, s%d, 2" % (c.st[2], c.st[2]))
        a("s_bfe_u32 s%d, s%d, 0x20002" % (c.st[3], c.st[1]))
        a("s_add_u32 s%d, s%d, s%d" % (c.st[2], c.st[2], c.st[3]))
    elif rot == "4":
        a("s_lshl_b32 s%d, s%d, 1" % (c.st[2], c.st[0]))
    elif rot == "5":
        a("s_and_b32 s%d, s%d, 3" % (c.st[2], c.st[1]))
        a("s_lshl_b32 s%d, s%d, 1" % (c.st[2], c.st[2]))
        a("s_lshr_b32 s%d, s%d, 2" % (c.st[3], c.st[1]))
        a("s_add_u32 s%d, s%d, s%d" % (c.st[2], c.st[2], c.st[3]))
    else:
        a("s_mov_b32 s%d, 0" % c.st[2])
    a("s_lshl_b32 s%d, s%d, 7" % (c.s_ka, c.st[2]))
    a("s_mul_i32 s%d, s%d, %d" % (c.s_kb, c.st[2], 64 * c.ldb))
    a("s_mov_b32 s%d, 0x%x" % (s_l2e, L2E))
    a("s_mov_b32 s%d, 0x3f803f80" % s_ones)
    a("s_waitcnt lgkmcnt(0)")
    a("s_lshl_b32 s%d, s%d, 19" % (c.st[0], s_rb))
    a("s_add_u32 s12, s10, s%d" % c.st[0])
    a("s_addc_u32 s13, s11, 0")
    make_srd(a, c.srdA, "s12", "s13", 256 * 2048)
    a("s_lshl_b32 s%d, s%d, 6" % (c.st[0], s_h))
    a("s_add_u32 s12, s6, s%d" % c.st[0])
    a("s_addc_u32 s13, s7, 0")
    a("s_sub_u32 s%d, %d, s%d" % (c.st[1], 1024 * 6144, c.st[0]))
    make_srd(a, c.srdB, "s12", "s13", "s%d" % c.st[1])
    a("s_mul_i32 s%d, s%d, %d" % (c.st[1], s_rb, 256 * LD_O))
    a("s_add_u32 s%d, s%d, s%d" % (c.st[0], c.st[0], c.st[1]))
    a("s_add_u32 s12, s4, s%d" % c.st[0])
    a("s_addc_u32 s13, s5, 0")
    make_srd(a, srdO, "s12", "s13", 256 * LD_O - 0)
    a("s_mul_i32 s%d, s%d, %d" % (c.st[0], s_h, 8 * KVP_BYTES))
    a("s_add_u32 s%d, s%d, %d" % (c.st[0], c.st[0], WS_KVP))
    a("s_add_u32 s12, s4, s%d" % c.st[0])
    a("s_addc_u32 s13, s5, 0")
    make_srd(a, srdKV, "s12", "s13", 8 * KVP_BYTES)
    kidx = 0
    stamp(a, 0, s_wave, kidx, tmp_v=vst)
    Lcons = a.newlabel("Lconsumer")
    a("s_cmp_lt_u32 s%d, 4" % s_wave)
    a("s_cbranch_scc1 %s" % Lcons)

    if os.environ.get("PRIO_P"): a("s_setprio %s" % os.environ["PRIO_P"])
    a("s_sub_u32 s%d, s%d, 4" % (c.s_p, s_wave))
    vl = c.v_lane
    t = c.vt
    a("s_lshl_b32 s%d, s%d, 8" % (c.st[0], s_rb))
    a("s_lshl_b32 s%d, s%d, 3" % (c.st[1], s_h))
    a("s_add_u32 s%d, s%d, s%d" % (c.st[0], c.st[0], c.st[1]))
    a("s_lshl_b32 s%d, s%d, 1" % (c.st[1], c.s_p))
    a("s_add_u32 s74, s%d, s%d" % (c.st[0], c.st[1]))
    a("s_lshl_b32 s%d, s74, 11" % c.st[1])
    a("v_lshlrev_b32 v%d, 4, v%d" % (t[0], vl))
    a("v_add_u32 v%d, s%d, v%d" % (t[0], c.st[1], t[0]))
    a("global_load_dwordx4 v[64:67], v%d, s[10:11]" % t[0])
    a("global_load_dwordx4 v[68:71], v%d, s[10:11] offset:1024" % t[0])
    a("global_load_dwordx4 v[72:75], v%d, s[10:11] offset:2048" % t[0])
    a("global_load_dwordx4 v[76:79], v%d, s[10:11] offset:3072" % t[0])
    emit_producer_setup(a, c, 32)
    stamp(a, 1, s_wave, kidx, tmp_v=vst)
    def prod_hook():
        Lhk = a.newlabel("Lhook")
        a("s_cmp_lg_u32 s%d, 0" % c.s_i)
        a("s_cbranch_scc1 %s" % Lhk)
        raw = 64; fp = 80
        for r in range(2):
            for q in range(8):
                a("v_lshlrev_b32 v%d, 16, v%d" % (fp + 16 * r + 2 * q, raw + 8 * r + q))
                a("v_and_b32 v%d, 0xffff0000, v%d" % (fp + 16 * r + 2 * q + 1, raw + 8 * r + q))
        sm = [112, 113]; tm_ = [114, 115]
        for r in range(2):
            a("v_add_f32 v%d, v%d, v%d" % (sm[r], fp + 16 * r, fp + 16 * r + 1))
            a("v_add_f32 v%d, v%d, v%d" % (tm_[r], fp + 16 * r + 2, fp + 16 * r + 3))
        for q in range(4, 16, 2):
            for r in range(2):
                a("v_add_f32 v%d, v%d, v%d" % (sm[r], sm[r], fp + 16 * r + q))
                a("v_add_f32 v%d, v%d, v%d" % (tm_[r], tm_[r], fp + 16 * r + q + 1))
        for r in range(2):
            a("v_add_f32 v%d, v%d, v%d" % (sm[r], sm[r], tm_[r]))
        wave_reduce_add(a, sm, tm_)
        for r in range(2):
            a("v_mul_f32 v%d, 0x3a800000, v%d" % (sm[r], sm[r]))
        sq = [116, 117]
        for r in range(2):
            for q in range(16):
                a("v_sub_f32 v%d, v%d, v%d" % (fp + 16 * r + q, fp + 16 * r + q, sm[r]))
        for r in range(2):
            a("v_mul_f32 v%d, v%d, v%d" % (sq[r], fp + 16 * r, fp + 16 * r))
            a("v_mul_f32 v%d, v%d, v%d" % (tm_[r], fp + 16 * r + 1, fp + 16 * r + 1))
        for q in range(2, 16, 2):
            for r in range(2):
                a("v_fmac_f32 v%d, v%d, v%d" % (sq[r], fp + 16 * r + q, fp + 16 * r + q))
                a("v_fmac_f32 v%d, v%d, v%d" % (tm_[r], fp + 16 * r + q + 1, fp + 16 * r + q + 1))
        for r in range(2):
            a("v_add_f32 v%d, v%d, v%d" % (sq[r], sq[r], tm_[r]))
        wave_reduce_add(a, sq, tm_)
        def rb(x):
            a("v_cvt_pk_bf16_f32 v%d, v%d, v%d" % (x, x, x))
            a("v_lshlrev_b32 v%d, 16, v%d" % (x, x))
        for r in range(2):
            a("v_mul_f32 v%d, 0x3a800000, v%d" % (sq[r], sq[r]))
            rb(sq[r])
            a("v_add_f32 v%d, 0x3727c5ac, v%d" % (sq[r], sq[r]))
            rb(sq[r])
            a("v_sqrt_f32 v%d, v%d" % (sq[r], sq[r]))
            a("s_nop 0")
            rb(sq[r])
            a("v_rcp_f32 v%d, v%d" % (118 + r, sq[r]))
            rb(sm[r])
        a("s_nop 0")
        for r in range(2):
            a("v_mul_f32 v%d, v%d, v%d" % (120 + r, sm[r], 118 + r))
            a("v_sub_f32 v%d, 0, v%d" % (120 + r, 120 + r))
        a("s_lshl_b32 s%d, s%d, 3" % (c.st[0], c.s_p))
        a("s_add_u32 s%d, s%d, %d" % (c.st[0], c.st[0], L_STAT))
        a("v_mov_b32 v%d, s%d" % (t[0], c.st[0]))
        a("s_mov_b64 s[58:59], exec")
        a("s_mov_b64 exec, 1")
        a("ds_write_b64 v%d, v[118:119]" % t[0])
        a("ds_write_b64 v%d, v[120:121] offset:32" % t[0])
        a("s_mov_b64 exec, s[58:59]")
        Lt = a.newlabel("Ltok")
        a("s_cmp_lg_u32 s%d, 4" % s_wave)
        a("s_cbranch_scc1 %s" % Lt)
        a("v_lshlrev_b32 v%d, 4, v%d" % (t[1], vl))
        a("s_lshl_b32 s%d, s%d, 11" % (c.st[0], s_h))
        a("s_add_u32 s12, s14, s%d" % c.st[0])
        a("s_addc_u32 s13, s15, 0")
        make_srd(a, srdW1, "s12", "s13", 2048)
        a("s_mov_b32 m0, %d" % L_WPHI)
        a("s_nop 0")
        a("buffer_load_dwordx4 v%d, s[%d:%d], 0 offen lds" % (t[1], srdW1, srdW1 + 3))
        a("s_nop 0")
        a("buffer_load_dwordx4 v%d, s[%d:%d], 0 offen offset:1024 lds" % (t[1], srdW1, srdW1 + 3))
        a.label(Lt)
        a("s_waitcnt lgkmcnt(0)")
        a.label(Lhk)
        Lq = a.newlabel("Lq"); Lq2 = a.newlabel("Lq2")
        a("s_cmp_lg_u32 s%d, 4" % s_wave)
        a("s_cbranch_scc1 %s" % Lq2)
        a("s_cmp_lg_u32 s%d, 9" % c.s_i)
        a("s_cbranch_scc1 %s" % Lq)
        a("s_load_dwordx2 s[78:79], s[8:9], 0")
        a("s_lshl_b32 s%d, s%d, 2" % (c.st[0], s_rb))
        a("s_add_u32 s%d, s%d, 16" % (c.st[0], c.st[0]))
        a("s_load_dword s80, s[8:9], s%d" % c.st[0])
        a.label(Lq)
        a("s_cmp_lg_u32 s%d, 11" % c.s_i)
        a("s_cbranch_scc1 %s" % Lq2)
        a("s_waitcnt lgkmcnt(0)")
        a("s_cmp_lt_u32 s80, 32")
        a("s_cbranch_scc1 %s" % Lq2)
        emit_stats_loads()
        a("s_mov_b32 s73, 1")
        a.label(Lq2)
    vSt = 124
    def emit_stats_loads():
        a("s_lshl_b32 s%d, s%d, 10" % (c.st[0], s_rb))
        a("s_add_u32 s%d, s%d, %d" % (c.st[0], c.st[0], WS_ST1))
        a("v_lshlrev_b32 v%d, 4, v%d" % (t[6], vl))
        a("v_add_u32 v%d, s%d, v%d" % (t[6], c.st[0], t[6]))
        a("global_load_dwordx4 %s, v%d, s[4:5] sc1" % (vr(vSt, 4), t[6]))
        a("v_add_u32 v%d, 8192, v%d" % (t[6], t[6]))
        a("global_load_dwordx4 %s, v%d, s[4:5] sc1" % (vr(vSt + 4, 4), t[6]))
    a("s_mov_b32 s73, 0")
    a("s_mov_b32 s78, 0")
    a("s_mov_b32 s79, 0")
    c.prod_iter_hook = prod_hook
    emit_producer_loop(a, c)
    stamp(a, 2, s_wave, kidx, tmp_v=vst)
    vl = c.v_lane
    t = c.vt
    Le = a.newlabel("Lesync"); Lg = a.newlabel("Lgot"); Ltk = a.newlabel("Ltokok")
    a("s_cmp_lg_u32 s%d, 4" % s_wave)
    a("s_cbranch_scc1 %s" % Le)
    a("s_cmp_eq_u32 s73, 1")
    a("s_cbranch_scc1 %s" % Lg)
    a("s_lshl_b32 s%d, s%d, 2" % (c.st[0], s_rb))
    a("s_add_u32 s%d, s%d, 16" % (c.st[0], c.st[0]))
    a("v_mov_b32 v%d, s%d" % (t[4], c.st[0]))
    Lp = a.newlabel("Lpoll"); Lpd = a.newlabel("Lpolld")
    a("s_mov_b32 s75, 0")
    a.label(Lp)
    a("global_load_dword v%d, v%d, s[8:9] sc1" % (t[5], t[4]))
    a("s_waitcnt vmcnt(0)")
    a("v_readfirstlane_b32 s%d, v%d" % (c.st[1], t[5]))
    a("s_cmp_ge_u32 s%d, 32" % c.st[1])
    a("s_cbranch_scc1 %s" % Lpd)
    a("s_add_u32 s75, s75, 1")
    a("s_cmp_gt_u32 s75, 0x40000")
    a("s_cbranch_scc1 %s" % Lpd)
    a("s_sleep 2")
    a("s_branch %s" % Lp)
    a.label(Lpd)
    emit_stats_loads()
    a.label(Lg)
    a("s_waitcnt lgkmcnt(0)")
    a("v_mov_b32 v%d, s78" % vtok)
    a("v_mov_b32 v%d, s79" % (vtok + 1))
    Ltp = a.newlabel("Ltp")
    a("s_mov_b32 s75, 0")
    a.label(Ltp)
    a("v_cmp_ne_u64 vcc, 0, %s" % vr(vtok, 2))
    a("s_nop 4")
    a("s_cmp_eq_u64 vcc, exec")
    a("s_cbranch_scc1 %s" % Ltk)
    a("s_add_u32 s75, s75, 1")
    a("s_cmp_gt_u32 s75, 0x40000")
    a("s_cbranch_scc1 %s" % Ltk)
    a("v_mov_b32 v%d, 0" % t[4])
    a("global_load_dwordx2 %s, v%d, s[8:9] sc1" % (vr(vtok, 2), t[4]))
    a("s_waitcnt vmcnt(0)")
    a("s_branch %s" % Ltp)
    a.label(Ltk)
    a("v_mov_b32 v%d, %d" % (t[4], L_TOK))
    a("ds_write_b64 v%d, %s" % (t[4], vr(vtok, 2)))
    a("v_lshlrev_b32 v%d, 4, v%d" % (t[4], vl))
    a("v_add_u32 v%d, %d, v%d" % (t[4], L_RS, t[4]))
    a("s_waitcnt vmcnt(0)")
    a("ds_write_b128 v%d, %s" % (t[4], vr(vSt, 4)))
    a("ds_write_b128 v%d, %s offset:1024" % (t[4], vr(vSt + 4, 4)))
    a("s_waitcnt lgkmcnt(0)")
    a.label(Le)
    Lpfr = a.newlabel("Lpfrole")
    a("s_cmp_ge_u32 s%d, 6" % s_wave)
    a("s_cbranch_scc1 %s" % Lpfr)
    a("s_barrier")
    a("s_barrier")
    a("s_barrier")
    stamp(a, 3, s_wave, kidx, tmp_v=vst)
    a("v_mov_b32 v%d, %d" % (t[0], L_TOK))
    a("ds_read_b64 v[40:41], v%d" % t[0])
    a("s_lshl_b32 s%d, s%d, 7" % (c.st[0], s_h))
    a("s_add_u32 s%d, s%d, %d" % (c.st[0], c.st[0], WS_FLAG))
    a("v_and_b32 v%d, 7, v%d" % (t[0], vl))
    a("v_lshlrev_b32 v%d, 3, v%d" % (t[0], t[0]))
    a("v_add_u32 v%d, s%d, v%d" % (t[0], c.st[0], t[0]))
    a("s_waitcnt lgkmcnt(0)")
    Lp = a.newlabel("Lpoll2"); Lpd = a.newlabel("Lpoll2d")
    a("s_mov_b32 s75, 0")
    a.label(Lp)
    a("global_load_dwordx2 v[42:43], v%d, s[4:5] sc1" % t[0])
    a("s_waitcnt vmcnt(0)")
    a("v_cmp_eq_u64 vcc, v[40:41], v[42:43]")
    a("s_nop 4")
    a("s_cmp_eq_u64 vcc, exec")
    a("s_cbranch_scc1 %s" % Lpd)
    a("s_add_u32 s75, s75, 1")
    a("s_cmp_gt_u32 s75, 0x40000")
    a("s_cbranch_scc1 %s" % Lpd)
    a("s_branch %s" % Lp)
    a.label(Lpd)
    stamp(a, 4, s_wave, kidx, tmp_v=vst)
    a("s_lshl_b32 s%d, s%d, 12" % (c.st[0], c.s_p))
    a("v_lshlrev_b32 v%d, 4, v%d" % (t[0], vl))
    a("v_add_u32 v%d, s%d, v%d" % (t[0], c.st[0], t[0]))
    vZ = 40
    a("v_lshlrev_b32 v%d, 4, v%d" % (t[1], vl))
    a("v_add_u32 v%d, 8192, v%d" % (t[1], t[1]))
    a("v_cmp_gt_u32 vcc, 16, v%d" % vl)
    a("v_mov_b32 v%d, 0x7fffffff" % t[2])
    a("s_nop 0")
    a("v_cndmask_b32 v%d, v%d, v%d, vcc" % (t[1], t[2], t[1]))
    vKa = [72, 164]
    def kreg(rbi, bb): return vKa[rbi // 4] + 16 * (rbi % 4) + 4 * bb
    for rbi in range(8):
        a("s_mov_b32 s%d, %d" % (c.st[1], rbi * KVP_BYTES))
        for bb in range(4):
            a("buffer_load_dwordx4 %s, v%d, s[%d:%d], s%d offen offset:%d sc1" % (vr(kreg(rbi, bb), 4), t[0], srdKV, srdKV + 3, c.st[1], bb * 1024))
    for rbi in range(8):
        a("s_mov_b32 s%d, %d" % (c.st[1], rbi * KVP_BYTES))
        a("buffer_load_dwordx4 %s, v%d, s[%d:%d], s%d offen sc1" % (vr(vZ + 4 * rbi, 4), t[1], srdKV, srdKV + 3, c.st[1]))
    for rbi in range(1, 8):
        a("s_waitcnt vmcnt(%d)" % (8 + 4 * (7 - rbi)))
        for q in range(0, 16, 2):
            a("v_pk_add_f32 %s, %s, %s" % (vr(vKa[0] + q, 2), vr(vKa[0] + q, 2), vr(kreg(rbi, 0) + q, 2)))
    ko = 228
    for bb in range(4):
        a("v_cvt_pk_bf16_f32 v%d, v%d, v%d" % (ko + 2 * bb, vKa[0] + 4 * bb, vKa[0] + 4 * bb + 1))
        a("v_cvt_pk_bf16_f32 v%d, v%d, v%d" % (ko + 2 * bb + 1, vKa[0] + 4 * bb + 2, vKa[0] + 4 * bb + 3))
    a("s_lshl_b32 s%d, s%d, 11" % (c.st[0], c.s_p))
    a("s_add_u32 s%d, s%d, %d" % (c.st[0], c.st[0], L_KVF))
    a("v_lshlrev_b32 v%d, 4, v%d" % (t[0], vl))
    a("v_add_u32 v%d, s%d, v%d" % (t[0], c.st[0], t[0]))
    a("ds_write_b128 v%d, %s" % (t[0], vr(ko, 4)))
    a("ds_write_b128 v%d, %s offset:1024" % (t[0], vr(ko + 4, 4)))
    a("s_waitcnt vmcnt(0)")
    for rbi in range(1, 8):
        for q in range(0, 4, 2):
            a("v_pk_add_f32 %s, %s, %s" % (vr(vZ + q, 2), vr(vZ + q, 2), vr(vZ + 4 * rbi + q, 2)))
    a("v_cvt_pk_bf16_f32 v%d, v%d, v%d" % (vZ + 4, vZ, vZ + 1))
    a("v_cvt_pk_bf16_f32 v%d, v%d, v%d" % (vZ + 5, vZ + 2, vZ + 3))
    a("v_lshrrev_b32 v%d, 2, v%d" % (t[0], vl))
    a("v_lshlrev_b32 v%d, 5, v%d" % (t[0], t[0]))
    a("v_and_b32 v%d, 1, v%d" % (t[1], vl))
    a("v_lshl_add_u32 v%d, v%d, 4, v%d" % (t[0], t[1], t[0]))
    a("v_bfe_u32 v%d, v%d, 1, 1" % (t[1], vl))
    a("v_lshl_add_u32 v%d, v%d, 3, v%d" % (t[0], t[1], t[0]))
    a("v_add_u32 v%d, %d, v%d" % (t[0], L_ZF, t[0]))
    a("v_cmp_gt_u32 vcc, 16, v%d" % vl)
    a("s_and_saveexec_b64 s[58:59], vcc")
    a("ds_write_b64 v%d, %s" % (t[0], vr(vZ + 4, 2)))
    a("s_mov_b64 exec, s[58:59]")
    a("s_waitcnt lgkmcnt(0)")
    a("s_barrier")
    stamp(a, 5, s_wave, kidx, tmp_v=vst)
    a("s_branch %s" % (Ljoin if mega else Lend))

    a.label(Lpfr)
    a("s_lshl_b32 s72, s2, 1")
    a("s_add_u32 s72, s72, s%d" % s_wave)
    a("s_sub_u32 s72, s72, 6")
    make_srd(a, srdW1, "s64", "s65", 1024 * 7168)
    a("s_barrier")
    vP = 164
    mul, sh = magic_div(56, 1024)
    for un in range(2):
        a("s_lshl_b32 s%d, s72, 1" % c.st[0])
        if un: a("s_add_u32 s%d, s%d, 1" % (c.st[0], c.st[0]))
        a("s_mul_i32 s%d, s%d, %d" % (c.st[1], c.st[0], mul))
        a("s_lshr_b32 s%d, s%d, %d" % (76 + 2 * un, c.st[1], sh))
        a("s_mul_i32 s%d, s%d, 56" % (c.st[2], 76 + 2 * un))
        a("s_sub_u32 s%d, s%d, s%d" % (77 + 2 * un, c.st[0], c.st[2]))
        a("s_lshl_b32 s%d, s%d, 6" % (c.st[3], 76 + 2 * un))
        a("v_lshrrev_b32 v%d, 3, v%d" % (t[0], vl))
        a("v_add_u32 v%d, s%d, v%d" % (t[0], c.st[3], t[0]))
        a("s_mov_b32 s%d, 7168" % c.st[3])
        a("v_mul_lo_u32 v%d, v%d, s%d" % (t[0], t[0], c.st[3]))
        a("v_and_b32 v%d, 7, v%d" % (t[1], vl))
        a("v_lshlrev_b32 v%d, 4, v%d" % (t[1], t[1]))
        a("s_lshl_b32 s%d, s%d, 7" % (c.st[3], 77 + 2 * un))
        a("v_add3_u32 v%d, v%d, v%d, s%d" % (60 + un, t[0], t[1], c.st[3]))
        for j in range(8):
            a("s_mov_b32 s%d, %d" % (c.st[3], j * 8 * 7168))
            a("buffer_load_dwordx4 %s, v%d, s[%d:%d], s%d offen" % (vr(vP + 32 * un + 4 * j, 4), 60 + un, srdW1, srdW1 + 3, c.st[3]))
    a("s_barrier")
    a("s_barrier")
    if "nopf" not in os.environ.get("GDBG", ""):
        a("v_lshlrev_b32 v62, 4, v%d" % vl)
        a("s_lshl_b32 s%d, s72, 12" % c.st[3])
        a("v_add_u32 v63, s%d, v62" % c.st[3])
        for j in range(4):
            a("global_load_dwordx4 v[%d:%d], v63, s[68:69] offset:%d" % (228 + 4 * (j % 4), 231 + 4 * (j % 4), j * 1024))
        a("s_mul_i32 s%d, s72, 14336" % c.st[3])
        a("v_add_u32 v63, s%d, v62" % c.st[3])
        for j in range(0 if mega else 14):
            if j and j % 4 == 0: a("v_add_u32 v63, 4096, v63")
            a("global_load_dwordx4 v[%d:%d], v63, s[66:67] offset:%d" % (236 + 4 * (j % 4), 239 + 4 * (j % 4), (j % 4) * 1024))
    a("s_barrier")
    def emit_colsum(t, vl, st):
        for un in range(2):
            Lskip = a.newlabel("Lskipcs")
            a("s_cmp_ge_u32 s%d, 16" % (76 + 2 * un))
            a("s_cbranch_scc1 %s" % Lskip)
            vS = 124
            for j in range(8):
                for q in range(4):
                    src = vP + 32 * un + 4 * j + q
                    a("v_lshlrev_b32 v%d, 16, v%d" % (t[0], src))
                    a("v_and_b32 v%d, 0xffff0000, v%d" % (t[1], src))
                    if j == 0:
                        a("v_mov_b32 v%d, v%d" % (vS + 2 * q, t[0]))
                        a("v_mov_b32 v%d, v%d" % (vS + 2 * q + 1, t[1]))
                    else:
                        a("v_add_f32 v%d, v%d, v%d" % (vS + 2 * q, vS + 2 * q, t[0]))
                        a("v_add_f32 v%d, v%d, v%d" % (vS + 2 * q + 1, vS + 2 * q + 1, t[1]))
            xs = [vS + i for i in range(8)]; ts_ = [132 + i for i in range(8)]
            a("s_nop 1")
            for x, tt in zip(xs, ts_):
                a("v_add_f32_dpp v%d, v%d, v%d row_ror:8 row_mask:0xf bank_mask:0xf" % (tt, x, x))
            for x, tt in zip(xs, ts_):
                a("v_mov_b32 v%d, v%d" % (x, tt))
            for sw in ("v_permlane16_swap_b32", "v_permlane32_swap_b32"):
                a("s_nop 1")
                for x, tt in zip(xs, ts_):
                    a("%s v%d, v%d" % (sw, tt, x))
                for x, tt in zip(xs, ts_):
                    a("v_add_f32 v%d, v%d, v%d" % (x, x, tt))
                for x, tt in zip(xs, ts_):
                    a("v_mov_b32 v%d, v%d" % (tt, x))
            a("s_mul_i32 s%d, s%d, %d" % (st[0], 76 + 2 * un, 3584 * 4))
            a("s_lshl_b32 s%d, s%d, 8" % (st[1], 77 + 2 * un))
            a("s_add_u32 s%d, s%d, s%d" % (st[0], st[0], st[1]))
            a("s_add_u32 s%d, s%d, %d" % (st[0], st[0], WS_CS1))
            a("v_lshlrev_b32 v%d, 5, v%d" % (t[0], vl))
            a("v_add_u32 v%d, s%d, v%d" % (t[0], st[0], t[0]))
            a("v_cmp_gt_u32 vcc, 8, v%d" % vl)
            a("s_and_saveexec_b64 s[58:59], vcc")
            a("global_store_dwordx4 v%d, %s, s[4:5]%s" % (t[0], vr(vS, 4), SCM))
            a("global_store_dwordx4 v%d, %s, s[4:5] offset:16%s" % (t[0], vr(vS + 4, 4), SCM))
            a("s_mov_b64 exec, s[58:59]")
            a.label(Lskip)

    if mega:
        global COLSUM_FN
        COLSUM_FN = emit_colsum
    else:
        a("s_waitcnt vmcnt(%d)" % (0 if "nopf" in os.environ.get("GDBG", "") else 18))
        emit_colsum(t, vl, c.st)
    a("s_branch %s" % (Ljoin if mega else Lend))

    a.label(Lcons)
    if os.environ.get("PRIO_C"): a("s_setprio %s" % os.environ["PRIO_C"])
    vl = c.v_lane
    t = c.vt
    Lt0 = a.newlabel("Ltok0")
    a("s_or_b32 s58, s2, s%d" % s_wave)
    a("s_cmp_lg_u32 s58, 0")
    a("s_cbranch_scc1 %s" % Lt0)
    a("s_memrealtime s[58:59]")
    a("s_waitcnt lgkmcnt(0)")
    a("s_or_b32 s58, s58, 1")
    a("v_mov_b32 v%d, s58" % vtok)
    a("v_mov_b32 v%d, s59" % (vtok + 1))
    a("v_mov_b32 v%d, 0" % t[0])
    a("s_mov_b64 s[58:59], exec")
    a("s_mov_b64 exec, 1")
    a("global_store_dwordx2 v%d, %s, s[8:9] sc1" % (t[0], vr(vtok, 2)))
    a("s_mov_b64 exec, s[58:59]")
    a.label(Lt0)
    a("v_and_b32 v%d, 31, v%d" % (t[0], vl))
    a("v_lshrrev_b32 v%d, 5, v%d" % (t[1], vl))
    a("v_bfe_u32 v%d, v%d, 1, 3" % (t[2], t[0]))
    a("s_lshl_b32 s%d, s%d, 6" % (c.st[2], s_wave))
    a("v_add_u32 v%d, s%d, v%d" % (t[3], c.st[2], t[0]))
    a("v_lshlrev_b32 v%d, 7, v%d" % (t[3], t[3]))
    for stp in range(4):
        a("v_add_u32 v%d, %d, v%d" % (t[4], 2 * stp, t[1]))
        a("v_xor_b32 v%d, v%d, v%d" % (t[4], t[4], t[2]))
        a("v_lshl_add_u32 v%d, v%d, 4, v%d" % (c.vX[stp], t[4], t[3]))
    a("v_lshrrev_b32 v%d, 4, v%d" % (t[0], vl))
    a("v_and_b32 v%d, 15, v%d" % (t[1], vl))
    a("v_lshrrev_b32 v%d, 2, v%d" % (t[2], t[1]))
    a("v_lshrrev_b32 v%d, 1, v%d" % (t[3], t[0]))
    a("v_lshl_add_u32 v%d, v%d, 3, v%d" % (t[2], t[3], t[2]))
    a("v_mul_u32_u24 v%d, 192, v%d" % (t[2], t[2]))
    a("v_and_b32 v%d, 1, v%d" % (t[0], t[0]))
    a("v_lshl_add_u32 v%d, v%d, 5, v%d" % (t[2], t[0], t[2]))
    a("v_and_b32 v%d, 3, v%d" % (t[1], t[1]))
    a("v_lshl_add_u32 v%d, v%d, 3, v%d" % (t[2], t[1], t[2]))
    a("v_add_u32 v%d, %d, v%d" % (vW, c.Bbase, t[2]))
    stamp(a, 1, s_wave, kidx, tmp_v=vst)
    stamp(a, 6, s_wave, kidx, tmp_v=vst)
    for i in range(96): a("v_mov_b32 v%d, 0" % i)
    for u in range(3): a("v_mov_b32 v%d, 0" % vcs[u])
    a("s_mov_b32 s%d, 0" % c.s_cslotA)
    a("s_mov_b32 s%d, 0" % c.s_cslotB)
    a("s_mov_b32 s%d, 0" % c.s_i)
    a("s_waitcnt lgkmcnt(0)")
    def reads(buf, stp):
        r = []
        fb = F[buf]
        W = lambda u, hf: "ds_read_b64_tr_b16 %s, v%d offset:%d" % (vr(fb + 8 + 4 * u + 2 * hf, 2), vW, (16 * stp + 4 * hf) * 192 + u * 64)
        X = lambda st: "ds_read_b128 %s, v%d offset:%d" % (vr(fb + 4 * st, 4), c.vX[stp], st * 4096)
        if "noread" in DBG: return []
        return [W(0, 0), W(0, 1), X(0), W(1, 0), W(1, 1), X(1), W(2, 0), W(2, 1)]
    def mfmas(buf):
        fb = F[buf]
        X = lambda st: fb + 4 * st
        W = lambda u: fb + 8 + 4 * u
        if "nomfma" in DBG: return ["s_nop 0"] * 6
        return [mf32(accQ[0], W(0), X(0), accQ[0]), mf32(accK[0], W(1), X(0), accK[0]), mf32(accQ[1], W(0), X(1), accQ[1]),
                mf32(accK[1], W(1), X(1), accK[1]), mf32(accV[0], X(0), W(2), accV[0]), mf32(accV[1], X(1), W(2), accV[1])]
    def csops(buf, w):
        fb = F[buf]
        o = []
        if "nocs" in DBG: return []
        for u in range(3):
            src = fb + 8 + 4 * u + w
            tt = t[2 * (u % 2)]
            o.append("v_lshlrev_b32 v%d, 16, v%d" % (tt, src))
            o.append("v_and_b32 v%d, 0xffff0000, v%d" % (tt + 1, src))
            o.append("v_add_f32 v%d, v%d, v%d" % (vcs[u], vcs[u], tt))
            o.append("v_add_f32 v%d, v%d, v%d" % (vcs[u], vcs[u], tt + 1))
        return o
    def step(mf, rd, cs):
        ri = ci = 0
        for i, m in enumerate(mf):
            a(m)
            for _ in range(3):
                if ri < len(rd): a(rd[ri]); ri += 1
            for _ in range(2 if i < 3 else 3):
                if ci < len(cs): a(cs[ci]); ci += 1
        while ri < len(rd): a(rd[ri]); ri += 1
        while ci < len(cs): a(cs[ci]); ci += 1
    Lafter = a.newlabel("Lafter")
    Lw = [a.newlabel("Lw") for _ in range(4)]
    for w in range(1, 4):
        a("s_cmp_eq_u32 s%d, %d" % (s_wave, w))
        a("s_cbranch_scc1 %s" % Lw[w])
    for w in range(4):
        a.label(Lw[w])
        a("s_barrier")
        for r in reads(0, 0): a(r)
        for r in reads(1, 1): a(r)
        L = a.newlabel("Lk1")
        a.label(L)
        for stp in range(2):
            a("s_waitcnt lgkmcnt(8)")
            step(mfmas(stp), reads(stp + 2, stp + 2), csops(stp, w))
        a("s_waitcnt lgkmcnt(0)")
        a("s_barrier")
        emit_addr_advance(a, c, [c.vX[0], c.vX[1], c.vX[2], c.vX[3]], [vW])
        if w == 0:
            La = a.newlabel("Lh1"); Lb = a.newlabel("Lh2")
            a("s_cmp_lg_u32 s%d, 1" % c.s_i)
            a("s_cbranch_scc1 %s" % La)
            a("v_lshlrev_b32 v%d, 2, v%d" % (vst + 4, vl))
            a("v_add_u32 v%d, %d, v%d" % (vst + 5, L_STAT, vst + 4))
            a("ds_read_b32 v%d, v%d" % (vst + 6, vst + 5))
            a("ds_read_b32 v%d, v%d offset:32" % (vst + 7, vst + 5))
            a("s_lshl_b32 s%d, s%d, 8" % (c.st[0], s_rb))
            a("s_lshl_b32 s%d, s%d, 3" % (c.st[1], s_h))
            a("s_add_u32 s%d, s%d, s%d" % (c.st[0], c.st[0], c.st[1]))
            a("s_lshl_b32 s%d, s%d, 2" % (c.st[0], c.st[0]))
            a("s_add_u32 s%d, s%d, %d" % (c.st[0], c.st[0], WS_ST1))
            a("v_add_u32 v%d, s%d, v%d" % (vst + 4, c.st[0], vst + 4))
            a("v_add_u32 v%d, 8192, v%d" % (vst + 5, vst + 4))
            a("s_waitcnt lgkmcnt(0)")
            a("s_mov_b64 s[58:59], exec")
            a("s_mov_b64 exec, 0xff")
            a("global_store_dword v%d, v%d, s[4:5] sc1" % (vst + 4, vst + 6))
            a("global_store_dword v%d, v%d, s[4:5] sc1" % (vst + 5, vst + 7))
            a("s_mov_b64 exec, s[58:59]")
            a.label(La)
            a("s_cmp_lg_u32 s%d, 5" % c.s_i)
            a("s_cbranch_scc1 %s" % Lb)
            a("s_waitcnt vmcnt(0)")
            a("s_lshl_b32 s%d, s%d, 2" % (c.st[0], s_rb))
            a("s_add_u32 s%d, s%d, 16" % (c.st[0], c.st[0]))
            a("v_mov_b32 v%d, s%d" % (vst + 4, c.st[0]))
            a("v_mov_b32 v%d, 1" % (vst + 5))
            a("s_mov_b64 s[58:59], exec")
            a("s_mov_b64 exec, 1")
            a("global_atomic_add v%d, v%d, s[8:9]" % (vst + 4, vst + 5))
            a("s_mov_b64 exec, s[58:59]")
            a.label(Lb)
        step(mfmas(2), reads(0, 0), csops(2, w))
        a("s_nop 0")
        step(mfmas(3), reads(1, 1), csops(3, w))
        a("s_add_u32 s%d, s%d, 1" % (c.s_i, c.s_i))
        a("s_cmp_lt_u32 s%d, %d" % (c.s_i, c.NS - 1))
        a("s_cbranch_scc1 %s" % L)
        for stp in range(2):
            a("s_waitcnt lgkmcnt(8)")
            step(mfmas(stp), reads(stp + 2, stp + 2), csops(stp, w))
        a("s_waitcnt lgkmcnt(8)")
        step(mfmas(2), [], csops(2, w))
        a("s_waitcnt lgkmcnt(0)")
        step(mfmas(3), [], csops(3, w))
        if w < 3: a("s_branch %s" % Lafter)
    a.label(Lafter)
    stamp(a, 7, s_wave, kidx, tmp_v=vst)
    stamp(a, 2, s_wave, kidx, tmp_v=vst)
    for u in range(3):
        a("v_mov_b32 v%d, v%d" % (t[1 + u], vcs[u]))
    a("s_nop 1")
    for u in range(3):
        a("v_permlane32_swap_b32 v%d, v%d" % (t[1 + u], vcs[u]))
    for u in range(3):
        a("v_add_f32 v%d, v%d, v%d" % (vcs[u], vcs[u], t[1 + u]))
    a("v_and_b32 v%d, 31, v%d" % (t[0], vl))
    a("v_lshlrev_b32 v%d, 2, v%d" % (t[0], t[0]))
    a("v_add_u32 v%d, %d, v%d" % (t[0], L_CS, t[0]))
    a("s_mul_i32 s%d, s%d, 384" % (c.st[0], s_wave))
    a("v_add_u32 v%d, s%d, v%d" % (t[1], c.st[0], t[0]))
    for u in range(3):
        a("ds_write_b32 v%d, v%d offset:%d" % (t[1], vcs[u], u * 128))
    a("s_waitcnt lgkmcnt(0)")
    a("s_barrier")
    stamp(a, 8, s_wave, kidx, tmp_v=156)
    csQ, csK = 96, 112
    rsL, nmL = [128, 130], [132, 134]
    csV = 136
    wph = 164
    kb = 172
    pD = 180
    eT = 196
    pos, neg = 212, 220
    sT = [228 + i for i in range(8)]
    rsV, nmV = 236, 240
    aF = 196
    vb = 244
    kvA = [32, 48]
    hi_ = t[7]
    a("v_lshrrev_b32 v%d, 5, v%d" % (hi_, vl))
    cp = 180
    for ww in range(4):
        for u in range(3):
            a("ds_read_b32 v%d, v%d offset:%d" % (cp + 3 * ww + u, t[0], ww * 384 + u * 128))
    a("s_waitcnt lgkmcnt(0)")
    for u in range(3):
        a("v_add_f32 v%d, v%d, v%d" % (cp + u, cp + u, cp + 3 + u))
        a("v_add_f32 v%d, v%d, v%d" % (cp + 6 + u, cp + 6 + u, cp + 9 + u))
        a("v_add_f32 v%d, v%d, v%d" % (cp + u, cp + u, cp + 6 + u))
    a("v_mov_b32 v%d, v%d" % (csV, cp + 2))
    a("v_add_u32 v%d, 1536, v%d" % (t[1], t[1]))
    a("ds_write_b32 v%d, v%d" % (t[1], cp))
    a("ds_write_b32 v%d, v%d offset:128" % (t[1], cp + 1))
    a("v_lshlrev_b32 v%d, 4, v%d" % (t[1], hi_))
    a("s_add_u32 s%d, s%d, %d" % (c.st[0], c.st[0], L_CS + 1536))
    a("v_add_u32 v%d, s%d, v%d" % (t[1], c.st[0], t[1]))
    a("s_waitcnt lgkmcnt(0)")
    for aa in range(4):
        a("ds_read_b128 %s, v%d offset:%d" % (vr(csQ + 4 * aa, 4), t[1], aa * 32))
        a("ds_read_b128 %s, v%d offset:%d" % (vr(csK + 4 * aa, 4), t[1], 128 + aa * 32))
    a("v_mov_b32 v%d, %d" % (vtok + 2, L_TOK))
    a("ds_read_b64 %s, v%d" % (vr(vtok, 2), vtok + 2))
    a("v_and_b32 v%d, 31, v%d" % (t[2], vl))
    a("s_lshl_b32 s%d, s%d, 6" % (c.st[0], s_wave))
    a("v_add_u32 v%d, s%d, v%d" % (t[2], c.st[0], t[2]))
    a("v_lshlrev_b32 v%d, 2, v%d" % (t[2], t[2]))
    a("v_add_u32 v%d, %d, v%d" % (t[2], L_RS, t[2]))
    for st in range(2):
        a("ds_read_b32 v%d, v%d offset:%d" % (rsL[st], t[2], st * 128))
        a("ds_read_b32 v%d, v%d offset:%d" % (nmL[st], t[2], 1024 + st * 128))
    a("v_lshrrev_b32 v%d, 4, v%d" % (t[3], vl))
    a("v_and_b32 v%d, 15, v%d" % (t[4], vl))
    a("v_lshrrev_b32 v%d, 2, v%d" % (t[5], t[4]))
    a("v_lshrrev_b32 v%d, 1, v%d" % (t[6], t[3]))
    a("v_lshl_add_u32 v%d, v%d, 2, v%d" % (t[5], t[6], t[5]))
    a("v_mov_b32 v%d, v%d" % (sT[7], t[5]))
    a("v_lshlrev_b32 v%d, 6, v%d" % (t[5], t[5]))
    a("v_and_b32 v%d, 1, v%d" % (t[3], t[3]))
    a("v_lshlrev_b32 v%d, 5, v%d" % (t[3], t[3]))
    a("v_and_b32 v%d, 3, v%d" % (t[4], t[4]))
    a("v_lshl_add_u32 v%d, v%d, 3, v%d" % (t[3], t[4], t[3]))
    a("v_add_u32 v%d, v%d, v%d" % (t[5], t[5], t[3]))
    a("v_add_u32 v%d, %d, v%d" % (t[5], L_WPHI, t[5]))
    for tt in range(2):
        for hf in range(2):
            a("ds_read_b64_tr_b16 %s, v%d offset:%d" % (vr(wph + 4 * tt + 2 * hf, 2), t[5], (16 * tt + 8 * hf) * 64))
    vPKw, vPKr, vRSV = 160, 161, 162
    a("s_mul_i32 s%d, s%d, %d" % (c.st[0], s_wave, 64 * PKP))
    a("s_add_u32 s%d, s%d, %d" % (c.st[0], c.st[0], L_PK))
    a("v_and_b32 v%d, 31, v%d" % (t[2], vl))
    a("v_mul_u32_u24 v%d, %d, v%d" % (t[2], PKP, t[2]))
    a("v_lshl_add_u32 v%d, v%d, 3, v%d" % (t[2], hi_, t[2]))
    a("v_add_u32 v%d, s%d, v%d" % (vPKw, c.st[0], t[2]))
    a("v_mul_u32_u24 v%d, %d, v%d" % (t[2], PKP, sT[7]))
    a("v_add_u32 v%d, v%d, v%d" % (t[2], t[2], t[3]))
    a("v_add_u32 v%d, s%d, v%d" % (vPKr, c.st[0], t[2]))
    a("s_lshl_b32 s%d, s%d, 8" % (c.st[0], s_wave))
    a("v_lshlrev_b32 v%d, 4, v%d" % (t[2], hi_))
    a("v_add_u32 v%d, s%d, v%d" % (t[2], c.st[0], t[2]))
    a("v_add_u32 v%d, %d, v%d" % (vRSV, L_RS, t[2]))
    a("s_waitcnt lgkmcnt(0)")

    def ln_qk(acc, cs, st, dst):
        for i in range(0, 16, 2):
            a("v_pk_mul_f32 %s, %s, %s op_sel_hi:[1,0]" % (vr(acc + i, 2), vr(acc + i, 2), vr(rsL[st], 2)))
            a("v_pk_fma_f32 %s, %s, %s, %s op_sel_hi:[1,0,1]" % (vr(acc + i, 2), vr(cs + i, 2), vr(nmL[st], 2), vr(acc + i, 2)))
            a("v_cvt_pk_bf16_f32 v%d, v%d, v%d" % (dst + i // 2, acc + i, acc + i + 1))
    def phi(acc, cs, st):
        ln_qk(acc, cs, st, kb)
        a("s_nop 1")
        a(mf32(pD, wph, kb, "0"))
        a(mf32(pD, wph + 4, kb + 4, pD))
        mfma_wait(a)
        if os.environ.get("RNDP", "0") == "1":
            for i in range(0, 16, 2):
                a("v_cvt_pk_bf16_f32 v%d, v%d, v%d" % (eT + i // 2, pD + i, pD + i + 1))
            for i in range(0, 16, 2):
                a("v_lshlrev_b32 v%d, 16, v%d" % (pD + i, eT + i // 2))
                a("v_and_b32 v%d, 0xffff0000, v%d" % (pD + i + 1, eT + i // 2))
        softmax2(a, pD, pos, neg, eT, sT, s_l2e)

    for st in range(2):
        phi(accK[st], csK, st)
        for aa in range(4):
            a("ds_write_b64 v%d, %s offset:%d" % (vPKw, vr(pos + 2 * aa, 2), st * 32 * PKP + aa * 16))
            a("ds_write_b64 v%d, %s offset:%d" % (vPKw, vr(neg + 2 * aa, 2), st * 32 * PKP + aa * 16 + 64))
    stamp(a, 9, s_wave, kidx, tmp_v=156)
    kvT = [32, 48]; zT = [180, 196]
    aF = 212
    ones = 252
    for q in range(4): a("v_mov_b32 v%d, s%d" % (ones + q, s_ones))
    a("s_waitcnt lgkmcnt(0)")
    first = True
    for st in range(2):
        for aa in range(4):
            a("ds_read_b128 %s, v%d offset:%d" % (vr(228 + 4 * aa, 4), vRSV, (32 * st + 8 * aa) * 4))
            a("ds_read_b128 %s, v%d offset:%d" % (vr(112 + 4 * aa, 4), vRSV, 1024 + (32 * st + 8 * aa) * 4))
        for ft in range(2):
            for u in range(2):
                for hf in range(2):
                    a("ds_read_b64_tr_b16 %s, v%d offset:%d" % (vr(aF + 8 * ft + 4 * u + 2 * hf, 2), vPKr, (st * 32 + 16 * u + 8 * hf) * PKP + ft * 64))
        a("s_waitcnt lgkmcnt(8)")
        for aa in range(4):
            for h2 in range(2):
                r = accV[st] + 4 * aa + 2 * h2
                a("v_pk_mul_f32 %s, %s, %s" % (vr(r, 2), vr(r, 2), vr(228 + 4 * aa + 2 * h2, 2)))
                a("v_pk_fma_f32 %s, %s, %s, %s op_sel_hi:[1,0,1]" % (vr(r, 2), vr(112 + 4 * aa + 2 * h2, 2), vr(csV, 2), vr(r, 2)))
                a("v_cvt_pk_bf16_f32 v%d, v%d, v%d" % (vb + 2 * aa + h2, r, r + 1))
        a("s_waitcnt lgkmcnt(0)")
        for u in range(2):
            for ft in range(2):
                a(mf32(kvT[ft], aF + 8 * ft + 4 * u, vb + 4 * u, "0" if (st == 0 and u == 0) else kvT[ft]))
                a(mf32(zT[ft], aF + 8 * ft + 4 * u, ones, "0" if (st == 0 and u == 0) else zT[ft]))
        a("s_nop 7")
    mfma_wait(a)
    stamp(a, 10, s_wave, kidx, tmp_v=156)
    a("s_mul_i32 s%d, s%d, %d" % (c.st[0], s_wave, KVP_BYTES))
    a("s_add_u32 s%d, s%d, %d" % (c.st[0], c.st[0], L_RED))
    a("v_lshlrev_b32 v%d, 4, v%d" % (t[0], vl))
    a("v_add_u32 v%d, s%d, v%d" % (t[1], c.st[0], t[0]))
    for ft in range(2):
        for rq in range(4):
            a("ds_write_b128 v%d, %s offset:%d" % (t[1], vr(kvT[ft] + 4 * rq, 4), (ft * 4 + rq) * 1024))
    a("v_lshlrev_b32 v%d, 4, v%d" % (t[2], hi_))
    a("v_add_u32 v%d, s%d, v%d" % (t[2], c.st[0], t[2]))
    a("v_and_b32 v%d, 31, v%d" % (t[3], vl))
    a("v_cmp_eq_u32 vcc, 0, v%d" % t[3])
    a("s_and_saveexec_b64 s[58:59], vcc")
    for ft in range(2):
        for rq in range(4):
            a("ds_write_b128 v%d, %s offset:%d" % (t[2], vr(zT[ft] + 4 * rq, 4), 8192 + (ft * 8 + rq * 2) * 16))
    a("s_mov_b64 exec, s[58:59]")
    a("s_waitcnt lgkmcnt(0)")
    a("s_barrier")
    stamp(a, 11, s_wave, kidx, tmp_v=156)
    a("s_lshl_b32 s%d, s%d, 11" % (c.st[0], s_wave))
    a("s_add_u32 s%d, s%d, %d" % (c.st[0], c.st[0], L_RED))
    a("v_add_u32 v%d, s%d, v%d" % (t[1], c.st[0], t[0]))
    rr = 32
    for ww in range(4):
        for bb in range(2):
            a("ds_read_b128 %s, v%d offset:%d" % (vr(rr + 8 * ww + 4 * bb, 4), t[1], ww * KVP_BYTES + bb * 1024))
    a("v_add_u32 v%d, %d, v%d" % (t[2], L_RED + 8192, t[0]))
    a("v_and_b32 v%d, 0xff, v%d" % (t[3], t[0]))
    a("v_add_u32 v%d, %d, v%d" % (t[2], L_RED + 8192, t[3]))
    zr = 180
    for ww in range(4):
        a("ds_read_b128 %s, v%d offset:%d" % (vr(zr + 4 * ww, 4), t[2], ww * KVP_BYTES))
    a("s_waitcnt lgkmcnt(0)")
    for ww in range(1, 4):
        for q in range(0, 8, 2):
            a("v_pk_add_f32 %s, %s, %s" % (vr(rr + q, 2), vr(rr + q, 2), vr(rr + 8 * ww + q, 2)))
        for q in range(0, 4, 2):
            a("v_pk_add_f32 %s, %s, %s" % (vr(zr + q, 2), vr(zr + q, 2), vr(zr + 4 * ww + q, 2)))
    a("s_mul_i32 s%d, s%d, %d" % (c.st[0], s_rb, KVP_BYTES))
    a("s_lshl_b32 s%d, s%d, 11" % (c.st[1], s_wave))
    a("s_add_u32 s%d, s%d, s%d" % (c.st[1], c.st[1], c.st[0]))
    for bb in range(2):
        a("buffer_store_dwordx4 %s, v%d, s[%d:%d], s%d offen offset:%d sc1" % (vr(rr + 4 * bb, 4), t[0], srdKV, srdKV + 3, c.st[1], bb * 1024))
    Lz = a.newlabel("Lz")
    a("s_cmp_lg_u32 s%d, 0" % s_wave)
    a("s_cbranch_scc1 %s" % Lz)
    a("v_add_u32 v%d, 8192, v%d" % (t[2], t[0]))
    a("v_cmp_gt_u32 vcc, 16, v%d" % vl)
    a("v_mov_b32 v%d, 0x7fffffff" % t[3])
    a("s_nop 0")
    a("v_cndmask_b32 v%d, v%d, v%d, vcc" % (t[2], t[3], t[2]))
    a("buffer_store_dwordx4 %s, v%d, s[%d:%d], s%d offen sc1" % (vr(zr, 4), t[2], srdKV, srdKV + 3, c.st[0]))
    a.label(Lz)
    stamp(a, 12, s_wave, kidx, tmp_v=156)
    a("s_waitcnt vmcnt(0)")
    a("s_barrier")
    stamp(a, 3, s_wave, kidx, tmp_v=vst)
    Lf = a.newlabel("Lflag")
    a("s_cmp_lg_u32 s%d, 0" % s_wave)
    a("s_cbranch_scc1 %s" % Lf)
    a("s_lshl_b32 s%d, s%d, 7" % (c.st[0], s_h))
    a("s_lshl_b32 s%d, s%d, 3" % (c.st[1], s_rb))
    a("s_add_u32 s%d, s%d, s%d" % (c.st[0], c.st[0], c.st[1]))
    a("s_add_u32 s%d, s%d, %d" % (c.st[0], c.st[0], WS_FLAG))
    a("v_mov_b32 v%d, s%d" % (t[0], c.st[0]))
    a("s_mov_b64 s[58:59], exec")
    a("s_mov_b64 exec, 1")
    a("global_store_dwordx2 v%d, %s, s[4:5] sc1" % (t[0], vr(vtok, 2)))
    a("s_mov_b64 exec, s[58:59]")
    a.label(Lf)
    phq = [32, 48]
    for st in range(2):
        phi(accQ[st], csQ, st)
        for i in range(8):
            a("v_mov_b32 v%d, v%d" % (phq[st] + i, pos + i))
            a("v_mov_b32 v%d, v%d" % (phq[st] + 8 + i, neg + i))
    stamp(a, 4, s_wave, kidx, tmp_v=vst)
    a("s_barrier")
    kvf, zf = 64, 80
    a("v_lshlrev_b32 v%d, 4, v%d" % (t[0], vl))
    a("v_add_u32 v%d, %d, v%d" % (t[0], L_KVF, t[0]))
    a("v_lshlrev_b32 v%d, 4, v%d" % (t[1], hi_))
    a("v_add_u32 v%d, %d, v%d" % (t[1], L_ZF, t[1]))
    for tp in range(4):
        a("ds_read_b128 %s, v%d offset:%d" % (vr(kvf + 4 * tp, 4), t[0], tp * 1024))
        a("ds_read_b128 %s, v%d offset:%d" % (vr(zf + 4 * tp, 4), t[1], tp * 32))
    a("s_waitcnt lgkmcnt(0)")
    num = [96, 112]; den = [180, 196]
    for st in range(2):
        for tp in range(4):
            a(mf32(num[st], kvf + 4 * tp, phq[st] + 4 * tp, "0" if tp == 0 else num[st]))
            a(mf32(den[st], zf + 4 * tp, phq[st] + 4 * tp, "0" if tp == 0 else den[st]))
    mfma_wait(a)
    a("v_and_b32 v%d, 31, v%d" % (t[0], vl))
    a("s_lshl_b32 s%d, s%d, 6" % (c.st[0], s_wave))
    a("v_add_u32 v%d, s%d, v%d" % (t[0], c.st[0], t[0]))
    a("v_mul_u32_u24 v%d, %d, v%d" % (t[0], LD_O, t[0]))
    a("v_lshl_add_u32 v%d, v%d, 4, v%d" % (t[0], hi_, t[0]))
    for st in range(2):
        a("v_add_f32 v%d, 0x358637bd, v%d" % (t[1], den[st]))
        a("v_rcp_f32 v%d, v%d" % (t[1], t[1]))
        a("s_nop 0")
        for i in range(16):
            a("v_mul_f32 v%d, v%d, v%d" % (num[st] + i, num[st] + i, t[1]))
        ob = 212 + 8 * st
        for i in range(8):
            a("v_cvt_pk_bf16_f32 v%d, v%d, v%d" % (ob + i, num[st] + 2 * i, num[st] + 2 * i + 1))
        a("s_nop 1")
        for pr in range(2):
            a("v_permlane32_swap_b32 v%d, v%d" % (ob + 4 * pr, ob + 4 * pr + 2))
            a("v_permlane32_swap_b32 v%d, v%d" % (ob + 4 * pr + 1, ob + 4 * pr + 3))
        for pr in range(2):
            a("s_mov_b32 s%d, %d" % (c.st[1], st * 32 * LD_O))
            a("buffer_store_dwordx4 %s, v%d, s[%d:%d], s%d offen offset:%d%s" % (vr(ob + 4 * pr, 4), t[0], srdO, srdO + 3, c.st[1], pr * 32, SCM))
    if mega or STAMPS: a("s_waitcnt vmcnt(0)")
    stamp(a, 5, s_wave, kidx, tmp_v=vst)
    if mega:
        a.label(Ljoin)
        a("v_mov_b32 v%d, %d" % (t[0], L_TOK))
        a("ds_read_b64 %s, v%d" % (vr(vtok, 2), t[0]))
        a("s_waitcnt lgkmcnt(0)")
        a("v_readfirstlane_b32 s72, v%d" % vtok)
        a("v_readfirstlane_b32 s73, v%d" % (vtok + 1))
        a("s_barrier")
        Lf2 = a.newlabel("Lfo")
        a("s_cmp_lg_u32 s%d, 0" % s_wave)
        a("s_cbranch_scc1 %s" % Lf2)
        a("s_lshl_b32 s%d, s%d, 5" % (c.st[0], s_rb))
        a("s_add_u32 s%d, s%d, s%d" % (c.st[0], c.st[0], s_h))
        a("s_lshl_b32 s%d, s%d, 3" % (c.st[0], c.st[0]))
        a("s_add_u32 s%d, s%d, %d" % (c.st[0], c.st[0], FO))
        a("v_mov_b32 v%d, s%d" % (t[0], c.st[0]))
        a("s_mov_b64 s[58:59], exec")
        a("s_mov_b64 exec, 1")
        a("global_store_dwordx2 v%d, %s, s[4:5] sc1" % (t[0], vr(vtok, 2)))
        a("s_mov_b64 exec, s[58:59]")
        a.label(Lf2)
        return vmax, lds
    a.label(Lend)
    a("s_endpgm")
    return kernel_desc(name, vmax, 90), lds
```

```python
from common import *
from gemm import *
import os

def env_tuple(name, default):
    v = os.environ.get(name)
    return tuple(int(x) for x in v.replace("x", ",").split(",")) if v else default

def base_cfg(BM, BN, K, lda, ldb):
    c = Cfg()
    c.BM, c.BN, c.K, c.lda, c.ldb = BM, BN, K, lda, ldb
    c.NS = K // 64
    c.nA = BM // 8; c.nB = BN // 8
    c.a_ins = c.nA // 4; c.b_ins = c.nB // 4
    assert c.nA % 4 == 0 and c.nB % 4 == 0
    c.P = BN // 8
    c.rotate = False
    c.colmode = "lin"
    return c

L_TOK = 147456
MEGA = False
VB = os.environ.get('VB', '0') == '1'
FO = WS_FLAG + 196608
CFU = WS_FLAG + 262144
FH = WS_FLAG + 65536
FH1 = WS_FLAG + 131072
NP2 = None
def wo_tile():
    return env_tuple("TILE_wo", (64, 128))

def gemm_phase(a, kind, first, last):
    DBG = os.environ.get("GDBG", "")
    if kind == "wo":
        BM, BN = wo_tile(); c = base_cfg(BM, BN, 1024, LD_O, 2048); set_rings(c, *env_tuple("RING_wo", (6, 6)))
    elif kind == "w1":
        BM, BN = 128, 224; c = base_cfg(BM, BN, 1024, LD_H, 7168); set_rings(c, *env_tuple("RING_w1", (3, 3)))
    else:
        BM, BN = env_tuple("TILE_w2", (64, 128)); c = base_cfg(BM, BN, 3584, LD_H1, 2048); set_rings(c, *env_tuple("RING_w2", (6, 6)))
    N = {"wo": 1024, "w1": 3584, "w2": 1024}[kind]
    tilesM, tilesN = 2048 // BM, N // BN
    assert tilesM * tilesN == 256
    XM = env_tuple("XROWS_" + kind, (1024 if kind == "w1" else 512,))[0] // BM; XN = 32 // XM
    np2 = 1024 // wo_tile()[1]
    c.swz = swz_mask_bits(c.P)
    c.MT = BM // 32; c.NT = BN // 32
    c.WM = BM // 2
    nW = 1
    for (kb, jb) in c.swz: nW = max(nW, 1 << jb)
    nW = min(nW, 1 << (c.NT - 1).bit_length()) if c.NT <= 4 else 2
    nW = max(nW, 2) if c.NT >= 2 else 1
    if c.NT <= 4: nW = c.NT
    c.srdA, c.srdB, srdC, srdR, srdS, srdT = 16, 20, 24, 28, 32, 36
    s_wave, s_tm, s_tn = 40, 41, 42
    c.s_p = c.s_wm = 43; c.s_wn = 44
    c.s_slotA = c.s_cslotA = 45; c.s_ka = c.s_deltaA = 46; c.s_kb = c.s_deltaB = 47; c.s_mA = 48; c.s_mB = 49; c.s_i = 50; c.s_slotB = c.s_cslotB = 51
    c.st = [52, 53, 54, 55]
    nacc = c.MT * c.NT * 4
    c.acc = 0
    fr = nacc
    fsz = 4 * c.MT + 4 * c.NT
    c.fX = [fr, fr + fsz]; c.fW = [fr + 4 * c.MT, fr + fsz + 4 * c.MT]
    misc = max(fr + 2 * fsz, 96)
    c.v_lane = misc
    c.vX = [misc + 1, misc + 2]; c.vW = [misc + 3 + i for i in range(nW)]
    c.vt = [misc + 3 + nW + i for i in range(8)]
    vside = (misc + 11 + nW + 3) // 4 * 4
    vst = vside + (24 if kind == "w1" else 0)
    vtok = (vst + 4 + 1) // 2 * 2
    vmax = vtok + 6
    assert vmax <= 256
    lds = c.ring_bytes
    side = lds
    if kind == "w1": lds += 128 * 8 + 224 * 4
    pitch = BN * 2 + 16
    ctile = BM * pitch
    cbase = 0
    assert ctile <= c.ring_bytes
    kidx = {"wo": 1, "w1": 2, "w2": 3}[kind]
    vl = c.v_lane; t = c.vt

    a_off = {"wo": WS_O, "w1": WS_H, "w2": WS_H1}[kind]
    sW = {"wo": 64, "w1": 66, "w2": 68}[kind]
    a("v_mbcnt_lo_u32_b32 v%d, -1, 0" % vl)
    a("v_mbcnt_hi_u32_b32 v%d, -1, v%d" % (vl, vl))
    c.a_sc1 = not first
    SC = " sc1"
    a("s_and_b32 s%d, s2, 7" % c.st[0])
    a("s_lshr_b32 s%d, s2, 3" % c.st[1])
    PM = tilesM // XM
    lgPM = PM.bit_length() - 1; lgXM = XM.bit_length() - 1; lgXN = XN.bit_length() - 1
    a("s_and_b32 s%d, s%d, %d" % (c.st[2], c.st[0], PM - 1))
    a("s_lshr_b32 s%d, s%d, %d" % (c.st[3], c.st[0], lgPM))
    a("s_lshl_b32 s%d, s%d, %d" % (s_tm, c.st[2], lgXM))
    a("s_and_b32 s%d, s%d, %d" % (c.st[2], c.st[1], XM - 1))
    a("s_add_u32 s%d, s%d, s%d" % (s_tm, s_tm, c.st[2]))
    a("s_lshl_b32 s%d, s%d, %d" % (s_tn, c.st[3], lgXN))
    a("s_lshr_b32 s%d, s%d, %d" % (c.st[2], c.st[1], lgXM))
    a("s_add_u32 s%d, s%d, s%d" % (s_tn, s_tn, c.st[2]))
    a("s_mul_i32 s%d, s%d, %d" % (c.st[0], s_tm, BM * c.lda))
    a("s_add_u32 s%d, s%d, %d" % (c.st[0], c.st[0], a_off))
    a("s_add_u32 s12, s4, s%d" % c.st[0])
    a("s_addc_u32 s13, s5, 0")
    make_srd(a, c.srdA, "s12", "s13", BM * c.lda)
    a("s_mul_i32 s%d, s%d, %d" % (c.st[0], s_tn, BN * 2))
    a("s_add_u32 s12, s%d, s%d" % (sW, c.st[0]))
    a("s_addc_u32 s13, s%d, 0" % (sW + 1))
    a("s_sub_u32 s%d, %d, s%d" % (c.st[1], c.K * c.ldb, c.st[0]))
    make_srd(a, c.srdB, "s12", "s13", "s%d" % c.st[1])
    Lcons = a.newlabel("Lconsumer"); Lfin = a.newlabel("Lfinal")
    ldc = {"wo": LD_H, "w1": LD_H1, "w2": 2048}[kind]
    ldr = {"wo": 2048, "w1": 0, "w2": LD_H}[kind]
    def other_srds():
        a("s_mul_i32 s%d, s%d, %d" % (c.st[0], s_tm, BM * ldc))
        a("s_mul_i32 s%d, s%d, %d" % (c.st[1], s_tn, BN * 2))
        a("s_add_u32 s%d, s%d, s%d" % (c.st[0], c.st[0], c.st[1]))
        if kind == "w2":
            a("s_add_u32 s12, s8, s%d" % c.st[0])
            a("s_addc_u32 s13, s9, 0")
        else:
            a("s_add_u32 s%d, s%d, %d" % (c.st[2], c.st[0], {"wo": WS_H, "w1": WS_H1}[kind]))
            a("s_add_u32 s12, s4, s%d" % c.st[2])
            a("s_addc_u32 s13, s5, 0")
        a("s_sub_u32 s%d, %d, s%d" % (c.st[1], S_ * ldc, c.st[0]))
        make_srd(a, srdC, "s12", "s13", "s%d" % c.st[1])
        if kind in ("wo", "w2"):
            a("s_mul_i32 s%d, s%d, %d" % (c.st[0], s_tm, BM * ldr))
            a("s_mul_i32 s%d, s%d, %d" % (c.st[1], s_tn, BN * 2))
            a("s_add_u32 s%d, s%d, s%d" % (c.st[0], c.st[0], c.st[1]))
            a("s_sub_u32 s%d, %d, s%d" % (c.st[1], S_ * ldr, c.st[0]))
            if kind == "wo":
                a("s_add_u32 s12, s10, s%d" % c.st[0])
                a("s_addc_u32 s13, s11, 0")
            else:
                a("s_add_u32 s%d, s%d, %d" % (c.st[2], c.st[0], WS_H))
                a("s_add_u32 s12, s4, s%d" % c.st[2])
                a("s_addc_u32 s13, s5, 0")
            make_srd(a, srdR, "s12", "s13", "s%d" % c.st[1])
        if kind == "wo":
            assert BM == 64 and np2 == 8
            a("s_lshl_b32 s%d, s%d, 3" % (c.st[0], s_tm))
            a("s_add_u32 s%d, s%d, s%d" % (c.st[0], c.st[0], s_tn))
            a("s_lshl_b32 s%d, s%d, 9" % (c.st[0], c.st[0]))
            a("s_add_u32 s%d, s%d, %d" % (c.st[0], c.st[0], WS_ST2))
            a("s_add_u32 s12, s4, s%d" % c.st[0])
            a("s_addc_u32 s13, s5, 0")
            make_srd(a, srdS, "s12", "s13", 512)
        if kind == "w1":
            a("s_mul_i32 s%d, s%d, %d" % (c.st[0], s_tm, 128 * np2 * 8))
            a("s_add_u32 s%d, s%d, %d" % (c.st[0], c.st[0], WS_ST2))
            a("s_add_u32 s12, s4, s%d" % c.st[0])
            a("s_addc_u32 s13, s5, 0")
            make_srd(a, srdS, "s12", "s13", 128 * np2 * 8)
            a("s_mul_i32 s%d, s%d, %d" % (c.st[0], s_tn, 224 * 4))
            a("s_add_u32 s%d, s%d, %d" % (c.st[0], c.st[0], WS_CS1))
            a("s_add_u32 s12, s4, s%d" % c.st[0])
            a("s_addc_u32 s13, s5, 0")
            make_srd(a, srdT, "s12", "s13", 15 * 3584 * 4 + 224 * 4)
    stamp(a, 0, s_wave, kidx, tmp_v=vst)
    a("s_cmp_lt_u32 s%d, 4" % s_wave)
    a("s_cbranch_scc1 %s" % Lcons)
    if os.environ.get("PRIO_P"): a("s_setprio %s" % os.environ["PRIO_P"])
    a("s_sub_u32 s%d, s%d, 4" % (c.s_p, s_wave))
    a("s_mov_b32 s%d, 0" % c.s_ka)
    a("s_mov_b32 s%d, 0" % c.s_kb)
    emit_producer_setup(a, c, 32)
    stamp(a, 1, s_wave, kidx, tmp_v=vst)
    def poll():
        Lnp = a.newlabel("Lnopoll")
        if kind == "wo" and MEGA:
            if VB: import kqkvb as kqkv
            else: import kqkv
            Lnc = a.newlabel("Lnocs")
            a("s_cmp_lt_u32 s%d, 6" % s_wave)
            a("s_cbranch_scc1 %s" % Lnc)
            nB = (c.SB - 1) * c.b_ins
            a("s_waitcnt vmcnt(%d)" % (4 + nB))
            kqkv.COLSUM_FN(t, vl, c.st)
            a.label(Lnc)
        a("s_cmp_lg_u32 s%d, 4" % s_wave)
        a("s_cbranch_scc1 %s" % Lnp)
        if kind == "wo":
            if VB:
                a("s_lshr_b32 s%d, s%d, 1" % (c.st[0], s_tm))
                a("s_lshl_b32 s%d, s%d, 7" % (c.st[0], c.st[0]))
                a("s_add_u32 s%d, s%d, %d" % (c.st[0], c.st[0], FO))
                a("v_and_b32 v%d, 15, v%d" % (t[0], vl))
            else:
                a("s_lshr_b32 s%d, s%d, 2" % (c.st[0], s_tm))
                a("s_lshl_b32 s%d, s%d, %d" % (c.st[0], c.st[0], 5 + FS_LG))
                a("s_add_u32 s%d, s%d, %d" % (c.st[0], c.st[0], FO))
                a("v_and_b32 v%d, 31, v%d" % (t[0], vl))
        else:
            base = FH if kind == "w1" else FH1
            a("s_lshl_b32 s%d, s%d, %d" % (c.st[0], s_tm, 4 + FS_LG))
            a("s_add_u32 s%d, s%d, %d" % (c.st[0], c.st[0], base))
            a("v_and_b32 v%d, 15, v%d" % (t[0], vl))
        a("v_lshlrev_b32 v%d, %d, v%d" % (t[0], FS_LG, t[0]))
        a("v_add_u32 v%d, s%d, v%d" % (t[0], c.st[0], t[0]))
        a("v_mov_b32 v56, s72")
        a("v_mov_b32 v57, s73")
        Lp = a.newlabel("Lpoll"); Lpd = a.newlabel("Lpolld")
        a("s_mov_b32 s57, 0")
        a.label(Lp)
        a("global_load_dwordx2 v[58:59], v%d, s[4:5] sc1" % t[0])
        a("s_waitcnt vmcnt(0)")
        a("v_cmp_eq_u64 vcc, v[56:57], v[58:59]")
        a("s_nop 4")
        a("s_cmp_eq_u64 vcc, exec")
        a("s_cbranch_scc1 %s" % Lpd)
        a("s_add_u32 s57, s57, 1")
        a("s_cmp_gt_u32 s57, 0x40000")
        a("s_cbranch_scc1 %s" % Lpd)
        a("s_sleep %s" % os.environ.get("PSLEEP", "4"))
        a("s_branch %s" % Lp)
        a.label(Lpd)
        if kind == "w1" and MEGA:
            Lc1 = a.newlabel("Lcs"); Lc2 = a.newlabel("Lcsd")
            a("s_mul_i32 s%d, s%d, 224" % (c.st[0], s_tn))
            a("s_lshr_b32 s%d, s%d, 6" % (c.st[0], c.st[0]))
            a("v_lshrrev_b32 v%d, 2, v%d" % (t[0], vl))
            a("v_mul_u32_u24 v%d, 56, v%d" % (t[0], t[0]))
            a("v_and_b32 v%d, 3, v%d" % (t[1], vl))
            a("v_add3_u32 v%d, v%d, v%d, s%d" % (t[0], t[0], t[1], c.st[0]))
            a("v_lshlrev_b32 v%d, %d, v%d" % (t[0], FS_LG, t[0]))
            a("v_add_u32 v%d, %d, v%d" % (t[0], CFU, t[0]))
            a("s_mov_b32 s57, 0")
            a.label(Lc1)
            a("global_load_dwordx2 v[58:59], v%d, s[4:5] sc1" % t[0])
            a("s_waitcnt vmcnt(0)")
            a("v_cmp_eq_u64 vcc, v[56:57], v[58:59]")
            a("s_nop 4")
            a("s_cmp_eq_u64 vcc, exec")
            a("s_cbranch_scc1 %s" % Lc2)
            a("s_add_u32 s57, s57, 1")
            a("s_cmp_gt_u32 s57, 0x40000")
            a("s_cbranch_scc1 %s" % Lc2)
            a("s_sleep 4")
            a("s_branch %s" % Lc1)
            a.label(Lc2)
        a.label(Lnp)
        a("s_barrier")
        stamp(a, 8, s_wave, kidx, tmp_v=vst)
    if first and not last:
        def mid():
            a("s_load_dwordx2 s[72:73], s[70:71], 0")
        c.prod_mid_hook = mid
    emit_producer_loop2(a, c, None if first else poll)
    if kind == "wo" and MEGA:
        Lna = a.newlabel("Lnoat")
        a("s_cmp_lt_u32 s%d, 6" % s_wave)
        a("s_cbranch_scc1 %s" % Lna)
        a("s_waitcnt vmcnt(0)")
        a("s_lshl_b32 s%d, s2, 1" % c.st[0])
        a("s_add_u32 s%d, s%d, s%d" % (c.st[0], c.st[0], s_wave))
        a("s_sub_u32 s%d, s%d, 6" % (c.st[0], c.st[0]))
        a("s_lshl_b32 s%d, s%d, %d" % (c.st[0], c.st[0], 1 + FS_LG))
        a("s_add_u32 s%d, s%d, %d" % (c.st[0], c.st[0], CFU))
        a("v_lshlrev_b32 v%d, 3, v%d" % (t[0], vl))
        a("v_add_u32 v%d, s%d, v%d" % (t[0], c.st[0], t[0]))
        a("v_mov_b32 v56, s72")
        a("v_mov_b32 v57, s73")
        a("s_mov_b64 s[58:59], exec")
        a("s_mov_b64 exec, %s" % ("3" if FS_LG == 3 else "0xffff"))
        a("global_store_dwordx2 v%d, v[56:57], s[4:5] sc1" % t[0])
        a("s_mov_b64 exec, s[58:59]")
        a.label(Lna)
    if first and not last:
        Lt1 = a.newlabel("Ltok1"); Ltp = a.newlabel("Ltp"); Ltd = a.newlabel("Ltd")
        a("s_waitcnt lgkmcnt(0)")
        a("s_cmp_lg_u32 s%d, 4" % s_wave)
        a("s_cbranch_scc1 %s" % Lt1)
        a("v_mov_b32 v%d, s72" % vtok)
        a("v_mov_b32 v%d, s73" % (vtok + 1))
        a("s_mov_b32 s57, 0")
        a.label(Ltp)
        a("v_cmp_ne_u64 vcc, 0, %s" % vr(vtok, 2))
        a("s_nop 4")
        a("s_cmp_eq_u64 vcc, exec")
        a("s_cbranch_scc1 %s" % Ltd)
        a("s_add_u32 s57, s57, 1")
        a("s_cmp_gt_u32 s57, 0x40000")
        a("s_cbranch_scc1 %s" % Ltd)
        a("v_mov_b32 v%d, 0" % (vtok + 2))
        a("global_load_dwordx2 %s, v%d, s[70:71] sc1" % (vr(vtok, 2), vtok + 2))
        a("s_waitcnt vmcnt(0)")
        a("s_branch %s" % Ltp)
        a.label(Ltd)
        a("v_mov_b32 v%d, %d" % (t[0], L_TOK))
        a("ds_write_b64 v%d, %s" % (t[0], vr(vtok, 2)))
        a("s_waitcnt lgkmcnt(0)")
        a.label(Lt1)
    other_srds()
    a("s_barrier")
    stamp(a, 2, s_wave, kidx, tmp_v=vst)
    ES_ = (kind == "w1") and os.environ.get("ES", "0") == "1"
    Lt1p = a.newlabel("LT1p")
    a("s_branch %s" % (Lt1p if ES_ else Lfin))
    a.label(Lcons)
    if os.environ.get("PRIO_C"): a("s_setprio %s" % os.environ["PRIO_C"])
    a("s_lshr_b32 s%d, s%d, 1" % (c.s_wm, s_wave))
    a("s_and_b32 s%d, s%d, 1" % (c.s_wn, s_wave))
    other_srds()
    if first and not last:
        Lt0 = a.newlabel("Ltok0")
        a("s_or_b32 s58, s2, s%d" % s_wave)
        a("s_cmp_lg_u32 s58, 0")
        a("s_cbranch_scc1 %s" % Lt0)
        a("s_memrealtime s[58:59]")
        a("s_waitcnt lgkmcnt(0)")
        a("s_or_b32 s58, s58, 1")
        a("v_mov_b32 v%d, s58" % vtok)
        a("v_mov_b32 v%d, s59" % (vtok + 1))
        a("v_mov_b32 v%d, 0" % t[0])
        a("s_mov_b64 s[58:59], exec")
        a("s_mov_b64 exec, 1")
        a("global_store_dwordx2 v%d, %s, s[70:71] sc1" % (t[0], vr(vtok, 2)))
        a("s_mov_b64 exec, s[58:59]")
        a.label(Lt0)
    def side_loads():
      if kind == "w1":
        a("v_and_b32 v%d, 31, v%d" % (t[0], vl))
        a("s_lshl_b32 s%d, s%d, 5" % (c.st[0], s_wave))
        a("v_add_u32 v%d, s%d, v%d" % (t[0], c.st[0], t[0]))
        a("v_lshrrev_b32 v%d, 6, v%d" % (t[1], t[0]))
        a("v_lshlrev_b32 v%d, 12, v%d" % (t[1], t[1]))
        a("v_and_b32 v%d, 63, v%d" % (t[2], t[0]))
        a("v_lshl_add_u32 v%d, v%d, 3, v%d" % (t[1], t[2], t[1]))
        a("v_lshrrev_b32 v%d, 5, v%d" % (t[2], vl))
        a("v_lshl_add_u32 v%d, v%d, 11, v%d" % (t[1], t[2], t[1]))
        for q in range(4):
            a("buffer_load_dwordx2 %s, v%d, s[%d:%d], 0 offen offset:%d%s" % (vr(vside + 2 * q, 2), t[1], srdS, srdS + 3, q * 512, SC))
        assert np2 == 8
        a("s_mul_i32 s%d, s%d, 56" % (c.st[0], s_wave))
        a("v_add_u32 v%d, s%d, v%d" % (t[3], c.st[0], vl))
        a("v_lshlrev_b32 v%d, 2, v%d" % (t[4], t[3]))
        a("v_cmp_gt_u32 vcc, 56, v%d" % vl)
        a("v_mov_b32 v%d, 0x7fffffff" % t[5])
        a("s_nop 0")
        a("v_cndmask_b32 v%d, v%d, v%d, vcc" % (t[4], t[5], t[4]))
        for q in range(16):
            a("s_mov_b32 s%d, %d" % (c.st[1], q * 3584 * 4))
            a("buffer_load_dword v%d, v%d, s[%d:%d], s%d offen%s" % (vside + 8 + q, t[4], srdT, srdT + 3, c.st[1], SC))
    c.cons_hook0 = side_loads
    if MEGA and kind == "wo":
        a("s_lshl_b32 s%d, s2, 2" % c.st[0])
        a("s_add_u32 s%d, s%d, s%d" % (c.st[0], c.st[0], s_wave))
        a("s_mul_i32 s%d, s%d, 7168" % (c.st[0], c.st[0]))
        a("v_lshlrev_b32 v%d, 4, v%d" % (t[0], vl))
        a("v_add_u32 v%d, s%d, v%d" % (t[0], c.st[0], t[0]))
        for j in range(7):
            if j == 4: a("v_add_u32 v%d, 4096, v%d" % (t[0], t[0]))
            a("global_load_dwordx4 v[124:127], v%d, s[68:69] offset:%d" % (t[0], (j % 4) * 1024))
    emit_consumer16_setup(a, c)
    if not first: a("s_barrier")
    stamp(a, 1, s_wave, kidx, tmp_v=vst)
    stamp(a, 6, s_wave, kidx, tmp_v=vst)
    def side_compute():
        Lsc = a.newlabel("Lsc")
        a("s_cmp_lg_u32 s%d, 6" % c.s_i)
        a("s_cbranch_scc1 %s" % Lsc)
        f = vside; g = vside + 8
        a("s_waitcnt vmcnt(0)")
        a("v_add_f32 v%d, v%d, v%d" % (t[5], f + 0, f + 2))
        a("v_add_f32 v%d, v%d, v%d" % (t[6], f + 1, f + 3))
        for q in range(2, 4):
            a("v_add_f32 v%d, v%d, v%d" % (t[5], t[5], f + 2 * q))
            a("v_add_f32 v%d, v%d, v%d" % (t[6], t[6], f + 2 * q + 1))
        a("v_mov_b32 v%d, v%d" % (f + 0, t[5]))
        a("v_mov_b32 v%d, v%d" % (f + 1, t[6]))
        for q in range(1, 16):
            a("v_add_f32 v%d, v%d, v%d" % (g, g, g + q))
        a("v_permlane32_swap_b32 v%d, v%d" % (f + 0, t[5]))
        a("v_permlane32_swap_b32 v%d, v%d" % (f + 1, t[6]))
        a("v_add_f32 v%d, v%d, v%d" % (t[5], t[5], f + 0))
        a("v_add_f32 v%d, v%d, v%d" % (t[6], t[6], f + 1))
        a("v_mul_f32 v%d, 0x3a800000, v%d" % (t[5], t[5]))
        a("v_mul_f32 v%d, 0x3a800000, v%d" % (t[6], t[6]))
        a("v_fma_f32 v%d, -v%d, v%d, v%d" % (t[6], t[5], t[5], t[6]))
        a("v_max_f32 v%d, 0, v%d" % (t[6], t[6]))
        def rb(x):
            a("v_cvt_pk_bf16_f32 v%d, v%d, v%d" % (x, x, x))
            a("v_lshlrev_b32 v%d, 16, v%d" % (x, x))
        rb(t[6])
        a("v_add_f32 v%d, 0x3727c5ac, v%d" % (t[6], t[6]))
        rb(t[6])
        a("v_sqrt_f32 v%d, v%d" % (t[6], t[6]))
        a("s_nop 0")
        rb(t[6])
        a("v_rcp_f32 v%d, v%d" % (f + 1, t[6]))
        rb(t[5])
        a("v_sub_f32 v%d, 0, v%d" % (f + 0, t[5]))
        a("v_and_b32 v%d, 31, v%d" % (t[0], vl))
        a("s_lshl_b32 s%d, s%d, 5" % (c.st[0], s_wave))
        a("v_add_u32 v%d, s%d, v%d" % (t[0], c.st[0], t[0]))
        a("v_lshlrev_b32 v%d, 3, v%d" % (t[0], t[0]))
        a("v_add_u32 v%d, %d, v%d" % (t[0], side, t[0]))
        a("ds_write_b64 v%d, %s" % (t[0], vr(f, 2)))
        a("s_mul_i32 s%d, s%d, 56" % (c.st[0], s_wave))
        a("v_add_u32 v%d, s%d, v%d" % (t[3], c.st[0], vl))
        a("v_lshlrev_b32 v%d, 2, v%d" % (t[3], t[3]))
        a("v_add_u32 v%d, %d, v%d" % (t[3], side + 1024, t[3]))
        a("v_cmp_gt_u32 vcc, 56, v%d" % vl)
        a("s_and_saveexec_b64 s[56:57], vcc")
        a("ds_write_b32 v%d, v%d" % (t[3], g))
        a("s_mov_b64 exec, s[56:57]")
        a.label(Lsc)
    if kind == "w1": c.cons_iter_hook = side_compute
    emit_consumer16_loop(a, c)
    stamp(a, 7, s_wave, kidx, tmp_v=vst)
    stamp(a, 2, s_wave, kidx, tmp_v=vst)
    a("s_barrier")
    a("s_nop 3")
    a("v_and_b32 v%d, 15, v%d" % (t[0], vl))
    a("s_mul_i32 s%d, s%d, %d" % (c.st[0], c.s_wm, c.WM))
    a("v_add_u32 v%d, s%d, v%d" % (t[0], c.st[0], t[0]))
    a("v_mul_u32_u24 v%d, %d, v%d" % (t[1], pitch, t[0]))
    a("v_lshrrev_b32 v%d, 4, v%d" % (t[2], vl))
    a("v_lshl_add_u32 v%d, v%d, 3, v%d" % (t[1], t[2], t[1]))
    a("s_mul_i32 s%d, s%d, %d" % (c.st[0], c.s_wn, c.NT * 32))
    a("s_add_u32 s%d, s%d, %d" % (c.st[0], c.st[0], cbase))
    a("v_add_u32 v%d, s%d, v%d" % (t[1], c.st[0], t[1]))
    f0 = c.fX[0]
    if kind == "w1":
        a("v_lshlrev_b32 v%d, 3, v%d" % (t[3], t[0]))
        a("v_add_u32 v%d, %d, v%d" % (t[3], side, t[3]))
        for mt in range(4):
            a("ds_read_b64 %s, v%d offset:%d" % (vr(f0 + 2 * mt, 2), t[3], mt * 16 * 8))
        a("v_lshlrev_b32 v%d, 4, v%d" % (t[4], t[2]))
        a("s_mul_i32 s%d, s%d, %d" % (c.st[0], c.s_wn, c.NT * 64))
        a("v_add_u32 v%d, s%d, v%d" % (t[4], c.st[0], t[4]))
        a("v_add_u32 v%d, %d, v%d" % (t[4], side, t[4]))
        for tt in range(c.NT):
            a("ds_read_b128 %s, v%d offset:%d" % (vr(f0 + 8 + 4 * tt, 4), t[4], 1024 + tt * 64))
        a("s_waitcnt lgkmcnt(%d)" % c.NT)
        rs = f0 + 8 + 4 * c.NT
        for mt in range(4):
            a("v_mov_b32 v%d, v%d" % (rs + 2 * mt, f0 + 2 * mt + 1))
    ES = (kind == "w1") and os.environ.get("ES", "0") == "1"
    Lt1 = a.newlabel("LT1")
    if ES:
        PP = 240; PB = 16 * PP
        a("s_waitcnt lgkmcnt(0)")
        a("v_and_b32 v%d, 15, v%d" % (t[0], vl))
        a("v_mul_u32_u24 v%d, %d, v%d" % (t[1], PP, t[0]))
        a("v_lshrrev_b32 v%d, 4, v%d" % (t[2], vl))
        a("v_lshl_add_u32 v%d, v%d, 3, v%d" % (t[1], t[2], t[1]))
        a("s_mul_i32 s%d, s%d, %d" % (c.st[0], s_wave, 2 * PB))
        a("v_add_u32 v%d, s%d, v%d" % (t[1], c.st[0], t[1]))
        vLr = [vside + i for i in range(4)]; vGr = [vside + 4 + i for i in range(4)]
        mul, sh = magic_div(14, 320)
        a("s_mul_i32 s%d, s%d, %d" % (c.st[1], c.s_wm, 64 * ldc))
        a("s_mul_i32 s%d, s%d, 224" % (c.st[2], c.s_wn))
        a("s_add_u32 s%d, s%d, s%d" % (c.st[1], c.st[1], c.st[2]))
        for j in range(4):
            a("v_add_u32 v%d, %d, v%d" % (t[3], 64 * j, vl))
            a("v_mul_u32_u24 v%d, %d, v%d" % (t[4], mul, t[3]))
            a("v_lshrrev_b32 v%d, %d, v%d" % (t[4], sh, t[4]))
            a("v_mul_u32_u24 v%d, 14, v%d" % (t[5], t[4]))
            a("v_sub_u32 v%d, v%d, v%d" % (t[5], t[3], t[5]))
            a("v_lshlrev_b32 v%d, 4, v%d" % (t[5], t[5]))
            a("v_mul_u32_u24 v%d, %d, v%d" % (t[6], PP, t[4]))
            a("v_add3_u32 v%d, v%d, v%d, s%d" % (vLr[j], t[6], t[5], c.st[0]))
            a("v_mul_u32_u24 v%d, %d, v%d" % (t[6], ldc, t[4]))
            a("v_add3_u32 v%d, v%d, v%d, s%d" % (vGr[j], t[6], t[5], c.st[1]))
            if j == 3:
                a("v_cmp_gt_u32 vcc, 32, v%d" % vl)
                a("v_mov_b32 v%d, 0x7fffffff" % t[6])
                a("v_mov_b32 v%d, s%d" % (t[5], c.st[0]))
                a("v_cndmask_b32 v%d, v%d, v%d, vcc" % (vGr[j], t[6], vGr[j]))
                a("v_cndmask_b32 v%d, v%d, v%d, vcc" % (vLr[j], t[5], vLr[j]))
        db = [c.fX[1], c.fX[1] + 16]
        def conv(mt):
            for tt in range(c.NT):
                acc = c.acc + 4 * (tt * c.MT + mt)
                cs = f0 + 8 + 4 * tt
                for h in range(2):
                    a("v_pk_fma_f32 %s, %s, %s, %s op_sel_hi:[1,0,1]" % (vr(acc + 2 * h, 2), vr(cs + 2 * h, 2), vr(f0 + 2 * mt, 2), vr(acc + 2 * h, 2)))
                    a("v_pk_mul_f32 %s, %s, %s op_sel_hi:[1,0]" % (vr(acc + 2 * h, 2), vr(acc + 2 * h, 2), vr(rs + 2 * mt, 2)))
                a("v_cvt_pk_bf16_f32 v%d, v%d, v%d" % (acc, acc, acc + 1))
                a("v_cvt_pk_bf16_f32 v%d, v%d, v%d" % (acc + 1, acc + 2, acc + 3))
                a("v_pk_max_i16 v%d, v%d, 0" % (acc, acc))
                a("v_pk_max_i16 v%d, v%d, 0" % (acc + 1, acc + 1))
                a("ds_write_b64 v%d, %s offset:%d" % (t[1], vr(acc, 2), (mt & 1) * PB + tt * 32))
            for j in range(4):
                a("ds_read_b128 %s, v%d offset:%d" % (vr(db[mt & 1] + 4 * j, 4), vLr[j], (mt & 1) * PB))
        def stores(mt):
            a("s_mov_b32 s%d, %d" % (c.st[2], mt * 16 * ldc))
            for j in range(4):
                a("buffer_store_dwordx4 %s, v%d, s[%d:%d], s%d offen%s" % (vr(db[mt & 1] + 4 * j, 4), vGr[j], srdC, srdC + 3, c.st[2], "" if last else SC))
        conv(0)
        for mt in range(1, 4):
            conv(mt)
            a("s_waitcnt lgkmcnt(%d)" % (c.NT + 4))
            stores(mt - 1)
        a("s_waitcnt lgkmcnt(0)")
        stores(3)
        a("s_branch %s" % Lt1)
    tmp = c.fX[1] + 4 * c.MT
    ntmp = min(4, (4 * c.NT) // 2)
    for tt in range(c.NT):
        if kind == "w1": a("s_waitcnt lgkmcnt(%d)" % min(15, c.NT - 1 - tt + tt * c.MT))
        for mt in range(c.MT):
            acc = c.acc + 4 * (tt * c.MT + mt)
            if kind == "w1":
                cs = f0 + 8 + 4 * tt
                for h in range(2):
                    a("v_pk_fma_f32 %s, %s, %s, %s op_sel_hi:[1,0,1]" % (vr(acc + 2 * h, 2), vr(cs + 2 * h, 2), vr(f0 + 2 * mt, 2), vr(acc + 2 * h, 2)))
                    a("v_pk_mul_f32 %s, %s, %s op_sel_hi:[1,0]" % (vr(acc + 2 * h, 2), vr(acc + 2 * h, 2), vr(rs + 2 * mt, 2)))
            d = acc if kind != "w1" else acc
            a("v_cvt_pk_bf16_f32 v%d, v%d, v%d" % (d, acc, acc + 1))
            a("v_cvt_pk_bf16_f32 v%d, v%d, v%d" % (d + 1, acc + 2, acc + 3))
            if kind == "w1":
                a("v_pk_max_i16 v%d, v%d, 0" % (d, d))
                a("v_pk_max_i16 v%d, v%d, 0" % (d + 1, d + 1))
            a("ds_write_b64 v%d, %s offset:%d" % (t[1], vr(d, 2), mt * 16 * pitch + tt * 32))
    a("s_waitcnt lgkmcnt(0)")
    a.label(Lfin)
    G = BN // 8
    nf = BM * G // 64 // 8
    vL = [i for i in range(nf)]; vG = [nf + i for i in range(nf)]
    vGR = [2 * nf + i for i in range(nf)]
    vD = (3 * nf + 3) // 4 * 4
    vR = vD + 4 * nf
    mul, sh = magic_div(G, BM * G + 64)
    t = [vR + 4 * nf + i for i in range(10)]
    assert vR + 4 * nf + 10 <= misc
    a("s_mul_i32 s%d, s%d, %d" % (c.st[0], s_wave, nf * 64))
    for j in range(nf):
        a("v_add_u32 v%d, s%d, v%d" % (t[0], c.st[0], vl))
        if j: a("v_add_u32 v%d, %d, v%d" % (t[0], 64 * j, t[0]))
        a("v_mul_u32_u24 v%d, %d, v%d" % (t[1], mul, t[0]))
        a("v_lshrrev_b32 v%d, %d, v%d" % (t[1], sh, t[1]))
        a("v_mul_u32_u24 v%d, %d, v%d" % (t[2], G, t[1]))
        a("v_sub_u32 v%d, v%d, v%d" % (t[2], t[0], t[2]))
        a("v_lshlrev_b32 v%d, 4, v%d" % (t[2], t[2]))
        a("v_mul_u32_u24 v%d, %d, v%d" % (t[3], pitch, t[1]))
        a("v_add_u32 v%d, v%d, v%d" % (vL[j], t[3], t[2]))
        a("v_mul_u32_u24 v%d, %d, v%d" % (t[3], ldc, t[1]))
        a("v_add_u32 v%d, v%d, v%d" % (vG[j], t[3], t[2]))
        if kind in ("wo", "w2"):
            a("v_mul_u32_u24 v%d, %d, v%d" % (t[3], ldr, t[1]))
            a("v_add_u32 v%d, v%d, v%d" % (vGR[j], t[3], t[2]))
            a("buffer_load_dwordx4 %s, v%d, s[%d:%d], 0 offen%s" % (vr(vR + 4 * j, 4), vGR[j], srdR, srdR + 3, SC if kind == "w2" else ""))
    stamp(a, 3, s_wave, kidx, tmp_v=vst)
    a("s_barrier")
    stamp(a, 4, s_wave, kidx, tmp_v=vst)
    if first and not last:
        a("v_mov_b32 v%d, %d" % (t[8], L_TOK))
        a("ds_read_b64 %s, v%d" % (vr(vtok, 2), t[8]))
        a("s_waitcnt lgkmcnt(0)")
        a("v_readfirstlane_b32 s72, v%d" % vtok)
        a("v_readfirstlane_b32 s73, v%d" % (vtok + 1))
    for j in range(nf):
        a("ds_read_b128 %s, v%d offset:%d" % (vr(vD + 4 * j, 4), vL[j], cbase))
    if kind in ("wo", "w2"): a("s_waitcnt vmcnt(0)")
    lanes_per_row = G
    for j in range(nf):
        a("s_waitcnt lgkmcnt(%d)" % (nf - 1 - j))
        if kind in ("wo", "w2"):
            for q in range(4):
                d = vD + 4 * j + q; r = vR + 4 * j + q
                a("v_lshlrev_b32 v%d, 16, v%d" % (t[0], d))
                a("v_and_b32 v%d, 0xffff0000, v%d" % (t[1], d))
                a("v_lshlrev_b32 v%d, 16, v%d" % (t[2], r))
                a("v_and_b32 v%d, 0xffff0000, v%d" % (t[3], r))
                a("v_add_f32 v%d, v%d, v%d" % (t[0], t[0], t[2]))
                a("v_add_f32 v%d, v%d, v%d" % (t[1], t[1], t[3]))
                a("v_cvt_pk_bf16_f32 v%d, v%d, v%d" % (d, t[0], t[1]))
                if kind == "wo":
                    a("v_lshlrev_b32 v%d, 16, v%d" % (t[0], d))
                    a("v_and_b32 v%d, 0xffff0000, v%d" % (t[1], d))
                    if q == 0:
                        a("v_add_f32 v%d, v%d, v%d" % (t[4], t[0], t[1]))
                        a("v_mul_f32 v%d, v%d, v%d" % (t[5], t[0], t[0]))
                    else:
                        a("v_add_f32 v%d, v%d, v%d" % (t[4], t[4], t[0]))
                        a("v_add_f32 v%d, v%d, v%d" % (t[4], t[4], t[1]))
                        a("v_fmac_f32 v%d, v%d, v%d" % (t[5], t[0], t[0]))
                    a("v_fmac_f32 v%d, v%d, v%d" % (t[5], t[1], t[1]))
        a("buffer_store_dwordx4 %s, v%d, s[%d:%d], 0 offen%s" % (vr(vD + 4 * j, 4), vG[j], srdC, srdC + 3, "" if last else SC))
        if kind == "wo":
            steps = ["quad_perm:[1,0,3,2]", "quad_perm:[2,3,0,1]", "row_half_mirror"] + (["row_mirror"] if G == 16 else [])
            for dpp in steps:
                a("s_nop 1")
                a("v_add_f32_dpp v%d, v%d, v%d %s row_mask:0xf bank_mask:0xf" % (t[6], t[4], t[4], dpp))
                a("v_add_f32_dpp v%d, v%d, v%d %s row_mask:0xf bank_mask:0xf" % (t[7], t[5], t[5], dpp))
                a("v_mov_b32 v%d, v%d" % (t[4], t[6]))
                a("v_mov_b32 v%d, v%d" % (t[5], t[7]))
            assert G == 16 and nf == 2
            if j == 0:
                a("v_mov_b32 v%d, v%d" % (t[8], t[4]))
                a("v_mov_b32 v%d, v%d" % (t[9], t[5]))
            else:
                a("v_and_b32 v%d, 1, v%d" % (t[2], vl))
                a("v_cmp_eq_u32 vcc, 0, v%d" % t[2])
                a("v_lshrrev_b32 v%d, 4, v%d" % (t[1], vl))
                a("v_lshl_add_u32 v%d, v%d, 2, v%d" % (t[1], t[2], t[1]))
                a("v_cndmask_b32 v%d, v%d, v%d, vcc" % (vR, t[4], t[8]))
                a("v_cndmask_b32 v%d, v%d, v%d, vcc" % (vR + 1, t[5], t[9]))
                a("s_lshl_b32 s%d, s%d, 3" % (c.st[1], s_wave))
                a("v_add_u32 v%d, s%d, v%d" % (t[1], c.st[1], t[1]))
                a("v_lshlrev_b32 v%d, 3, v%d" % (t[1], t[1]))
                a("v_and_b32 v%d, 14, v%d" % (t[2], vl))
                a("v_cmp_eq_u32 vcc, 0, v%d" % t[2])
                a("v_mov_b32 v%d, 0x7fffffff" % t[3])
                a("s_nop 1")
                a("v_cndmask_b32 v%d, v%d, v%d, vcc" % (t[1], t[3], t[1]))
                a("buffer_store_dwordx2 %s, v%d, s[%d:%d], 0 offen%s" % (vr(vR, 2), t[1], srdS, srdS + 3, SC))
    a.label(Lt1)
    a.label(Lt1p)
    if not last:
        a("s_waitcnt vmcnt(0)")
        a("s_barrier")
        Lf = a.newlabel("Lflag")
        a("s_cmp_lg_u32 s%d, 0" % s_wave)
        a("s_cbranch_scc1 %s" % Lf)
        if kind == "wo":
            a("s_lshl_b32 s%d, s%d, 3" % (c.st[0], s_tm))
            a("s_add_u32 s%d, s%d, s%d" % (c.st[0], c.st[0], s_tn))
            base = FH
        else:
            a("s_lshl_b32 s%d, s%d, 4" % (c.st[0], s_tm))
            a("s_add_u32 s%d, s%d, s%d" % (c.st[0], c.st[0], s_tn))
            base = FH1
        a("s_lshl_b32 s%d, s%d, %d" % (c.st[0], c.st[0], FS_LG))
        a("s_add_u32 s%d, s%d, %d" % (c.st[0], c.st[0], base))
        a("v_lshlrev_b32 v%d, 3, v%d" % (t[0], vl))
        a("v_add_u32 v%d, s%d, v%d" % (t[0], c.st[0], t[0]))
        a("v_mov_b32 v%d, s72" % vtok)
        a("v_mov_b32 v%d, s73" % (vtok + 1))
        a("s_mov_b64 s[58:59], exec")
        a("s_mov_b64 exec, %s" % FMASK)
        a("global_store_dwordx2 v%d, %s, s[4:5] sc1" % (t[0], vr(vtok, 2)))
        a("s_mov_b64 exec, s[58:59]")
        a.label(Lf)
    else:
        a("s_waitcnt vmcnt(0)") if (STAMPS or SPAN) else None
    stamp(a, 5, s_wave, kidx, tmp_v=vst)
    return vmax, lds

def fused_kernel(a, name, kinds):
    kernel_header(a, name)
    Lend = a.newlabel("Lend")
    a("s_cmp_ge_u32 s2, 256")
    a("s_cbranch_scc1 %s" % Lend)
    a("s_load_dwordx2 s[4:5], s[0:1], %d" % KA_WS)
    a("s_load_dwordx2 s[8:9], s[0:1], %d" % KA_OUT)
    a("s_load_dwordx2 s[10:11], s[0:1], %d" % KA_X)
    a("s_load_dwordx2 s[64:65], s[0:1], %d" % KA_WO)
    a("s_load_dwordx2 s[66:67], s[0:1], %d" % KA_W1)
    a("s_load_dwordx2 s[68:69], s[0:1], %d" % KA_W2)
    a("s_load_dwordx2 s[70:71], s[0:1], %d" % KA_DBG)
    a("v_lshrrev_b32 v1, 6, v0")
    a("s_nop 0")
    a("v_readfirstlane_b32 s40, v1")
    a("s_waitcnt lgkmcnt(0)")
    vm = 0; lds = 0
    for i, k in enumerate(kinds):
        v, l = gemm_phase(a, k, i == 0, i == len(kinds) - 1)
        vm = max(vm, v); lds = max(lds, l)
    a.label(Lend)
    a("s_endpgm")
    return kernel_desc(name, vm, 80), L_TOK + 64


def mega_kernel(a, name):
    global MEGA
    MEGA = True
    if VB: from kqkvb import qkv_kernel
    else: from kqkv import qkv_kernel
    Lend = a.newlabel("Lend")
    vm, lds = qkv_kernel(a, name, mega=True, Lend_ext=Lend)
    a("s_load_dwordx2 s[8:9], s[0:1], %d" % KA_OUT)
    a("s_load_dwordx2 s[64:65], s[0:1], %d" % KA_WO)
    a("s_load_dwordx2 s[66:67], s[0:1], %d" % KA_W1)
    a("s_load_dwordx2 s[68:69], s[0:1], %d" % KA_W2)
    a("s_load_dwordx2 s[70:71], s[0:1], %d" % KA_DBG)
    a("s_waitcnt lgkmcnt(0)")
    kinds = ["wo", "w1", "w2"]
    for i, k in enumerate(kinds):
        v, l = gemm_phase(a, k, False, i == len(kinds) - 1)
        vm = max(vm, v); lds = max(lds, l)
    a.label(Lend)
    a("s_endpgm")
    return kernel_desc(name, 256, 90), max(lds, 147456)
```

```python
from common import *
from gemm import *
import os

L2E = 0x3fb8aa3b

def mfma_wait(a):
    a("s_nop 7"); a("s_nop 4")

def mf32(d, A, B, C):
    return "v_mfma_f32_32x32x16_bf16 %s, %s, %s, %s" % (vr(d, 16), vr(A, 4), vr(B, 4), C if isinstance(C, str) else vr(C, 16))

def cross32(a, op, x, t):
    a("v_mov_b32 v%d, v%d" % (t, x))
    a("s_nop 1")
    a("v_permlane32_swap_b32 v%d, v%d" % (t, x))
    a("%s v%d, v%d, v%d" % (op, x, x, t))

def softmax2(a, p, pos, neg, e, t, s_l2e):
    mx, mn, t0, t1, sp, sn, rp, rn = t[0:8]
    a("v_max3_f32 v%d, v%d, v%d, v%d" % (mx, p, p + 1, p + 2))
    a("v_min3_f32 v%d, v%d, v%d, v%d" % (mn, p, p + 1, p + 2))
    for i in range(3, 15, 2):
        a("v_max3_f32 v%d, v%d, v%d, v%d" % (mx, mx, p + i, p + i + 1))
        a("v_min3_f32 v%d, v%d, v%d, v%d" % (mn, mn, p + i, p + i + 1))
    a("v_max_f32 v%d, v%d, v%d" % (mx, mx, p + 15))
    a("v_min_f32 v%d, v%d, v%d" % (mn, mn, p + 15))
    a("v_mov_b32 v%d, v%d" % (t0, mx))
    a("v_mov_b32 v%d, v%d" % (t1, mn))
    a("s_nop 1")
    a("v_permlane32_swap_b32 v%d, v%d" % (t0, mx))
    a("v_permlane32_swap_b32 v%d, v%d" % (t1, mn))
    a("v_max_f32 v%d, v%d, v%d" % (mx, mx, t0))
    a("v_min_f32 v%d, v%d, v%d" % (mn, mn, t1))
    a("v_mul_f32 v%d, s%d, v%d" % (mx, s_l2e, mx))
    a("v_mul_f32 v%d, s%d, v%d" % (mn, s_l2e, mn))
    for (sign, out, ssum, rr) in ((+1, pos, sp, rp), (-1, neg, sn, rn)):
        for i in range(16):
            if sign > 0: a("v_fma_f32 v%d, v%d, s%d, -v%d" % (e + i, p + i, s_l2e, mx))
            else: a("v_fma_f32 v%d, -v%d, s%d, v%d" % (e + i, p + i, s_l2e, mn))
        for i in range(16):
            a("v_exp_f32 v%d, v%d" % (e + i, e + i))
        a("s_nop 0")
        a("v_add_f32 v%d, v%d, v%d" % (ssum, e, e + 1))
        a("v_add_f32 v%d, v%d, v%d" % (t0, e + 2, e + 3))
        for i in range(4, 16, 2):
            a("v_add_f32 v%d, v%d, v%d" % (ssum, ssum, e + i))
            a("v_add_f32 v%d, v%d, v%d" % (t0, t0, e + i + 1))
        a("v_add_f32 v%d, v%d, v%d" % (ssum, ssum, t0))
        cross32(a, "v_add_f32", ssum, t0)
        a("v_rcp_f32 v%d, v%d" % (rr, ssum))
        a("s_nop 0")
        for i in range(0, 16, 2):
            a("v_mul_f32 v%d, v%d, v%d" % (e + i, e + i, rr))
            a("v_mul_f32 v%d, v%d, v%d" % (e + i + 1, e + i + 1, rr))
            a("v_cvt_pk_bf16_f32 v%d, v%d, v%d" % (out + i // 2, e + i, e + i + 1))

def wave_reduce_add(a, xs, ts):
    for dpp in ("quad_perm:[1,0,3,2]", "quad_perm:[2,3,0,1]", "row_half_mirror", "row_mirror"):
        a("s_nop 1")
        for x, t in zip(xs, ts):
            a("v_add_f32_dpp v%d, v%d, v%d %s row_mask:0xf bank_mask:0xf" % (t, x, x, dpp))
        for x, t in zip(xs, ts):
            a("v_mov_b32 v%d, v%d" % (x, t))
    for sw in ("v_permlane16_swap_b32", "v_permlane32_swap_b32"):
        a("s_nop 1")
        for x, t in zip(xs, ts):
            a("%s v%d, v%d" % (sw, t, x))
        for x, t in zip(xs, ts):
            a("v_add_f32 v%d, v%d, v%d" % (x, x, t))
        for x, t in zip(xs, ts):
            a("v_mov_b32 v%d, v%d" % (t, x))

COLSUM_FN = None
FO = WS_FLAG + 196608
CSCNT_OFF = 128
def qkv_kernel(a, name, mega=False, Lend_ext=None):
    c = Cfg()
    c.BM, c.BN, c.K, c.lda, c.ldb, c.S = 256, 96, 1024, 2048, 6144, 3
    c.NS = 16; c.nA = 32; c.nB = 12; c.a_ins = 8; c.b_ins = 3; c.P = 12
    c.stage_bytes = 44 * 1024
    c.rotate = True
    c.colmode = "qkv"; c.swz = []
    set_rings(c, *[int(x) for x in os.environ.get("RING_qkv", "3,3").split(",")])
    c.srdA, c.srdB = 16, 20
    srdO, srdKV, srdW1 = 24, 28, 32
    s_wave, s_rb, s_h = 40, 41, 42
    c.s_p = 43
    c.s_slotA = c.s_cslotA = 45; c.s_ka = c.s_deltaA = 46; c.s_kb = c.s_deltaB = 47; c.s_mA = 48; c.s_mB = 49; c.s_i = 50; c.s_slotB = c.s_cslotB = 51
    c.st = [52, 53, 54, 55]
    s_l2e, s_ones = 56, 57
    ring = c.ring_bytes
    L_WPHI = ring
    L_CS = L_WPHI + 2048
    L_RS = L_CS + 3072
    L_NM = L_RS + 1024
    L_TOK = L_NM + 1024
    L_STAT = L_TOK + 64
    lds = L_STAT + 64
    assert lds <= 163840
    L_PK = 0
    PKP = 144
    L_RED = 36864
    L_KVF = L_RED + 4 * KVP_BYTES
    L_ZF = L_KVF + 4096
    accQ = [0, 16]; accK = [32, 48]; accV = [64, 80]
    F = [96, 116, 176, 196]
    vcs = [136, 137, 138]
    c.vX = [139, 140, 141, 142]; vW = 143
    c.v_lane = 144
    c.vt = [145 + i for i in range(8)]
    vtok = 154
    vst = 160
    vmax = 256

    kernel_header(a, name)
    Lend = Lend_ext if mega else a.newlabel("Lend")
    Ljoin = a.newlabel("Ljoin")
    SCM = " sc1" if mega else ""
    a("s_cmp_ge_u32 s2, 256")
    a("s_cbranch_scc1 %s" % Lend)
    a("s_load_dwordx2 s[4:5], s[0:1], %d" % KA_WS)
    a("s_load_dwordx2 s[6:7], s[0:1], %d" % KA_WQKV)
    a("s_load_dwordx2 s[8:9], s[0:1], %d" % KA_DBG)
    a("s_load_dwordx2 s[10:11], s[0:1], %d" % KA_X)
    a("s_load_dwordx2 s[14:15], s[0:1], %d" % KA_WPHI)
    a("s_load_dwordx2 s[64:65], s[0:1], %d" % KA_W1)
    a("s_load_dwordx2 s[66:67], s[0:1], %d" % KA_W2)
    a("s_load_dwordx2 s[68:69], s[0:1], %d" % KA_WO)
    a("v_and_b32 v%d, 63, v0" % c.v_lane)
    a("v_lshrrev_b32 v1, 6, v0")
    a("s_nop 0")
    a("v_readfirstlane_b32 s%d, v1" % s_wave)
    if "badmap" in os.environ.get("GDBG", ""):
        a("s_lshr_b32 s%d, s2, 5" % c.st[0])
        a("s_and_b32 s%d, s2, 31" % c.st[1])
    else:
        a("s_and_b32 s%d, s2, 7" % c.st[0])
        a("s_lshr_b32 s%d, s2, 3" % c.st[1])
    a("s_and_b32 s%d, s%d, 1" % (c.st[2], c.st[0]))
    a("s_lshl_b32 s%d, s%d, 2" % (s_rb, c.st[2]))
    a("s_and_b32 s%d, s%d, 3" % (c.st[2], c.st[1]))
    a("s_add_u32 s%d, s%d, s%d" % (s_rb, s_rb, c.st[2]))
    a("s_lshr_b32 s%d, s%d, 1" % (c.st[2], c.st[0]))
    a("s_lshl_b32 s%d, s%d, 3" % (s_h, c.st[2]))
    a("s_lshr_b32 s%d, s%d, 2" % (c.st[2], c.st[1]))
    a("s_add_u32 s%d, s%d, s%d" % (s_h, s_h, c.st[2]))
    rot = os.environ.get("K1ROT", "1")
    if rot == "1":
        a("s_lshl_b32 s%d, s%d, 1" % (c.st[2], c.st[0]))
        a("s_add_u32 s%d, s%d, s%d" % (c.st[2], c.st[2], c.st[1]))
        a("s_and_b32 s%d, s%d, 15" % (c.st[2], c.st[2]))
    elif rot == "2":
        a("s_lshr_b32 s%d, s%d, 2" % (c.st[2], c.st[1]))
        a("s_lshl_b32 s%d, s%d, 1" % (c.st[2], c.st[2]))
    elif rot == "3":
        a("s_and_b32 s%d, s%d, 3" % (c.st[2], c.st[1]))
        a("s_lshl_b32 s%d, s%d, 2" % (c.st[2], c.st[2]))
        a("s_bfe_u32 s%d, s%d, 0x20002" % (c.st[3], c.st[1]))
        a("s_add_u32 s%d, s%d, s%d" % (c.st[2], c.st[2], c.st[3]))
    elif rot == "4":
        a("s_lshl_b32 s%d, s%d, 1" % (c.st[2], c.st[0]))
    elif rot == "5":
        a("s_and_b32 s%d, s%d, 3" % (c.st[2], c.st[1]))
        a("s_lshl_b32 s%d, s%d, 1" % (c.st[2], c.st[2]))
        a("s_lshr_b32 s%d, s%d, 2" % (c.st[3], c.st[1]))
        a("s_add_u32 s%d, s%d, s%d" % (c.st[2], c.st[2], c.st[3]))
    else:
        a("s_mov_b32 s%d, 0" % c.st[2])
    a("s_lshl_b32 s%d, s%d, 7" % (c.s_ka, c.st[2]))
    a("s_mul_i32 s%d, s%d, %d" % (c.s_kb, c.st[2], 64 * c.ldb))
    a("s_mov_b32 s%d, 0x%x" % (s_l2e, L2E))
    a("s_mov_b32 s%d, 0x3f803f80" % s_ones)
    a("s_waitcnt lgkmcnt(0)")
    a("s_lshl_b32 s%d, s%d, 19" % (c.st[0], s_rb))
    a("s_add_u32 s12, s10, s%d" % c.st[0])
    a("s_addc_u32 s13, s11, 0")
    make_srd(a, c.srdA, "s12", "s13", 256 * 2048)
    a("s_lshl_b32 s%d, s%d, 6" % (c.st[0], s_h))
    a("s_add_u32 s12, s6, s%d" % c.st[0])
    a("s_addc_u32 s13, s7, 0")
    a("s_sub_u32 s%d, %d, s%d" % (c.st[1], 1024 * 6144, c.st[0]))
    make_srd(a, c.srdB, "s12", "s13", "s%d" % c.st[1])
    a("s_mul_i32 s%d, s%d, %d" % (c.st[1], s_rb, 256 * LD_O))
    a("s_add_u32 s%d, s%d, s%d" % (c.st[0], c.st[0], c.st[1]))
    a("s_add_u32 s12, s4, s%d" % c.st[0])
    a("s_addc_u32 s13, s5, 0")
    make_srd(a, srdO, "s12", "s13", 256 * LD_O - 0)
    a("s_mul_i32 s%d, s%d, %d" % (c.st[0], s_h, 8 * KVP_BYTES))
    a("s_add_u32 s%d, s%d, %d" % (c.st[0], c.st[0], WS_KVP))
    a("s_add_u32 s12, s4, s%d" % c.st[0])
    a("s_addc_u32 s13, s5, 0")
    make_srd(a, srdKV, "s12", "s13", 8 * KVP_BYTES)
    kidx = 0
    stamp(a, 0, s_wave, kidx, tmp_v=vst)
    Lcons = a.newlabel("Lconsumer")
    a("s_cmp_lt_u32 s%d, 4" % s_wave)
    a("s_cbranch_scc1 %s" % Lcons)

    if os.environ.get("PRIO_P"): a("s_setprio %s" % os.environ["PRIO_P"])
    a("s_sub_u32 s%d, s%d, 4" % (c.s_p, s_wave))
    vl = c.v_lane
    t = c.vt
    a("s_lshl_b32 s%d, s%d, 8" % (c.st[0], s_rb))
    a("s_lshl_b32 s%d, s%d, 3" % (c.st[1], s_h))
    a("s_add_u32 s%d, s%d, s%d" % (c.st[0], c.st[0], c.st[1]))
    a("s_lshl_b32 s%d, s%d, 1" % (c.st[1], c.s_p))
    a("s_add_u32 s74, s%d, s%d" % (c.st[0], c.st[1]))
    a("s_lshl_b32 s%d, s74, 11" % c.st[1])
    a("v_lshlrev_b32 v%d, 4, v%d" % (t[0], vl))
    a("v_add_u32 v%d, s%d, v%d" % (t[0], c.st[1], t[0]))
    a("global_load_dwordx4 v[64:67], v%d, s[10:11]" % t[0])
    a("global_load_dwordx4 v[68:71], v%d, s[10:11] offset:1024" % t[0])
    a("global_load_dwordx4 v[72:75], v%d, s[10:11] offset:2048" % t[0])
    a("global_load_dwordx4 v[76:79], v%d, s[10:11] offset:3072" % t[0])
    emit_producer_setup(a, c, 32)
    stamp(a, 1, s_wave, kidx, tmp_v=vst)
    def prod_hook():
        Lhk = a.newlabel("Lhook")
        a("s_cmp_lg_u32 s%d, 0" % c.s_i)
        a("s_cbranch_scc1 %s" % Lhk)
        raw = 64; fp = 80
        for r in range(2):
            for q in range(8):
                a("v_lshlrev_b32 v%d, 16, v%d" % (fp + 16 * r + 2 * q, raw + 8 * r + q))
                a("v_and_b32 v%d, 0xffff0000, v%d" % (fp + 16 * r + 2 * q + 1, raw + 8 * r + q))
        sm = [112, 113]; tm_ = [114, 115]
        for r in range(2):
            a("v_add_f32 v%d, v%d, v%d" % (sm[r], fp + 16 * r, fp + 16 * r + 1))
            a("v_add_f32 v%d, v%d, v%d" % (tm_[r], fp + 16 * r + 2, fp + 16 * r + 3))
        for q in range(4, 16, 2):
            for r in range(2):
                a("v_add_f32 v%d, v%d, v%d" % (sm[r], sm[r], fp + 16 * r + q))
                a("v_add_f32 v%d, v%d, v%d" % (tm_[r], tm_[r], fp + 16 * r + q + 1))
        for r in range(2):
            a("v_add_f32 v%d, v%d, v%d" % (sm[r], sm[r], tm_[r]))
        wave_reduce_add(a, sm, tm_)
        for r in range(2):
            a("v_mul_f32 v%d, 0x3a800000, v%d" % (sm[r], sm[r]))
        sq = [116, 117]
        for r in range(2):
            for q in range(16):
                a("v_sub_f32 v%d, v%d, v%d" % (fp + 16 * r + q, fp + 16 * r + q, sm[r]))
        for r in range(2):
            a("v_mul_f32 v%d, v%d, v%d" % (sq[r], fp + 16 * r, fp + 16 * r))
            a("v_mul_f32 v%d, v%d, v%d" % (tm_[r], fp + 16 * r + 1, fp + 16 * r + 1))
        for q in range(2, 16, 2):
            for r in range(2):
                a("v_fmac_f32 v%d, v%d, v%d" % (sq[r], fp + 16 * r + q, fp + 16 * r + q))
                a("v_fmac_f32 v%d, v%d, v%d" % (tm_[r], fp + 16 * r + q + 1, fp + 16 * r + q + 1))
        for r in range(2):
            a("v_add_f32 v%d, v%d, v%d" % (sq[r], sq[r], tm_[r]))
        wave_reduce_add(a, sq, tm_)
        def rb(x):
            a("v_cvt_pk_bf16_f32 v%d, v%d, v%d" % (x, x, x))
            a("v_lshlrev_b32 v%d, 16, v%d" % (x, x))
        for r in range(2):
            a("v_mul_f32 v%d, 0x3a800000, v%d" % (sq[r], sq[r]))
            rb(sq[r])
            a("v_add_f32 v%d, 0x3727c5ac, v%d" % (sq[r], sq[r]))
            rb(sq[r])
            a("v_sqrt_f32 v%d, v%d" % (sq[r], sq[r]))
            a("s_nop 0")
            rb(sq[r])
            a("v_rcp_f32 v%d, v%d" % (118 + r, sq[r]))
            rb(sm[r])
        a("s_nop 0")
        for r in range(2):
            a("v_mul_f32 v%d, v%d, v%d" % (120 + r, sm[r], 118 + r))
            a("v_sub_f32 v%d, 0, v%d" % (120 + r, 120 + r))
        a("s_lshl_b32 s%d, s%d, 3" % (c.st[0], c.s_p))
        a("s_add_u32 s%d, s%d, %d" % (c.st[0], c.st[0], L_STAT))
        a("v_mov_b32 v%d, s%d" % (t[0], c.st[0]))
        a("s_mov_b64 s[58:59], exec")
        a("s_mov_b64 exec, 1")
        a("ds_write_b64 v%d, v[118:119]" % t[0])
        a("ds_write_b64 v%d, v[120:121] offset:32" % t[0])
        a("s_mov_b64 exec, s[58:59]")
        Lt = a.newlabel("Ltok")
        a("s_cmp_lg_u32 s%d, 4" % s_wave)
        a("s_cbranch_scc1 %s" % Lt)
        a("v_lshlrev_b32 v%d, 4, v%d" % (t[1], vl))
        a("s_lshl_b32 s%d, s%d, 11" % (c.st[0], s_h))
        a("s_add_u32 s12, s14, s%d" % c.st[0])
        a("s_addc_u32 s13, s15, 0")
        make_srd(a, srdW1, "s12", "s13", 2048)
        a("s_mov_b32 m0, %d" % L_WPHI)
        a("s_nop 0")
        a("buffer_load_dwordx4 v%d, s[%d:%d], 0 offen lds" % (t[1], srdW1, srdW1 + 3))
        a("s_nop 0")
        a("buffer_load_dwordx4 v%d, s[%d:%d], 0 offen offset:1024 lds" % (t[1], srdW1, srdW1 + 3))
        a.label(Lt)
        a("s_waitcnt lgkmcnt(0)")
        a.label(Lhk)
        Lq = a.newlabel("Lq"); Lq2 = a.newlabel("Lq2")
        a("s_cmp_lg_u32 s%d, 4" % s_wave)
        a("s_cbranch_scc1 %s" % Lq2)
        a("s_cmp_lg_u32 s%d, 9" % c.s_i)
        a("s_cbranch_scc1 %s" % Lq)
        a("s_load_dwordx2 s[78:79], s[8:9], 0")
        a("s_lshl_b32 s%d, s%d, 2" % (c.st[0], s_rb))
        a("s_add_u32 s%d, s%d, 16" % (c.st[0], c.st[0]))
        a("s_load_dword s80, s[8:9], s%d" % c.st[0])
        a.label(Lq)
        a("s_cmp_lg_u32 s%d, 11" % c.s_i)
        a("s_cbranch_scc1 %s" % Lq2)
        a("s_waitcnt lgkmcnt(0)")
        a("s_cmp_lt_u32 s80, 32")
        a("s_cbranch_scc1 %s" % Lq2)
        emit_stats_loads()
        a("s_mov_b32 s73, 1")
        a.label(Lq2)
    vSt = 124
    def emit_stats_loads():
        a("s_lshl_b32 s%d, s%d, 10" % (c.st[0], s_rb))
        a("s_add_u32 s%d, s%d, %d" % (c.st[0], c.st[0], WS_ST1))
        a("v_lshlrev_b32 v%d, 4, v%d" % (t[6], vl))
        a("v_add_u32 v%d, s%d, v%d" % (t[6], c.st[0], t[6]))
        a("global_load_dwordx4 %s, v%d, s[4:5] sc1" % (vr(vSt, 4), t[6]))
        a("v_add_u32 v%d, 8192, v%d" % (t[6], t[6]))
        a("global_load_dwordx4 %s, v%d, s[4:5] sc1" % (vr(vSt + 4, 4), t[6]))
    a("s_mov_b32 s73, 0")
    a("s_mov_b32 s78, 0")
    a("s_mov_b32 s79, 0")
    c.prod_iter_hook = prod_hook
    emit_producer_loop(a, c)
    stamp(a, 2, s_wave, kidx, tmp_v=vst)
    vl = c.v_lane
    t = c.vt
    Le = a.newlabel("Lesync"); Lg = a.newlabel("Lgot"); Ltk = a.newlabel("Ltokok")
    a("s_cmp_lg_u32 s%d, 4" % s_wave)
    a("s_cbranch_scc1 %s" % Le)
    a("s_cmp_eq_u32 s73, 1")
    a("s_cbranch_scc1 %s" % Lg)
    a("s_lshl_b32 s%d, s%d, 2" % (c.st[0], s_rb))
    a("s_add_u32 s%d, s%d, 16" % (c.st[0], c.st[0]))
    a("v_mov_b32 v%d, s%d" % (t[4], c.st[0]))
    Lp = a.newlabel("Lpoll"); Lpd = a.newlabel("Lpolld")
    a("s_mov_b32 s75, 0")
    a.label(Lp)
    a("global_load_dword v%d, v%d, s[8:9] sc1" % (t[5], t[4]))
    a("s_waitcnt vmcnt(0)")
    a("v_readfirstlane_b32 s%d, v%d" % (c.st[1], t[5]))
    a("s_cmp_ge_u32 s%d, 32" % c.st[1])
    a("s_cbranch_scc1 %s" % Lpd)
    a("s_add_u32 s75, s75, 1")
    a("s_cmp_gt_u32 s75, 0x40000")
    a("s_cbranch_scc1 %s" % Lpd)
    a("s_sleep 2")
    a("s_branch %s" % Lp)
    a.label(Lpd)
    emit_stats_loads()
    a.label(Lg)
    a("s_waitcnt lgkmcnt(0)")
    a("v_mov_b32 v%d, s78" % vtok)
    a("v_mov_b32 v%d, s79" % (vtok + 1))
    Ltp = a.newlabel("Ltp")
    a("s_mov_b32 s75, 0")
    a.label(Ltp)
    a("v_cmp_ne_u64 vcc, 0, %s" % vr(vtok, 2))
    a("s_nop 4")
    a("s_cmp_eq_u64 vcc, exec")
    a("s_cbranch_scc1 %s" % Ltk)
    a("s_add_u32 s75, s75, 1")
    a("s_cmp_gt_u32 s75, 0x40000")
    a("s_cbranch_scc1 %s" % Ltk)
    a("v_mov_b32 v%d, 0" % t[4])
    a("global_load_dwordx2 %s, v%d, s[8:9] sc1" % (vr(vtok, 2), t[4]))
    a("s_waitcnt vmcnt(0)")
    a("s_branch %s" % Ltp)
    a.label(Ltk)
    a("v_mov_b32 v%d, %d" % (t[4], L_TOK))
    a("ds_write_b64 v%d, %s" % (t[4], vr(vtok, 2)))
    a("v_lshlrev_b32 v%d, 4, v%d" % (t[4], vl))
    a("v_add_u32 v%d, %d, v%d" % (t[4], L_RS, t[4]))
    a("s_waitcnt vmcnt(0)")
    a("ds_write_b128 v%d, %s" % (t[4], vr(vSt, 4)))
    a("ds_write_b128 v%d, %s offset:1024" % (t[4], vr(vSt + 4, 4)))
    a("s_waitcnt lgkmcnt(0)")
    a.label(Le)
    Lpfr = a.newlabel("Lpfrole")
    a("s_cmp_ge_u32 s%d, 6" % s_wave)
    a("s_cbranch_scc1 %s" % Lpfr)
    a("s_barrier")
    a("s_barrier")
    a("s_barrier")
    stamp(a, 3, s_wave, kidx, tmp_v=vst)
    a("v_mov_b32 v%d, %d" % (t[0], L_TOK))
    a("ds_read_b64 v[40:41], v%d" % t[0])
    a("s_lshl_b32 s%d, s%d, %d" % (c.st[0], s_h, 7 if FS_LG == 3 else 3 + FS_LG))
    a("s_add_u32 s%d, s%d, %d" % (c.st[0], c.st[0], WS_FLAG))
    a("v_and_b32 v%d, 7, v%d" % (t[0], vl))
    a("v_lshlrev_b32 v%d, %d, v%d" % (t[0], FS_LG, t[0]))
    a("v_add_u32 v%d, s%d, v%d" % (t[0], c.st[0], t[0]))
    a("s_waitcnt lgkmcnt(0)")
    Lp = a.newlabel("Lpoll2"); Lpd = a.newlabel("Lpoll2d")
    a("s_mov_b32 s75, 0")
    a.label(Lp)
    a("global_load_dwordx2 v[42:43], v%d, s[4:5] sc1" % t[0])
    a("s_waitcnt vmcnt(0)")
    a("v_cmp_eq_u64 vcc, v[40:41], v[42:43]")
    a("s_nop 4")
    a("s_cmp_eq_u64 vcc, exec")
    a("s_cbranch_scc1 %s" % Lpd)
    a("s_add_u32 s75, s75, 1")
    a("s_cmp_gt_u32 s75, 0x40000")
    a("s_cbranch_scc1 %s" % Lpd)
    a("s_branch %s" % Lp)
    a.label(Lpd)
    stamp(a, 4, s_wave, kidx, tmp_v=vst)
    a("s_lshl_b32 s%d, s%d, 12" % (c.st[0], c.s_p))
    a("v_lshlrev_b32 v%d, 4, v%d" % (t[0], vl))
    a("v_add_u32 v%d, s%d, v%d" % (t[0], c.st[0], t[0]))
    vZ = 40
    a("v_lshlrev_b32 v%d, 4, v%d" % (t[1], vl))
    a("v_add_u32 v%d, 8192, v%d" % (t[1], t[1]))
    a("v_cmp_gt_u32 vcc, 16, v%d" % vl)
    a("v_mov_b32 v%d, 0x7fffffff" % t[2])
    a("s_nop 0")
    a("v_cndmask_b32 v%d, v%d, v%d, vcc" % (t[1], t[2], t[1]))
    vKa = [72, 164]
    def kreg(rbi, bb): return vKa[rbi // 4] + 16 * (rbi % 4) + 4 * bb
    for rbi in range(8):
        a("s_mov_b32 s%d, %d" % (c.st[1], rbi * KVP_BYTES))
        for bb in range(4):
            a("buffer_load_dwordx4 %s, v%d, s[%d:%d], s%d offen offset:%d sc1" % (vr(kreg(rbi, bb), 4), t[0], srdKV, srdKV + 3, c.st[1], bb * 1024))
    for rbi in range(8):
        a("s_mov_b32 s%d, %d" % (c.st[1], rbi * KVP_BYTES))
        a("buffer_load_dwordx4 %s, v%d, s[%d:%d], s%d offen sc1" % (vr(vZ + 4 * rbi, 4), t[1], srdKV, srdKV + 3, c.st[1]))
    for rbi in range(1, 8):
        a("s_waitcnt vmcnt(%d)" % (8 + 4 * (7 - rbi)))
        for q in range(0, 16, 2):
            a("v_pk_add_f32 %s, %s, %s" % (vr(vKa[0] + q, 2), vr(vKa[0] + q, 2), vr(kreg(rbi, 0) + q, 2)))
    ko = 228
    for bb in range(4):
        a("v_cvt_pk_bf16_f32 v%d, v%d, v%d" % (ko + 2 * bb, vKa[0] + 4 * bb, vKa[0] + 4 * bb + 1))
        a("v_cvt_pk_bf16_f32 v%d, v%d, v%d" % (ko + 2 * bb + 1, vKa[0] + 4 * bb + 2, vKa[0] + 4 * bb + 3))
    a("s_lshl_b32 s%d, s%d, 11" % (c.st[0], c.s_p))
    a("s_add_u32 s%d, s%d, %d" % (c.st[0], c.st[0], L_KVF))
    a("v_lshlrev_b32 v%d, 4, v%d" % (t[0], vl))
    a("v_add_u32 v%d, s%d, v%d" % (t[0], c.st[0], t[0]))
    a("ds_write_b128 v%d, %s" % (t[0], vr(ko, 4)))
    a("ds_write_b128 v%d, %s offset:1024" % (t[0], vr(ko + 4, 4)))
    a("s_waitcnt vmcnt(0)")
    for rbi in range(1, 8):
        for q in range(0, 4, 2):
            a("v_pk_add_f32 %s, %s, %s" % (vr(vZ + q, 2), vr(vZ + q, 2), vr(vZ + 4 * rbi + q, 2)))
    a("v_cvt_pk_bf16_f32 v%d, v%d, v%d" % (vZ + 4, vZ, vZ + 1))
    a("v_cvt_pk_bf16_f32 v%d, v%d, v%d" % (vZ + 5, vZ + 2, vZ + 3))
    a("v_lshrrev_b32 v%d, 2, v%d" % (t[0], vl))
    a("v_lshlrev_b32 v%d, 5, v%d" % (t[0], t[0]))
    a("v_and_b32 v%d, 1, v%d" % (t[1], vl))
    a("v_lshl_add_u32 v%d, v%d, 4, v%d" % (t[0], t[1], t[0]))
    a("v_bfe_u32 v%d, v%d, 1, 1" % (t[1], vl))
    a("v_lshl_add_u32 v%d, v%d, 3, v%d" % (t[0], t[1], t[0]))
    a("v_add_u32 v%d, %d, v%d" % (t[0], L_ZF, t[0]))
    a("v_cmp_gt_u32 vcc, 16, v%d" % vl)
    a("s_and_saveexec_b64 s[58:59], vcc")
    a("ds_write_b64 v%d, %s" % (t[0], vr(vZ + 4, 2)))
    a("s_mov_b64 exec, s[58:59]")
    a("s_waitcnt lgkmcnt(0)")
    a("s_barrier")
    stamp(a, 5, s_wave, kidx, tmp_v=vst)
    a("s_branch %s" % (Ljoin if mega else Lend))

    a.label(Lpfr)
    a("s_lshl_b32 s72, s2, 1")
    a("s_add_u32 s72, s72, s%d" % s_wave)
    a("s_sub_u32 s72, s72, 6")
    make_srd(a, srdW1, "s64", "s65", 1024 * 7168)
    a("s_barrier")
    vP = 164
    mul, sh = magic_div(56, 1024)
    for un in range(2):
        a("s_lshl_b32 s%d, s72, 1" % c.st[0])
        if un: a("s_add_u32 s%d, s%d, 1" % (c.st[0], c.st[0]))
        a("s_mul_i32 s%d, s%d, %d" % (c.st[1], c.st[0], mul))
        a("s_lshr_b32 s%d, s%d, %d" % (76 + 2 * un, c.st[1], sh))
        a("s_mul_i32 s%d, s%d, 56" % (c.st[2], 76 + 2 * un))
        a("s_sub_u32 s%d, s%d, s%d" % (77 + 2 * un, c.st[0], c.st[2]))
        a("s_lshl_b32 s%d, s%d, 6" % (c.st[3], 76 + 2 * un))
        a("v_lshrrev_b32 v%d, 3, v%d" % (t[0], vl))
        a("v_add_u32 v%d, s%d, v%d" % (t[0], c.st[3], t[0]))
        a("s_mov_b32 s%d, 7168" % c.st[3])
        a("v_mul_lo_u32 v%d, v%d, s%d" % (t[0], t[0], c.st[3]))
        a("v_and_b32 v%d, 7, v%d" % (t[1], vl))
        a("v_lshlrev_b32 v%d, 4, v%d" % (t[1], t[1]))
        a("s_lshl_b32 s%d, s%d, 7" % (c.st[3], 77 + 2 * un))
        a("v_add3_u32 v%d, v%d, v%d, s%d" % (60 + un, t[0], t[1], c.st[3]))
        for j in range(8):
            a("s_mov_b32 s%d, %d" % (c.st[3], j * 8 * 7168))
            a("buffer_load_dwordx4 %s, v%d, s[%d:%d], s%d offen" % (vr(vP + 32 * un + 4 * j, 4), 60 + un, srdW1, srdW1 + 3, c.st[3]))
    a("s_barrier")
    a("s_barrier")
    if "nopf" not in os.environ.get("GDBG", ""):
        a("v_lshlrev_b32 v62, 4, v%d" % vl)
        a("s_lshl_b32 s%d, s72, 12" % c.st[3])
        a("v_add_u32 v63, s%d, v62" % c.st[3])
        for j in range(4):
            a("global_load_dwordx4 v[%d:%d], v63, s[68:69] offset:%d" % (228 + 4 * (j % 4), 231 + 4 * (j % 4), j * 1024))
        a("s_mul_i32 s%d, s72, 14336" % c.st[3])
        a("v_add_u32 v63, s%d, v62" % c.st[3])
        for j in range(0 if mega else 14):
            if j and j % 4 == 0: a("v_add_u32 v63, 4096, v63")
            a("global_load_dwordx4 v[%d:%d], v63, s[66:67] offset:%d" % (236 + 4 * (j % 4), 239 + 4 * (j % 4), (j % 4) * 1024))
    a("s_barrier")
    def emit_colsum(t, vl, st):
        for un in range(2):
            Lskip = a.newlabel("Lskipcs")
            a("s_cmp_ge_u32 s%d, 16" % (76 + 2 * un))
            a("s_cbranch_scc1 %s" % Lskip)
            vS = 124
            for j in range(8):
                for q in range(4):
                    src = vP + 32 * un + 4 * j + q
                    a("v_lshlrev_b32 v%d, 16, v%d" % (t[0], src))
                    a("v_and_b32 v%d, 0xffff0000, v%d" % (t[1], src))
                    if j == 0:
                        a("v_mov_b32 v%d, v%d" % (vS + 2 * q, t[0]))
                        a("v_mov_b32 v%d, v%d" % (vS + 2 * q + 1, t[1]))
                    else:
                        a("v_add_f32 v%d, v%d, v%d" % (vS + 2 * q, vS + 2 * q, t[0]))
                        a("v_add_f32 v%d, v%d, v%d" % (vS + 2 * q + 1, vS + 2 * q + 1, t[1]))
            xs = [vS + i for i in range(8)]; ts_ = [132 + i for i in range(8)]
            a("s_nop 1")
            for x, tt in zip(xs, ts_):
                a("v_add_f32_dpp v%d, v%d, v%d row_ror:8 row_mask:0xf bank_mask:0xf" % (tt, x, x))
            for x, tt in zip(xs, ts_):
                a("v_mov_b32 v%d, v%d" % (x, tt))
            for sw in ("v_permlane16_swap_b32", "v_permlane32_swap_b32"):
                a("s_nop 1")
                for x, tt in zip(xs, ts_):
                    a("%s v%d, v%d" % (sw, tt, x))
                for x, tt in zip(xs, ts_):
                    a("v_add_f32 v%d, v%d, v%d" % (x, x, tt))
                for x, tt in zip(xs, ts_):
                    a("v_mov_b32 v%d, v%d" % (tt, x))
            a("s_mul_i32 s%d, s%d, %d" % (st[0], 76 + 2 * un, 3584 * 4))
            a("s_lshl_b32 s%d, s%d, 8" % (st[1], 77 + 2 * un))
            a("s_add_u32 s%d, s%d, s%d" % (st[0], st[0], st[1]))
            a("s_add_u32 s%d, s%d, %d" % (st[0], st[0], WS_CS1))
            a("v_and_b32 v%d, 7, v%d" % (t[0], vl))
            a("v_lshlrev_b32 v%d, 5, v%d" % (t[0], t[0]))
            a("v_bfe_u32 v%d, v%d, 3, 1" % (t[1], vl))
            a("v_lshl_add_u32 v%d, v%d, 4, v%d" % (t[0], t[1], t[0]))
            a("v_add_u32 v%d, s%d, v%d" % (t[0], st[0], t[0]))
            a("v_cmp_eq_u32 vcc, 1, v%d" % t[1])
            a("s_nop 1")
            for q in range(4):
                a("v_cndmask_b32 v%d, v%d, v%d, vcc" % (vS + q, vS + q, vS + 4 + q))
            a("s_mov_b64 s[58:59], exec")
            a("s_mov_b64 exec, 0xffff")
            a("global_store_dwordx4 v%d, %s, s[4:5]%s" % (t[0], vr(vS, 4), SCM))
            a("s_mov_b64 exec, s[58:59]")
            a.label(Lskip)

    if mega:
        global COLSUM_FN
        COLSUM_FN = emit_colsum
    else:
        a("s_waitcnt vmcnt(%d)" % (0 if "nopf" in os.environ.get("GDBG", "") else 18))
        emit_colsum(t, vl, c.st)
    a("s_branch %s" % (Ljoin if mega else Lend))

    a.label(Lcons)
    if os.environ.get("PRIO_C"): a("s_setprio %s" % os.environ["PRIO_C"])
    vl = c.v_lane
    t = c.vt
    Lt0 = a.newlabel("Ltok0")
    a("s_or_b32 s58, s2, s%d" % s_wave)
    a("s_cmp_lg_u32 s58, 0")
    a("s_cbranch_scc1 %s" % Lt0)
    a("s_memrealtime s[58:59]")
    a("s_waitcnt lgkmcnt(0)")
    a("s_or_b32 s58, s58, 1")
    a("v_mov_b32 v%d, s58" % vtok)
    a("v_mov_b32 v%d, s59" % (vtok + 1))
    a("v_mov_b32 v%d, 0" % t[0])
    a("s_mov_b64 s[58:59], exec")
    a("s_mov_b64 exec, 1")
    a("global_store_dwordx2 v%d, %s, s[8:9] sc1" % (t[0], vr(vtok, 2)))
    a("s_mov_b64 exec, s[58:59]")
    a.label(Lt0)
    a("v_and_b32 v%d, 31, v%d" % (t[0], vl))
    a("v_lshrrev_b32 v%d, 5, v%d" % (t[1], vl))
    a("v_bfe_u32 v%d, v%d, 1, 3" % (t[2], t[0]))
    a("s_lshl_b32 s%d, s%d, 6" % (c.st[2], s_wave))
    a("v_add_u32 v%d, s%d, v%d" % (t[3], c.st[2], t[0]))
    a("v_lshlrev_b32 v%d, 7, v%d" % (t[3], t[3]))
    for stp in range(4):
        a("v_add_u32 v%d, %d, v%d" % (t[4], 2 * stp, t[1]))
        a("v_xor_b32 v%d, v%d, v%d" % (t[4], t[4], t[2]))
        a("v_lshl_add_u32 v%d, v%d, 4, v%d" % (c.vX[stp], t[4], t[3]))
    a("v_lshrrev_b32 v%d, 4, v%d" % (t[0], vl))
    a("v_and_b32 v%d, 15, v%d" % (t[1], vl))
    a("v_lshrrev_b32 v%d, 2, v%d" % (t[2], t[1]))
    a("v_lshrrev_b32 v%d, 1, v%d" % (t[3], t[0]))
    a("v_lshl_add_u32 v%d, v%d, 3, v%d" % (t[2], t[3], t[2]))
    a("v_mul_u32_u24 v%d, 192, v%d" % (t[2], t[2]))
    a("v_and_b32 v%d, 1, v%d" % (t[0], t[0]))
    a("v_lshl_add_u32 v%d, v%d, 5, v%d" % (t[2], t[0], t[2]))
    a("v_and_b32 v%d, 3, v%d" % (t[1], t[1]))
    a("v_lshl_add_u32 v%d, v%d, 3, v%d" % (t[2], t[1], t[2]))
    a("v_add_u32 v%d, %d, v%d" % (vW, c.Bbase, t[2]))
    stamp(a, 1, s_wave, kidx, tmp_v=vst)
    stamp(a, 6, s_wave, kidx, tmp_v=vst)
    for i in range(96): a("v_mov_b32 v%d, 0" % i)
    for u in range(3): a("v_mov_b32 v%d, 0" % vcs[u])
    a("s_mov_b32 s%d, 0" % c.s_cslotA)
    a("s_mov_b32 s%d, 0" % c.s_cslotB)
    a("s_mov_b32 s%d, 0" % c.s_i)
    a("s_waitcnt lgkmcnt(0)")
    def reads(buf, stp):
        r = []
        fb = F[buf]
        W = lambda u, hf: "ds_read_b64_tr_b16 %s, v%d offset:%d" % (vr(fb + 8 + 4 * u + 2 * hf, 2), vW, (16 * stp + 4 * hf) * 192 + u * 64)
        X = lambda st: "ds_read_b128 %s, v%d offset:%d" % (vr(fb + 4 * st, 4), c.vX[stp], st * 4096)
        if "noread" in DBG: return []
        return [W(0, 0), W(0, 1), X(0), W(1, 0), W(1, 1), X(1), W(2, 0), W(2, 1)]
    def mfmas(buf):
        fb = F[buf]
        X = lambda st: fb + 4 * st
        W = lambda u: fb + 8 + 4 * u
        if "nomfma" in DBG: return ["s_nop 0"] * 6
        return [mf32(accQ[0], W(0), X(0), accQ[0]), mf32(accK[0], W(1), X(0), accK[0]), mf32(accQ[1], W(0), X(1), accQ[1]),
                mf32(accK[1], W(1), X(1), accK[1]), mf32(accV[0], X(0), W(2), accV[0]), mf32(accV[1], X(1), W(2), accV[1])]
    def csops(buf, w):
        fb = F[buf]
        o = []
        if "nocs" in DBG: return []
        for u in range(3):
            src = fb + 8 + 4 * u + w
            tt = t[2 * (u % 2)]
            o.append("v_lshlrev_b32 v%d, 16, v%d" % (tt, src))
            o.append("v_and_b32 v%d, 0xffff0000, v%d" % (tt + 1, src))
            o.append("v_add_f32 v%d, v%d, v%d" % (vcs[u], vcs[u], tt))
            o.append("v_add_f32 v%d, v%d, v%d" % (vcs[u], vcs[u], tt + 1))
        return o
    def step(mf, rd, cs):
        ri = ci = 0
        for i, m in enumerate(mf):
            a(m)
            for _ in range(3):
                if ri < len(rd): a(rd[ri]); ri += 1
            for _ in range(2 if i < 3 else 3):
                if ci < len(cs): a(cs[ci]); ci += 1
        while ri < len(rd): a(rd[ri]); ri += 1
        while ci < len(cs): a(cs[ci]); ci += 1
    Lafter = a.newlabel("Lafter")
    Lw = [a.newlabel("Lw") for _ in range(4)]
    for w in range(1, 4):
        a("s_cmp_eq_u32 s%d, %d" % (s_wave, w))
        a("s_cbranch_scc1 %s" % Lw[w])
    for w in range(4):
        a.label(Lw[w])
        a("s_barrier")
        for r in reads(0, 0): a(r)
        for r in reads(1, 1): a(r)
        L = a.newlabel("Lk1")
        a.label(L)
        for stp in range(2):
            a("s_waitcnt lgkmcnt(8)")
            step(mfmas(stp), reads(stp + 2, stp + 2), csops(stp, w))
        a("s_waitcnt lgkmcnt(0)")
        a("s_barrier")
        emit_addr_advance(a, c, [c.vX[0], c.vX[1], c.vX[2], c.vX[3]], [vW])
        if w == 0:
            La = a.newlabel("Lh1"); Lb = a.newlabel("Lh2")
            a("s_cmp_lg_u32 s%d, 1" % c.s_i)
            a("s_cbranch_scc1 %s" % La)
            a("v_lshlrev_b32 v%d, 2, v%d" % (vst + 4, vl))
            a("v_add_u32 v%d, %d, v%d" % (vst + 5, L_STAT, vst + 4))
            a("ds_read_b32 v%d, v%d" % (vst + 6, vst + 5))
            a("ds_read_b32 v%d, v%d offset:32" % (vst + 7, vst + 5))
            a("s_lshl_b32 s%d, s%d, 8" % (c.st[0], s_rb))
            a("s_lshl_b32 s%d, s%d, 3" % (c.st[1], s_h))
            a("s_add_u32 s%d, s%d, s%d" % (c.st[0], c.st[0], c.st[1]))
            a("s_lshl_b32 s%d, s%d, 2" % (c.st[0], c.st[0]))
            a("s_add_u32 s%d, s%d, %d" % (c.st[0], c.st[0], WS_ST1))
            a("v_add_u32 v%d, s%d, v%d" % (vst + 4, c.st[0], vst + 4))
            a("v_add_u32 v%d, 8192, v%d" % (vst + 5, vst + 4))
            a("s_waitcnt lgkmcnt(0)")
            a("s_mov_b64 s[58:59], exec")
            a("s_mov_b64 exec, 0xff")
            a("global_store_dword v%d, v%d, s[4:5] sc1" % (vst + 4, vst + 6))
            a("global_store_dword v%d, v%d, s[4:5] sc1" % (vst + 5, vst + 7))
            a("s_mov_b64 exec, s[58:59]")
            a.label(La)
            a("s_cmp_lg_u32 s%d, 5" % c.s_i)
            a("s_cbranch_scc1 %s" % Lb)
            a("s_waitcnt vmcnt(0)")
            a("s_lshl_b32 s%d, s%d, 2" % (c.st[0], s_rb))
            a("s_add_u32 s%d, s%d, 16" % (c.st[0], c.st[0]))
            a("v_mov_b32 v%d, s%d" % (vst + 4, c.st[0]))
            a("v_mov_b32 v%d, 1" % (vst + 5))
            a("s_mov_b64 s[58:59], exec")
            a("s_mov_b64 exec, 1")
            a("global_atomic_add v%d, v%d, s[8:9]" % (vst + 4, vst + 5))
            a("s_mov_b64 exec, s[58:59]")
            a.label(Lb)
        step(mfmas(2), reads(0, 0), csops(2, w))
        a("s_nop 0")
        step(mfmas(3), reads(1, 1), csops(3, w))
        a("s_add_u32 s%d, s%d, 1" % (c.s_i, c.s_i))
        a("s_cmp_lt_u32 s%d, %d" % (c.s_i, c.NS - 1))
        a("s_cbranch_scc1 %s" % L)
        for stp in range(2):
            a("s_waitcnt lgkmcnt(8)")
            step(mfmas(stp), reads(stp + 2, stp + 2), csops(stp, w))
        a("s_waitcnt lgkmcnt(8)")
        step(mfmas(2), [], csops(2, w))
        a("s_waitcnt lgkmcnt(0)")
        step(mfmas(3), [], csops(3, w))
        if w < 3: a("s_branch %s" % Lafter)
    a.label(Lafter)
    stamp(a, 7, s_wave, kidx, tmp_v=vst)
    stamp(a, 2, s_wave, kidx, tmp_v=vst)
    for u in range(3):
        a("v_mov_b32 v%d, v%d" % (t[1 + u], vcs[u]))
    a("s_nop 1")
    for u in range(3):
        a("v_permlane32_swap_b32 v%d, v%d" % (t[1 + u], vcs[u]))
    for u in range(3):
        a("v_add_f32 v%d, v%d, v%d" % (vcs[u], vcs[u], t[1 + u]))
    a("v_and_b32 v%d, 31, v%d" % (t[0], vl))
    a("v_lshlrev_b32 v%d, 2, v%d" % (t[0], t[0]))
    a("v_add_u32 v%d, %d, v%d" % (t[0], L_CS, t[0]))
    a("s_mul_i32 s%d, s%d, 384" % (c.st[0], s_wave))
    a("v_add_u32 v%d, s%d, v%d" % (t[1], c.st[0], t[0]))
    for u in range(3):
        a("ds_write_b32 v%d, v%d offset:%d" % (t[1], vcs[u], u * 128))
    a("s_waitcnt lgkmcnt(0)")
    a("s_barrier")
    stamp(a, 8, s_wave, kidx, tmp_v=156)
    csQ, csK = 96, 112
    rsL, nmL = [128, 130], [132, 134]
    csV = 136
    wph = 164
    kb = 172
    pD = 180
    eT = 196
    pos, neg = 212, 220
    sT = [228 + i for i in range(8)]
    rsV, nmV = 236, 240
    aF = 196
    vb = 244
    kvA = [32, 48]
    hi_ = t[7]
    a("v_lshrrev_b32 v%d, 5, v%d" % (hi_, vl))
    cp = 180
    for ww in range(4):
        for u in range(3):
            a("ds_read_b32 v%d, v%d offset:%d" % (cp + 3 * ww + u, t[0], ww * 384 + u * 128))
    a("s_waitcnt lgkmcnt(0)")
    for u in range(3):
        a("v_add_f32 v%d, v%d, v%d" % (cp + u, cp + u, cp + 3 + u))
        a("v_add_f32 v%d, v%d, v%d" % (cp + 6 + u, cp + 6 + u, cp + 9 + u))
        a("v_add_f32 v%d, v%d, v%d" % (cp + u, cp + u, cp + 6 + u))
    a("v_mov_b32 v%d, v%d" % (csV, cp + 2))
    a("v_add_u32 v%d, 1536, v%d" % (t[1], t[1]))
    a("ds_write_b32 v%d, v%d" % (t[1], cp))
    a("ds_write_b32 v%d, v%d offset:128" % (t[1], cp + 1))
    a("v_lshlrev_b32 v%d, 4, v%d" % (t[1], hi_))
    a("s_add_u32 s%d, s%d, %d" % (c.st[0], c.st[0], L_CS + 1536))
    a("v_add_u32 v%d, s%d, v%d" % (t[1], c.st[0], t[1]))
    a("s_waitcnt lgkmcnt(0)")
    for aa in range(4):
        a("ds_read_b128 %s, v%d offset:%d" % (vr(csQ + 4 * aa, 4), t[1], aa * 32))
        a("ds_read_b128 %s, v%d offset:%d" % (vr(csK + 4 * aa, 4), t[1], 128 + aa * 32))
    a("v_mov_b32 v%d, %d" % (vtok + 2, L_TOK))
    a("ds_read_b64 %s, v%d" % (vr(vtok, 2), vtok + 2))
    a("v_and_b32 v%d, 31, v%d" % (t[2], vl))
    a("s_lshl_b32 s%d, s%d, 6" % (c.st[0], s_wave))
    a("v_add_u32 v%d, s%d, v%d" % (t[2], c.st[0], t[2]))
    a("v_lshlrev_b32 v%d, 2, v%d" % (t[2], t[2]))
    a("v_add_u32 v%d, %d, v%d" % (t[2], L_RS, t[2]))
    for st in range(2):
        a("ds_read_b32 v%d, v%d offset:%d" % (rsL[st], t[2], st * 128))
        a("ds_read_b32 v%d, v%d offset:%d" % (nmL[st], t[2], 1024 + st * 128))
    a("v_lshrrev_b32 v%d, 4, v%d" % (t[3], vl))
    a("v_and_b32 v%d, 15, v%d" % (t[4], vl))
    a("v_lshrrev_b32 v%d, 2, v%d" % (t[5], t[4]))
    a("v_lshrrev_b32 v%d, 1, v%d" % (t[6], t[3]))
    a("v_lshl_add_u32 v%d, v%d, 2, v%d" % (t[5], t[6], t[5]))
    a("v_mov_b32 v%d, v%d" % (sT[7], t[5]))
    a("v_lshlrev_b32 v%d, 6, v%d" % (t[5], t[5]))
    a("v_and_b32 v%d, 1, v%d" % (t[3], t[3]))
    a("v_lshlrev_b32 v%d, 5, v%d" % (t[3], t[3]))
    a("v_and_b32 v%d, 3, v%d" % (t[4], t[4]))
    a("v_lshl_add_u32 v%d, v%d, 3, v%d" % (t[3], t[4], t[3]))
    a("v_add_u32 v%d, v%d, v%d" % (t[5], t[5], t[3]))
    a("v_add_u32 v%d, %d, v%d" % (t[5], L_WPHI, t[5]))
    for tt in range(2):
        for hf in range(2):
            a("ds_read_b64_tr_b16 %s, v%d offset:%d" % (vr(wph + 4 * tt + 2 * hf, 2), t[5], (16 * tt + 8 * hf) * 64))
    vPKw, vPKr, vRSV = 160, 161, 162
    a("s_mul_i32 s%d, s%d, %d" % (c.st[0], s_wave, 64 * PKP))
    a("s_add_u32 s%d, s%d, %d" % (c.st[0], c.st[0], L_PK))
    a("v_and_b32 v%d, 31, v%d" % (t[2], vl))
    a("v_mul_u32_u24 v%d, %d, v%d" % (t[2], PKP, t[2]))
    a("v_lshl_add_u32 v%d, v%d, 3, v%d" % (t[2], hi_, t[2]))
    a("v_add_u32 v%d, s%d, v%d" % (vPKw, c.st[0], t[2]))
    a("v_mul_u32_u24 v%d, %d, v%d" % (t[2], PKP, sT[7]))
    a("v_add_u32 v%d, v%d, v%d" % (t[2], t[2], t[3]))
    a("v_add_u32 v%d, s%d, v%d" % (vPKr, c.st[0], t[2]))
    a("s_lshl_b32 s%d, s%d, 8" % (c.st[0], s_wave))
    a("v_lshlrev_b32 v%d, 4, v%d" % (t[2], hi_))
    a("v_add_u32 v%d, s%d, v%d" % (t[2], c.st[0], t[2]))
    a("v_add_u32 v%d, %d, v%d" % (vRSV, L_RS, t[2]))
    a("s_waitcnt lgkmcnt(0)")

    def ln_qk(acc, cs, st, dst):
        for i in range(0, 16, 2):
            a("v_pk_mul_f32 %s, %s, %s op_sel_hi:[1,0]" % (vr(acc + i, 2), vr(acc + i, 2), vr(rsL[st], 2)))
            a("v_pk_fma_f32 %s, %s, %s, %s op_sel_hi:[1,0,1]" % (vr(acc + i, 2), vr(cs + i, 2), vr(nmL[st], 2), vr(acc + i, 2)))
            a("v_cvt_pk_bf16_f32 v%d, v%d, v%d" % (dst + i // 2, acc + i, acc + i + 1))
    def phi(acc, cs, st):
        ln_qk(acc, cs, st, kb)
        a("s_nop 1")
        a(mf32(pD, wph, kb, "0"))
        a(mf32(pD, wph + 4, kb + 4, pD))
        mfma_wait(a)
        if os.environ.get("RNDP", "0") == "1":
            for i in range(0, 16, 2):
                a("v_cvt_pk_bf16_f32 v%d, v%d, v%d" % (eT + i // 2, pD + i, pD + i + 1))
            for i in range(0, 16, 2):
                a("v_lshlrev_b32 v%d, 16, v%d" % (pD + i, eT + i // 2))
                a("v_and_b32 v%d, 0xffff0000, v%d" % (pD + i + 1, eT + i // 2))
        softmax2(a, pD, pos, neg, eT, sT, s_l2e)

    for st in range(2):
        phi(accK[st], csK, st)
        for aa in range(4):
            a("ds_write_b64 v%d, %s offset:%d" % (vPKw, vr(pos + 2 * aa, 2), st * 32 * PKP + aa * 16))
            a("ds_write_b64 v%d, %s offset:%d" % (vPKw, vr(neg + 2 * aa, 2), st * 32 * PKP + aa * 16 + 64))
    stamp(a, 9, s_wave, kidx, tmp_v=156)
    kvT = [32, 48]; zT = [180, 196]
    aF = 212
    ones = 252
    for q in range(4): a("v_mov_b32 v%d, s%d" % (ones + q, s_ones))
    a("s_waitcnt lgkmcnt(0)")
    first = True
    for st in range(2):
        for aa in range(4):
            a("ds_read_b128 %s, v%d offset:%d" % (vr(228 + 4 * aa, 4), vRSV, (32 * st + 8 * aa) * 4))
            a("ds_read_b128 %s, v%d offset:%d" % (vr(112 + 4 * aa, 4), vRSV, 1024 + (32 * st + 8 * aa) * 4))
        for ft in range(2):
            for u in range(2):
                for hf in range(2):
                    a("ds_read_b64_tr_b16 %s, v%d offset:%d" % (vr(aF + 8 * ft + 4 * u + 2 * hf, 2), vPKr, (st * 32 + 16 * u + 8 * hf) * PKP + ft * 64))
        a("s_waitcnt lgkmcnt(8)")
        for aa in range(4):
            for h2 in range(2):
                r = accV[st] + 4 * aa + 2 * h2
                a("v_pk_mul_f32 %s, %s, %s" % (vr(r, 2), vr(r, 2), vr(228 + 4 * aa + 2 * h2, 2)))
                a("v_pk_fma_f32 %s, %s, %s, %s op_sel_hi:[1,0,1]" % (vr(r, 2), vr(112 + 4 * aa + 2 * h2, 2), vr(csV, 2), vr(r, 2)))
                a("v_cvt_pk_bf16_f32 v%d, v%d, v%d" % (vb + 2 * aa + h2, r, r + 1))
        a("s_waitcnt lgkmcnt(0)")
        for u in range(2):
            for ft in range(2):
                a(mf32(kvT[ft], aF + 8 * ft + 4 * u, vb + 4 * u, "0" if (st == 0 and u == 0) else kvT[ft]))
                a(mf32(zT[ft], aF + 8 * ft + 4 * u, ones, "0" if (st == 0 and u == 0) else zT[ft]))
        a("s_nop 7")
    mfma_wait(a)
    stamp(a, 10, s_wave, kidx, tmp_v=156)
    a("s_mul_i32 s%d, s%d, %d" % (c.st[0], s_wave, KVP_BYTES))
    a("s_add_u32 s%d, s%d, %d" % (c.st[0], c.st[0], L_RED))
    a("v_lshlrev_b32 v%d, 4, v%d" % (t[0], vl))
    a("v_add_u32 v%d, s%d, v%d" % (t[1], c.st[0], t[0]))
    for ft in range(2):
        for rq in range(4):
            a("ds_write_b128 v%d, %s offset:%d" % (t[1], vr(kvT[ft] + 4 * rq, 4), (ft * 4 + rq) * 1024))
    a("v_lshlrev_b32 v%d, 4, v%d" % (t[2], hi_))
    a("v_add_u32 v%d, s%d, v%d" % (t[2], c.st[0], t[2]))
    a("v_and_b32 v%d, 31, v%d" % (t[3], vl))
    a("v_cmp_eq_u32 vcc, 0, v%d" % t[3])
    a("s_and_saveexec_b64 s[58:59], vcc")
    for ft in range(2):
        for rq in range(4):
            a("ds_write_b128 v%d, %s offset:%d" % (t[2], vr(zT[ft] + 4 * rq, 4), 8192 + (ft * 8 + rq * 2) * 16))
    a("s_mov_b64 exec, s[58:59]")
    a("s_waitcnt lgkmcnt(0)")
    a("s_barrier")
    stamp(a, 11, s_wave, kidx, tmp_v=156)
    a("s_lshl_b32 s%d, s%d, 11" % (c.st[0], s_wave))
    a("s_add_u32 s%d, s%d, %d" % (c.st[0], c.st[0], L_RED))
    a("v_add_u32 v%d, s%d, v%d" % (t[1], c.st[0], t[0]))
    rr = 32
    for ww in range(4):
        for bb in range(2):
            a("ds_read_b128 %s, v%d offset:%d" % (vr(rr + 8 * ww + 4 * bb, 4), t[1], ww * KVP_BYTES + bb * 1024))
    a("v_add_u32 v%d, %d, v%d" % (t[2], L_RED + 8192, t[0]))
    a("v_and_b32 v%d, 0xff, v%d" % (t[3], t[0]))
    a("v_add_u32 v%d, %d, v%d" % (t[2], L_RED + 8192, t[3]))
    zr = 180
    for ww in range(4):
        a("ds_read_b128 %s, v%d offset:%d" % (vr(zr + 4 * ww, 4), t[2], ww * KVP_BYTES))
    a("s_waitcnt lgkmcnt(0)")
    for ww in range(1, 4):
        for q in range(0, 8, 2):
            a("v_pk_add_f32 %s, %s, %s" % (vr(rr + q, 2), vr(rr + q, 2), vr(rr + 8 * ww + q, 2)))
        for q in range(0, 4, 2):
            a("v_pk_add_f32 %s, %s, %s" % (vr(zr + q, 2), vr(zr + q, 2), vr(zr + 4 * ww + q, 2)))
    a("s_mul_i32 s%d, s%d, %d" % (c.st[0], s_rb, KVP_BYTES))
    a("s_lshl_b32 s%d, s%d, 11" % (c.st[1], s_wave))
    a("s_add_u32 s%d, s%d, s%d" % (c.st[1], c.st[1], c.st[0]))
    for bb in range(2):
        a("buffer_store_dwordx4 %s, v%d, s[%d:%d], s%d offen offset:%d sc1" % (vr(rr + 4 * bb, 4), t[0], srdKV, srdKV + 3, c.st[1], bb * 1024))
    Lz = a.newlabel("Lz")
    a("s_cmp_lg_u32 s%d, 0" % s_wave)
    a("s_cbranch_scc1 %s" % Lz)
    a("v_add_u32 v%d, 8192, v%d" % (t[2], t[0]))
    a("v_cmp_gt_u32 vcc, 16, v%d" % vl)
    a("v_mov_b32 v%d, 0x7fffffff" % t[3])
    a("s_nop 0")
    a("v_cndmask_b32 v%d, v%d, v%d, vcc" % (t[2], t[3], t[2]))
    a("buffer_store_dwordx4 %s, v%d, s[%d:%d], s%d offen sc1" % (vr(zr, 4), t[2], srdKV, srdKV + 3, c.st[0]))
    a.label(Lz)
    stamp(a, 12, s_wave, kidx, tmp_v=156)
    a("s_waitcnt vmcnt(0)")
    a("s_barrier")
    stamp(a, 3, s_wave, kidx, tmp_v=vst)
    Lf = a.newlabel("Lflag")
    a("s_cmp_lg_u32 s%d, 0" % s_wave)
    a("s_cbranch_scc1 %s" % Lf)
    a("s_lshl_b32 s%d, s%d, %d" % (c.st[0], s_h, 7 if FS_LG == 3 else 3 + FS_LG))
    a("s_lshl_b32 s%d, s%d, %d" % (c.st[1], s_rb, FS_LG))
    a("s_add_u32 s%d, s%d, s%d" % (c.st[0], c.st[0], c.st[1]))
    a("s_add_u32 s%d, s%d, %d" % (c.st[0], c.st[0], WS_FLAG))
    a("v_lshlrev_b32 v%d, 3, v%d" % (t[0], vl))
    a("v_add_u32 v%d, s%d, v%d" % (t[0], c.st[0], t[0]))
    a("s_mov_b64 s[58:59], exec")
    a("s_mov_b64 exec, %s" % FMASK)
    a("global_store_dwordx2 v%d, %s, s[4:5] sc1" % (t[0], vr(vtok, 2)))
    a("s_mov_b64 exec, s[58:59]")
    a.label(Lf)
    phq = [32, 48]
    for st in range(2):
        phi(accQ[st], csQ, st)
        for i in range(8):
            a("v_mov_b32 v%d, v%d" % (phq[st] + i, pos + i))
            a("v_mov_b32 v%d, v%d" % (phq[st] + 8 + i, neg + i))
    stamp(a, 4, s_wave, kidx, tmp_v=vst)
    a("s_barrier")
    kvf, zf = 64, 80
    a("v_lshlrev_b32 v%d, 4, v%d" % (t[0], vl))
    a("v_add_u32 v%d, %d, v%d" % (t[0], L_KVF, t[0]))
    a("v_lshlrev_b32 v%d, 4, v%d" % (t[1], hi_))
    a("v_add_u32 v%d, %d, v%d" % (t[1], L_ZF, t[1]))
    for tp in range(4):
        a("ds_read_b128 %s, v%d offset:%d" % (vr(kvf + 4 * tp, 4), t[0], tp * 1024))
        a("ds_read_b128 %s, v%d offset:%d" % (vr(zf + 4 * tp, 4), t[1], tp * 32))
    a("s_waitcnt lgkmcnt(0)")
    num = [96, 112]; den = [180, 196]
    for st in range(2):
        for tp in range(4):
            a(mf32(num[st], kvf + 4 * tp, phq[st] + 4 * tp, "0" if tp == 0 else num[st]))
            a(mf32(den[st], zf + 4 * tp, phq[st] + 4 * tp, "0" if tp == 0 else den[st]))
    mfma_wait(a)
    if os.environ.get("OST", "1") == "1":
        OP = 80
        L_OST = L_PK
        a("v_and_b32 v%d, 31, v%d" % (t[0], vl))
        a("v_mul_u32_u24 v%d, %d, v%d" % (t[0], OP, t[0]))
        a("v_lshl_add_u32 v%d, v%d, 3, v%d" % (t[0], hi_, t[0]))
        a("s_mul_i32 s%d, s%d, %d" % (c.st[0], s_wave, 64 * OP))
        a("s_add_u32 s%d, s%d, %d" % (c.st[0], c.st[0], L_OST))
        a("v_add_u32 v%d, s%d, v%d" % (t[0], c.st[0], t[0]))
        a("v_lshrrev_b32 v%d, 2, v%d" % (t[2], vl))
        a("v_and_b32 v%d, 3, v%d" % (t[3], vl))
        a("v_lshlrev_b32 v%d, 4, v%d" % (t[3], t[3]))
        a("v_mul_u32_u24 v%d, %d, v%d" % (t[4], OP, t[2]))
        a("v_add3_u32 v%d, v%d, v%d, s%d" % (t[4], t[4], t[3], c.st[0]))
        a("s_lshl_b32 s%d, s%d, 6" % (c.st[1], s_wave))
        a("v_add_u32 v%d, s%d, v%d" % (t[2], c.st[1], t[2]))
        a("v_mul_u32_u24 v%d, %d, v%d" % (t[2], LD_O, t[2]))
        a("v_add_u32 v%d, v%d, v%d" % (t[2], t[2], t[3]))
        for st in range(2):
            a("v_add_f32 v%d, 0x358637bd, v%d" % (t[1], den[st]))
            a("v_rcp_f32 v%d, v%d" % (t[1], t[1]))
            a("s_nop 0")
            for i in range(16):
                a("v_mul_f32 v%d, v%d, v%d" % (num[st] + i, num[st] + i, t[1]))
            ob = 212 + 8 * st
            for i in range(8):
                a("v_cvt_pk_bf16_f32 v%d, v%d, v%d" % (ob + i, num[st] + 2 * i, num[st] + 2 * i + 1))
            for aa in range(4):
                a("ds_write_b64 v%d, %s offset:%d" % (t[0], vr(ob + 2 * aa, 2), st * 32 * OP + aa * 16))
        for j in range(4):
            a("ds_read_b128 %s, v%d offset:%d" % (vr(64 + 4 * j, 4), t[4], j * 16 * OP))
        for j in range(4):
            a("s_waitcnt lgkmcnt(%d)" % (3 - j))
            a("s_mov_b32 s%d, %d" % (c.st[1], j * 16 * LD_O))
            a("buffer_store_dwordx4 %s, v%d, s[%d:%d], s%d offen%s" % (vr(64 + 4 * j, 4), t[2], srdO, srdO + 3, c.st[1], SCM))
    else:
        a("v_and_b32 v%d, 31, v%d" % (t[0], vl))
        a("s_lshl_b32 s%d, s%d, 6" % (c.st[0], s_wave))
        a("v_add_u32 v%d, s%d, v%d" % (t[0], c.st[0], t[0]))
        a("v_mul_u32_u24 v%d, %d, v%d" % (t[0], LD_O, t[0]))
        a("v_lshl_add_u32 v%d, v%d, 4, v%d" % (t[0], hi_, t[0]))
        for st in range(2):
            a("v_add_f32 v%d, 0x358637bd, v%d" % (t[1], den[st]))
            a("v_rcp_f32 v%d, v%d" % (t[1], t[1]))
            a("s_nop 0")
            for i in range(16):
                a("v_mul_f32 v%d, v%d, v%d" % (num[st] + i, num[st] + i, t[1]))
            ob = 212 + 8 * st
            for i in range(8):
                a("v_cvt_pk_bf16_f32 v%d, v%d, v%d" % (ob + i, num[st] + 2 * i, num[st] + 2 * i + 1))
            a("s_nop 1")
            for pr in range(2):
                a("v_permlane32_swap_b32 v%d, v%d" % (ob + 4 * pr, ob + 4 * pr + 2))
                a("v_permlane32_swap_b32 v%d, v%d" % (ob + 4 * pr + 1, ob + 4 * pr + 3))
            for pr in range(2):
                a("s_mov_b32 s%d, %d" % (c.st[1], st * 32 * LD_O))
                a("buffer_store_dwordx4 %s, v%d, s[%d:%d], s%d offen offset:%d%s" % (vr(ob + 4 * pr, 4), t[0], srdO, srdO + 3, c.st[1], pr * 32, SCM))
    if mega or STAMPS: a("s_waitcnt vmcnt(0)")
    stamp(a, 5, s_wave, kidx, tmp_v=vst)
    if mega:
        a.label(Ljoin)
        a("v_mov_b32 v%d, %d" % (t[0], L_TOK))
        a("ds_read_b64 %s, v%d" % (vr(vtok, 2), t[0]))
        a("s_waitcnt lgkmcnt(0)")
        a("v_readfirstlane_b32 s72, v%d" % vtok)
        a("v_readfirstlane_b32 s73, v%d" % (vtok + 1))
        a("s_barrier")
        Lf2 = a.newlabel("Lfo")
        a("s_cmp_lg_u32 s%d, 0" % s_wave)
        a("s_cbranch_scc1 %s" % Lf2)
        a("s_lshl_b32 s%d, s%d, 5" % (c.st[0], s_rb))
        a("s_add_u32 s%d, s%d, s%d" % (c.st[0], c.st[0], s_h))
        a("s_lshl_b32 s%d, s%d, %d" % (c.st[0], c.st[0], FS_LG))
        a("s_add_u32 s%d, s%d, %d" % (c.st[0], c.st[0], FO))
        a("v_lshlrev_b32 v%d, 3, v%d" % (t[0], vl))
        a("v_add_u32 v%d, s%d, v%d" % (t[0], c.st[0], t[0]))
        a("s_mov_b64 s[58:59], exec")
        a("s_mov_b64 exec, %s" % FMASK)
        a("global_store_dwordx2 v%d, %s, s[4:5] sc1" % (t[0], vr(vtok, 2)))
        a("s_mov_b64 exec, s[58:59]")
        a.label(Lf2)
        return vmax, lds
    a.label(Lend)
    a("s_endpgm")
    return kernel_desc(name, vmax, 90), lds
```

```python
class Asm:
    def __init__(self):
        self.lines = []
        self.uid = 0
    def __call__(self, s):
        for l in s.split("\n"):
            self.lines.append("  " + l.strip())
    def raw(self, s):
        self.lines.append(s)
    def label(self, name):
        self.lines.append(name + ":")
    def newlabel(self, base="L"):
        self.uid += 1
        return "%s_%d" % (base, self.uid)
    def comment(self, s):
        self.lines.append("  ; " + s)
    def text(self):
        return "\n".join(self.lines) + "\n"

def vr(base, n=1):
    if n == 1:
        return "v%d" % base
    return "v[%d:%d]" % (base, base + n - 1)

def sr(base, n=1):
    if n == 1:
        return "s%d" % base
    return "s[%d:%d]" % (base, base + n - 1)

KA_X, KA_WQKV, KA_WPHI, KA_WO, KA_BX, KA_W1, KA_W2, KA_OUT, KA_DBG, KA_WS = [8 * i for i in range(10)]

MB = 1 << 20
import os as _os
PAD = int(_os.environ.get("PAD", "128"))
LD_O = 2048 + PAD; LD_H = 2048 + PAD; LD_H1 = 7168 + PAD
WS_O = 0
WS_H = 5 * MB
WS_H1 = 10 * MB
WS_KVP = 25 * MB
KVP_BYTES = 8704
WS_ST1 = 28 * MB
WS_ST2 = 29 * MB
WS_CS1 = 30 * MB
WS_CSQ = 31 * MB
WS_FLAG = 32 * MB
WS_SIZE = 256 * MB

S_, D_, DFF = 2048, 1024, 3584

def kernel_header(a, name):
    a.raw(".globl %s" % name)
    a.raw(".p2align 8")
    a.raw(".type %s,@function" % name)
    a.label(name)

def kernel_desc(name, vgpr, sgpr):
    acc = (vgpr + 3) // 4 * 4
    return """.p2align 6
.amdhsa_kernel %s
  .amdhsa_next_free_vgpr %d
  .amdhsa_next_free_sgpr %d
  .amdhsa_accum_offset %d
  .amdhsa_group_segment_fixed_size 0
  .amdhsa_kernarg_size 80
  .amdhsa_user_sgpr_count 2
  .amdhsa_user_sgpr_kernarg_segment_ptr 1
  .amdhsa_system_sgpr_workgroup_id_x 1
.end_amdhsa_kernel
""" % (name, vgpr, sgpr, acc)

def make_srd(a, s, base_lo, base_hi, nbytes):
    a("s_mov_b32 s%d, %s" % (s, base_lo))
    a("s_and_b32 s%d, %s, 0xffff" % (s + 1, base_hi))
    a("s_mov_b32 s%d, %s" % (s + 2, nbytes if isinstance(nbytes, str) else hex(nbytes)))
    a("s_mov_b32 s%d, 0x00020000" % (s + 3))

import os
STAMPS = "stamp" in os.environ.get("GDBG", "")
SPAN = "span" in os.environ.get("GDBG", "")
WS_STAMP = 40 * MB
def stamp(a, idx, s_wave, kidx, sws=4, tmp_s=60, tmp_v=None):
    if not STAMPS and not (SPAN and ((kidx == 0 and idx == 0) or (kidx == 3 and idx == 5))): return
    if idx in (6, 7): a("s_memtime s[60:61]")
    else: a("s_memrealtime s[60:61]")
    a("s_lshl_b32 s62, s2, 3")
    a("s_add_u32 s62, s62, s%d" % s_wave)
    a("s_lshl_b32 s62, s62, 7")
    a("s_add_u32 s62, s62, %d" % (WS_STAMP + kidx * 256 * 8 * 128 + idx * 8))
    a("s_waitcnt lgkmcnt(0)")
    a("v_mov_b32 v%d, s60" % tmp_v)
    a("v_mov_b32 v%d, s61" % (tmp_v + 1))
    a("v_mov_b32 v%d, s62" % (tmp_v + 2))
    a("global_store_dwordx2 v%d, v[%d:%d], s[4:5]" % (tmp_v + 2, tmp_v, tmp_v + 1))

FS_LG = int(os.environ.get('FSLG', '6'))
FMASK = {3: '1', 6: '0xff', 7: '0xffff'}[FS_LG]

OPAIR = os.environ.get('OPAIR', '1') == '1'
LD_OP = 4096 + PAD
```

```python
from common import *
import os
DBG = os.environ.get("GDBG", "")

def magic_div(P, maxs):
    for sh in range(8, 24):
        mul = -(-(1 << sh) // P)
        if mul >= (1 << 24): continue
        if all(((s * mul) >> sh) == s // P for s in range(maxs)) and (maxs * mul) < (1 << 32):
            return mul, sh
    raise Exception("no magic")

def swz_mask_bits(P):
    if P % 16 in (4, 12):
        return [(3, 1)]
    if P % 16 == 8:
        return [(1, 1), (3, 2)]
    if P % 16 == 0:
        return [(0, 1), (1, 2), (3, 3)]
    raise Exception("P")

class Cfg:
    pass

def emit_producer_setup(a, c, vbase):
    vl = c.v_lane
    t0, t1, t2, t3 = c.vt[0:4]
    st = c.st[0]
    c.vA = [vbase + i for i in range(c.a_ins)]
    c.vB = [vbase + c.a_ins + i for i in range(c.b_ins)]
    a("v_lshrrev_b32 v%d, 3, v%d" % (t0, vl))
    a("v_and_b32 v%d, 7, v%d" % (t1, vl))
    a("s_mul_i32 s%d, s%d, %d" % (st, c.s_p, c.a_ins * 8))
    for j in range(c.a_ins):
        a("v_add_u32 v%d, s%d, v%d" % (t2, st, t0))
        if j: a("v_add_u32 v%d, %d, v%d" % (t2, 8 * j, t2))
        a("v_bfe_u32 v%d, v%d, 1, 3" % (t3, t2))
        if "noswzA" in DBG: a("v_mov_b32 v%d, v%d" % (t3, t1))
        else: a("v_xor_b32 v%d, v%d, v%d" % (t3, t3, t1))
        if getattr(c, "apair", False):
            a("v_lshrrev_b32 v%d, 2, v%d" % (c.vt[4], t3))
            a("v_lshlrev_b32 v%d, 7, v%d" % (c.vt[4], c.vt[4]))
            a("v_and_b32 v%d, 3, v%d" % (t3, t3))
            a("v_lshl_add_u32 v%d, v%d, 4, v%d" % (t3, t3, c.vt[4]))
            a("v_and_b32 v%d, 1, v%d" % (c.vt[4], t2))
            a("v_lshl_add_u32 v%d, v%d, 6, v%d" % (t3, c.vt[4], t3))
            a("v_lshrrev_b32 v%d, 1, v%d" % (t2, t2))
            a("s_mov_b32 s%d, %d" % (c.st[1], LD_OP))
        else:
            a("v_lshlrev_b32 v%d, 4, v%d" % (t3, t3))
            a("s_mov_b32 s%d, %d" % (c.st[1], c.lda))
        a("v_mul_lo_u32 v%d, v%d, s%d" % (t2, t2, c.st[1]))
        a("v_add_u32 v%d, v%d, v%d" % (c.vA[j], t2, t3))
    P = c.P
    mul, sh = magic_div(P, 64 * P + 64)
    a("s_mul_i32 s%d, s%d, %d" % (st, c.s_p, c.b_ins * 64))
    for j in range(c.b_ins):
        a("v_add_u32 v%d, s%d, v%d" % (t0, st, vl))
        if j: a("v_add_u32 v%d, %d, v%d" % (t0, 64 * j, t0))
        a("v_mul_u32_u24 v%d, %d, v%d" % (t1, mul, t0))
        a("v_lshrrev_b32 v%d, %d, v%d" % (t1, sh, t1))
        a("v_mul_u32_u24 v%d, %d, v%d" % (t2, P, t1))
        a("v_sub_u32 v%d, v%d, v%d" % (t2, t0, t2))
        for (kb, jb) in (c.swz if "noswzB" not in DBG else []):
            a("v_bfe_u32 v%d, v%d, %d, 1" % (t3, t1, kb))
            a("v_lshlrev_b32 v%d, %d, v%d" % (t3, jb, t3))
            a("v_xor_b32 v%d, v%d, v%d" % (t2, t2, t3))
        if c.colmode == "lin":
            a("v_lshlrev_b32 v%d, 4, v%d" % (t2, t2))
        elif c.colmode == "qkv2":
            a("v_lshrrev_b32 v%d, 3, v%d" % (t3, t2))
            a("v_lshlrev_b32 v%d, 11, v%d" % (t3, t3))
            a("v_and_b32 v%d, 7, v%d" % (t2, t2))
            a("v_lshlrev_b32 v%d, 4, v%d" % (t2, t2))
            a("v_add_u32 v%d, v%d, v%d" % (t2, t2, t3))
        else:
            a("v_lshrrev_b32 v%d, 2, v%d" % (t3, t2))
            a("v_lshlrev_b32 v%d, 11, v%d" % (t3, t3))
            a("v_and_b32 v%d, 3, v%d" % (t2, t2))
            a("v_lshlrev_b32 v%d, 4, v%d" % (t2, t2))
            a("v_add_u32 v%d, v%d, v%d" % (t2, t2, t3))
        a("s_mov_b32 s%d, %d" % (c.st[1], c.ldb))
        a("v_mul_lo_u32 v%d, v%d, s%d" % (t1, t1, c.st[1]))
        a("v_add_u32 v%d, v%d, v%d" % (c.vB[j], t1, t2))

def emit_dbg_hot(a, c):
    if "hotA" in DBG:
        for r in c.vA: a("v_lshlrev_b32 v%d, 4, v%d" % (r, c.v_lane))
        c.hotA = True
    if "hotB" in DBG:
        for r in c.vB: a("v_lshlrev_b32 v%d, 4, v%d" % (r, c.v_lane))
        c.hotB = True

def emit_issue_A(a, c):
    a("s_add_u32 m0, s%d, s%d" % (c.s_slotA, c.s_mA))
    for j in range(c.a_ins):
        if j: a("s_add_u32 m0, m0, 0x400")
        a("s_nop 0")
        a("buffer_load_dwordx4 v%d, s[%d:%d], %s offen%s lds" % (c.vA[j], c.srdA, c.srdA + 3, "0" if "hotA" in DBG else "s%d" % c.s_ka, " sc1" if getattr(c, "a_sc1", False) else ""))
    a("s_add_u32 s%d, s%d, %d" % (c.s_slotA, c.s_slotA, c.Abytes))
    a("s_cmp_eq_u32 s%d, %d" % (c.s_slotA, c.SA * c.Abytes))
    a("s_cselect_b32 s%d, 0, s%d" % (c.s_slotA, c.s_slotA))
    a("s_add_u32 s%d, s%d, %d" % (c.s_ka, c.s_ka, 256 if getattr(c, "apair", False) else 128))
    if c.rotate:
        a("s_cmp_eq_u32 s%d, %d" % (c.s_ka, c.NS * 128))
        a("s_cselect_b32 s%d, 0, s%d" % (c.s_ka, c.s_ka))

def emit_issue_B(a, c):
    a("s_add_u32 m0, s%d, s%d" % (c.s_slotB, c.s_mB))
    for j in range(c.b_ins):
        if j: a("s_add_u32 m0, m0, 0x400")
        a("s_nop 0")
        a("buffer_load_dwordx4 v%d, s[%d:%d], %s offen lds" % (c.vB[j], c.srdB, c.srdB + 3, "0" if "hotB" in DBG else "s%d" % c.s_kb))
    a("s_add_u32 s%d, s%d, %d" % (c.s_slotB, c.s_slotB, c.Bbytes))
    a("s_cmp_eq_u32 s%d, %d" % (c.s_slotB, c.SB * c.Bbytes))
    a("s_cselect_b32 s%d, 0, s%d" % (c.s_slotB, c.s_slotB))
    a("s_add_u32 s%d, s%d, %d" % (c.s_kb, c.s_kb, 64 * c.ldb))
    if c.rotate:
        a("s_cmp_eq_u32 s%d, %d" % (c.s_kb, c.NS * 64 * c.ldb))
        a("s_cselect_b32 s%d, 0, s%d" % (c.s_kb, c.s_kb))

def emit_pf_setup(a, c):
    pf = c.pf
    vl = c.v_lane; t = c.vt
    nA, nB, seg = pf["nA"], pf["nB"], pf["segB"]
    ns = len(seg)
    Smax = max(c.SA, c.SB)
    a("v_add_u32 v%d, s%d, v%d" % (t[0], pf["rowA"], vl))
    a("s_mov_b32 s%d, %d" % (c.st[0], c.lda))
    a("v_mul_lo_u32 v%d, v%d, s%d" % (t[0], t[0], c.st[0]))
    a("s_add_u32 s%d, s%d, %d" % (c.st[0], c.s_ka, (Smax - 1) * 128))
    a("v_add_u32 v%d, s%d, v%d" % (t[0], c.st[0], t[0]))
    a("v_subrev_u32 v%d, %d, v%d" % (t[1], nA, vl))
    a("v_and_b32 v%d, 63, v%d" % (t[1], t[1]))
    mul, sh = magic_div(ns, 64) if ns > 1 else (1, 0)
    a("v_mul_u32_u24 v%d, %d, v%d" % (t[2], mul, t[1]))
    a("v_lshrrev_b32 v%d, %d, v%d" % (t[2], sh, t[2]))
    a("v_mul_u32_u24 v%d, %d, v%d" % (t[3], ns, t[2]))
    a("v_sub_u32 v%d, v%d, v%d" % (t[3], t[1], t[3]))
    a("v_lshlrev_b32 v%d, 7, v%d" % (t[3], t[3]))
    a("v_min_u32 v%d, %d, v%d" % (t[3], seg[-1], t[3]))
    a("v_add_u32 v%d, s%d, v%d" % (t[2], pf["rowB"], t[2]))
    a("s_mov_b32 s%d, %d" % (c.st[0], c.ldb))
    a("v_mul_lo_u32 v%d, v%d, s%d" % (t[2], t[2], c.st[0]))
    a("v_add_u32 v%d, v%d, v%d" % (t[2], t[2], t[3]))
    a("s_add_u32 s%d, s%d, %d" % (c.st[0], c.s_kb, (Smax - 1) * 64 * c.ldb))
    a("v_add_u32 v%d, s%d, v%d" % (t[2], c.st[0], t[2]))
    a("v_cmp_le_u32 vcc, %d, v%d" % (nA, vl))
    a("v_cmp_gt_u32 s[74:75], %d, v%d" % (nA + nB * ns, vl))
    a("s_nop 1")
    a("s_and_b64 vcc, vcc, s[74:75]")
    a("v_cmp_gt_u32 s[74:75], %d, v%d" % (nA, vl))
    a("v_mov_b32 v%d, s%d" % (t[4], pf["rowA"]))
    a("s_mov_b32 s%d, %d" % (c.st[0], c.lda))
    a("v_mul_lo_u32 v%d, v%d, s%d" % (t[4], t[4], c.st[0]))
    a("s_add_u32 s%d, s%d, %d" % (c.st[0], c.s_ka, (Smax - 1) * 128))
    a("v_add_u32 v%d, s%d, v%d" % (t[4], c.st[0], t[4]))
    a("v_cndmask_b32 v%d, v%d, v%d, s[74:75]" % (t[0], t[4], t[0]))
    a("v_cndmask_b32 v%d, v%d, v%d, vcc" % (t[0], t[0], t[2]))
    a("v_mov_b32 v%d, 128" % c.v_pfi)
    a("v_mov_b32 v%d, %d" % (t[1], 64 * c.ldb))
    a("v_cndmask_b32 v%d, v%d, v%d, vcc" % (c.v_pfi, c.v_pfi, t[1]))
    a("v_mov_b32 v%d, s%d" % (t[1], c.srdA))
    a("v_mov_b32 v%d, s%d" % (t[2], c.srdB))
    a("v_cndmask_b32 v%d, v%d, v%d, vcc" % (t[1], t[1], t[2]))
    a("v_mov_b32 v%d, s%d" % (t[2], c.srdA + 1))
    a("v_mov_b32 v%d, s%d" % (t[3], c.srdB + 1))
    a("v_cndmask_b32 v%d, v%d, v%d, vcc" % (t[2], t[2], t[3]))
    a("v_add_co_u32 v%d, vcc, v%d, v%d" % (c.v_pf, t[1], t[0]))
    a("s_nop 1")
    a("v_addc_co_u32 v%d, vcc, 0, v%d, vcc" % (c.v_pf + 1, t[2]))
    a("s_mov_b32 s%d, %d" % (c.s_pfn, Smax - 1))

def emit_pf_issue(a, c):
    a("global_load_dword v%d, v[%d:%d], off" % (c.v_pfd, c.v_pf, c.v_pf + 1))
    a("s_add_u32 s%d, s%d, 1" % (c.s_pfn, c.s_pfn))
    a("s_cmp_lt_u32 s%d, %d" % (c.s_pfn, c.NS))
    a("s_cselect_b32 s%d, -1, 0" % c.st[2])
    a("v_and_b32 v%d, s%d, v%d" % (c.v_pfd + 1, c.st[2], c.v_pfi))
    a("v_add_co_u32 v%d, vcc, v%d, v%d" % (c.v_pf, c.v_pf, c.v_pfd + 1))
    a("s_nop 1")
    a("v_addc_co_u32 v%d, vcc, 0, v%d, vcc" % (c.v_pf + 1, c.v_pf + 1))

def emit_producer_loop(a, c):
    emit_dbg_hot(a, c)
    pf = getattr(c, "pf", None)
    SA, SB, NS = c.SA, c.SB, c.NS
    na, nb = c.a_ins, c.b_ins
    a("s_mul_i32 s%d, s%d, %d" % (c.s_mA, c.s_p, c.a_ins * 1024))
    a("s_mul_i32 s%d, s%d, %d" % (c.s_mB, c.s_p, c.b_ins * 1024))
    a("s_add_u32 s%d, s%d, %d" % (c.s_mB, c.s_mB, c.Bbase))
    a("s_mov_b32 s%d, 0" % c.s_slotA)
    a("s_mov_b32 s%d, 0" % c.s_slotB)
    Smax = max(SA, SB)
    log = []
    def virt(j, emit=True):
        ops = []
        if 0 <= j + SB - 1 < NS: ops.append(("B", j + SB - 1, nb))
        if 0 <= j + SA - 1 < NS: ops.append(("A", j + SA - 1, na))
        if SA > SB: ops.reverse()
        for o in ops:
            log.append(o)
            if emit: (emit_issue_A if o[0] == "A" else emit_issue_B)(a, c)
    def need(stage):
        last = max(i for i, o in enumerate(log) if o[1] == stage and o[0] in "AB" and ((o[0], stage) in (("A", stage), ("B", stage))))
        return sum(o[2] for o in log[last + 1:])
    if pf:
        assert not c.rotate
        emit_pf_setup(a, c)
    for j in range(-(Smax - 1), 0): virt(j)
    if pf:
        for d in range(pf["D"]):
            emit_pf_issue(a, c); log.append(("P", -1, 1))
    nmain = NS - Smax + 1
    cnt0 = need(0)
    if pf:
        cnt0 = min(cnt0, (min(SA, SB) - 2) * (na + nb + 1) + 1)
    a("s_mov_b32 s%d, 0" % c.s_i)
    L = a.newlabel("Lprod")
    a.label(L)
    a("s_waitcnt vmcnt(%d)" % cnt0)
    a("s_barrier")
    virt(0)
    if pf:
        emit_pf_issue(a, c); log.append(("P", -1, 1))
    PFLOOP = True
    if getattr(c, "prod_iter_hook", None): c.prod_iter_hook()
    a("s_add_u32 s%d, s%d, 1" % (c.s_i, c.s_i))
    a("s_cmp_lt_u32 s%d, %d" % (c.s_i, nmain))
    a("s_cbranch_scc1 %s" % L)
    if not pf: assert need(1) == cnt0, (need(1), cnt0)
    for j in range(1, nmain):
        if pf: assert need(j) >= cnt0, (j, need(j), cnt0)
        virt(j, emit=False)
        if pf: log.append(("P", -1, 1))
    for i in range(nmain, NS):
        a("s_waitcnt vmcnt(%d)" % need(i))
        a("s_barrier")
        virt(i)

def emit_consumer16_setup(a, c):
    vl = c.v_lane
    t0, t1, t2, t3 = c.vt[0:4]
    st0, st1 = c.st[0:2]
    a("v_and_b32 v%d, 15, v%d" % (t0, vl))
    a("v_lshrrev_b32 v%d, 4, v%d" % (t1, vl))
    a("v_lshrrev_b32 v%d, 1, v%d" % (t2, t0))
    a("s_mul_i32 s%d, s%d, %d" % (st0, c.s_wm, getattr(c, "WM", 64)))
    a("v_add_u32 v%d, s%d, v%d" % (t3, st0, t0))
    a("v_lshlrev_b32 v%d, 7, v%d" % (t3, t3))
    a("v_xor_b32 v%d, v%d, v%d" % (t2, t2, t1))
    for stp in range(2):
        if stp: a("v_xor_b32 v%d, 4, v%d" % (t2, t2))
        a("v_lshl_add_u32 v%d, v%d, 4, v%d" % (c.vX[stp], t2, t3))
    a("v_lshrrev_b32 v%d, 2, v%d" % (t2, t0))
    a("v_lshl_add_u32 v%d, v%d, 3, v%d" % (t3, t1, t2))
    a("v_mov_b32 v%d, 0" % c.vt[4])
    for (kb, jb) in c.swz:
        a("v_bfe_u32 v%d, v%d, %d, 1" % (c.vt[5], t3, kb))
        a("v_lshlrev_b32 v%d, %d, v%d" % (c.vt[5], jb - 1, c.vt[5]))
        a("v_or_b32 v%d, v%d, v%d" % (c.vt[4], c.vt[4], c.vt[5]))
    a("v_mul_u32_u24 v%d, %d, v%d" % (t3, c.P * 16, t3))
    a("v_and_b32 v%d, 3, v%d" % (t2, t0))
    a("v_lshl_add_u32 v%d, v%d, 3, v%d" % (t3, t2, t3))
    a("v_add_u32 v%d, %d, v%d" % (t3, c.Bbase, t3))
    a("s_mul_i32 s%d, s%d, %d" % (st0, c.s_wn, c.NT))
    for q in range(len(c.vW)):
        a("s_add_u32 s%d, s%d, %d" % (st1, st0, q))
        a("v_xor_b32 v%d, s%d, v%d" % (t2, st1, c.vt[4]))
        a("v_lshl_add_u32 v%d, v%d, 5, v%d" % (c.vW[q], t2, t3))
        if q: a("v_subrev_u32 v%d, %d, v%d" % (c.vW[q], 32 * q, c.vW[q]))

def reads16(c, buf, stp):
    r = []
    if "noread" in DBG: return []
    for mt in range(c.MT):
        r.append("ds_read_b128 %s, v%d offset:%d" % (vr(c.fX[buf] + 4 * mt, 4), c.vX[stp], mt * 2048))
    xs = r; ws = []
    for t in range(c.NT):
        for hf in range(2):
            off = (32 * stp + 4 * hf) * c.P * 16 + t * 32
            ws.append("ds_read_b64_tr_b16 %s, v%d offset:%d" % (vr(c.fW[buf] + 4 * t + 2 * hf, 2), c.vW[t % len(c.vW)], off))
    out = ws[0:2] + xs + ws[2:]
    if "notr" in DBG: out = xs
    if "nox" in DBG: out = ws
    return out

def mfmas16(c, buf):
    m = []
    if "nomfma" in DBG: return []
    for t in range(c.NT):
        for mt in range(c.MT):
            acc = c.acc + 4 * (t * c.MT + mt)
            m.append("v_mfma_f32_16x16x32_bf16 %s, %s, %s, %s" % (vr(acc, 4), vr(c.fW[buf] + 4 * t, 4), vr(c.fX[buf] + 4 * mt, 4), vr(acc, 4)))
    return m

def interleave(a, mf, rd, first=1, per=1):
    ri = 0
    for i, m in enumerate(mf):
        a(m)
        if i + 1 >= first:
            for _ in range(per):
                if ri < len(rd):
                    a(rd[ri]); ri += 1
    while ri < len(rd):
        a(rd[ri]); ri += 1

def emit_addr_advance(a, c, regsA, regsB):
    for (sl, dl, nb, S, regs) in ((c.s_cslotA, c.s_deltaA, c.Abytes, c.SA, regsA), (c.s_cslotB, c.s_deltaB, c.Bbytes, c.SB, regsB)):
        a("s_add_u32 s%d, s%d, %d" % (sl, sl, nb))
        a("s_mov_b32 s%d, %d" % (dl, nb))
        a("s_cmp_eq_u32 s%d, %d" % (sl, S * nb))
        a("s_cselect_b32 s%d, 0, s%d" % (sl, sl))
        a("s_cselect_b32 s%d, %d, s%d" % (dl, -(S - 1) * nb, dl))
    for r in regsA: a("v_add_u32 v%d, s%d, v%d" % (r, c.s_deltaA, r))
    for r in regsB: a("v_add_u32 v%d, s%d, v%d" % (r, c.s_deltaB, r))

def set_rings(c, SA, SB):
    c.SA, c.SB = SA, SB
    c.Abytes = c.nA * 1024; c.Bbytes = c.nB * 1024
    if "fakering" in DBG: c.Abytes //= 2; c.Bbytes //= 2
    c.Bbase = SA * c.Abytes
    c.ring_bytes = SA * c.Abytes + SB * c.Bbytes

def emit_consumer16_loop(a, c):
    per = 1 if c.NT * c.MT >= 16 else 2
    if os.environ.get("PER"): per = int(os.environ["PER"])
    for i in range(c.NT * c.MT * 4):
        a("v_mov_b32 v%d, 0" % (c.acc + i))
    a("s_mov_b32 s%d, 0" % c.s_cslotA)
    a("s_mov_b32 s%d, 0" % c.s_cslotB)
    a("s_barrier")
    for r in reads16(c, 0, 0): a(r)
    if getattr(c, "cons_hook0", None): c.cons_hook0()
    a("s_mov_b32 s%d, 0" % c.s_i)
    L = a.newlabel("Lcons")
    a.label(L)
    a("s_waitcnt lgkmcnt(0)")
    interleave(a, mfmas16(c, 0), reads16(c, 1, 1), 1, per)
    a("s_waitcnt lgkmcnt(0)")
    a("s_barrier")
    emit_addr_advance(a, c, [c.vX[0], c.vX[1]], c.vW)
    if getattr(c, "cons_iter_hook", None): c.cons_iter_hook()
    interleave(a, mfmas16(c, 1), reads16(c, 0, 0), 1, per)
    a("s_add_u32 s%d, s%d, 1" % (c.s_i, c.s_i))
    a("s_cmp_lt_u32 s%d, %d" % (c.s_i, c.NS - 1))
    a("s_cbranch_scc1 %s" % L)
    a("s_waitcnt lgkmcnt(0)")
    interleave(a, mfmas16(c, 0), reads16(c, 1, 1), 1, per)
    a("s_waitcnt lgkmcnt(0)")
    for m in mfmas16(c, 1): a(m)

def emit_producer_loop2(a, c, pre_poll=None):
    SA, SB, NS = c.SA, c.SB, c.NS
    na, nb = c.a_ins, c.b_ins
    a("s_mul_i32 s%d, s%d, %d" % (c.s_mA, c.s_p, c.a_ins * 1024))
    a("s_mul_i32 s%d, s%d, %d" % (c.s_mB, c.s_p, c.b_ins * 1024))
    a("s_add_u32 s%d, s%d, %d" % (c.s_mB, c.s_mB, c.Bbase))
    a("s_mov_b32 s%d, 0" % c.s_slotA)
    a("s_mov_b32 s%d, 0" % c.s_slotB)
    log = []
    def ops_of(j):
        ops = []
        if 0 <= j + SB - 1 < NS: ops.append(("B", j + SB - 1, nb))
        if 0 <= j + SA - 1 < NS: ops.append(("A", j + SA - 1, na))
        if SA > SB: ops.reverse()
        return ops
    def emit_ops(ops):
        for o in ops: (emit_issue_A if o[0] == "A" else emit_issue_B)(a, c)
    def need(stage):
        idx = [i for i, o in enumerate(log) if o[1] == stage]
        if not idx: return None
        return sum(o[2] for o in log[max(idx) + 1:])
    if pre_poll:
        for s in range(SB - 1):
            emit_issue_B(a, c); log.append(("B", s, nb))
        pre_poll()
        for s in range(SA - 1):
            emit_issue_A(a, c); log.append(("A", s, na))
    else:
        for j in range(-(max(SA, SB) - 1), 0):
            o = ops_of(j); emit_ops(o); log.extend(o)
    sched = []
    for i in range(NS):
        n = need(i)
        o = ops_of(i)
        sched.append((n, tuple(x[0] for x in o), o))
        log.extend(o)
    best = (0, 0)
    i = 0
    while i < NS:
        j = i
        while j < NS and sched[j][0] == sched[i][0] and sched[j][1] == sched[i][1]: j += 1
        if j - i > best[1] - best[0]: best = (i, j)
        i = j
    i = 0
    while i < NS:
        if i == best[0] and best[1] - best[0] >= 3:
            a("s_mov_b32 s%d, 0" % c.s_i)
            L = a.newlabel("Lprod")
            a.label(L)
            a("s_waitcnt vmcnt(%d)" % sched[i][0])
            a("s_barrier")
            emit_ops(sched[i][2])
            a("s_add_u32 s%d, s%d, 1" % (c.s_i, c.s_i))
            a("s_cmp_lt_u32 s%d, %d" % (c.s_i, best[1] - best[0]))
            a("s_cbranch_scc1 %s" % L)
            if getattr(c, "prod_mid_hook", None): c.prod_mid_hook()
            i = best[1]
        else:
            a("s_waitcnt vmcnt(%d)" % sched[i][0])
            a("s_barrier")
            emit_ops(sched[i][2])
            i += 1
```

```python
from common import *
from gemm import *
import os

def env_tuple(name, default):
    v = os.environ.get(name)
    return tuple(int(x) for x in v.replace("x", ",").split(",")) if v else default

def base_cfg(BM, BN, K, lda, ldb):
    c = Cfg()
    c.BM, c.BN, c.K, c.lda, c.ldb = BM, BN, K, lda, ldb
    c.NS = K // 64
    c.nA = BM // 8; c.nB = BN // 8
    c.a_ins = c.nA // 4; c.b_ins = c.nB // 4
    assert c.nA % 4 == 0 and c.nB % 4 == 0
    c.P = BN // 8
    c.rotate = False
    c.colmode = "lin"
    return c

L_TOK = 147456
MEGA = False
VB = os.environ.get('VB', '0') == '1'
FO = WS_FLAG + 196608
CFU = WS_FLAG + 262144
FH = WS_FLAG + 65536
FH1 = WS_FLAG + 131072
NP2 = None
def wo_tile():
    return env_tuple("TILE_wo", (64, 128))

def gemm_phase(a, kind, first, last):
    DBG = os.environ.get("GDBG", "")
    if kind == "wo":
        BM, BN = wo_tile(); c = base_cfg(BM, BN, 1024, LD_O, 2048); set_rings(c, *env_tuple("RING_wo", (6, 6)))
    elif kind == "w1":
        BM, BN = 128, 224; c = base_cfg(BM, BN, 1024, LD_H, 7168); set_rings(c, *env_tuple("RING_w1", (3, 3)))
    else:
        BM, BN = env_tuple("TILE_w2", (64, 128)); c = base_cfg(BM, BN, 3584, LD_H1, 2048); set_rings(c, *env_tuple("RING_w2", (6, 6)))
    N = {"wo": 1024, "w1": 3584, "w2": 1024}[kind]
    tilesM, tilesN = 2048 // BM, N // BN
    assert tilesM * tilesN == 256
    XM = env_tuple("XROWS_" + kind, (1024 if kind == "w1" else 512,))[0] // BM; XN = 32 // XM
    np2 = 1024 // wo_tile()[1]
    c.swz = swz_mask_bits(c.P)
    c.MT = BM // 32; c.NT = BN // 32
    c.WM = BM // 2
    nW = 1
    for (kb, jb) in c.swz: nW = max(nW, 1 << jb)
    nW = min(nW, 1 << (c.NT - 1).bit_length()) if c.NT <= 4 else 2
    nW = max(nW, 2) if c.NT >= 2 else 1
    if c.NT <= 4: nW = c.NT
    c.srdA, c.srdB, srdC, srdR, srdS, srdT = 16, 20, 24, 28, 32, 36
    s_wave, s_tm, s_tn = 40, 41, 42
    c.s_p = c.s_wm = 43; c.s_wn = 44
    c.s_slotA = c.s_cslotA = 45; c.s_ka = c.s_deltaA = 46; c.s_kb = c.s_deltaB = 47; c.s_mA = 48; c.s_mB = 49; c.s_i = 50; c.s_slotB = c.s_cslotB = 51
    c.st = [52, 53, 54, 55]
    nacc = c.MT * c.NT * 4
    c.acc = 0
    fr = nacc
    fsz = 4 * c.MT + 4 * c.NT
    c.fX = [fr, fr + fsz]; c.fW = [fr + 4 * c.MT, fr + fsz + 4 * c.MT]
    misc = max(fr + 2 * fsz, 96)
    c.v_lane = misc
    c.vX = [misc + 1, misc + 2]; c.vW = [misc + 3 + i for i in range(nW)]
    c.vt = [misc + 3 + nW + i for i in range(8)]
    vside = (misc + 11 + nW + 3) // 4 * 4
    vst = vside + (24 if kind == "w1" else 0)
    vtok = (vst + 4 + 1) // 2 * 2
    vmax = vtok + 6
    assert vmax <= 256
    lds = c.ring_bytes
    side = lds
    if kind == "w1": lds += 128 * 8 + 224 * 4
    pitch = BN * 2 + 16
    ctile = BM * pitch
    cbase = 0
    assert ctile <= c.ring_bytes
    kidx = {"wo": 1, "w1": 2, "w2": 3}[kind]
    vl = c.v_lane; t = c.vt

    a_off = {"wo": WS_O, "w1": WS_H, "w2": WS_H1}[kind]
    sW = {"wo": 64, "w1": 66, "w2": 68}[kind]
    a("v_mbcnt_lo_u32_b32 v%d, -1, 0" % vl)
    a("v_mbcnt_hi_u32_b32 v%d, -1, v%d" % (vl, vl))
    c.a_sc1 = not first
    SC = " sc1"
    a("s_and_b32 s%d, s2, 7" % c.st[0])
    a("s_lshr_b32 s%d, s2, 3" % c.st[1])
    PM = tilesM // XM
    lgPM = PM.bit_length() - 1; lgXM = XM.bit_length() - 1; lgXN = XN.bit_length() - 1
    a("s_and_b32 s%d, s%d, %d" % (c.st[2], c.st[0], PM - 1))
    a("s_lshr_b32 s%d, s%d, %d" % (c.st[3], c.st[0], lgPM))
    a("s_lshl_b32 s%d, s%d, %d" % (s_tm, c.st[2], lgXM))
    a("s_and_b32 s%d, s%d, %d" % (c.st[2], c.st[1], XM - 1))
    a("s_add_u32 s%d, s%d, s%d" % (s_tm, s_tm, c.st[2]))
    a("s_lshl_b32 s%d, s%d, %d" % (s_tn, c.st[3], lgXN))
    a("s_lshr_b32 s%d, s%d, %d" % (c.st[2], c.st[1], lgXM))
    a("s_add_u32 s%d, s%d, s%d" % (s_tn, s_tn, c.st[2]))
    c.apair = (kind == "wo") and OPAIR and MEGA
    a("s_mul_i32 s%d, s%d, %d" % (c.st[0], s_tm, (BM // 2) * LD_OP if c.apair else BM * c.lda))
    a("s_add_u32 s%d, s%d, %d" % (c.st[0], c.st[0], a_off))
    a("s_add_u32 s12, s4, s%d" % c.st[0])
    a("s_addc_u32 s13, s5, 0")
    make_srd(a, c.srdA, "s12", "s13", (BM // 2) * LD_OP if c.apair else BM * c.lda)
    a("s_mul_i32 s%d, s%d, %d" % (c.st[0], s_tn, BN * 2))
    a("s_add_u32 s12, s%d, s%d" % (sW, c.st[0]))
    a("s_addc_u32 s13, s%d, 0" % (sW + 1))
    a("s_sub_u32 s%d, %d, s%d" % (c.st[1], c.K * c.ldb, c.st[0]))
    make_srd(a, c.srdB, "s12", "s13", "s%d" % c.st[1])
    Lcons = a.newlabel("Lconsumer"); Lfin = a.newlabel("Lfinal")
    ldc = {"wo": LD_H, "w1": LD_H1, "w2": 2048}[kind]
    ldr = {"wo": 2048, "w1": 0, "w2": LD_H}[kind]
    def other_srds():
        a("s_mul_i32 s%d, s%d, %d" % (c.st[0], s_tm, BM * ldc))
        a("s_mul_i32 s%d, s%d, %d" % (c.st[1], s_tn, BN * 2))
        a("s_add_u32 s%d, s%d, s%d" % (c.st[0], c.st[0], c.st[1]))
        if kind == "w2":
            a("s_add_u32 s12, s8, s%d" % c.st[0])
            a("s_addc_u32 s13, s9, 0")
        else:
            a("s_add_u32 s%d, s%d, %d" % (c.st[2], c.st[0], {"wo": WS_H, "w1": WS_H1}[kind]))
            a("s_add_u32 s12, s4, s%d" % c.st[2])
            a("s_addc_u32 s13, s5, 0")
        a("s_sub_u32 s%d, %d, s%d" % (c.st[1], S_ * ldc, c.st[0]))
        make_srd(a, srdC, "s12", "s13", "s%d" % c.st[1])
        if kind in ("wo", "w2"):
            a("s_mul_i32 s%d, s%d, %d" % (c.st[0], s_tm, BM * ldr))
            a("s_mul_i32 s%d, s%d, %d" % (c.st[1], s_tn, BN * 2))
            a("s_add_u32 s%d, s%d, s%d" % (c.st[0], c.st[0], c.st[1]))
            a("s_sub_u32 s%d, %d, s%d" % (c.st[1], S_ * ldr, c.st[0]))
            if kind == "wo":
                a("s_add_u32 s12, s10, s%d" % c.st[0])
                a("s_addc_u32 s13, s11, 0")
            else:
                a("s_add_u32 s%d, s%d, %d" % (c.st[2], c.st[0], WS_H))
                a("s_add_u32 s12, s4, s%d" % c.st[2])
                a("s_addc_u32 s13, s5, 0")
            make_srd(a, srdR, "s12", "s13", "s%d" % c.st[1])
        if kind == "wo":
            assert BM == 64 and np2 == 8
            a("s_lshl_b32 s%d, s%d, 3" % (c.st[0], s_tm))
            a("s_add_u32 s%d, s%d, s%d" % (c.st[0], c.st[0], s_tn))
            a("s_lshl_b32 s%d, s%d, 9" % (c.st[0], c.st[0]))
            a("s_add_u32 s%d, s%d, %d" % (c.st[0], c.st[0], WS_ST2))
            a("s_add_u32 s12, s4, s%d" % c.st[0])
            a("s_addc_u32 s13, s5, 0")
            make_srd(a, srdS, "s12", "s13", 512)
        if kind == "w1":
            a("s_mul_i32 s%d, s%d, %d" % (c.st[0], s_tm, 128 * np2 * 8))
            a("s_add_u32 s%d, s%d, %d" % (c.st[0], c.st[0], WS_ST2))
            a("s_add_u32 s12, s4, s%d" % c.st[0])
            a("s_addc_u32 s13, s5, 0")
            make_srd(a, srdS, "s12", "s13", 128 * np2 * 8)
            a("s_mul_i32 s%d, s%d, %d" % (c.st[0], s_tn, 224 * 4))
            a("s_add_u32 s%d, s%d, %d" % (c.st[0], c.st[0], WS_CS1))
            a("s_add_u32 s12, s4, s%d" % c.st[0])
            a("s_addc_u32 s13, s5, 0")
            make_srd(a, srdT, "s12", "s13", 15 * 3584 * 4 + 224 * 4)
    stamp(a, 0, s_wave, kidx, tmp_v=vst)
    a("s_cmp_lt_u32 s%d, 4" % s_wave)
    a("s_cbranch_scc1 %s" % Lcons)
    if os.environ.get("PRIO_P"): a("s_setprio %s" % os.environ["PRIO_P"])
    a("s_sub_u32 s%d, s%d, 4" % (c.s_p, s_wave))
    a("s_mov_b32 s%d, 0" % c.s_ka)
    a("s_mov_b32 s%d, 0" % c.s_kb)
    emit_producer_setup(a, c, 32)
    stamp(a, 1, s_wave, kidx, tmp_v=vst)
    def poll():
        Lnp = a.newlabel("Lnopoll")
        if kind == "wo" and MEGA:
            if VB: import kqkvb as kqkv
            else: import kqkv
            Lnc = a.newlabel("Lnocs")
            a("s_cmp_lt_u32 s%d, 6" % s_wave)
            a("s_cbranch_scc1 %s" % Lnc)
            nB = (c.SB - 1) * c.b_ins
            a("s_waitcnt vmcnt(%d)" % (4 + nB))
            kqkv.COLSUM_FN(t, vl, c.st)
            a.label(Lnc)
        a("s_cmp_lg_u32 s%d, 4" % s_wave)
        a("s_cbranch_scc1 %s" % Lnp)
        if kind == "wo":
            if VB:
                a("s_lshr_b32 s%d, s%d, 1" % (c.st[0], s_tm))
                a("s_lshl_b32 s%d, s%d, 7" % (c.st[0], c.st[0]))
                a("s_add_u32 s%d, s%d, %d" % (c.st[0], c.st[0], FO))
                a("v_and_b32 v%d, 15, v%d" % (t[0], vl))
            else:
                a("s_lshr_b32 s%d, s%d, 2" % (c.st[0], s_tm))
                a("s_lshl_b32 s%d, s%d, %d" % (c.st[0], c.st[0], 5 + FS_LG))
                a("s_add_u32 s%d, s%d, %d" % (c.st[0], c.st[0], FO))
                a("v_and_b32 v%d, 31, v%d" % (t[0], vl))
        else:
            base = FH if kind == "w1" else FH1
            a("s_lshl_b32 s%d, s%d, %d" % (c.st[0], s_tm, 4 + FS_LG))
            a("s_add_u32 s%d, s%d, %d" % (c.st[0], c.st[0], base))
            a("v_and_b32 v%d, 15, v%d" % (t[0], vl))
        a("v_lshlrev_b32 v%d, %d, v%d" % (t[0], FS_LG, t[0]))
        a("v_add_u32 v%d, s%d, v%d" % (t[0], c.st[0], t[0]))
        a("v_mov_b32 v56, s72")
        a("v_mov_b32 v57, s73")
        Lp = a.newlabel("Lpoll"); Lpd = a.newlabel("Lpolld")
        a("s_mov_b32 s57, 0")
        a.label(Lp)
        a("global_load_dwordx2 v[58:59], v%d, s[4:5] sc1" % t[0])
        a("s_waitcnt vmcnt(0)")
        a("v_cmp_eq_u64 vcc, v[56:57], v[58:59]")
        a("s_nop 4")
        a("s_cmp_eq_u64 vcc, exec")
        a("s_cbranch_scc1 %s" % Lpd)
        a("s_add_u32 s57, s57, 1")
        a("s_cmp_gt_u32 s57, 0x40000")
        a("s_cbranch_scc1 %s" % Lpd)
        a("s_sleep %s" % os.environ.get("PSLEEP", "4"))
        a("s_branch %s" % Lp)
        a.label(Lpd)
        if kind == "w1" and MEGA:
            Lc1 = a.newlabel("Lcs"); Lc2 = a.newlabel("Lcsd")
            a("s_mul_i32 s%d, s%d, 224" % (c.st[0], s_tn))
            a("s_lshr_b32 s%d, s%d, 6" % (c.st[0], c.st[0]))
            a("v_lshrrev_b32 v%d, 2, v%d" % (t[0], vl))
            a("v_mul_u32_u24 v%d, 56, v%d" % (t[0], t[0]))
            a("v_and_b32 v%d, 3, v%d" % (t[1], vl))
            a("v_add3_u32 v%d, v%d, v%d, s%d" % (t[0], t[0], t[1], c.st[0]))
            a("v_lshlrev_b32 v%d, %d, v%d" % (t[0], FS_LG, t[0]))
            a("v_add_u32 v%d, %d, v%d" % (t[0], CFU, t[0]))
            a("s_mov_b32 s57, 0")
            a.label(Lc1)
            a("global_load_dwordx2 v[58:59], v%d, s[4:5] sc1" % t[0])
            a("s_waitcnt vmcnt(0)")
            a("v_cmp_eq_u64 vcc, v[56:57], v[58:59]")
            a("s_nop 4")
            a("s_cmp_eq_u64 vcc, exec")
            a("s_cbranch_scc1 %s" % Lc2)
            a("s_add_u32 s57, s57, 1")
            a("s_cmp_gt_u32 s57, 0x40000")
            a("s_cbranch_scc1 %s" % Lc2)
            a("s_sleep 4")
            a("s_branch %s" % Lc1)
            a.label(Lc2)
        a.label(Lnp)
        a("s_barrier")
        stamp(a, 8, s_wave, kidx, tmp_v=vst)
    if first and not last:
        def mid():
            a("s_load_dwordx2 s[72:73], s[70:71], 0")
        c.prod_mid_hook = mid
    emit_producer_loop2(a, c, None if first else poll)
    if kind == "wo" and MEGA:
        Lna = a.newlabel("Lnoat")
        a("s_cmp_lt_u32 s%d, 6" % s_wave)
        a("s_cbranch_scc1 %s" % Lna)
        a("s_waitcnt vmcnt(0)")
        a("s_lshl_b32 s%d, s2, 1" % c.st[0])
        a("s_add_u32 s%d, s%d, s%d" % (c.st[0], c.st[0], s_wave))
        a("s_sub_u32 s%d, s%d, 6" % (c.st[0], c.st[0]))
        a("s_lshl_b32 s%d, s%d, %d" % (c.st[0], c.st[0], 1 + FS_LG))
        a("s_add_u32 s%d, s%d, %d" % (c.st[0], c.st[0], CFU))
        a("v_lshlrev_b32 v%d, 3, v%d" % (t[0], vl))
        a("v_add_u32 v%d, s%d, v%d" % (t[0], c.st[0], t[0]))
        a("v_mov_b32 v56, s72")
        a("v_mov_b32 v57, s73")
        a("s_mov_b64 s[58:59], exec")
        a("s_mov_b64 exec, %s" % {3: "3", 6: "0xffff", 7: "0xffffffff"}[FS_LG])
        a("global_store_dwordx2 v%d, v[56:57], s[4:5] sc1" % t[0])
        a("s_mov_b64 exec, s[58:59]")
        a.label(Lna)
    if first and not last:
        Lt1 = a.newlabel("Ltok1"); Ltp = a.newlabel("Ltp"); Ltd = a.newlabel("Ltd")
        a("s_waitcnt lgkmcnt(0)")
        a("s_cmp_lg_u32 s%d, 4" % s_wave)
        a("s_cbranch_scc1 %s" % Lt1)
        a("v_mov_b32 v%d, s72" % vtok)
        a("v_mov_b32 v%d, s73" % (vtok + 1))
        a("s_mov_b32 s57, 0")
        a.label(Ltp)
        a("v_cmp_ne_u64 vcc, 0, %s" % vr(vtok, 2))
        a("s_nop 4")
        a("s_cmp_eq_u64 vcc, exec")
        a("s_cbranch_scc1 %s" % Ltd)
        a("s_add_u32 s57, s57, 1")
        a("s_cmp_gt_u32 s57, 0x40000")
        a("s_cbranch_scc1 %s" % Ltd)
        a("v_mov_b32 v%d, 0" % (vtok + 2))
        a("global_load_dwordx2 %s, v%d, s[70:71] sc1" % (vr(vtok, 2), vtok + 2))
        a("s_waitcnt vmcnt(0)")
        a("s_branch %s" % Ltp)
        a.label(Ltd)
        a("v_mov_b32 v%d, %d" % (t[0], L_TOK))
        a("ds_write_b64 v%d, %s" % (t[0], vr(vtok, 2)))
        a("s_waitcnt lgkmcnt(0)")
        a.label(Lt1)
    other_srds()
    a("s_barrier")
    stamp(a, 2, s_wave, kidx, tmp_v=vst)
    ES_ = (kind == "w1") and os.environ.get("ES", "0") == "1"
    Lt1p = a.newlabel("LT1p")
    a("s_branch %s" % (Lt1p if ES_ else Lfin))
    a.label(Lcons)
    if os.environ.get("PRIO_C"): a("s_setprio %s" % os.environ["PRIO_C"])
    a("s_lshr_b32 s%d, s%d, 1" % (c.s_wm, s_wave))
    a("s_and_b32 s%d, s%d, 1" % (c.s_wn, s_wave))
    other_srds()
    if first and not last:
        Lt0 = a.newlabel("Ltok0")
        a("s_or_b32 s58, s2, s%d" % s_wave)
        a("s_cmp_lg_u32 s58, 0")
        a("s_cbranch_scc1 %s" % Lt0)
        a("s_memrealtime s[58:59]")
        a("s_waitcnt lgkmcnt(0)")
        a("s_or_b32 s58, s58, 1")
        a("v_mov_b32 v%d, s58" % vtok)
        a("v_mov_b32 v%d, s59" % (vtok + 1))
        a("v_mov_b32 v%d, 0" % t[0])
        a("s_mov_b64 s[58:59], exec")
        a("s_mov_b64 exec, 1")
        a("global_store_dwordx2 v%d, %s, s[70:71] sc1" % (t[0], vr(vtok, 2)))
        a("s_mov_b64 exec, s[58:59]")
        a.label(Lt0)
    def side_loads():
      if kind == "w1":
        a("v_and_b32 v%d, 31, v%d" % (t[0], vl))
        a("s_lshl_b32 s%d, s%d, 5" % (c.st[0], s_wave))
        a("v_add_u32 v%d, s%d, v%d" % (t[0], c.st[0], t[0]))
        a("v_lshrrev_b32 v%d, 6, v%d" % (t[1], t[0]))
        a("v_lshlrev_b32 v%d, 12, v%d" % (t[1], t[1]))
        a("v_and_b32 v%d, 63, v%d" % (t[2], t[0]))
        a("v_lshl_add_u32 v%d, v%d, 3, v%d" % (t[1], t[2], t[1]))
        a("v_lshrrev_b32 v%d, 5, v%d" % (t[2], vl))
        a("v_lshl_add_u32 v%d, v%d, 11, v%d" % (t[1], t[2], t[1]))
        for q in range(4):
            a("buffer_load_dwordx2 %s, v%d, s[%d:%d], 0 offen offset:%d%s" % (vr(vside + 2 * q, 2), t[1], srdS, srdS + 3, q * 512, SC))
        assert np2 == 8
        a("s_mul_i32 s%d, s%d, 56" % (c.st[0], s_wave))
        a("v_add_u32 v%d, s%d, v%d" % (t[3], c.st[0], vl))
        a("v_lshlrev_b32 v%d, 2, v%d" % (t[4], t[3]))
        a("v_cmp_gt_u32 vcc, 56, v%d" % vl)
        a("v_mov_b32 v%d, 0x7fffffff" % t[5])
        a("s_nop 0")
        a("v_cndmask_b32 v%d, v%d, v%d, vcc" % (t[4], t[5], t[4]))
        for q in range(16):
            a("s_mov_b32 s%d, %d" % (c.st[1], q * 3584 * 4))
            a("buffer_load_dword v%d, v%d, s[%d:%d], s%d offen%s" % (vside + 8 + q, t[4], srdT, srdT + 3, c.st[1], SC))
    c.cons_hook0 = side_loads
    if MEGA and kind == "wo":
        a("s_lshl_b32 s%d, s2, 2" % c.st[0])
        a("s_add_u32 s%d, s%d, s%d" % (c.st[0], c.st[0], s_wave))
        a("s_mul_i32 s%d, s%d, 7168" % (c.st[0], c.st[0]))
        a("v_lshlrev_b32 v%d, 4, v%d" % (t[0], vl))
        a("v_add_u32 v%d, s%d, v%d" % (t[0], c.st[0], t[0]))
        for j in range(7):
            if j == 4: a("v_add_u32 v%d, 4096, v%d" % (t[0], t[0]))
            a("global_load_dwordx4 v[124:127], v%d, s[68:69] offset:%d" % (t[0], (j % 4) * 1024))
    emit_consumer16_setup(a, c)
    if not first: a("s_barrier")
    stamp(a, 1, s_wave, kidx, tmp_v=vst)
    stamp(a, 6, s_wave, kidx, tmp_v=vst)
    def side_compute():
        Lsc = a.newlabel("Lsc")
        a("s_cmp_lg_u32 s%d, 6" % c.s_i)
        a("s_cbranch_scc1 %s" % Lsc)
        f = vside; g = vside + 8
        a("s_waitcnt vmcnt(0)")
        a("v_add_f32 v%d, v%d, v%d" % (t[5], f + 0, f + 2))
        a("v_add_f32 v%d, v%d, v%d" % (t[6], f + 1, f + 3))
        for q in range(2, 4):
            a("v_add_f32 v%d, v%d, v%d" % (t[5], t[5], f + 2 * q))
            a("v_add_f32 v%d, v%d, v%d" % (t[6], t[6], f + 2 * q + 1))
        a("v_mov_b32 v%d, v%d" % (f + 0, t[5]))
        a("v_mov_b32 v%d, v%d" % (f + 1, t[6]))
        for q in range(1, 16):
            a("v_add_f32 v%d, v%d, v%d" % (g, g, g + q))
        a("v_permlane32_swap_b32 v%d, v%d" % (f + 0, t[5]))
        a("v_permlane32_swap_b32 v%d, v%d" % (f + 1, t[6]))
        a("v_add_f32 v%d, v%d, v%d" % (t[5], t[5], f + 0))
        a("v_add_f32 v%d, v%d, v%d" % (t[6], t[6], f + 1))
        a("v_mul_f32 v%d, 0x3a800000, v%d" % (t[5], t[5]))
        a("v_mul_f32 v%d, 0x3a800000, v%d" % (t[6], t[6]))
        a("v_fma_f32 v%d, -v%d, v%d, v%d" % (t[6], t[5], t[5], t[6]))
        a("v_max_f32 v%d, 0, v%d" % (t[6], t[6]))
        def rb(x):
            a("v_cvt_pk_bf16_f32 v%d, v%d, v%d" % (x, x, x))
            a("v_lshlrev_b32 v%d, 16, v%d" % (x, x))
        rb(t[6])
        a("v_add_f32 v%d, 0x3727c5ac, v%d" % (t[6], t[6]))
        rb(t[6])
        a("v_sqrt_f32 v%d, v%d" % (t[6], t[6]))
        a("s_nop 0")
        rb(t[6])
        a("v_rcp_f32 v%d, v%d" % (f + 1, t[6]))
        rb(t[5])
        a("v_sub_f32 v%d, 0, v%d" % (f + 0, t[5]))
        a("v_and_b32 v%d, 31, v%d" % (t[0], vl))
        a("s_lshl_b32 s%d, s%d, 5" % (c.st[0], s_wave))
        a("v_add_u32 v%d, s%d, v%d" % (t[0], c.st[0], t[0]))
        a("v_lshlrev_b32 v%d, 3, v%d" % (t[0], t[0]))
        a("v_add_u32 v%d, %d, v%d" % (t[0], side, t[0]))
        a("ds_write_b64 v%d, %s" % (t[0], vr(f, 2)))
        a("s_mul_i32 s%d, s%d, 56" % (c.st[0], s_wave))
        a("v_add_u32 v%d, s%d, v%d" % (t[3], c.st[0], vl))
        a("v_lshlrev_b32 v%d, 2, v%d" % (t[3], t[3]))
        a("v_add_u32 v%d, %d, v%d" % (t[3], side + 1024, t[3]))
        a("v_cmp_gt_u32 vcc, 56, v%d" % vl)
        a("s_and_saveexec_b64 s[56:57], vcc")
        a("ds_write_b32 v%d, v%d" % (t[3], g))
        a("s_mov_b64 exec, s[56:57]")
        a.label(Lsc)
    if kind == "w1": c.cons_iter_hook = side_compute
    emit_consumer16_loop(a, c)
    stamp(a, 7, s_wave, kidx, tmp_v=vst)
    stamp(a, 2, s_wave, kidx, tmp_v=vst)
    a("s_barrier")
    a("s_nop 3")
    a("v_and_b32 v%d, 15, v%d" % (t[0], vl))
    a("s_mul_i32 s%d, s%d, %d" % (c.st[0], c.s_wm, c.WM))
    a("v_add_u32 v%d, s%d, v%d" % (t[0], c.st[0], t[0]))
    a("v_mul_u32_u24 v%d, %d, v%d" % (t[1], pitch, t[0]))
    a("v_lshrrev_b32 v%d, 4, v%d" % (t[2], vl))
    a("v_lshl_add_u32 v%d, v%d, 3, v%d" % (t[1], t[2], t[1]))
    a("s_mul_i32 s%d, s%d, %d" % (c.st[0], c.s_wn, c.NT * 32))
    a("s_add_u32 s%d, s%d, %d" % (c.st[0], c.st[0], cbase))
    a("v_add_u32 v%d, s%d, v%d" % (t[1], c.st[0], t[1]))
    f0 = c.fX[0]
    if kind == "w1":
        a("v_lshlrev_b32 v%d, 3, v%d" % (t[3], t[0]))
        a("v_add_u32 v%d, %d, v%d" % (t[3], side, t[3]))
        for mt in range(4):
            a("ds_read_b64 %s, v%d offset:%d" % (vr(f0 + 2 * mt, 2), t[3], mt * 16 * 8))
        a("v_lshlrev_b32 v%d, 4, v%d" % (t[4], t[2]))
        a("s_mul_i32 s%d, s%d, %d" % (c.st[0], c.s_wn, c.NT * 64))
        a("v_add_u32 v%d, s%d, v%d" % (t[4], c.st[0], t[4]))
        a("v_add_u32 v%d, %d, v%d" % (t[4], side, t[4]))
        for tt in range(c.NT):
            a("ds_read_b128 %s, v%d offset:%d" % (vr(f0 + 8 + 4 * tt, 4), t[4], 1024 + tt * 64))
        a("s_waitcnt lgkmcnt(%d)" % c.NT)
        rs = f0 + 8 + 4 * c.NT
        for mt in range(4):
            a("v_mov_b32 v%d, v%d" % (rs + 2 * mt, f0 + 2 * mt + 1))
    ES = (kind == "w1") and os.environ.get("ES", "0") == "1"
    Lt1 = a.newlabel("LT1")
    if ES:
        PP = 240; PB = 16 * PP
        a("s_waitcnt lgkmcnt(0)")
        a("v_and_b32 v%d, 15, v%d" % (t[0], vl))
        a("v_mul_u32_u24 v%d, %d, v%d" % (t[1], PP, t[0]))
        a("v_lshrrev_b32 v%d, 4, v%d" % (t[2], vl))
        a("v_lshl_add_u32 v%d, v%d, 3, v%d" % (t[1], t[2], t[1]))
        a("s_mul_i32 s%d, s%d, %d" % (c.st[0], s_wave, 2 * PB))
        a("v_add_u32 v%d, s%d, v%d" % (t[1], c.st[0], t[1]))
        vLr = [vside + i for i in range(4)]; vGr = [vside + 4 + i for i in range(4)]
        mul, sh = magic_div(14, 320)
        a("s_mul_i32 s%d, s%d, %d" % (c.st[1], c.s_wm, 64 * ldc))
        a("s_mul_i32 s%d, s%d, 224" % (c.st[2], c.s_wn))
        a("s_add_u32 s%d, s%d, s%d" % (c.st[1], c.st[1], c.st[2]))
        for j in range(4):
            a("v_add_u32 v%d, %d, v%d" % (t[3], 64 * j, vl))
            a("v_mul_u32_u24 v%d, %d, v%d" % (t[4], mul, t[3]))
            a("v_lshrrev_b32 v%d, %d, v%d" % (t[4], sh, t[4]))
            a("v_mul_u32_u24 v%d, 14, v%d" % (t[5], t[4]))
            a("v_sub_u32 v%d, v%d, v%d" % (t[5], t[3], t[5]))
            a("v_lshlrev_b32 v%d, 4, v%d" % (t[5], t[5]))
            a("v_mul_u32_u24 v%d, %d, v%d" % (t[6], PP, t[4]))
            a("v_add3_u32 v%d, v%d, v%d, s%d" % (vLr[j], t[6], t[5], c.st[0]))
            a("v_mul_u32_u24 v%d, %d, v%d" % (t[6], ldc, t[4]))
            a("v_add3_u32 v%d, v%d, v%d, s%d" % (vGr[j], t[6], t[5], c.st[1]))
            if j == 3:
                a("v_cmp_gt_u32 vcc, 32, v%d" % vl)
                a("v_mov_b32 v%d, 0x7fffffff" % t[6])
                a("v_mov_b32 v%d, s%d" % (t[5], c.st[0]))
                a("v_cndmask_b32 v%d, v%d, v%d, vcc" % (vGr[j], t[6], vGr[j]))
                a("v_cndmask_b32 v%d, v%d, v%d, vcc" % (vLr[j], t[5], vLr[j]))
        db = [c.fX[1], c.fX[1] + 16]
        def conv(mt):
            for tt in range(c.NT):
                acc = c.acc + 4 * (tt * c.MT + mt)
                cs = f0 + 8 + 4 * tt
                for h in range(2):
                    a("v_pk_fma_f32 %s, %s, %s, %s op_sel_hi:[1,0,1]" % (vr(acc + 2 * h, 2), vr(cs + 2 * h, 2), vr(f0 + 2 * mt, 2), vr(acc + 2 * h, 2)))
                    a("v_pk_mul_f32 %s, %s, %s op_sel_hi:[1,0]" % (vr(acc + 2 * h, 2), vr(acc + 2 * h, 2), vr(rs + 2 * mt, 2)))
                a("v_cvt_pk_bf16_f32 v%d, v%d, v%d" % (acc, acc, acc + 1))
                a("v_cvt_pk_bf16_f32 v%d, v%d, v%d" % (acc + 1, acc + 2, acc + 3))
                a("v_pk_max_i16 v%d, v%d, 0" % (acc, acc))
                a("v_pk_max_i16 v%d, v%d, 0" % (acc + 1, acc + 1))
                a("ds_write_b64 v%d, %s offset:%d" % (t[1], vr(acc, 2), (mt & 1) * PB + tt * 32))
            for j in range(4):
                a("ds_read_b128 %s, v%d offset:%d" % (vr(db[mt & 1] + 4 * j, 4), vLr[j], (mt & 1) * PB))
        def stores(mt):
            a("s_mov_b32 s%d, %d" % (c.st[2], mt * 16 * ldc))
            for j in range(4):
                a("buffer_store_dwordx4 %s, v%d, s[%d:%d], s%d offen%s" % (vr(db[mt & 1] + 4 * j, 4), vGr[j], srdC, srdC + 3, c.st[2], "" if last else SC))
        conv(0)
        for mt in range(1, 4):
            conv(mt)
            a("s_waitcnt lgkmcnt(%d)" % (c.NT + 4))
            stores(mt - 1)
        a("s_waitcnt lgkmcnt(0)")
        stores(3)
        a("s_branch %s" % Lt1)
    tmp = c.fX[1] + 4 * c.MT
    ntmp = min(4, (4 * c.NT) // 2)
    for tt in range(c.NT):
        if kind == "w1": a("s_waitcnt lgkmcnt(%d)" % min(15, c.NT - 1 - tt + tt * c.MT))
        for mt in range(c.MT):
            acc = c.acc + 4 * (tt * c.MT + mt)
            if kind == "w1":
                cs = f0 + 8 + 4 * tt
                for h in range(2):
                    a("v_pk_fma_f32 %s, %s, %s, %s op_sel_hi:[1,0,1]" % (vr(acc + 2 * h, 2), vr(cs + 2 * h, 2), vr(f0 + 2 * mt, 2), vr(acc + 2 * h, 2)))
                    a("v_pk_mul_f32 %s, %s, %s op_sel_hi:[1,0]" % (vr(acc + 2 * h, 2), vr(acc + 2 * h, 2), vr(rs + 2 * mt, 2)))
            d = acc if kind != "w1" else acc
            a("v_cvt_pk_bf16_f32 v%d, v%d, v%d" % (d, acc, acc + 1))
            a("v_cvt_pk_bf16_f32 v%d, v%d, v%d" % (d + 1, acc + 2, acc + 3))
            if kind == "w1":
                a("v_pk_max_i16 v%d, v%d, 0" % (d, d))
                a("v_pk_max_i16 v%d, v%d, 0" % (d + 1, d + 1))
            a("ds_write_b64 v%d, %s offset:%d" % (t[1], vr(d, 2), mt * 16 * pitch + tt * 32))
    a("s_waitcnt lgkmcnt(0)")
    a.label(Lfin)
    G = BN // 8
    nf = BM * G // 64 // 8
    vL = [i for i in range(nf)]; vG = [nf + i for i in range(nf)]
    vGR = [2 * nf + i for i in range(nf)]
    vD = (3 * nf + 3) // 4 * 4
    vR = vD + 4 * nf
    mul, sh = magic_div(G, BM * G + 64)
    t = [vR + 4 * nf + i for i in range(10)]
    assert vR + 4 * nf + 10 <= misc
    a("s_mul_i32 s%d, s%d, %d" % (c.st[0], s_wave, nf * 64))
    for j in range(nf):
        a("v_add_u32 v%d, s%d, v%d" % (t[0], c.st[0], vl))
        if j: a("v_add_u32 v%d, %d, v%d" % (t[0], 64 * j, t[0]))
        a("v_mul_u32_u24 v%d, %d, v%d" % (t[1], mul, t[0]))
        a("v_lshrrev_b32 v%d, %d, v%d" % (t[1], sh, t[1]))
        a("v_mul_u32_u24 v%d, %d, v%d" % (t[2], G, t[1]))
        a("v_sub_u32 v%d, v%d, v%d" % (t[2], t[0], t[2]))
        a("v_lshlrev_b32 v%d, 4, v%d" % (t[2], t[2]))
        a("v_mul_u32_u24 v%d, %d, v%d" % (t[3], pitch, t[1]))
        a("v_add_u32 v%d, v%d, v%d" % (vL[j], t[3], t[2]))
        a("v_mul_u32_u24 v%d, %d, v%d" % (t[3], ldc, t[1]))
        a("v_add_u32 v%d, v%d, v%d" % (vG[j], t[3], t[2]))
        if kind in ("wo", "w2"):
            a("v_mul_u32_u24 v%d, %d, v%d" % (t[3], ldr, t[1]))
            a("v_add_u32 v%d, v%d, v%d" % (vGR[j], t[3], t[2]))
            a("buffer_load_dwordx4 %s, v%d, s[%d:%d], 0 offen%s" % (vr(vR + 4 * j, 4), vGR[j], srdR, srdR + 3, SC if kind == "w2" else ""))
    stamp(a, 3, s_wave, kidx, tmp_v=vst)
    a("s_barrier")
    stamp(a, 4, s_wave, kidx, tmp_v=vst)
    if first and not last:
        a("v_mov_b32 v%d, %d" % (t[8], L_TOK))
        a("ds_read_b64 %s, v%d" % (vr(vtok, 2), t[8]))
        a("s_waitcnt lgkmcnt(0)")
        a("v_readfirstlane_b32 s72, v%d" % vtok)
        a("v_readfirstlane_b32 s73, v%d" % (vtok + 1))
    for j in range(nf):
        a("ds_read_b128 %s, v%d offset:%d" % (vr(vD + 4 * j, 4), vL[j], cbase))
    if kind in ("wo", "w2"): a("s_waitcnt vmcnt(0)")
    lanes_per_row = G
    for j in range(nf):
        a("s_waitcnt lgkmcnt(%d)" % (nf - 1 - j))
        if kind in ("wo", "w2"):
            for q in range(4):
                d = vD + 4 * j + q; r = vR + 4 * j + q
                a("v_lshlrev_b32 v%d, 16, v%d" % (t[0], d))
                a("v_and_b32 v%d, 0xffff0000, v%d" % (t[1], d))
                a("v_lshlrev_b32 v%d, 16, v%d" % (t[2], r))
                a("v_and_b32 v%d, 0xffff0000, v%d" % (t[3], r))
                a("v_add_f32 v%d, v%d, v%d" % (t[0], t[0], t[2]))
                a("v_add_f32 v%d, v%d, v%d" % (t[1], t[1], t[3]))
                a("v_cvt_pk_bf16_f32 v%d, v%d, v%d" % (d, t[0], t[1]))
                if kind == "wo":
                    a("v_lshlrev_b32 v%d, 16, v%d" % (t[0], d))
                    a("v_and_b32 v%d, 0xffff0000, v%d" % (t[1], d))
                    if q == 0:
                        a("v_add_f32 v%d, v%d, v%d" % (t[4], t[0], t[1]))
                        a("v_mul_f32 v%d, v%d, v%d" % (t[5], t[0], t[0]))
                    else:
                        a("v_add_f32 v%d, v%d, v%d" % (t[4], t[4], t[0]))
                        a("v_add_f32 v%d, v%d, v%d" % (t[4], t[4], t[1]))
                        a("v_fmac_f32 v%d, v%d, v%d" % (t[5], t[0], t[0]))
                    a("v_fmac_f32 v%d, v%d, v%d" % (t[5], t[1], t[1]))
        a("buffer_store_dwordx4 %s, v%d, s[%d:%d], 0 offen%s" % (vr(vD + 4 * j, 4), vG[j], srdC, srdC + 3, "" if last else SC))
        if kind == "wo":
            steps = ["quad_perm:[1,0,3,2]", "quad_perm:[2,3,0,1]", "row_half_mirror"] + (["row_mirror"] if G == 16 else [])
            for dpp in steps:
                a("s_nop 1")
                a("v_add_f32_dpp v%d, v%d, v%d %s row_mask:0xf bank_mask:0xf" % (t[6], t[4], t[4], dpp))
                a("v_add_f32_dpp v%d, v%d, v%d %s row_mask:0xf bank_mask:0xf" % (t[7], t[5], t[5], dpp))
                a("v_mov_b32 v%d, v%d" % (t[4], t[6]))
                a("v_mov_b32 v%d, v%d" % (t[5], t[7]))
            assert G == 16 and nf == 2
            if j == 0:
                a("v_mov_b32 v%d, v%d" % (t[8], t[4]))
                a("v_mov_b32 v%d, v%d" % (t[9], t[5]))
            else:
                a("v_and_b32 v%d, 1, v%d" % (t[2], vl))
                a("v_cmp_eq_u32 vcc, 0, v%d" % t[2])
                a("v_lshrrev_b32 v%d, 4, v%d" % (t[1], vl))
                a("v_lshl_add_u32 v%d, v%d, 2, v%d" % (t[1], t[2], t[1]))
                a("v_cndmask_b32 v%d, v%d, v%d, vcc" % (vR, t[4], t[8]))
                a("v_cndmask_b32 v%d, v%d, v%d, vcc" % (vR + 1, t[5], t[9]))
                a("s_lshl_b32 s%d, s%d, 3" % (c.st[1], s_wave))
                a("v_add_u32 v%d, s%d, v%d" % (t[1], c.st[1], t[1]))
                a("v_lshlrev_b32 v%d, 3, v%d" % (t[1], t[1]))
                a("v_and_b32 v%d, 14, v%d" % (t[2], vl))
                a("v_cmp_eq_u32 vcc, 0, v%d" % t[2])
                a("v_mov_b32 v%d, 0x7fffffff" % t[3])
                a("s_nop 1")
                a("v_cndmask_b32 v%d, v%d, v%d, vcc" % (t[1], t[3], t[1]))
                a("buffer_store_dwordx2 %s, v%d, s[%d:%d], 0 offen%s" % (vr(vR, 2), t[1], srdS, srdS + 3, SC))
    a.label(Lt1)
    a.label(Lt1p)
    if not last:
        a("s_waitcnt vmcnt(0)")
        a("s_barrier")
        Lf = a.newlabel("Lflag")
        a("s_cmp_lg_u32 s%d, 0" % s_wave)
        a("s_cbranch_scc1 %s" % Lf)
        if kind == "wo":
            a("s_lshl_b32 s%d, s%d, 3" % (c.st[0], s_tm))
            a("s_add_u32 s%d, s%d, s%d" % (c.st[0], c.st[0], s_tn))
            base = FH
        else:
            a("s_lshl_b32 s%d, s%d, 4" % (c.st[0], s_tm))
            a("s_add_u32 s%d, s%d, s%d" % (c.st[0], c.st[0], s_tn))
            base = FH1
        a("s_lshl_b32 s%d, s%d, %d" % (c.st[0], c.st[0], FS_LG))
        a("s_add_u32 s%d, s%d, %d" % (c.st[0], c.st[0], base))
        a("v_lshlrev_b32 v%d, 3, v%d" % (t[0], vl))
        a("v_add_u32 v%d, s%d, v%d" % (t[0], c.st[0], t[0]))
        a("v_mov_b32 v%d, s72" % vtok)
        a("v_mov_b32 v%d, s73" % (vtok + 1))
        a("s_mov_b64 s[58:59], exec")
        a("s_mov_b64 exec, %s" % FMASK)
        a("global_store_dwordx2 v%d, %s, s[4:5] sc1" % (t[0], vr(vtok, 2)))
        a("s_mov_b64 exec, s[58:59]")
        a.label(Lf)
    else:
        a("s_waitcnt vmcnt(0)") if (STAMPS or SPAN) else None
    stamp(a, 5, s_wave, kidx, tmp_v=vst)
    return vmax, lds

def fused_kernel(a, name, kinds):
    kernel_header(a, name)
    Lend = a.newlabel("Lend")
    a("s_cmp_ge_u32 s2, 256")
    a("s_cbranch_scc1 %s" % Lend)
    a("s_load_dwordx2 s[4:5], s[0:1], %d" % KA_WS)
    a("s_load_dwordx2 s[8:9], s[0:1], %d" % KA_OUT)
    a("s_load_dwordx2 s[10:11], s[0:1], %d" % KA_X)
    a("s_load_dwordx2 s[64:65], s[0:1], %d" % KA_WO)
    a("s_load_dwordx2 s[66:67], s[0:1], %d" % KA_W1)
    a("s_load_dwordx2 s[68:69], s[0:1], %d" % KA_W2)
    a("s_load_dwordx2 s[70:71], s[0:1], %d" % KA_DBG)
    a("v_lshrrev_b32 v1, 6, v0")
    a("s_nop 0")
    a("v_readfirstlane_b32 s40, v1")
    a("s_waitcnt lgkmcnt(0)")
    vm = 0; lds = 0
    for i, k in enumerate(kinds):
        v, l = gemm_phase(a, k, i == 0, i == len(kinds) - 1)
        vm = max(vm, v); lds = max(lds, l)
    a.label(Lend)
    a("s_endpgm")
    return kernel_desc(name, vm, 80), L_TOK + 64


def mega_kernel(a, name):
    global MEGA
    MEGA = True
    if VB: from kqkvb import qkv_kernel
    else: from kqkv import qkv_kernel
    Lend = a.newlabel("Lend")
    vm, lds = qkv_kernel(a, name, mega=True, Lend_ext=Lend)
    a("s_load_dwordx2 s[8:9], s[0:1], %d" % KA_OUT)
    a("s_load_dwordx2 s[64:65], s[0:1], %d" % KA_WO)
    a("s_load_dwordx2 s[66:67], s[0:1], %d" % KA_W1)
    a("s_load_dwordx2 s[68:69], s[0:1], %d" % KA_W2)
    a("s_load_dwordx2 s[70:71], s[0:1], %d" % KA_DBG)
    a("s_waitcnt lgkmcnt(0)")
    kinds = ["wo", "w1", "w2"]
    for i, k in enumerate(kinds):
        v, l = gemm_phase(a, k, False, i == len(kinds) - 1)
        vm = max(vm, v); lds = max(lds, l)
    a.label(Lend)
    a("s_endpgm")
    return kernel_desc(name, 256, 90), max(lds, 147456)
```

```python
from common import *
from gemm import *
import os

L2E = 0x3fb8aa3b

def mfma_wait(a):
    a("s_nop 7"); a("s_nop 4")

def mf32(d, A, B, C):
    return "v_mfma_f32_32x32x16_bf16 %s, %s, %s, %s" % (vr(d, 16), vr(A, 4), vr(B, 4), C if isinstance(C, str) else vr(C, 16))

def cross32(a, op, x, t):
    a("v_mov_b32 v%d, v%d" % (t, x))
    a("s_nop 1")
    a("v_permlane32_swap_b32 v%d, v%d" % (t, x))
    a("%s v%d, v%d, v%d" % (op, x, x, t))

def softmax2(a, p, pos, neg, e, t, s_l2e):
    mx, mn, t0, t1, sp, sn, rp, rn = t[0:8]
    a("v_max3_f32 v%d, v%d, v%d, v%d" % (mx, p, p + 1, p + 2))
    a("v_min3_f32 v%d, v%d, v%d, v%d" % (mn, p, p + 1, p + 2))
    for i in range(3, 15, 2):
        a("v_max3_f32 v%d, v%d, v%d, v%d" % (mx, mx, p + i, p + i + 1))
        a("v_min3_f32 v%d, v%d, v%d, v%d" % (mn, mn, p + i, p + i + 1))
    a("v_max_f32 v%d, v%d, v%d" % (mx, mx, p + 15))
    a("v_min_f32 v%d, v%d, v%d" % (mn, mn, p + 15))
    a("v_mov_b32 v%d, v%d" % (t0, mx))
    a("v_mov_b32 v%d, v%d" % (t1, mn))
    a("s_nop 1")
    a("v_permlane32_swap_b32 v%d, v%d" % (t0, mx))
    a("v_permlane32_swap_b32 v%d, v%d" % (t1, mn))
    a("v_max_f32 v%d, v%d, v%d" % (mx, mx, t0))
    a("v_min_f32 v%d, v%d, v%d" % (mn, mn, t1))
    a("v_mul_f32 v%d, s%d, v%d" % (mx, s_l2e, mx))
    a("v_mul_f32 v%d, s%d, v%d" % (mn, s_l2e, mn))
    assert mx % 2 == 0 and rp % 2 == 0 and t0 % 2 == 0
    a("v_mov_b32 v%d, v%d" % (sp, mn))
    for (sign, out, mreg) in ((+1, pos, mx), (-1, neg, sp)):
        for i in range(0, 16, 2):
            if sign > 0:
                a("v_pk_fma_f32 %s, %s, s[%d:%d], %s op_sel_hi:[1,0,0] neg_lo:[0,0,1] neg_hi:[0,0,1]" % (vr(e + i, 2), vr(p + i, 2), s_l2e, s_l2e + 1, vr(mreg, 2)))
            else:
                a("v_pk_fma_f32 %s, %s, s[%d:%d], %s op_sel_hi:[1,0,0] neg_lo:[1,0,0] neg_hi:[1,0,0]" % (vr(e + i, 2), vr(p + i, 2), s_l2e, s_l2e + 1, vr(mreg, 2)))
        for i in range(16):
            a("v_exp_f32 v%d, v%d" % (e + i, e + i))
        a("s_nop 0")
        a("v_pk_add_f32 %s, %s, %s" % (vr(t0, 2), vr(e, 2), vr(e + 2, 2)))
        a("v_pk_add_f32 %s, %s, %s" % (vr(rp, 2), vr(e + 4, 2), vr(e + 6, 2)))
        for i in range(8, 16, 4):
            a("v_pk_add_f32 %s, %s, %s" % (vr(t0, 2), vr(t0, 2), vr(e + i, 2)))
            a("v_pk_add_f32 %s, %s, %s" % (vr(rp, 2), vr(rp, 2), vr(e + i + 2, 2)))
        a("v_pk_add_f32 %s, %s, %s" % (vr(t0, 2), vr(t0, 2), vr(rp, 2)))
        a("v_add_f32 v%d, v%d, v%d" % (t0, t0, t0 + 1))
        cross32(a, "v_add_f32", t0, t0 + 1)
        a("v_rcp_f32 v%d, v%d" % (rp, t0))
        a("s_nop 0")
        for i in range(0, 16, 2):
            a("v_pk_mul_f32 %s, %s, %s op_sel_hi:[1,0]" % (vr(e + i, 2), vr(e + i, 2), vr(rp, 2)))
            a("v_cvt_pk_bf16_f32 v%d, v%d, v%d" % (out + i // 2, e + i, e + i + 1))

def wave_reduce_add(a, xs, ts):
    for dpp in ("quad_perm:[1,0,3,2]", "quad_perm:[2,3,0,1]", "row_half_mirror", "row_mirror"):
        a("s_nop 1")
        for x, t in zip(xs, ts):
            a("v_add_f32_dpp v%d, v%d, v%d %s row_mask:0xf bank_mask:0xf" % (t, x, x, dpp))
        for x, t in zip(xs, ts):
            a("v_mov_b32 v%d, v%d" % (x, t))
    for sw in ("v_permlane16_swap_b32", "v_permlane32_swap_b32"):
        a("s_nop 1")
        for x, t in zip(xs, ts):
            a("%s v%d, v%d" % (sw, t, x))
        for x, t in zip(xs, ts):
            a("v_add_f32 v%d, v%d, v%d" % (x, x, t))
        for x, t in zip(xs, ts):
            a("v_mov_b32 v%d, v%d" % (t, x))

COLSUM_FN = None
FO = WS_FLAG + 196608
CSCNT_OFF = 128
FE = WS_FLAG + 458752
def qkv_kernel(a, name, mega=False, Lend_ext=None):
    c = Cfg()
    c.BM, c.BN, c.K, c.lda, c.ldb, c.S = 256, 96, 1024, 2048, 6144, 3
    c.NS = 16; c.nA = 32; c.nB = 12; c.a_ins = 8; c.b_ins = 3; c.P = 12
    c.stage_bytes = 44 * 1024
    c.rotate = True
    c.colmode = "qkv"; c.swz = []
    set_rings(c, *[int(x) for x in os.environ.get("RING_qkv", "3,3").split(",")])
    c.srdA, c.srdB = 16, 20
    srdO, srdKV, srdW1 = 24, 28, 32
    s_wave, s_rb, s_h = 40, 41, 42
    c.s_p = 43
    c.s_slotA = c.s_cslotA = 45; c.s_ka = c.s_deltaA = 46; c.s_kb = c.s_deltaB = 47; c.s_mA = 48; c.s_mB = 49; c.s_i = 50; c.s_slotB = c.s_cslotB = 51
    c.st = [52, 53, 54, 55]
    s_l2e, s_ones = 56, 57
    ring = c.ring_bytes
    L_WPHI = ring
    L_CS = L_WPHI + 2048
    L_RS = L_CS + 3072
    L_NM = L_RS + 1024
    L_TOK = L_NM + 1024
    L_STAT = L_TOK + 64
    lds = L_STAT + 64
    assert lds <= 163840
    L_PK = 0
    PKP = 144
    L_RED = 36864
    L_KVF = L_RED + 4 * KVP_BYTES
    L_ZF = L_KVF + 4096
    accQ = [0, 16]; accK = [32, 48]; accV = [64, 80]
    F = [96, 116, 176, 196]
    vcs = [136, 137, 138]
    c.vX = [139, 140, 141, 142]; vW = 143
    c.v_lane = 144
    c.vt = [145 + i for i in range(8)]
    vtok = 154
    vst = 160
    vmax = 256

    kernel_header(a, name)
    Lend = Lend_ext if mega else a.newlabel("Lend")
    Ljoin = a.newlabel("Ljoin")
    SCM = " sc1" if mega else ""
    a("s_cmp_ge_u32 s2, 256")
    a("s_cbranch_scc1 %s" % Lend)
    a("s_load_dwordx2 s[4:5], s[0:1], %d" % KA_WS)
    a("s_load_dwordx2 s[6:7], s[0:1], %d" % KA_WQKV)
    a("s_load_dwordx2 s[8:9], s[0:1], %d" % KA_DBG)
    a("s_load_dwordx2 s[10:11], s[0:1], %d" % KA_X)
    a("s_load_dwordx2 s[14:15], s[0:1], %d" % KA_WPHI)
    a("s_load_dwordx2 s[64:65], s[0:1], %d" % KA_W1)
    a("s_load_dwordx2 s[66:67], s[0:1], %d" % KA_W2)
    a("s_load_dwordx2 s[68:69], s[0:1], %d" % KA_WO)
    a("v_and_b32 v%d, 63, v0" % c.v_lane)
    a("v_lshrrev_b32 v1, 6, v0")
    a("s_nop 0")
    a("v_readfirstlane_b32 s%d, v1" % s_wave)
    if "badmap" in os.environ.get("GDBG", ""):
        a("s_lshr_b32 s%d, s2, 5" % c.st[0])
        a("s_and_b32 s%d, s2, 31" % c.st[1])
    else:
        a("s_and_b32 s%d, s2, 7" % c.st[0])
        a("s_lshr_b32 s%d, s2, 3" % c.st[1])
    a("s_and_b32 s%d, s%d, 1" % (c.st[2], c.st[0]))
    a("s_lshl_b32 s%d, s%d, 2" % (s_rb, c.st[2]))
    a("s_and_b32 s%d, s%d, 3" % (c.st[2], c.st[1]))
    a("s_add_u32 s%d, s%d, s%d" % (s_rb, s_rb, c.st[2]))
    a("s_lshr_b32 s%d, s%d, 1" % (c.st[2], c.st[0]))
    a("s_lshl_b32 s%d, s%d, 3" % (s_h, c.st[2]))
    a("s_lshr_b32 s%d, s%d, 2" % (c.st[2], c.st[1]))
    a("s_add_u32 s%d, s%d, s%d" % (s_h, s_h, c.st[2]))
    rot = os.environ.get("K1ROT", "1")
    if rot == "1":
        a("s_lshl_b32 s%d, s%d, 1" % (c.st[2], c.st[0]))
        a("s_add_u32 s%d, s%d, s%d" % (c.st[2], c.st[2], c.st[1]))
        a("s_and_b32 s%d, s%d, 15" % (c.st[2], c.st[2]))
    elif rot == "2":
        a("s_lshr_b32 s%d, s%d, 2" % (c.st[2], c.st[1]))
        a("s_lshl_b32 s%d, s%d, 1" % (c.st[2], c.st[2]))
    elif rot == "3":
        a("s_and_b32 s%d, s%d, 3" % (c.st[2], c.st[1]))
        a("s_lshl_b32 s%d, s%d, 2" % (c.st[2], c.st[2]))
        a("s_bfe_u32 s%d, s%d, 0x20002" % (c.st[3], c.st[1]))
        a("s_add_u32 s%d, s%d, s%d" % (c.st[2], c.st[2], c.st[3]))
    elif rot == "4":
        a("s_lshl_b32 s%d, s%d, 1" % (c.st[2], c.st[0]))
    elif rot == "5":
        a("s_and_b32 s%d, s%d, 3" % (c.st[2], c.st[1]))
        a("s_lshl_b32 s%d, s%d, 1" % (c.st[2], c.st[2]))
        a("s_lshr_b32 s%d, s%d, 2" % (c.st[3], c.st[1]))
        a("s_add_u32 s%d, s%d, s%d" % (c.st[2], c.st[2], c.st[3]))
    else:
        a("s_mov_b32 s%d, 0" % c.st[2])
    a("s_lshl_b32 s%d, s%d, 7" % (c.s_ka, c.st[2]))
    a("s_mul_i32 s%d, s%d, %d" % (c.s_kb, c.st[2], 64 * c.ldb))
    a("s_mov_b32 s%d, 0x%x" % (s_l2e, L2E))
    a("s_mov_b32 s%d, 0x3f803f80" % s_ones)
    a("s_waitcnt lgkmcnt(0)")
    a("s_lshl_b32 s%d, s%d, 19" % (c.st[0], s_rb))
    a("s_add_u32 s12, s10, s%d" % c.st[0])
    a("s_addc_u32 s13, s11, 0")
    make_srd(a, c.srdA, "s12", "s13", 256 * 2048)
    a("s_lshl_b32 s%d, s%d, 6" % (c.st[0], s_h))
    a("s_add_u32 s12, s6, s%d" % c.st[0])
    a("s_addc_u32 s13, s7, 0")
    a("s_sub_u32 s%d, %d, s%d" % (c.st[1], 1024 * 6144, c.st[0]))
    make_srd(a, c.srdB, "s12", "s13", "s%d" % c.st[1])
    PAIR = OPAIR and mega
    if PAIR:
        a("s_lshl_b32 s%d, s%d, 7" % (c.st[0], s_h))
        a("s_mul_i32 s%d, s%d, %d" % (c.st[1], s_rb, 128 * LD_OP))
    else:
        a("s_mul_i32 s%d, s%d, %d" % (c.st[1], s_rb, 256 * LD_O))
    a("s_add_u32 s%d, s%d, s%d" % (c.st[0], c.st[0], c.st[1]))
    a("s_add_u32 s12, s4, s%d" % c.st[0])
    a("s_addc_u32 s13, s5, 0")
    make_srd(a, srdO, "s12", "s13", 128 * LD_OP if PAIR else 256 * LD_O)
    a("s_mul_i32 s%d, s%d, %d" % (c.st[0], s_h, 8 * KVP_BYTES))
    a("s_add_u32 s%d, s%d, %d" % (c.st[0], c.st[0], WS_KVP))
    a("s_add_u32 s12, s4, s%d" % c.st[0])
    a("s_addc_u32 s13, s5, 0")
    make_srd(a, srdKV, "s12", "s13", 8 * KVP_BYTES)
    kidx = 0
    stamp(a, 0, s_wave, kidx, tmp_v=vst)
    Lcons = a.newlabel("Lconsumer")
    a("s_cmp_lt_u32 s%d, 4" % s_wave)
    a("s_cbranch_scc1 %s" % Lcons)

    if os.environ.get("PRIO_P"): a("s_setprio %s" % os.environ["PRIO_P"])
    a("s_sub_u32 s%d, s%d, 4" % (c.s_p, s_wave))
    vl = c.v_lane
    t = c.vt
    a("s_lshl_b32 s%d, s%d, 8" % (c.st[0], s_rb))
    a("s_lshl_b32 s%d, s%d, 3" % (c.st[1], s_h))
    a("s_add_u32 s%d, s%d, s%d" % (c.st[0], c.st[0], c.st[1]))
    a("s_lshl_b32 s%d, s%d, 1" % (c.st[1], c.s_p))
    a("s_add_u32 s74, s%d, s%d" % (c.st[0], c.st[1]))
    a("s_lshl_b32 s%d, s74, 11" % c.st[1])
    a("v_lshlrev_b32 v%d, 4, v%d" % (t[0], vl))
    a("v_add_u32 v%d, s%d, v%d" % (t[0], c.st[1], t[0]))
    a("global_load_dwordx4 v[64:67], v%d, s[10:11]" % t[0])
    a("global_load_dwordx4 v[68:71], v%d, s[10:11] offset:1024" % t[0])
    a("global_load_dwordx4 v[72:75], v%d, s[10:11] offset:2048" % t[0])
    a("global_load_dwordx4 v[76:79], v%d, s[10:11] offset:3072" % t[0])
    emit_producer_setup(a, c, 32)
    stamp(a, 1, s_wave, kidx, tmp_v=vst)
    def prod_hook():
        Lhk = a.newlabel("Lhook")
        a("s_cmp_lg_u32 s%d, 0" % c.s_i)
        a("s_cbranch_scc1 %s" % Lhk)
        raw = 64; fp = 80
        for r in range(2):
            for q in range(8):
                a("v_lshlrev_b32 v%d, 16, v%d" % (fp + 16 * r + 2 * q, raw + 8 * r + q))
                a("v_and_b32 v%d, 0xffff0000, v%d" % (fp + 16 * r + 2 * q + 1, raw + 8 * r + q))
        sm = [112, 113]; tm_ = [114, 115]
        for r in range(2):
            a("v_add_f32 v%d, v%d, v%d" % (sm[r], fp + 16 * r, fp + 16 * r + 1))
            a("v_add_f32 v%d, v%d, v%d" % (tm_[r], fp + 16 * r + 2, fp + 16 * r + 3))
        for q in range(4, 16, 2):
            for r in range(2):
                a("v_add_f32 v%d, v%d, v%d" % (sm[r], sm[r], fp + 16 * r + q))
                a("v_add_f32 v%d, v%d, v%d" % (tm_[r], tm_[r], fp + 16 * r + q + 1))
        for r in range(2):
            a("v_add_f32 v%d, v%d, v%d" % (sm[r], sm[r], tm_[r]))
        wave_reduce_add(a, sm, tm_)
        for r in range(2):
            a("v_mul_f32 v%d, 0x3a800000, v%d" % (sm[r], sm[r]))
        sq = [116, 117]
        for r in range(2):
            for q in range(16):
                a("v_sub_f32 v%d, v%d, v%d" % (fp + 16 * r + q, fp + 16 * r + q, sm[r]))
        for r in range(2):
            a("v_mul_f32 v%d, v%d, v%d" % (sq[r], fp + 16 * r, fp + 16 * r))
            a("v_mul_f32 v%d, v%d, v%d" % (tm_[r], fp + 16 * r + 1, fp + 16 * r + 1))
        for q in range(2, 16, 2):
            for r in range(2):
                a("v_fmac_f32 v%d, v%d, v%d" % (sq[r], fp + 16 * r + q, fp + 16 * r + q))
                a("v_fmac_f32 v%d, v%d, v%d" % (tm_[r], fp + 16 * r + q + 1, fp + 16 * r + q + 1))
        for r in range(2):
            a("v_add_f32 v%d, v%d, v%d" % (sq[r], sq[r], tm_[r]))
        wave_reduce_add(a, sq, tm_)
        def rb(x):
            a("v_cvt_pk_bf16_f32 v%d, v%d, v%d" % (x, x, x))
            a("v_lshlrev_b32 v%d, 16, v%d" % (x, x))
        for r in range(2):
            a("v_mul_f32 v%d, 0x3a800000, v%d" % (sq[r], sq[r]))
            rb(sq[r])
            a("v_add_f32 v%d, 0x3727c5ac, v%d" % (sq[r], sq[r]))
            rb(sq[r])
            a("v_sqrt_f32 v%d, v%d" % (sq[r], sq[r]))
            a("s_nop 0")
            rb(sq[r])
            a("v_rcp_f32 v%d, v%d" % (118 + r, sq[r]))
            rb(sm[r])
        a("s_nop 0")
        for r in range(2):
            a("v_mul_f32 v%d, v%d, v%d" % (120 + r, sm[r], 118 + r))
            a("v_sub_f32 v%d, 0, v%d" % (120 + r, 120 + r))
        a("s_lshl_b32 s%d, s%d, 3" % (c.st[0], c.s_p))
        a("s_add_u32 s%d, s%d, %d" % (c.st[0], c.st[0], L_STAT))
        a("v_mov_b32 v%d, s%d" % (t[0], c.st[0]))
        a("s_mov_b64 s[58:59], exec")
        a("s_mov_b64 exec, 1")
        a("ds_write_b64 v%d, v[118:119]" % t[0])
        a("ds_write_b64 v%d, v[120:121] offset:32" % t[0])
        a("s_mov_b64 exec, s[58:59]")
        Lt = a.newlabel("Ltok")
        a("s_cmp_lg_u32 s%d, 4" % s_wave)
        a("s_cbranch_scc1 %s" % Lt)
        a("v_lshlrev_b32 v%d, 4, v%d" % (t[1], vl))
        a("s_lshl_b32 s%d, s%d, 11" % (c.st[0], s_h))
        a("s_add_u32 s12, s14, s%d" % c.st[0])
        a("s_addc_u32 s13, s15, 0")
        make_srd(a, srdW1, "s12", "s13", 2048)
        a("s_mov_b32 m0, %d" % L_WPHI)
        a("s_nop 0")
        a("buffer_load_dwordx4 v%d, s[%d:%d], 0 offen lds" % (t[1], srdW1, srdW1 + 3))
        a("s_nop 0")
        a("buffer_load_dwordx4 v%d, s[%d:%d], 0 offen offset:1024 lds" % (t[1], srdW1, srdW1 + 3))
        a.label(Lt)
        a("s_waitcnt lgkmcnt(0)")
        a.label(Lhk)
        Lq = a.newlabel("Lq"); Lq2 = a.newlabel("Lq2")
        a("s_cmp_lg_u32 s%d, 4" % s_wave)
        a("s_cbranch_scc1 %s" % Lq2)
        a("s_cmp_lg_u32 s%d, 9" % c.s_i)
        a("s_cbranch_scc1 %s" % Lq)
        a("s_load_dwordx2 s[78:79], s[8:9], 0")
        emit_fe_load()
        a.label(Lq)
        a("s_cmp_lg_u32 s%d, 11" % c.s_i)
        a("s_cbranch_scc1 %s" % Lq2)
        a("s_waitcnt lgkmcnt(0)")
        a("v_cmp_eq_u64 vcc, s[78:79], v[132:133]")
        a("s_nop 4")
        a("s_cmp_eq_u64 vcc, exec")
        a("s_cbranch_scc0 %s" % Lq2)
        a("s_cmp_eq_u64 s[78:79], 0")
        a("s_cbranch_scc1 %s" % Lq2)
        emit_stats_loads()
        a("s_mov_b32 s73, 1")
        a.label(Lq2)
    vSt = 124
    def emit_fe_load():
        a("s_lshl_b32 s%d, s%d, 11" % (c.st[0], s_rb))
        a("s_add_u32 s%d, s%d, %d" % (c.st[0], c.st[0], FE))
        a("v_and_b32 v%d, 31, v%d" % (t[6], vl))
        a("v_lshlrev_b32 v%d, 6, v%d" % (t[6], t[6]))
        a("v_add_u32 v%d, s%d, v%d" % (t[6], c.st[0], t[6]))
        a("global_load_dwordx2 v[132:133], v%d, s[4:5] sc1" % t[6])
    def emit_stats_loads():
        a("s_lshl_b32 s%d, s%d, 10" % (c.st[0], s_rb))
        a("s_add_u32 s%d, s%d, %d" % (c.st[0], c.st[0], WS_ST1))
        a("v_lshlrev_b32 v%d, 4, v%d" % (t[6], vl))
        a("v_add_u32 v%d, s%d, v%d" % (t[6], c.st[0], t[6]))
        a("global_load_dwordx4 %s, v%d, s[4:5] sc1" % (vr(vSt, 4), t[6]))
        a("v_add_u32 v%d, 8192, v%d" % (t[6], t[6]))
        a("global_load_dwordx4 %s, v%d, s[4:5] sc1" % (vr(vSt + 4, 4), t[6]))
    a("s_mov_b32 s73, 0")
    a("s_mov_b32 s78, 0")
    a("s_mov_b32 s79, 0")
    c.prod_iter_hook = prod_hook
    emit_producer_loop(a, c)
    stamp(a, 2, s_wave, kidx, tmp_v=vst)
    vl = c.v_lane
    t = c.vt
    Le = a.newlabel("Lesync"); Lg = a.newlabel("Lgot"); Ltk = a.newlabel("Ltokok")
    a("s_cmp_lg_u32 s%d, 4" % s_wave)
    a("s_cbranch_scc1 %s" % Le)
    a("s_waitcnt lgkmcnt(0)")
    a("v_mov_b32 v%d, s78" % vtok)
    a("v_mov_b32 v%d, s79" % (vtok + 1))
    Ltp = a.newlabel("Ltp")
    a("s_mov_b32 s75, 0")
    a.label(Ltp)
    a("v_cmp_ne_u64 vcc, 0, %s" % vr(vtok, 2))
    a("s_nop 4")
    a("s_cmp_eq_u64 vcc, exec")
    a("s_cbranch_scc1 %s" % Ltk)
    a("s_add_u32 s75, s75, 1")
    a("s_cmp_gt_u32 s75, 0x40000")
    a("s_cbranch_scc1 %s" % Ltk)
    a("v_mov_b32 v%d, 0" % t[4])
    a("global_load_dwordx2 %s, v%d, s[8:9] sc1" % (vr(vtok, 2), t[4]))
    a("s_waitcnt vmcnt(0)")
    a("s_branch %s" % Ltp)
    a.label(Ltk)
    a("s_cmp_eq_u32 s73, 1")
    a("s_cbranch_scc1 %s" % Lg)
    Lp = a.newlabel("Lpoll"); Lpd = a.newlabel("Lpolld")
    a("s_mov_b32 s75, 0")
    a.label(Lp)
    emit_fe_load()
    a("s_waitcnt vmcnt(0)")
    a("v_cmp_eq_u64 vcc, %s, v[132:133]" % vr(vtok, 2))
    a("s_nop 4")
    a("s_cmp_eq_u64 vcc, exec")
    a("s_cbranch_scc1 %s" % Lpd)
    a("s_add_u32 s75, s75, 1")
    a("s_cmp_gt_u32 s75, 0x40000")
    a("s_cbranch_scc1 %s" % Lpd)
    a("s_sleep 2")
    a("s_branch %s" % Lp)
    a.label(Lpd)
    emit_stats_loads()
    a.label(Lg)
    a("v_mov_b32 v%d, %d" % (t[4], L_TOK))
    a("ds_write_b64 v%d, %s" % (t[4], vr(vtok, 2)))
    a("v_lshlrev_b32 v%d, 4, v%d" % (t[4], vl))
    a("v_add_u32 v%d, %d, v%d" % (t[4], L_RS, t[4]))
    a("s_waitcnt vmcnt(0)")
    a("ds_write_b128 v%d, %s" % (t[4], vr(vSt, 4)))
    a("ds_write_b128 v%d, %s offset:1024" % (t[4], vr(vSt + 4, 4)))
    a("s_waitcnt lgkmcnt(0)")
    a.label(Le)
    Lpfr = a.newlabel("Lpfrole")
    a("s_cmp_ge_u32 s%d, 6" % s_wave)
    a("s_cbranch_scc1 %s" % Lpfr)
    a("s_barrier")
    a("s_barrier")
    a("s_barrier")
    stamp(a, 3, s_wave, kidx, tmp_v=vst)
    a("v_mov_b32 v%d, %d" % (t[0], L_TOK))
    a("ds_read_b64 v[40:41], v%d" % t[0])
    a("s_lshl_b32 s%d, s%d, %d" % (c.st[0], s_h, 7 if FS_LG == 3 else 3 + FS_LG))
    a("s_add_u32 s%d, s%d, %d" % (c.st[0], c.st[0], WS_FLAG))
    a("v_and_b32 v%d, 7, v%d" % (t[0], vl))
    a("v_lshlrev_b32 v%d, %d, v%d" % (t[0], FS_LG, t[0]))
    a("v_add_u32 v%d, s%d, v%d" % (t[0], c.st[0], t[0]))
    a("s_waitcnt lgkmcnt(0)")
    Lp = a.newlabel("Lpoll2"); Lpd = a.newlabel("Lpoll2d")
    a("s_mov_b32 s75, 0")
    a.label(Lp)
    a("global_load_dwordx2 v[42:43], v%d, s[4:5] sc1" % t[0])
    a("s_waitcnt vmcnt(0)")
    a("v_cmp_eq_u64 vcc, v[40:41], v[42:43]")
    a("s_nop 4")
    a("s_cmp_eq_u64 vcc, exec")
    a("s_cbranch_scc1 %s" % Lpd)
    a("s_add_u32 s75, s75, 1")
    a("s_cmp_gt_u32 s75, 0x40000")
    a("s_cbranch_scc1 %s" % Lpd)
    a("s_branch %s" % Lp)
    a.label(Lpd)
    stamp(a, 4, s_wave, kidx, tmp_v=vst)
    a("s_lshl_b32 s%d, s%d, 12" % (c.st[0], c.s_p))
    a("v_lshlrev_b32 v%d, 4, v%d" % (t[0], vl))
    a("v_add_u32 v%d, s%d, v%d" % (t[0], c.st[0], t[0]))
    vZ = 40
    a("v_lshlrev_b32 v%d, 4, v%d" % (t[1], vl))
    a("v_add_u32 v%d, 8192, v%d" % (t[1], t[1]))
    a("v_cmp_gt_u32 vcc, 16, v%d" % vl)
    a("v_mov_b32 v%d, 0x7fffffff" % t[2])
    a("s_nop 0")
    a("v_cndmask_b32 v%d, v%d, v%d, vcc" % (t[1], t[2], t[1]))
    vKa = [72, 164]
    def kreg(rbi, bb): return vKa[rbi // 4] + 16 * (rbi % 4) + 4 * bb
    for rbi in range(8):
        a("s_mov_b32 s%d, %d" % (c.st[1], rbi * KVP_BYTES))
        for bb in range(4):
            a("buffer_load_dwordx4 %s, v%d, s[%d:%d], s%d offen offset:%d sc1" % (vr(kreg(rbi, bb), 4), t[0], srdKV, srdKV + 3, c.st[1], bb * 1024))
    for rbi in range(8):
        a("s_mov_b32 s%d, %d" % (c.st[1], rbi * KVP_BYTES))
        a("buffer_load_dwordx4 %s, v%d, s[%d:%d], s%d offen sc1" % (vr(vZ + 4 * rbi, 4), t[1], srdKV, srdKV + 3, c.st[1]))
    for rbi in range(1, 8):
        a("s_waitcnt vmcnt(%d)" % (8 + 4 * (7 - rbi)))
        for q in range(0, 16, 2):
            a("v_pk_add_f32 %s, %s, %s" % (vr(vKa[0] + q, 2), vr(vKa[0] + q, 2), vr(kreg(rbi, 0) + q, 2)))
    ko = 228
    for bb in range(4):
        a("v_cvt_pk_bf16_f32 v%d, v%d, v%d" % (ko + 2 * bb, vKa[0] + 4 * bb, vKa[0] + 4 * bb + 1))
        a("v_cvt_pk_bf16_f32 v%d, v%d, v%d" % (ko + 2 * bb + 1, vKa[0] + 4 * bb + 2, vKa[0] + 4 * bb + 3))
    a("s_lshl_b32 s%d, s%d, 11" % (c.st[0], c.s_p))
    a("s_add_u32 s%d, s%d, %d" % (c.st[0], c.st[0], L_KVF))
    a("v_lshlrev_b32 v%d, 4, v%d" % (t[0], vl))
    a("v_add_u32 v%d, s%d, v%d" % (t[0], c.st[0], t[0]))
    a("ds_write_b128 v%d, %s" % (t[0], vr(ko, 4)))
    a("ds_write_b128 v%d, %s offset:1024" % (t[0], vr(ko + 4, 4)))
    a("s_waitcnt vmcnt(0)")
    for rbi in range(1, 8):
        for q in range(0, 4, 2):
            a("v_pk_add_f32 %s, %s, %s" % (vr(vZ + q, 2), vr(vZ + q, 2), vr(vZ + 4 * rbi + q, 2)))
    a("v_cvt_pk_bf16_f32 v%d, v%d, v%d" % (vZ + 4, vZ, vZ + 1))
    a("v_cvt_pk_bf16_f32 v%d, v%d, v%d" % (vZ + 5, vZ + 2, vZ + 3))
    a("v_lshrrev_b32 v%d, 2, v%d" % (t[0], vl))
    a("v_lshlrev_b32 v%d, 5, v%d" % (t[0], t[0]))
    a("v_and_b32 v%d, 1, v%d" % (t[1], vl))
    a("v_lshl_add_u32 v%d, v%d, 4, v%d" % (t[0], t[1], t[0]))
    a("v_bfe_u32 v%d, v%d, 1, 1" % (t[1], vl))
    a("v_lshl_add_u32 v%d, v%d, 3, v%d" % (t[0], t[1], t[0]))
    a("v_add_u32 v%d, %d, v%d" % (t[0], L_ZF, t[0]))
    a("v_cmp_gt_u32 vcc, 16, v%d" % vl)
    a("s_and_saveexec_b64 s[58:59], vcc")
    a("ds_write_b64 v%d, %s" % (t[0], vr(vZ + 4, 2)))
    a("s_mov_b64 exec, s[58:59]")
    a("s_waitcnt lgkmcnt(0)")
    a("s_barrier")
    stamp(a, 5, s_wave, kidx, tmp_v=vst)
    a("s_branch %s" % (Ljoin if mega else Lend))

    a.label(Lpfr)
    a("s_lshl_b32 s72, s2, 1")
    a("s_add_u32 s72, s72, s%d" % s_wave)
    a("s_sub_u32 s72, s72, 6")
    make_srd(a, srdW1, "s64", "s65", 1024 * 7168)
    a("s_barrier")
    vP = 164
    mul, sh = magic_div(56, 1024)
    for un in range(2):
        a("s_lshl_b32 s%d, s72, 1" % c.st[0])
        if un: a("s_add_u32 s%d, s%d, 1" % (c.st[0], c.st[0]))
        a("s_mul_i32 s%d, s%d, %d" % (c.st[1], c.st[0], mul))
        a("s_lshr_b32 s%d, s%d, %d" % (76 + 2 * un, c.st[1], sh))
        a("s_mul_i32 s%d, s%d, 56" % (c.st[2], 76 + 2 * un))
        a("s_sub_u32 s%d, s%d, s%d" % (77 + 2 * un, c.st[0], c.st[2]))
        a("s_lshl_b32 s%d, s%d, 6" % (c.st[3], 76 + 2 * un))
        a("v_lshrrev_b32 v%d, 3, v%d" % (t[0], vl))
        a("v_add_u32 v%d, s%d, v%d" % (t[0], c.st[3], t[0]))
        a("s_mov_b32 s%d, 7168" % c.st[3])
        a("v_mul_lo_u32 v%d, v%d, s%d" % (t[0], t[0], c.st[3]))
        a("v_and_b32 v%d, 7, v%d" % (t[1], vl))
        a("v_lshlrev_b32 v%d, 4, v%d" % (t[1], t[1]))
        a("s_lshl_b32 s%d, s%d, 7" % (c.st[3], 77 + 2 * un))
        a("v_add3_u32 v%d, v%d, v%d, s%d" % (60 + un, t[0], t[1], c.st[3]))
        for j in range(8):
            a("s_mov_b32 s%d, %d" % (c.st[3], j * 8 * 7168))
            a("buffer_load_dwordx4 %s, v%d, s[%d:%d], s%d offen" % (vr(vP + 32 * un + 4 * j, 4), 60 + un, srdW1, srdW1 + 3, c.st[3]))
    a("s_barrier")
    a("s_barrier")
    if "nopf" not in os.environ.get("GDBG", ""):
        a("v_lshlrev_b32 v62, 4, v%d" % vl)
        a("s_lshl_b32 s%d, s72, 12" % c.st[3])
        a("v_add_u32 v63, s%d, v62" % c.st[3])
        for j in range(4):
            a("global_load_dwordx4 v[%d:%d], v63, s[68:69] offset:%d" % (228 + 4 * (j % 4), 231 + 4 * (j % 4), j * 1024))
        a("s_mul_i32 s%d, s72, 14336" % c.st[3])
        a("v_add_u32 v63, s%d, v62" % c.st[3])
        for j in range(0 if mega else 14):
            if j and j % 4 == 0: a("v_add_u32 v63, 4096, v63")
            a("global_load_dwordx4 v[%d:%d], v63, s[66:67] offset:%d" % (236 + 4 * (j % 4), 239 + 4 * (j % 4), (j % 4) * 1024))
    a("s_barrier")
    def emit_colsum(t, vl, st):
        for un in range(2):
            Lskip = a.newlabel("Lskipcs")
            a("s_cmp_ge_u32 s%d, 16" % (76 + 2 * un))
            a("s_cbranch_scc1 %s" % Lskip)
            vS = 124
            for j in range(8):
                for q in range(4):
                    src = vP + 32 * un + 4 * j + q
                    a("v_lshlrev_b32 v%d, 16, v%d" % (t[0], src))
                    a("v_and_b32 v%d, 0xffff0000, v%d" % (t[1], src))
                    if j == 0:
                        a("v_mov_b32 v%d, v%d" % (vS + 2 * q, t[0]))
                        a("v_mov_b32 v%d, v%d" % (vS + 2 * q + 1, t[1]))
                    else:
                        a("v_add_f32 v%d, v%d, v%d" % (vS + 2 * q, vS + 2 * q, t[0]))
                        a("v_add_f32 v%d, v%d, v%d" % (vS + 2 * q + 1, vS + 2 * q + 1, t[1]))
            xs = [vS + i for i in range(8)]; ts_ = [132 + i for i in range(8)]
            a("s_nop 1")
            for x, tt in zip(xs, ts_):
                a("v_add_f32_dpp v%d, v%d, v%d row_ror:8 row_mask:0xf bank_mask:0xf" % (tt, x, x))
            for x, tt in zip(xs, ts_):
                a("v_mov_b32 v%d, v%d" % (x, tt))
            for sw in ("v_permlane16_swap_b32", "v_permlane32_swap_b32"):
                a("s_nop 1")
                for x, tt in zip(xs, ts_):
                    a("%s v%d, v%d" % (sw, tt, x))
                for x, tt in zip(xs, ts_):
                    a("v_add_f32 v%d, v%d, v%d" % (x, x, tt))
                for x, tt in zip(xs, ts_):
                    a("v_mov_b32 v%d, v%d" % (tt, x))
            a("s_mul_i32 s%d, s%d, %d" % (st[0], 76 + 2 * un, 3584 * 4))
            a("s_lshl_b32 s%d, s%d, 8" % (st[1], 77 + 2 * un))
            a("s_add_u32 s%d, s%d, s%d" % (st[0], st[0], st[1]))
            a("s_add_u32 s%d, s%d, %d" % (st[0], st[0], WS_CS1))
            a("v_and_b32 v%d, 7, v%d" % (t[0], vl))
            a("v_lshlrev_b32 v%d, 5, v%d" % (t[0], t[0]))
            a("v_bfe_u32 v%d, v%d, 3, 1" % (t[1], vl))
            a("v_lshl_add_u32 v%d, v%d, 4, v%d" % (t[0], t[1], t[0]))
            a("v_add_u32 v%d, s%d, v%d" % (t[0], st[0], t[0]))
            a("v_cmp_eq_u32 vcc, 1, v%d" % t[1])
            a("s_nop 1")
            for q in range(4):
                a("v_cndmask_b32 v%d, v%d, v%d, vcc" % (vS + q, vS + q, vS + 4 + q))
            a("s_mov_b64 s[58:59], exec")
            a("s_mov_b64 exec, 0xffff")
            a("global_store_dwordx4 v%d, %s, s[4:5]%s" % (t[0], vr(vS, 4), SCM))
            a("s_mov_b64 exec, s[58:59]")
            a.label(Lskip)

    if mega:
        global COLSUM_FN
        COLSUM_FN = emit_colsum
    else:
        a("s_waitcnt vmcnt(%d)" % (0 if "nopf" in os.environ.get("GDBG", "") else 18))
        emit_colsum(t, vl, c.st)
    a("s_branch %s" % (Ljoin if mega else Lend))

    a.label(Lcons)
    if os.environ.get("PRIO_C"): a("s_setprio %s" % os.environ["PRIO_C"])
    vl = c.v_lane
    t = c.vt
    Lt0 = a.newlabel("Ltok0")
    a("s_or_b32 s58, s2, s%d" % s_wave)
    a("s_cmp_lg_u32 s58, 0")
    a("s_cbranch_scc1 %s" % Lt0)
    a("s_memrealtime s[58:59]")
    a("s_waitcnt lgkmcnt(0)")
    a("s_or_b32 s58, s58, 1")
    a("v_mov_b32 v%d, s58" % vtok)
    a("v_mov_b32 v%d, s59" % (vtok + 1))
    a("v_mov_b32 v%d, 0" % t[0])
    a("s_mov_b64 s[58:59], exec")
    a("s_mov_b64 exec, 1")
    a("global_store_dwordx2 v%d, %s, s[8:9] sc1" % (t[0], vr(vtok, 2)))
    a("s_mov_b64 exec, s[58:59]")
    a.label(Lt0)
    a("v_and_b32 v%d, 31, v%d" % (t[0], vl))
    a("v_lshrrev_b32 v%d, 5, v%d" % (t[1], vl))
    a("v_bfe_u32 v%d, v%d, 1, 3" % (t[2], t[0]))
    a("s_lshl_b32 s%d, s%d, 6" % (c.st[2], s_wave))
    a("v_add_u32 v%d, s%d, v%d" % (t[3], c.st[2], t[0]))
    a("v_lshlrev_b32 v%d, 7, v%d" % (t[3], t[3]))
    for stp in range(4):
        a("v_add_u32 v%d, %d, v%d" % (t[4], 2 * stp, t[1]))
        a("v_xor_b32 v%d, v%d, v%d" % (t[4], t[4], t[2]))
        a("v_lshl_add_u32 v%d, v%d, 4, v%d" % (c.vX[stp], t[4], t[3]))
    a("v_lshrrev_b32 v%d, 4, v%d" % (t[0], vl))
    a("v_and_b32 v%d, 15, v%d" % (t[1], vl))
    a("v_lshrrev_b32 v%d, 2, v%d" % (t[2], t[1]))
    a("v_lshrrev_b32 v%d, 1, v%d" % (t[3], t[0]))
    a("v_lshl_add_u32 v%d, v%d, 3, v%d" % (t[2], t[3], t[2]))
    a("v_mul_u32_u24 v%d, 192, v%d" % (t[2], t[2]))
    a("v_and_b32 v%d, 1, v%d" % (t[0], t[0]))
    a("v_lshl_add_u32 v%d, v%d, 5, v%d" % (t[2], t[0], t[2]))
    a("v_and_b32 v%d, 3, v%d" % (t[1], t[1]))
    a("v_lshl_add_u32 v%d, v%d, 3, v%d" % (t[2], t[1], t[2]))
    a("v_add_u32 v%d, %d, v%d" % (vW, c.Bbase, t[2]))
    stamp(a, 1, s_wave, kidx, tmp_v=vst)
    stamp(a, 6, s_wave, kidx, tmp_v=vst)
    for i in range(96): a("v_mov_b32 v%d, 0" % i)
    for u in range(3): a("v_mov_b32 v%d, 0" % vcs[u])
    a("s_mov_b32 s%d, 0" % c.s_cslotA)
    a("s_mov_b32 s%d, 0" % c.s_cslotB)
    a("s_mov_b32 s%d, 0" % c.s_i)
    a("s_waitcnt lgkmcnt(0)")
    def reads(buf, stp):
        r = []
        fb = F[buf]
        W = lambda u, hf: "ds_read_b64_tr_b16 %s, v%d offset:%d" % (vr(fb + 8 + 4 * u + 2 * hf, 2), vW, (16 * stp + 4 * hf) * 192 + u * 64)
        X = lambda st: "ds_read_b128 %s, v%d offset:%d" % (vr(fb + 4 * st, 4), c.vX[stp], st * 4096)
        if "noread" in DBG: return []
        return [W(0, 0), W(0, 1), X(0), W(1, 0), W(1, 1), X(1), W(2, 0), W(2, 1)]
    def mfmas(buf):
        fb = F[buf]
        X = lambda st: fb + 4 * st
        W = lambda u: fb + 8 + 4 * u
        if "nomfma" in DBG: return ["s_nop 0"] * 6
        return [mf32(accQ[0], W(0), X(0), accQ[0]), mf32(accK[0], W(1), X(0), accK[0]), mf32(accQ[1], W(0), X(1), accQ[1]),
                mf32(accK[1], W(1), X(1), accK[1]), mf32(accV[0], X(0), W(2), accV[0]), mf32(accV[1], X(1), W(2), accV[1])]
    def csops(buf, w):
        fb = F[buf]
        o = []
        if "nocs" in DBG: return []
        for u in range(3):
            src = fb + 8 + 4 * u + w
            tt = t[2 * (u % 2)]
            o.append("v_lshlrev_b32 v%d, 16, v%d" % (tt, src))
            o.append("v_and_b32 v%d, 0xffff0000, v%d" % (tt + 1, src))
            o.append("v_add_f32 v%d, v%d, v%d" % (vcs[u], vcs[u], tt))
            o.append("v_add_f32 v%d, v%d, v%d" % (vcs[u], vcs[u], tt + 1))
        return o
    def step(mf, rd, cs):
        ri = ci = 0
        for i, m in enumerate(mf):
            a(m)
            for _ in range(3):
                if ri < len(rd): a(rd[ri]); ri += 1
            for _ in range(2 if i < 3 else 3):
                if ci < len(cs): a(cs[ci]); ci += 1
        while ri < len(rd): a(rd[ri]); ri += 1
        while ci < len(cs): a(cs[ci]); ci += 1
    Lafter = a.newlabel("Lafter")
    Lw = [a.newlabel("Lw") for _ in range(4)]
    for w in range(1, 4):
        a("s_cmp_eq_u32 s%d, %d" % (s_wave, w))
        a("s_cbranch_scc1 %s" % Lw[w])
    for w in range(4):
        a.label(Lw[w])
        a("s_barrier")
        for r in reads(0, 0): a(r)
        for r in reads(1, 1): a(r)
        L = a.newlabel("Lk1")
        a.label(L)
        for stp in range(2):
            a("s_waitcnt lgkmcnt(8)")
            step(mfmas(stp), reads(stp + 2, stp + 2), csops(stp, w))
        a("s_waitcnt lgkmcnt(0)")
        a("s_barrier")
        emit_addr_advance(a, c, [c.vX[0], c.vX[1], c.vX[2], c.vX[3]], [vW])
        if w == 0:
            La = a.newlabel("Lh1"); Lb = a.newlabel("Lh2")
            a("s_cmp_lg_u32 s%d, 1" % c.s_i)
            a("s_cbranch_scc1 %s" % La)
            a("v_lshlrev_b32 v%d, 2, v%d" % (vst + 4, vl))
            a("v_add_u32 v%d, %d, v%d" % (vst + 5, L_STAT, vst + 4))
            a("ds_read_b32 v%d, v%d" % (vst + 6, vst + 5))
            a("ds_read_b32 v%d, v%d offset:32" % (vst + 7, vst + 5))
            a("s_lshl_b32 s%d, s%d, 8" % (c.st[0], s_rb))
            a("s_lshl_b32 s%d, s%d, 3" % (c.st[1], s_h))
            a("s_add_u32 s%d, s%d, s%d" % (c.st[0], c.st[0], c.st[1]))
            a("s_lshl_b32 s%d, s%d, 2" % (c.st[0], c.st[0]))
            a("s_add_u32 s%d, s%d, %d" % (c.st[0], c.st[0], WS_ST1))
            a("v_add_u32 v%d, s%d, v%d" % (vst + 4, c.st[0], vst + 4))
            a("v_add_u32 v%d, 8192, v%d" % (vst + 5, vst + 4))
            a("s_waitcnt lgkmcnt(0)")
            a("s_mov_b64 s[58:59], exec")
            a("s_mov_b64 exec, 0xff")
            a("global_store_dword v%d, v%d, s[4:5] sc1" % (vst + 4, vst + 6))
            a("global_store_dword v%d, v%d, s[4:5] sc1" % (vst + 5, vst + 7))
            a("s_mov_b64 exec, s[58:59]")
            a.label(La)
            Lc = a.newlabel("Lh3")
            a("s_cmp_lg_u32 s%d, 3" % c.s_i)
            a("s_cbranch_scc1 %s" % Lc)
            a("s_load_dwordx2 s[78:79], s[8:9], 0")
            a.label(Lc)
            a("s_cmp_lg_u32 s%d, 5" % c.s_i)
            a("s_cbranch_scc1 %s" % Lb)
            a("s_waitcnt vmcnt(0) lgkmcnt(0)")
            a("v_mov_b32 v%d, s78" % vtok)
            a("v_mov_b32 v%d, s79" % (vtok + 1))
            Ltp = a.newlabel("Ltp0"); Ltd = a.newlabel("Ltd0")
            a("s_mov_b32 s75, 0")
            a.label(Ltp)
            a("v_cmp_ne_u64 vcc, 0, %s" % vr(vtok, 2))
            a("s_nop 4")
            a("s_cmp_eq_u64 vcc, exec")
            a("s_cbranch_scc1 %s" % Ltd)
            a("s_add_u32 s75, s75, 1")
            a("s_cmp_gt_u32 s75, 0x40000")
            a("s_cbranch_scc1 %s" % Ltd)
            a("v_mov_b32 v%d, 0" % (vst + 4))
            a("global_load_dwordx2 %s, v%d, s[8:9] sc1" % (vr(vtok, 2), vst + 4))
            a("s_waitcnt vmcnt(0)")
            a("s_branch %s" % Ltp)
            a.label(Ltd)
            a("s_lshl_b32 s%d, s%d, 5" % (c.st[0], s_rb))
            a("s_add_u32 s%d, s%d, s%d" % (c.st[0], c.st[0], s_h))
            a("s_lshl_b32 s%d, s%d, 6" % (c.st[0], c.st[0]))
            a("s_add_u32 s%d, s%d, %d" % (c.st[0], c.st[0], FE))
            a("v_lshlrev_b32 v%d, 3, v%d" % (vst + 4, vl))
            a("v_add_u32 v%d, s%d, v%d" % (vst + 4, c.st[0], vst + 4))
            a("s_mov_b64 s[58:59], exec")
            a("s_mov_b64 exec, 0xff")
            a("global_store_dwordx2 v%d, %s, s[4:5] sc1" % (vst + 4, vr(vtok, 2)))
            a("s_mov_b64 exec, s[58:59]")
            a.label(Lb)
        step(mfmas(2), reads(0, 0), csops(2, w))
        a("s_nop 0")
        step(mfmas(3), reads(1, 1), csops(3, w))
        a("s_add_u32 s%d, s%d, 1" % (c.s_i, c.s_i))
        a("s_cmp_lt_u32 s%d, %d" % (c.s_i, c.NS - 1))
        a("s_cbranch_scc1 %s" % L)
        for stp in range(2):
            a("s_waitcnt lgkmcnt(8)")
            step(mfmas(stp), reads(stp + 2, stp + 2), csops(stp, w))
        a("s_waitcnt lgkmcnt(8)")
        step(mfmas(2), [], csops(2, w))
        a("s_waitcnt lgkmcnt(0)")
        step(mfmas(3), [], csops(3, w))
        if w < 3: a("s_branch %s" % Lafter)
    a.label(Lafter)
    stamp(a, 7, s_wave, kidx, tmp_v=vst)
    stamp(a, 2, s_wave, kidx, tmp_v=vst)
    for u in range(3):
        a("v_mov_b32 v%d, v%d" % (t[1 + u], vcs[u]))
    a("s_nop 1")
    for u in range(3):
        a("v_permlane32_swap_b32 v%d, v%d" % (t[1 + u], vcs[u]))
    for u in range(3):
        a("v_add_f32 v%d, v%d, v%d" % (vcs[u], vcs[u], t[1 + u]))
    a("v_and_b32 v%d, 31, v%d" % (t[0], vl))
    a("v_lshlrev_b32 v%d, 2, v%d" % (t[0], t[0]))
    a("v_add_u32 v%d, %d, v%d" % (t[0], L_CS, t[0]))
    a("s_mul_i32 s%d, s%d, 384" % (c.st[0], s_wave))
    a("v_add_u32 v%d, s%d, v%d" % (t[1], c.st[0], t[0]))
    for u in range(3):
        a("ds_write_b32 v%d, v%d offset:%d" % (t[1], vcs[u], u * 128))
    a("s_waitcnt lgkmcnt(0)")
    a("s_barrier")
    stamp(a, 8, s_wave, kidx, tmp_v=156)
    csQ, csK = 96, 112
    rsL, nmL = [128, 130], [132, 134]
    csV = 136
    wph = 164
    kb = 172
    pD = 180
    eT = 196
    pos, neg = 212, 220
    sT = [228 + i for i in range(8)]
    rsV, nmV = 236, 240
    aF = 196
    vb = 244
    kvA = [32, 48]
    hi_ = t[7]
    a("v_lshrrev_b32 v%d, 5, v%d" % (hi_, vl))
    cp = 180
    for ww in range(4):
        for u in range(3):
            a("ds_read_b32 v%d, v%d offset:%d" % (cp + 3 * ww + u, t[0], ww * 384 + u * 128))
    a("s_waitcnt lgkmcnt(0)")
    for u in range(3):
        a("v_add_f32 v%d, v%d, v%d" % (cp + u, cp + u, cp + 3 + u))
        a("v_add_f32 v%d, v%d, v%d" % (cp + 6 + u, cp + 6 + u, cp + 9 + u))
        a("v_add_f32 v%d, v%d, v%d" % (cp + u, cp + u, cp + 6 + u))
    a("v_mov_b32 v%d, v%d" % (csV, cp + 2))
    a("v_add_u32 v%d, 1536, v%d" % (t[1], t[1]))
    a("ds_write_b32 v%d, v%d" % (t[1], cp))
    a("ds_write_b32 v%d, v%d offset:128" % (t[1], cp + 1))
    a("v_lshlrev_b32 v%d, 4, v%d" % (t[1], hi_))
    a("s_add_u32 s%d, s%d, %d" % (c.st[0], c.st[0], L_CS + 1536))
    a("v_add_u32 v%d, s%d, v%d" % (t[1], c.st[0], t[1]))
    a("s_waitcnt lgkmcnt(0)")
    for aa in range(4):
        a("ds_read_b128 %s, v%d offset:%d" % (vr(csQ + 4 * aa, 4), t[1], aa * 32))
        a("ds_read_b128 %s, v%d offset:%d" % (vr(csK + 4 * aa, 4), t[1], 128 + aa * 32))
    a("v_mov_b32 v%d, %d" % (vtok + 2, L_TOK))
    a("ds_read_b64 %s, v%d" % (vr(vtok, 2), vtok + 2))
    a("v_and_b32 v%d, 31, v%d" % (t[2], vl))
    a("s_lshl_b32 s%d, s%d, 6" % (c.st[0], s_wave))
    a("v_add_u32 v%d, s%d, v%d" % (t[2], c.st[0], t[2]))
    a("v_lshlrev_b32 v%d, 2, v%d" % (t[2], t[2]))
    a("v_add_u32 v%d, %d, v%d" % (t[2], L_RS, t[2]))
    for st in range(2):
        a("ds_read_b32 v%d, v%d offset:%d" % (rsL[st], t[2], st * 128))
        a("ds_read_b32 v%d, v%d offset:%d" % (nmL[st], t[2], 1024 + st * 128))
    a("v_lshrrev_b32 v%d, 4, v%d" % (t[3], vl))
    a("v_and_b32 v%d, 15, v%d" % (t[4], vl))
    a("v_lshrrev_b32 v%d, 2, v%d" % (t[5], t[4]))
    a("v_lshrrev_b32 v%d, 1, v%d" % (t[6], t[3]))
    a("v_lshl_add_u32 v%d, v%d, 2, v%d" % (t[5], t[6], t[5]))
    a("v_mov_b32 v%d, v%d" % (sT[7], t[5]))
    a("v_lshlrev_b32 v%d, 6, v%d" % (t[5], t[5]))
    a("v_and_b32 v%d, 1, v%d" % (t[3], t[3]))
    a("v_lshlrev_b32 v%d, 5, v%d" % (t[3], t[3]))
    a("v_and_b32 v%d, 3, v%d" % (t[4], t[4]))
    a("v_lshl_add_u32 v%d, v%d, 3, v%d" % (t[3], t[4], t[3]))
    a("v_add_u32 v%d, v%d, v%d" % (t[5], t[5], t[3]))
    a("v_add_u32 v%d, %d, v%d" % (t[5], L_WPHI, t[5]))
    for tt in range(2):
        for hf in range(2):
            a("ds_read_b64_tr_b16 %s, v%d offset:%d" % (vr(wph + 4 * tt + 2 * hf, 2), t[5], (16 * tt + 8 * hf) * 64))
    vPKw, vPKr, vRSV = 160, 161, 162
    a("s_mul_i32 s%d, s%d, %d" % (c.st[0], s_wave, 64 * PKP))
    a("s_add_u32 s%d, s%d, %d" % (c.st[0], c.st[0], L_PK))
    a("v_and_b32 v%d, 31, v%d" % (t[2], vl))
    a("v_mul_u32_u24 v%d, %d, v%d" % (t[2], PKP, t[2]))
    a("v_lshl_add_u32 v%d, v%d, 3, v%d" % (t[2], hi_, t[2]))
    a("v_add_u32 v%d, s%d, v%d" % (vPKw, c.st[0], t[2]))
    a("v_mul_u32_u24 v%d, %d, v%d" % (t[2], PKP, sT[7]))
    a("v_add_u32 v%d, v%d, v%d" % (t[2], t[2], t[3]))
    a("v_add_u32 v%d, s%d, v%d" % (vPKr, c.st[0], t[2]))
    a("s_lshl_b32 s%d, s%d, 8" % (c.st[0], s_wave))
    a("v_lshlrev_b32 v%d, 4, v%d" % (t[2], hi_))
    a("v_add_u32 v%d, s%d, v%d" % (t[2], c.st[0], t[2]))
    a("v_add_u32 v%d, %d, v%d" % (vRSV, L_RS, t[2]))
    a("s_waitcnt lgkmcnt(0)")

    def ln_qk(acc, cs, st, dst):
        for i in range(0, 16, 2):
            a("v_pk_mul_f32 %s, %s, %s op_sel_hi:[1,0]" % (vr(acc + i, 2), vr(acc + i, 2), vr(rsL[st], 2)))
            a("v_pk_fma_f32 %s, %s, %s, %s op_sel_hi:[1,0,1]" % (vr(acc + i, 2), vr(cs + i, 2), vr(nmL[st], 2), vr(acc + i, 2)))
            a("v_cvt_pk_bf16_f32 v%d, v%d, v%d" % (dst + i // 2, acc + i, acc + i + 1))
    def phi(acc, cs, st):
        ln_qk(acc, cs, st, kb)
        a("s_nop 1")
        a(mf32(pD, wph, kb, "0"))
        a(mf32(pD, wph + 4, kb + 4, pD))
        mfma_wait(a)
        if os.environ.get("RNDP", "0") == "1":
            for i in range(0, 16, 2):
                a("v_cvt_pk_bf16_f32 v%d, v%d, v%d" % (eT + i // 2, pD + i, pD + i + 1))
            for i in range(0, 16, 2):
                a("v_lshlrev_b32 v%d, 16, v%d" % (pD + i, eT + i // 2))
                a("v_and_b32 v%d, 0xffff0000, v%d" % (pD + i + 1, eT + i // 2))
        softmax2(a, pD, pos, neg, eT, sT, s_l2e)

    for st in range(2):
        phi(accK[st], csK, st)
        for aa in range(4):
            a("ds_write_b64 v%d, %s offset:%d" % (vPKw, vr(pos + 2 * aa, 2), st * 32 * PKP + aa * 16))
            a("ds_write_b64 v%d, %s offset:%d" % (vPKw, vr(neg + 2 * aa, 2), st * 32 * PKP + aa * 16 + 64))
    stamp(a, 9, s_wave, kidx, tmp_v=156)
    kvT = [32, 48]; zT = [180, 196]
    aF = 212
    ones = 252
    for q in range(4): a("v_mov_b32 v%d, s%d" % (ones + q, s_ones))
    a("s_waitcnt lgkmcnt(0)")
    first = True
    for st in range(2):
        for aa in range(4):
            a("ds_read_b128 %s, v%d offset:%d" % (vr(228 + 4 * aa, 4), vRSV, (32 * st + 8 * aa) * 4))
            a("ds_read_b128 %s, v%d offset:%d" % (vr(112 + 4 * aa, 4), vRSV, 1024 + (32 * st + 8 * aa) * 4))
        for ft in range(2):
            for u in range(2):
                for hf in range(2):
                    a("ds_read_b64_tr_b16 %s, v%d offset:%d" % (vr(aF + 8 * ft + 4 * u + 2 * hf, 2), vPKr, (st * 32 + 16 * u + 8 * hf) * PKP + ft * 64))
        a("s_waitcnt lgkmcnt(8)")
        for aa in range(4):
            for h2 in range(2):
                r = accV[st] + 4 * aa + 2 * h2
                a("v_pk_mul_f32 %s, %s, %s" % (vr(r, 2), vr(r, 2), vr(228 + 4 * aa + 2 * h2, 2)))
                a("v_pk_fma_f32 %s, %s, %s, %s op_sel_hi:[1,0,1]" % (vr(r, 2), vr(112 + 4 * aa + 2 * h2, 2), vr(csV, 2), vr(r, 2)))
                a("v_cvt_pk_bf16_f32 v%d, v%d, v%d" % (vb + 2 * aa + h2, r, r + 1))
        a("s_waitcnt lgkmcnt(0)")
        for u in range(2):
            for ft in range(2):
                a(mf32(kvT[ft], aF + 8 * ft + 4 * u, vb + 4 * u, "0" if (st == 0 and u == 0) else kvT[ft]))
                a(mf32(zT[ft], aF + 8 * ft + 4 * u, ones, "0" if (st == 0 and u == 0) else zT[ft]))
        a("s_nop 7")
    mfma_wait(a)
    stamp(a, 10, s_wave, kidx, tmp_v=156)
    a("s_mul_i32 s%d, s%d, %d" % (c.st[0], s_wave, KVP_BYTES))
    a("s_add_u32 s%d, s%d, %d" % (c.st[0], c.st[0], L_RED))
    a("v_lshlrev_b32 v%d, 4, v%d" % (t[0], vl))
    a("v_add_u32 v%d, s%d, v%d" % (t[1], c.st[0], t[0]))
    for ft in range(2):
        for rq in range(4):
            a("ds_write_b128 v%d, %s offset:%d" % (t[1], vr(kvT[ft] + 4 * rq, 4), (ft * 4 + rq) * 1024))
    a("v_lshlrev_b32 v%d, 4, v%d" % (t[2], hi_))
    a("v_add_u32 v%d, s%d, v%d" % (t[2], c.st[0], t[2]))
    a("v_and_b32 v%d, 31, v%d" % (t[3], vl))
    a("v_cmp_eq_u32 vcc, 0, v%d" % t[3])
    a("s_and_saveexec_b64 s[58:59], vcc")
    for ft in range(2):
        for rq in range(4):
            a("ds_write_b128 v%d, %s offset:%d" % (t[2], vr(zT[ft] + 4 * rq, 4), 8192 + (ft * 8 + rq * 2) * 16))
    a("s_mov_b64 exec, s[58:59]")
    a("s_waitcnt lgkmcnt(0)")
    a("s_barrier")
    stamp(a, 11, s_wave, kidx, tmp_v=156)
    a("s_lshl_b32 s%d, s%d, 11" % (c.st[0], s_wave))
    a("s_add_u32 s%d, s%d, %d" % (c.st[0], c.st[0], L_RED))
    a("v_add_u32 v%d, s%d, v%d" % (t[1], c.st[0], t[0]))
    rr = 32
    for ww in range(4):
        for bb in range(2):
            a("ds_read_b128 %s, v%d offset:%d" % (vr(rr + 8 * ww + 4 * bb, 4), t[1], ww * KVP_BYTES + bb * 1024))
    a("v_add_u32 v%d, %d, v%d" % (t[2], L_RED + 8192, t[0]))
    a("v_and_b32 v%d, 0xff, v%d" % (t[3], t[0]))
    a("v_add_u32 v%d, %d, v%d" % (t[2], L_RED + 8192, t[3]))
    zr = 180
    for ww in range(4):
        a("ds_read_b128 %s, v%d offset:%d" % (vr(zr + 4 * ww, 4), t[2], ww * KVP_BYTES))
    a("s_waitcnt lgkmcnt(0)")
    for ww in range(1, 4):
        for q in range(0, 8, 2):
            a("v_pk_add_f32 %s, %s, %s" % (vr(rr + q, 2), vr(rr + q, 2), vr(rr + 8 * ww + q, 2)))
        for q in range(0, 4, 2):
            a("v_pk_add_f32 %s, %s, %s" % (vr(zr + q, 2), vr(zr + q, 2), vr(zr + 4 * ww + q, 2)))
    a("s_mul_i32 s%d, s%d, %d" % (c.st[0], s_rb, KVP_BYTES))
    a("s_lshl_b32 s%d, s%d, 11" % (c.st[1], s_wave))
    a("s_add_u32 s%d, s%d, s%d" % (c.st[1], c.st[1], c.st[0]))
    for bb in range(2):
        a("buffer_store_dwordx4 %s, v%d, s[%d:%d], s%d offen offset:%d sc1" % (vr(rr + 4 * bb, 4), t[0], srdKV, srdKV + 3, c.st[1], bb * 1024))
    Lz = a.newlabel("Lz")
    a("s_cmp_lg_u32 s%d, 0" % s_wave)
    a("s_cbranch_scc1 %s" % Lz)
    a("v_add_u32 v%d, 8192, v%d" % (t[2], t[0]))
    a("v_cmp_gt_u32 vcc, 16, v%d" % vl)
    a("v_mov_b32 v%d, 0x7fffffff" % t[3])
    a("s_nop 0")
    a("v_cndmask_b32 v%d, v%d, v%d, vcc" % (t[2], t[3], t[2]))
    a("buffer_store_dwordx4 %s, v%d, s[%d:%d], s%d offen sc1" % (vr(zr, 4), t[2], srdKV, srdKV + 3, c.st[0]))
    a.label(Lz)
    stamp(a, 12, s_wave, kidx, tmp_v=156)
    a("s_waitcnt vmcnt(0)")
    a("s_barrier")
    stamp(a, 3, s_wave, kidx, tmp_v=vst)
    Lf = a.newlabel("Lflag")
    a("s_cmp_lg_u32 s%d, 0" % s_wave)
    a("s_cbranch_scc1 %s" % Lf)
    a("s_lshl_b32 s%d, s%d, %d" % (c.st[0], s_h, 7 if FS_LG == 3 else 3 + FS_LG))
    a("s_lshl_b32 s%d, s%d, %d" % (c.st[1], s_rb, FS_LG))
    a("s_add_u32 s%d, s%d, s%d" % (c.st[0], c.st[0], c.st[1]))
    a("s_add_u32 s%d, s%d, %d" % (c.st[0], c.st[0], WS_FLAG))
    a("v_lshlrev_b32 v%d, 3, v%d" % (t[0], vl))
    a("v_add_u32 v%d, s%d, v%d" % (t[0], c.st[0], t[0]))
    a("s_mov_b64 s[58:59], exec")
    a("s_mov_b64 exec, %s" % FMASK)
    a("global_store_dwordx2 v%d, %s, s[4:5] sc1" % (t[0], vr(vtok, 2)))
    a("s_mov_b64 exec, s[58:59]")
    a.label(Lf)
    phq = [32, 48]
    for st in range(2):
        phi(accQ[st], csQ, st)
        for i in range(8):
            a("v_mov_b32 v%d, v%d" % (phq[st] + i, pos + i))
            a("v_mov_b32 v%d, v%d" % (phq[st] + 8 + i, neg + i))
    stamp(a, 4, s_wave, kidx, tmp_v=vst)
    a("s_barrier")
    kvf, zf = 64, 80
    a("v_lshlrev_b32 v%d, 4, v%d" % (t[0], vl))
    a("v_add_u32 v%d, %d, v%d" % (t[0], L_KVF, t[0]))
    a("v_lshlrev_b32 v%d, 4, v%d" % (t[1], hi_))
    a("v_add_u32 v%d, %d, v%d" % (t[1], L_ZF, t[1]))
    for tp in range(4):
        a("ds_read_b128 %s, v%d offset:%d" % (vr(kvf + 4 * tp, 4), t[0], tp * 1024))
        a("ds_read_b128 %s, v%d offset:%d" % (vr(zf + 4 * tp, 4), t[1], tp * 32))
    a("s_waitcnt lgkmcnt(0)")
    num = [96, 112]; den = [180, 196]
    for st in range(2):
        for tp in range(4):
            a(mf32(num[st], kvf + 4 * tp, phq[st] + 4 * tp, "0" if tp == 0 else num[st]))
            a(mf32(den[st], zf + 4 * tp, phq[st] + 4 * tp, "0" if tp == 0 else den[st]))
    mfma_wait(a)
    if os.environ.get("OST", "1") == "1":
        OP = 80
        L_OST = L_PK
        a("v_and_b32 v%d, 31, v%d" % (t[0], vl))
        a("v_mul_u32_u24 v%d, %d, v%d" % (t[0], OP, t[0]))
        a("v_lshl_add_u32 v%d, v%d, 3, v%d" % (t[0], hi_, t[0]))
        a("s_mul_i32 s%d, s%d, %d" % (c.st[0], s_wave, 64 * OP))
        a("s_add_u32 s%d, s%d, %d" % (c.st[0], c.st[0], L_OST))
        a("v_add_u32 v%d, s%d, v%d" % (t[0], c.st[0], t[0]))
        a("v_lshrrev_b32 v%d, 2, v%d" % (t[2], vl))
        a("v_and_b32 v%d, 3, v%d" % (t[3], vl))
        a("v_lshlrev_b32 v%d, 4, v%d" % (t[3], t[3]))
        a("v_mul_u32_u24 v%d, %d, v%d" % (t[4], OP, t[2]))
        a("v_add3_u32 v%d, v%d, v%d, s%d" % (t[4], t[4], t[3], c.st[0]))
        a("s_lshl_b32 s%d, s%d, 6" % (c.st[1], s_wave))
        a("v_add_u32 v%d, s%d, v%d" % (t[2], c.st[1], t[2]))
        if PAIR:
            a("v_and_b32 v%d, 1, v%d" % (t[5], t[2]))
            a("v_lshl_add_u32 v%d, v%d, 6, v%d" % (t[3], t[5], t[3]))
            a("v_lshrrev_b32 v%d, 1, v%d" % (t[2], t[2]))
            a("v_mul_u32_u24 v%d, %d, v%d" % (t[2], LD_OP, t[2]))
        else:
            a("v_mul_u32_u24 v%d, %d, v%d" % (t[2], LD_O, t[2]))
        a("v_add_u32 v%d, v%d, v%d" % (t[2], t[2], t[3]))
        for st in range(2):
            a("v_add_f32 v%d, 0x358637bd, v%d" % (t[1], den[st]))
            a("v_rcp_f32 v%d, v%d" % (t[1], t[1]))
            a("s_nop 0")
            for i in range(16):
                a("v_mul_f32 v%d, v%d, v%d" % (num[st] + i, num[st] + i, t[1]))
            ob = 212 + 8 * st
            for i in range(8):
                a("v_cvt_pk_bf16_f32 v%d, v%d, v%d" % (ob + i, num[st] + 2 * i, num[st] + 2 * i + 1))
            for aa in range(4):
                a("ds_write_b64 v%d, %s offset:%d" % (t[0], vr(ob + 2 * aa, 2), st * 32 * OP + aa * 16))
        for j in range(4):
            a("ds_read_b128 %s, v%d offset:%d" % (vr(64 + 4 * j, 4), t[4], j * 16 * OP))
        for j in range(4):
            a("s_waitcnt lgkmcnt(%d)" % (3 - j))
            a("s_mov_b32 s%d, %d" % (c.st[1], j * 8 * LD_OP if PAIR else j * 16 * LD_O))
            a("buffer_store_dwordx4 %s, v%d, s[%d:%d], s%d offen%s" % (vr(64 + 4 * j, 4), t[2], srdO, srdO + 3, c.st[1], SCM))
    else:
        a("v_and_b32 v%d, 31, v%d" % (t[0], vl))
        a("s_lshl_b32 s%d, s%d, 6" % (c.st[0], s_wave))
        a("v_add_u32 v%d, s%d, v%d" % (t[0], c.st[0], t[0]))
        a("v_mul_u32_u24 v%d, %d, v%d" % (t[0], LD_O, t[0]))
        a("v_lshl_add_u32 v%d, v%d, 4, v%d" % (t[0], hi_, t[0]))
        for st in range(2):
            a("v_add_f32 v%d, 0x358637bd, v%d" % (t[1], den[st]))
            a("v_rcp_f32 v%d, v%d" % (t[1], t[1]))
            a("s_nop 0")
            for i in range(16):
                a("v_mul_f32 v%d, v%d, v%d" % (num[st] + i, num[st] + i, t[1]))
            ob = 212 + 8 * st
            for i in range(8):
                a("v_cvt_pk_bf16_f32 v%d, v%d, v%d" % (ob + i, num[st] + 2 * i, num[st] + 2 * i + 1))
            a("s_nop 1")
            for pr in range(2):
                a("v_permlane32_swap_b32 v%d, v%d" % (ob + 4 * pr, ob + 4 * pr + 2))
                a("v_permlane32_swap_b32 v%d, v%d" % (ob + 4 * pr + 1, ob + 4 * pr + 3))
            for pr in range(2):
                a("s_mov_b32 s%d, %d" % (c.st[1], st * 32 * LD_O))
                a("buffer_store_dwordx4 %s, v%d, s[%d:%d], s%d offen offset:%d%s" % (vr(ob + 4 * pr, 4), t[0], srdO, srdO + 3, c.st[1], pr * 32, SCM))
    if mega or STAMPS: a("s_waitcnt vmcnt(0)")
    stamp(a, 5, s_wave, kidx, tmp_v=vst)
    if mega:
        a.label(Ljoin)
        a("v_mov_b32 v%d, %d" % (t[0], L_TOK))
        a("ds_read_b64 %s, v%d" % (vr(vtok, 2), t[0]))
        a("s_waitcnt lgkmcnt(0)")
        a("v_readfirstlane_b32 s72, v%d" % vtok)
        a("v_readfirstlane_b32 s73, v%d" % (vtok + 1))
        a("s_barrier")
        Lf2 = a.newlabel("Lfo")
        a("s_cmp_lg_u32 s%d, 0" % s_wave)
        a("s_cbranch_scc1 %s" % Lf2)
        a("s_lshl_b32 s%d, s%d, 5" % (c.st[0], s_rb))
        a("s_add_u32 s%d, s%d, s%d" % (c.st[0], c.st[0], s_h))
        a("s_lshl_b32 s%d, s%d, %d" % (c.st[0], c.st[0], FS_LG))
        a("s_add_u32 s%d, s%d, %d" % (c.st[0], c.st[0], FO))
        a("v_lshlrev_b32 v%d, 3, v%d" % (t[0], vl))
        a("v_add_u32 v%d, s%d, v%d" % (t[0], c.st[0], t[0]))
        a("s_mov_b64 s[58:59], exec")
        a("s_mov_b64 exec, %s" % FMASK)
        a("global_store_dwordx2 v%d, %s, s[4:5] sc1" % (t[0], vr(vtok, 2)))
        a("s_mov_b64 exec, s[58:59]")
        a.label(Lf2)
        return vmax, lds
    a.label(Lend)
    a("s_endpgm")
    return kernel_desc(name, vmax, 90), lds
```
